```python
import torch

def _softmax(x, axis=-1):
    return torch.softmax(x, dim=axis)

def _gelu(x):
    return torch.nn.functional.gelu(x, approximate='tanh')

def _silu(x):
    return torch.nn.functional.silu(x)

def _sigmoid(x):
    return torch.sigmoid(x)

def _layernorm(x, axis=-1, eps=1e-05):
    m = x.mean(dim=axis, keepdim=True)
    v = x.var(dim=axis, keepdim=True, unbiased=False)
    return (x - m) / torch.sqrt(v + eps)

def _scatter_add(tgt, idx, src, axis=0):
    return tgt.clone().index_add_(axis, idx, src)

def _segment_sum(src, seg, n):
    out = torch.zeros((n,) + src.shape[1:], dtype=src.dtype)
    return out.index_add_(0, seg, src)

def _pad(x, pw):
    flat = tuple((v for pair in reversed(pw) for v in pair))
    return torch.nn.functional.pad(x, flat)
kernel_name = 'standalone__varlen_attn_packed__ragged'

def setup_inputs():

    _w = lambda a: (lambda t: t.to(torch.bfloat16) if t.is_floating_point() else t)(torch.as_tensor(a))
    cu = torch.tensor([0, 534, 1426, 1714, 2675, 3469, 4036, 4628, 4845], dtype=torch.int64)
    T, H, D = (int(cu[-1]), 16, 128)
    return {'q': _w((lambda *s: torch.randn(*s, dtype=torch.bfloat16) * 0.8)(T, H, D)), 'k': _w((lambda *s: torch.randn(*s, dtype=torch.bfloat16) * 0.8)(T, H, D)), 'v': _w((lambda *s: torch.randn(*s, dtype=torch.bfloat16) * 0.05)(T, H, D)), 'cu': _w(cu)}

def reference(q, k, v, cu):
    T, H, D = q.shape
    out = torch.zeros_like(q)
    scale = D ** (-0.5)
    outs = []
    for i in range(len(cu) - 1):
        s, e = (int(cu[i]), int(cu[i + 1]))
        qi, ki, vi = (q[s:e].clone(), k[s:e].clone(), v[s:e].clone())
        p = _softmax(torch.einsum('qhd,khd->hqk', qi, ki) * scale, axis=-1)
        outs.append(torch.einsum('hqk,khd->qhd', p, vi))
    return torch.concatenate(outs, axis=0)
```

```python
import sys, struct, math

NAME = "standalone__varlen_attn_packed__ragged"
CU = [0, 534, 1426, 1714, 2675, 3469, 4036, 4628, 4845]
H = 16
ROWB = 4096
TILEB = 32 * ROWB

opts = dict(stamp=0, order="pair")
for a in sys.argv[2:]:
    k, v = a.split("=")
    opts[k] = int(v) if v.lstrip("-").isdigit() else v

def f32bits(x):
    return struct.unpack("<I", struct.pack("<f", x))[0]

vO = 0
vQ = 64
vS = 96
vP = 128
vNM = 144
vKf = 160
vVf = 192
vKa = 224
vVa = 232
vDK = 236
vDV = 238
vE = 240
vT = 244
vL = 245
vX = 246
vRem = 254
vOa = 255

sQ, sK, sV, sOut = 12, 16, 20, 24
sD0, sD1 = 28, 29
sL, sN, sOff, sWB, sCnt, sFlag, sThr, sC = 30, 31, 32, 33, 34, 35, 36, 37
sNeg = 38
sW = 39
sRet = 40
sPC = 42
sRem = 44
sT0 = 46
sM = 50

L = []
def e(s):
    L.append("    " + s)
def lab(s):
    L.append(s + ":")

def vr(b, n):
    return f"v[{b}:{b+n-1}]"

def jobs_by_seq():
    out = {}
    for si in range(8):
        st, en = CU[si], CU[si + 1]
        ln = en - st
        nb = (ln + 127) // 128
        out[si] = (st, ln, nb, (ln + 31) // 32)
    return out

def make_table():
    js = jobs_by_seq()
    def blocks(si):
        return [(hp, si, b) for b in range(js[si][2]) for hp in range(2)]
    byn = {js[si][3]: blocks(si) for si in range(8)}
    if opts["order"] == "lpt":
        local = []
        for n in sorted(byn, reverse=True):
            local += byn[n]
    else:
        b31, b28, b25, b19, b18, b17, b9, b7 = (list(byn[n]) for n in (31, 28, 25, 19, 18, 17, 9, 7))
        A, B = [], []
        for _ in range(10): A.append(b25.pop(0)); B.append(b18.pop(0))
        for _ in range(10): A.append(b31.pop(0)); B.append(b19.pop(0))
        for _ in range(4): A.append(b31.pop(0)); B.append(b25.pop(0))
        for _ in range(2): A.append(b31.pop(0)); B.append(b28.pop(0))
        for _ in range(6): A.append(b28.pop(0)); B.append(b28.pop(0))
        assert not (b31 or b28 or b25 or b19 or b18)
        if opts["order"] == "pair":
            local = A + B + b17 + b9 + b7
        elif opts["order"] == "pair2":
            local = [x for ab in zip(A, B) for x in ab] + b17 + b9 + b7
    assert len(local) == 84
    tab = []
    for j in range(84):
        for x in range(8):
            hp, si, b = local[j]
            st, ln, nb, n = js[si]
            head = 2 * x + hp
            tab.append((st * ROWB + head * 256, ln | ((b * 128) << 16)))
    return tab

TAB = make_table()
NWG = len(TAB)

def mfma(d, a, b, c):
    cs = "0" if c is None else vr(c, 16)
    return f"v_mfma_f32_32x32x16_bf16 {vr(d,16)}, {vr(a,4)}, {vr(b,4)}, {cs}"

def qk_mfmas(buf, cinit=vNM):
    d = vS + 16 * buf
    return [mfma(d, vKf + 4 * s, vQ + 4 * s, cinit if s == 0 else d) for s in range(8)]

def pv_mfmas(buf, vf=vVf):
    r = []
    for ks in range(2):
        for db in range(4):
            r.append(mfma(vO + 16 * db, vf + 4 * (db * 2 + ks), vP + 8 * buf + 4 * ks, vO + 16 * db))
    return r

def k_reads(slot):
    return [f"ds_read_b128 {vr(vKf+4*s,4)}, v{vKa+s} offset:{slot*16384}" for s in range(8)]

def v_reads(slot, vf=vVf):
    r = []
    for ks in range(2):
        for db in range(4):
            for g in range(2):
                r.append(f"ds_read_b64_tr_b16 {vr(vf+4*(db*2+ks)+2*g,2)}, v{vVa+db} offset:{slot*16384+(2*ks+g)*4096}")
    return r

def dma(slot):
    return [f"s_add_u32 m0, s{sWB}, {slot*16384}" if slot else f"s_mov_b32 m0, s{sWB}",
            f"s_add_u32 s{sOff}, s{sOff}, {TILEB}",
            f"buffer_load_dwordx4 v{vDV}, s[{sV}:{sV+3}], s{sOff} offen lds",
            f"buffer_load_dwordx4 v{vDV+1}, s[{sV}:{sV+3}], s{sOff} offen offset:1024 lds",
            f"buffer_load_dwordx4 v{vDK}, s[{sK}:{sK+3}], s{sOff} offen offset:2048 lds",
            f"buffer_load_dwordx4 v{vDK+1}, s[{sK}:{sK+3}], s{sOff} offen offset:3072 lds"]

def softmax_valu(buf):
    s = vS + 16 * buf
    p = vP + 8 * buf
    def ex(k, w):
        return (f"v_exp_f32 v{vE + 2*(k&1) + w}, v{s + 2*k + w}", 8)
    def cons(k):
        a, b = vE + 2 * (k & 1), vE + 2 * (k & 1) + 1
        if k == 0:
            return [(f"v_add_f32 v{vT}, v{a}, v{b}", 4), (f"v_cvt_pk_bf16_f32 v{p+k}, v{a}, v{b}", 4)]
        return [(f"v_add_f32 v{vT}, v{vT}, v{a}", 4), (f"v_add_f32 v{vT}, v{vT}, v{b}", 4),
                (f"v_cvt_pk_bf16_f32 v{p+k}, v{a}, v{b}", 4)]
    r = [ex(0, 0), ex(0, 1)]
    for k in range(1, 8):
        c = cons(k - 1)
        r.append(ex(k, 0))
        r.append(c[0])
        r.append(ex(k, 1))
        r += c[1:]
    c = cons(7)
    r += [c[0], c[1], c[2]]
    return r

def pack(mf, fixed, valu, pre=None):
    n = len(mf)
    fc = [4 * len(fixed.get(g, [])) for g in range(n)]
    total = sum(fc) + sum(c for _, c in valu)
    out = []
    vi = 0
    acc = 0
    for g in range(n):
        out.append(mf[g])
        fx = fixed.get(g, [])
        head = [x for x in fx if not isinstance(x, tuple)]
        tail = [x[0] for x in fx if isinstance(x, tuple)]
        acc += fc[g]
        target = total * (g + 1) / n
        vs = []
        while vi < len(valu) and (acc + valu[vi][1] / 2 <= target or g == n - 1):
            vs.append(valu[vi][0]); acc += valu[vi][1]; vi += 1
        i = j = 0
        while i < len(head) or j < len(vs):
            if i < len(head):
                out.append(head[i]); i += 1
            if j < len(vs):
                out.append(vs[j]); j += 1
        out += tail
    return out

def check_rare(buf, tag):
    e(f"v_cmp_lt_f32 vcc, s{sThr}, v{vT}")
    e(f"s_cbranch_vccnz Lrare_{tag}")
    lab(f"Lback_{tag}")
    e(f"v_add_f32 v{vL}, v{vL}, v{vT}")
    STUBS.append((tag, buf))

STUBS = []

def step(t, first=False):
    p = t % 4
    b = t % 2
    mf = qk_mfmas(b ^ 1)
    fixed = {}
    kr = k_reads((t + 2) % 4)
    d = dma((t + 1) % 4)
    if first:
        fixed[3] = [("s_waitcnt vmcnt(8)", 'end')]
        out = pack(mf, {}, softmax_valu(b)[:20])
        for x in out: e(x)
        e("s_waitcnt vmcnt(8)")
        e("s_barrier")
        rest = softmax_valu(b)[20:]
        items = kr + d
        i = j = 0
        while i < len(items) or j < len(rest):
            if i < len(items): e(items[i]); i += 1
            if j < len(rest): e(rest[j][0]); j += 1
        check_rare(b, f"s{t}f")
        return
    mf = mf + pv_mfmas(b ^ 1)
    vrd = v_reads((t + 1) % 4)
    cnt = [3, 3, 3, 3, 2, 2, 0, 0]
    i = 0
    for g in range(8):
        fixed[g] = vrd[i:i + cnt[g]]; i += cnt[g]
    fixed[7] = [("s_waitcnt vmcnt(8) lgkmcnt(0)", 'end'), ("s_barrier", 'end')]
    for g in range(4):
        fixed[8 + g] = kr[2 * g:2 * g + 2]
    fixed[10] = fixed[10] + [d[0]]
    fixed[11] = fixed[11] + [d[1]]
    fixed[12] = [d[2]]
    fixed[13] = [d[3]]
    fixed[14] = [d[4]]
    fixed[15] = [d[5]]
    e("s_waitcnt lgkmcnt(0)")
    for x in pack(mf, fixed, softmax_valu(b)): e(x)
    check_rare(b, f"s{p}")

def tail(p):
    b = p % 2
    lab(f"Ltail_{p}")
    t = p
    vrd = v_reads((t + 1) % 4)
    vrd2 = v_reads((t + 2) % 4, vKf)
    sm = softmax_valu(b)
    j = 0
    for x in vrd:
        e(x)
        if j < 16: e(sm[j][0]); j += 1
    e("s_waitcnt vmcnt(8) lgkmcnt(0)")
    e("s_barrier")
    fixed = {g: vrd2[2 * g:2 * g + 2] for g in range(8)}
    for x in pack(pv_mfmas(b ^ 1), fixed, sm[j:]): e(x)
    check_rare(b, f"t{p}")
    e("s_waitcnt lgkmcnt(0)")
    e("s_nop 0")
    mf = pv_mfmas(b, vKf)
    for x in mf: e(x)
    e("s_branch Lepi")

def gen():
    L.append(open(__file__.replace("gen1.py", "header.txt")).read().rstrip())
    L.append(f"; @launch grid=({NWG},1,1) block=(256,1,1) lds=65536")
    L.append('.amdgcn_target "amdgcn-amd-amdhsa--gfx950"')
    L.append(".text")
    L.append(f".globl {NAME}_kernel")
    L.append(".p2align 8")
    L.append(f".type {NAME}_kernel,@function")
    lab(f"{NAME}_kernel")
    e(f"s_cmp_ge_u32 s2, {NWG}")
    e("s_cbranch_scc1 Lend")
    e(f"s_getpc_b64 s[{sPC}:{sPC+1}]")
    lab("Lpc")
    e("s_load_dwordx4 s[4:7], s[0:1], 0")
    e("s_load_dwordx2 s[8:9], s[0:1], 16")
    e("s_load_dwordx2 s[10:11], s[0:1], 32")
    e(f"s_add_u32 s{sPC}, s{sPC}, Ltab-Lpc")
    e(f"s_addc_u32 s{sPC+1}, s{sPC+1}, 0")
    e("s_lshl_b32 s3, s2, 3")
    e(f"s_load_dwordx2 s[{sD0}:{sD1}], s[{sPC}:{sPC+1}], s3")
    if opts["stamp"]:
        e("s_load_dwordx2 s[60:61], s[0:1], 48")
        e("s_memtime s[62:63]")
    x0, x1, x2, x3, x4, x5 = range(vX, vX + 6)
    e(f"v_lshrrev_b32 v{x0}, 6, v0")
    e(f"v_and_b32 v{x1}, 63, v0")
    e(f"v_readfirstlane_b32 s{sW}, v{x0}")
    e(f"v_and_b32 v{x2}, 31, v{x1}")
    e(f"v_lshrrev_b32 v{x3}, 5, v{x1}")
    e(f"v_lshrrev_b32 v{x4}, 3, v{x2}")
    e(f"v_lshlrev_b32 v{x4}, 12, v{x4}")
    e(f"v_and_b32 v{x5}, 7, v{x2}")
    e(f"v_lshl_add_u32 v{x4}, v{x5}, 8, v{x4}")
    e(f"v_add_u32 v{x4}, 2048, v{x4}")
    e(f"v_and_b32 v{x5}, 15, v{x2}")
    e(f"v_xor_b32 v{x5}, v{x5}, v{x3}")
    e(f"v_lshl_add_u32 v{vKa}, v{x5}, 4, v{x4}")
    for s in range(1, 8):
        e(f"v_xor_b32 v{vKa+s}, {s*32}, v{vKa}")
    e(f"v_bfe_u32 v{x4}, v{x1}, 2, 2")
    e(f"v_lshl_add_u32 v{x5}, v{x3}, 2, v{x4}")
    e(f"v_lshlrev_b32 v{x5}, 8, v{x5}")
    e(f"v_lshl_add_u32 v{x5}, v{x4}, 6, v{x5}")
    e(f"v_bfe_u32 v{x4}, v{x1}, 4, 1")
    e(f"v_lshl_add_u32 v{x5}, v{x4}, 5, v{x5}")
    e(f"v_and_b32 v{x4}, 3, v{x1}")
    e(f"v_lshl_add_u32 v{vVa}, v{x4}, 3, v{x5}")
    for db in range(1, 4):
        e(f"v_xor_b32 v{vVa+db}, {db*64}, v{vVa}")
    e(f"v_lshrrev_b32 v{x4}, 4, v{x1}")
    e(f"v_lshl_add_u32 v{x5}, v{x0}, 3, v{x4}")
    e(f"v_and_b32 v{x1}, 15, v{x1}")
    e(f"v_lshlrev_b32 v{x4}, 2, v{x4}")
    e(f"v_xor_b32 v{x4}, v{x4}, v{x1}")
    e(f"v_lshlrev_b32 v{x4}, 4, v{x4}")
    e(f"v_lshl_add_u32 v{vDV}, v{x5}, 12, v{x4}")
    e(f"v_add_u32 v{vDV+1}, {4*ROWB-1024}, v{vDV}")
    e(f"v_and_b32 v{x4}, 15, v{x5}")
    e(f"v_xor_b32 v{x4}, v{x4}, v{x1}")
    e(f"v_lshlrev_b32 v{x4}, 4, v{x4}")
    e(f"v_lshl_add_u32 v{vDK}, v{x5}, 12, v{x4}")
    e(f"v_xor_b32 v{vDK+1}, 64, v{vDK}")
    e(f"v_add_u32 v{vDK+1}, {4*ROWB-1024}, v{vDK+1}")
    e(f"v_lshl_add_u32 v{x4}, v{x0}, 5, v{x2}")
    e(f"v_lshlrev_b32 v{x4}, 12, v{x4}")
    e(f"v_lshl_add_u32 v{vOa}, v{x3}, 4, v{x4}")
    e(f"v_lshlrev_b32 v{vRem}, 2, v{x3}")
    e(f"s_lshl_b32 s{sWB}, s{sW}, 12")
    e(f"s_mov_b32 s{sThr}, {hex(f32bits(4096.0))}")
    e(f"s_mov_b32 s{sC}, {hex(f32bits(128 ** -0.5 * math.log2(math.e)))}")
    e(f"s_mov_b32 s{sNeg}, {hex(f32bits(-1e30))}")
    e(f"s_mov_b32 s{sFlag}, 0")
    e("s_waitcnt lgkmcnt(0)")
    e(f"s_and_b32 s{sL}, s{sD1}, 0xffff")
    e(f"s_lshr_b32 s{sT0}, s{sD1}, 16")
    e(f"s_lshl_b32 s{sT0}, s{sT0}, 12")
    e(f"v_add_u32 v{vOa}, s{sT0}, v{vOa}")
    e(f"s_lshl_b32 s{sT0+1}, s{sL}, 12")
    e(f"s_add_u32 s{sT0+1}, s{sT0+1}, s{sD0}")
    e(f"s_sub_u32 s{sT0+1}, s{sT0+1}, {ROWB-256}")
    for srd, ptr in ((sQ, 4), (sK, 6), (sV, 8), (sOut, 10)):
        e(f"s_mov_b32 s{srd}, s{ptr}")
        e(f"s_mov_b32 s{srd+1}, s{ptr+1}")
        e(f"s_mov_b32 s{srd+2}, s{sT0+1}")
        e(f"s_mov_b32 s{srd+3}, 0x20000")
    e(f"s_add_u32 m0, s{sWB}, 2048")
    e(f"s_add_u32 s{sN}, s{sL}, 31")
    e(f"buffer_load_dwordx4 v{vDK}, s[{sK}:{sK+3}], s{sD0} offen lds")
    e(f"buffer_load_dwordx4 v{vDK+1}, s[{sK}:{sK+3}], s{sD0} offen offset:1024 lds")
    for s in range(8):
        e(f"buffer_load_dwordx4 {vr(vQ+4*s,4)}, v{vOa}, s[{sQ}:{sQ+3}], s{sD0} offen offset:{s*32}")
    e(f"s_add_u32 m0, s{sWB}, {16384+2048}")
    e(f"s_add_u32 s{sOff}, s{sD0}, {TILEB}")
    e(f"buffer_load_dwordx4 v{vDK}, s[{sK}:{sK+3}], s{sOff} offen lds")
    e(f"buffer_load_dwordx4 v{vDK+1}, s[{sK}:{sK+3}], s{sOff} offen offset:1024 lds")
    e(f"v_add_u32 v{vDK}, {2*TILEB-2048}, v{vDK}")
    e(f"v_add_u32 v{vDK+1}, {2*TILEB-2048}, v{vDK+1}")
    e(f"s_sub_u32 s{sOff}, s{sD0}, {TILEB}")
    for x in dma(2): e(x)
    for x in dma(3): e(x)
    e(f"s_lshr_b32 s{sN}, s{sN}, 5")
    e(f"s_sub_u32 s{sCnt}, s{sN}, 3")
    e(f"s_sub_u32 s{sT0}, s{sN}, 1")
    e(f"s_lshl_b32 s{sT0}, s{sT0}, 5")
    e(f"s_sub_u32 s{sRem}, s{sL}, s{sT0}")
    e(f"v_sub_u32 v{vRem}, s{sRem}, v{vRem}")
    for i in range(64):
        e(f"v_mov_b32 v{vO+i}, 0")
    e(f"v_mov_b32 v{vL}, 0")
    for s in range(8):
        e(f"s_waitcnt vmcnt({17-s})")
        for i in range(4):
            q = vQ + 4 * s + i
            a, b = vX + 2 * (i & 1), vX + 2 * (i & 1) + 1
            e(f"v_lshlrev_b32 v{a}, 16, v{q}")
            e(f"v_and_b32 v{b}, 0xffff0000, v{q}")
            e(f"v_mul_f32 v{a}, s{sC}, v{a}")
            e(f"v_mul_f32 v{b}, s{sC}, v{b}")
            e(f"v_cvt_pk_bf16_f32 v{q}, v{a}, v{b}")
    e("s_barrier")
    for x in k_reads(0): e(x)
    for s, x in enumerate(qk_mfmas(0, None)):
        e(f"s_waitcnt lgkmcnt({7-s})")
        e(x)
    e("s_waitcnt vmcnt(8)")
    e("s_barrier")
    for x in k_reads(1): e(x)
    for x in dma(0): e(x)
    e("s_nop 4")
    s0 = vS
    e(f"v_max3_f32 v{vX}, v{s0}, v{s0+1}, v{s0+2}")
    for i in range(3, 15, 2):
        e(f"v_max3_f32 v{vX}, v{vX}, v{s0+i}, v{s0+i+1}")
    e(f"v_max_f32 v{vX}, v{vX}, v{s0+15}")
    e(f"v_mov_b32 v{vX+1}, v{vX}")
    e("s_nop 1")
    e(f"v_permlane32_swap_b32 v{vX}, v{vX+1}")
    e("s_nop 1")
    e(f"v_max_f32 v{vX}, v{vX}, v{vX+1}")
    for i in range(16):
        e(f"v_sub_f32 v{vNM+i}, 0, v{vX}")
    for i in range(16):
        e(f"v_sub_f32 v{s0+i}, v{s0+i}, v{vX}")
    e("s_waitcnt lgkmcnt(0)")
    step(0, first=True)
    e(".p2align 3")
    lab("Lloop")
    for t in (1, 2, 3, 4):
        p = t % 4
        e(f"s_sub_u32 s{sCnt}, s{sCnt}, 1")
        e(f"s_cbranch_scc1 Lh_{p}")
        lab(f"Lgo_{p}")
        step(t)
    e("s_branch Lloop")
    for p in range(4):
        lab(f"Lh_{p}")
        e(f"s_cmp_lg_u32 s{sFlag}, 0")
        e(f"s_cbranch_scc1 Ltail_{p}")
        e(f"s_call_b64 s[{sRet}:{sRet+1}], Lmask")
        e(f"s_branch Lgo_{p}")
    lab("Lmask")
    e(f"s_mov_b32 s{sFlag}, 1")
    e(f"s_mov_b32 s{sCnt}, 0")
    e(f"v_mov_b32 v{vX}, s{sNeg}")
    for g in range(4):
        for i in range(4):
            r = 4 * g + i
            e(f"v_cmp_lt_i32 s[{sM+2*i}:{sM+2*i+1}], {8*g+i}, v{vRem}")
        e("s_nop 0")
        for i in range(4):
            r = 4 * g + i
            e(f"v_cndmask_b32 v{vNM+r}, v{vX}, v{vNM+r}, s[{sM+2*i}:{sM+2*i+1}]")
    e("s_nop 1")
    e(f"s_setpc_b64 s[{sRet}:{sRet+1}]")
    for p in range(4):
        tail(p)
    lab("Lepi")
    e(f"v_mov_b32 v{vX}, v{vL}")
    e("s_nop 1")
    e(f"v_permlane32_swap_b32 v{vL}, v{vX}")
    e("s_nop 1")
    e(f"v_add_f32 v{vL}, v{vL}, v{vX}")
    e(f"v_rcp_f32 v{vL}, v{vL}")
    e("s_nop 7")
    for db in range(4):
        o = vO + 16 * db
        pk = vS + 8 * db
        for i in range(16):
            e(f"v_mul_f32 v{o+i}, v{o+i}, v{vL}")
        for i in range(8):
            e(f"v_cvt_pk_bf16_f32 v{pk+i}, v{o+2*i}, v{o+2*i+1}")
        e("s_nop 1")
        for g in (0, 2):
            e(f"v_permlane32_swap_b32 v{pk+2*g}, v{pk+2*g+2}")
            e(f"v_permlane32_swap_b32 v{pk+2*g+1}, v{pk+2*g+3}")
        e("s_nop 0")
        for g in (0, 2):
            e(f"buffer_store_dwordx4 {vr(pk+2*g,4)}, v{vOa}, s[{sOut}:{sOut+3}], s{sD0} offen offset:{db*64+g*16}")
    if opts["stamp"]:
        e("s_memtime s[64:65]")
        e("s_getreg_b32 s66, hwreg(HW_REG_HW_ID)")
        e("s_getreg_b32 s67, hwreg(HW_REG_XCC_ID)")
        e("s_waitcnt lgkmcnt(0)")
        e("s_mov_b32 s68, s60"); e("s_mov_b32 s69, s61"); e("s_mov_b32 s70, 0x100000"); e("s_mov_b32 s71, 0x20000")
        e(f"s_lshl_b32 s72, s2, 2"); e(f"s_add_u32 s72, s72, s{sW}"); e("s_lshl_b32 s72, s72, 5")
        e("v_mov_b32 v0, s62"); e("v_mov_b32 v1, s63"); e("v_mov_b32 v2, s64"); e("v_mov_b32 v3, s65")
        e("v_mov_b32 v4, s66"); e("v_mov_b32 v5, s67"); e(f"v_mov_b32 v6, s{sN}"); e(f"v_mov_b32 v7, 0")
        e("v_mov_b32 v8, 0")
        e("s_mov_b64 exec, 1")
        e("buffer_store_dwordx4 v[0:3], v8, s[68:71], s72 offen")
        e("buffer_store_dwordx4 v[4:7], v8, s[68:71], s72 offen offset:16")
    lab("Lend")
    e("s_endpgm")
    for tag, buf in STUBS:
        lab(f"Lrare_{tag}")
        e(f"s_call_b64 s[{sRet}:{sRet+1}], Lresc_{buf}")
        e(f"s_branch Lback_{tag}")
    for b in range(2):
        lab(f"Lresc_{b}")
        s = vS + 16 * b
        s2 = vS + 16 * (b ^ 1)
        e("s_nop 15")
        e(f"v_max3_f32 v{vX}, v{s}, v{s+1}, v{s+2}")
        for i in range(3, 15, 2):
            e(f"v_max3_f32 v{vX}, v{vX}, v{s+i}, v{s+i+1}")
        e(f"v_max_f32 v{vX}, v{vX}, v{s+15}")
        e(f"v_mov_b32 v{vX+1}, v{vX}")
        e("s_nop 1")
        e(f"v_permlane32_swap_b32 v{vX}, v{vX+1}")
        e("s_nop 1")
        e(f"v_max3_f32 v{vX}, v{vX}, v{vX+1}, 0")
        e(f"v_sub_f32 v{vX+1}, 0, v{vX}")
        e(f"v_exp_f32 v{vX+1}, v{vX+1}")
        for i in range(16):
            e(f"v_sub_f32 v{s+i}, v{s+i}, v{vX}")
            e(f"v_sub_f32 v{s2+i}, v{s2+i}, v{vX}")
            e(f"v_sub_f32 v{vNM+i}, v{vNM+i}, v{vX}")
        for i in range(64):
            e(f"v_mul_f32 v{vO+i}, v{vO+i}, v{vX+1}")
        e(f"v_mul_f32 v{vL}, v{vL}, v{vX+1}")
        for x, _ in softmax_valu(b): e(x)
        e("s_nop 1")
        e(f"s_setpc_b64 s[{sRet}:{sRet+1}]")
    e(".p2align 3")
    L.append(".type Ltab,@object")
    lab("Ltab")
    for d0, d1 in TAB:
        e(f".long {d0}, {d1}")
    L.append('.section .rodata,"a"')
    L.append(".p2align 6")
    L.append(f".amdhsa_kernel {NAME}_kernel")
    L.append("  .amdhsa_next_free_vgpr 256")
    L.append("  .amdhsa_next_free_sgpr 80")
    L.append("  .amdhsa_accum_offset 256")
    L.append("  .amdhsa_group_segment_fixed_size 0")
    L.append("  .amdhsa_kernarg_size 56")
    L.append("  .amdhsa_user_sgpr_count 2")
    L.append("  .amdhsa_user_sgpr_kernarg_segment_ptr 1")
    L.append("  .amdhsa_system_sgpr_workgroup_id_x 1")
    L.append(".end_amdhsa_kernel")

gen()
open(sys.argv[1], "w").write("\n".join(L) + "\n")
```

```python
import sys, struct, math

NAME = "standalone__varlen_attn_packed__ragged"
CU = [0, 534, 1426, 1714, 2675, 3469, 4036, 4628, 4845]
H = 16
ROWB = 4096
TILEB = 32 * ROWB

opts = dict(stamp=0, order="pair", st="", pers=0, pre=0)
for a in sys.argv[2:]:
    k, v = a.split("=")
    opts[k] = int(v) if v.lstrip("-").isdigit() else v

def f32bits(x):
    return struct.unpack("<I", struct.pack("<f", x))[0]

vO = 0
vQ = 64
vS = 96
vP = 128
vNM = 144
vKf = 160
vVf = 192
vKa = 224
vVa = 232
vDK = 236
vDV = 238
vE = 240
vT = 244
vL = 245
vX = 246
vRem = 254
vOa = 255

sQ, sK, sV, sOut = 12, 16, 20, 24
sD0, sD1 = 28, 29
sL, sN, sOff, sWB, sCnt, sFlag, sThr, sC = 30, 31, 32, 33, 34, 35, 36, 37
sNeg = 38
sW = 39
sRet = 40
sPC = 42
sRem = 44
sT0 = 46
sM = 50

L = []
def e(s):
    L.append("    " + s)
def lab(s):
    L.append(s + ":")

NST = [0]
def stamp(idx):
    if opts["stamp"]:
        e(f"s_memtime s[{62+2*idx}:{63+2*idx}]")

def vr(b, n):
    return f"v[{b}:{b+n-1}]"

def jobs_by_seq():
    out = {}
    for si in range(8):
        st, en = CU[si], CU[si + 1]
        ln = en - st
        nb = (ln + 127) // 128
        out[si] = (st, ln, nb, (ln + 31) // 32)
    return out

def make_table():
    js = jobs_by_seq()
    def blocks(si):
        return [(hp, si, b) for b in range(js[si][2]) for hp in range(2)]
    byn = {js[si][3]: blocks(si) for si in range(8)}
    if opts["order"] == "lpt":
        local = []
        for n in sorted(byn, reverse=True):
            local += byn[n]
    else:
        b31, b28, b25, b19, b18, b17, b9, b7 = (list(byn[n]) for n in (31, 28, 25, 19, 18, 17, 9, 7))
        A, B = [], []
        for _ in range(10): A.append(b25.pop(0)); B.append(b18.pop(0))
        for _ in range(10): A.append(b31.pop(0)); B.append(b19.pop(0))
        for _ in range(4): A.append(b31.pop(0)); B.append(b25.pop(0))
        for _ in range(2): A.append(b31.pop(0)); B.append(b28.pop(0))
        for _ in range(6): A.append(b28.pop(0)); B.append(b28.pop(0))
        assert not (b31 or b28 or b25 or b19 or b18)
        if opts["order"] == "pair":
            local = A + B + b17 + b9 + b7
        elif opts["order"] == "pair2":
            local = [x for ab in zip(A, B) for x in ab] + b17 + b9 + b7
    assert len(local) == 84
    tab = []
    for j in range(84):
        for x in range(8):
            hp, si, b = local[j]
            st, ln, nb, n = js[si]
            head = 2 * x + hp
            tab.append((st * ROWB + head * 256, ln | ((b * 128) << 16)))
    return tab

TAB = make_table()
NWG = len(TAB)

def mfma(d, a, b, c):
    cs = "0" if c is None else vr(c, 16)
    return f"v_mfma_f32_32x32x16_bf16 {vr(d,16)}, {vr(a,4)}, {vr(b,4)}, {cs}"

def qk_mfmas(buf, cinit=vNM):
    d = vS + 16 * buf
    return [mfma(d, vKf + 4 * s, vQ + 4 * s, cinit if s == 0 else d) for s in range(8)]

def pv_mfmas(buf, vf=vVf):
    r = []
    for ks in range(2):
        for db in range(4):
            r.append(mfma(vO + 16 * db, vf + 4 * (db * 2 + ks), vP + 8 * buf + 4 * ks, vO + 16 * db))
    return r

def k_reads(slot):
    return [f"ds_read_b128 {vr(vKf+4*s,4)}, v{vKa+s} offset:{slot*16384}" for s in range(8)]

def v_reads(slot, vf=vVf):
    r = []
    for ks in range(2):
        for db in range(4):
            for g in range(2):
                r.append(f"ds_read_b64_tr_b16 {vr(vf+4*(db*2+ks)+2*g,2)}, v{vVa+db} offset:{slot*16384+(2*ks+g)*4096}")
    return r

def dma(slot):
    return [f"s_add_u32 m0, s{sWB}, {slot*16384}" if slot else f"s_mov_b32 m0, s{sWB}",
            f"s_add_u32 s{sOff}, s{sOff}, {TILEB}",
            f"buffer_load_dwordx4 v{vDV}, s[{sV}:{sV+3}], s{sOff} offen lds",
            f"buffer_load_dwordx4 v{vDV+1}, s[{sV}:{sV+3}], s{sOff} offen offset:1024 lds",
            f"buffer_load_dwordx4 v{vDK}, s[{sK}:{sK+3}], s{sOff} offen offset:2048 lds",
            f"buffer_load_dwordx4 v{vDK+1}, s[{sK}:{sK+3}], s{sOff} offen offset:3072 lds"]

def softmax_valu(buf):
    s = vS + 16 * buf
    p = vP + 8 * buf
    def ex(k, w):
        return (f"v_exp_f32 v{vE + 2*(k&1) + w}, v{s + 2*k + w}", 8)
    def cons(k):
        a, b = vE + 2 * (k & 1), vE + 2 * (k & 1) + 1
        if k == 0:
            return [(f"v_add_f32 v{vT}, v{a}, v{b}", 4), (f"v_cvt_pk_bf16_f32 v{p+k}, v{a}, v{b}", 4)]
        return [(f"v_add_f32 v{vT}, v{vT}, v{a}", 4), (f"v_add_f32 v{vT}, v{vT}, v{b}", 4),
                (f"v_cvt_pk_bf16_f32 v{p+k}, v{a}, v{b}", 4)]
    r = [ex(0, 0), ex(0, 1)]
    for k in range(1, 8):
        c = cons(k - 1)
        r.append(ex(k, 0))
        r.append(c[0])
        r.append(ex(k, 1))
        r += c[1:]
    c = cons(7)
    r += [c[0], c[1], c[2]]
    return r

def pack(mf, fixed, valu, pre=None):
    n = len(mf)
    fc = [4 * len(fixed.get(g, [])) for g in range(n)]
    total = sum(fc) + sum(c for _, c in valu)
    out = []
    vi = 0
    acc = 0
    for g in range(n):
        out.append(mf[g])
        fx = fixed.get(g, [])
        head = [x for x in fx if not isinstance(x, tuple)]
        tail = [x[0] for x in fx if isinstance(x, tuple)]
        acc += fc[g]
        target = total * (g + 1) / n
        vs = []
        while vi < len(valu) and (acc + valu[vi][1] / 2 <= target or g == n - 1):
            vs.append(valu[vi][0]); acc += valu[vi][1]; vi += 1
        i = j = 0
        while i < len(head) or j < len(vs):
            if i < len(head):
                out.append(head[i]); i += 1
            if j < len(vs):
                out.append(vs[j]); j += 1
        out += tail
    return out

def check_rare(buf, tag):
    e(f"v_cmp_lt_f32 vcc, s{sThr}, v{vT}")
    e(f"s_cbranch_vccnz Lrare_{tag}")
    lab(f"Lback_{tag}")
    e(f"v_add_f32 v{vL}, v{vL}, v{vT}")
    STUBS.append((tag, buf))

STUBS = []

def step(t, first=False):
    p = t % 4
    b = t % 2
    mf = qk_mfmas(b ^ 1)
    fixed = {}
    kr = k_reads((t + 2) % 4)
    d = dma((t + 1) % 4)
    if first:
        fixed[3] = [("s_waitcnt vmcnt(8)", 'end')]
        out = pack(mf, {}, softmax_valu(b)[:20])
        for x in out: e(x)
        e("s_waitcnt vmcnt(8)")
        e("s_barrier")
        rest = softmax_valu(b)[20:]
        items = kr + d
        i = j = 0
        while i < len(items) or j < len(rest):
            if i < len(items): e(items[i]); i += 1
            if j < len(rest): e(rest[j][0]); j += 1
        check_rare(b, f"s{t}f")
        return
    mf = mf + pv_mfmas(b ^ 1)
    vrd = v_reads((t + 1) % 4)
    cnt = [3, 3, 3, 3, 2, 2, 0, 0]
    i = 0
    for g in range(8):
        fixed[g] = vrd[i:i + cnt[g]]; i += cnt[g]
    fixed[7] = [("s_waitcnt vmcnt(8) lgkmcnt(0)", 'end'), ("s_barrier", 'end')]
    for g in range(4):
        fixed[8 + g] = kr[2 * g:2 * g + 2]
    fixed[10] = fixed[10] + [d[0]]
    fixed[11] = fixed[11] + [d[1]]
    fixed[12] = [d[2]]
    fixed[13] = [d[3]]
    fixed[14] = [d[4]]
    fixed[15] = [d[5]]
    e("s_waitcnt lgkmcnt(0)")
    for x in pack(mf, fixed, softmax_valu(b)): e(x)
    check_rare(b, f"s{p}")

def tail(p):
    b = p % 2
    lab(f"Ltail_{p}")
    stamp(4)
    t = p
    vrd = v_reads((t + 1) % 4)
    vrd2 = v_reads((t + 2) % 4, vKf)
    sm = softmax_valu(b)
    j = 0
    for x in vrd:
        e(x)
        if j < 16: e(sm[j][0]); j += 1
    e("s_waitcnt vmcnt(8) lgkmcnt(0)")
    e("s_barrier")
    fixed = {g: vrd2[2 * g:2 * g + 2] for g in range(8)}
    for x in pack(pv_mfmas(b ^ 1), fixed, sm[j:]): e(x)
    check_rare(b, f"t{p}")
    e("s_waitcnt lgkmcnt(0)")
    e("s_nop 0")
    mf = pv_mfmas(b, vKf)
    for x in mf: e(x)
    e("s_branch Lepi")

def gen():
    L.append(open(__file__.replace("gen1.py", "header.txt")).read().rstrip())
    L.append(f"; @launch grid=({NWG},1,1) block=(256,1,1) lds=65536")
    L.append('.amdgcn_target "amdgcn-amd-amdhsa--gfx950"')
    L.append(".text")
    L.append(f".globl {NAME}_kernel")
    L.append(".p2align 8")
    L.append(f".type {NAME}_kernel,@function")
    lab(f"{NAME}_kernel")
    e(f"s_cmp_ge_u32 s2, {NWG}")
    e("s_cbranch_scc1 Lend")
    e(f"s_getpc_b64 s[{sPC}:{sPC+1}]")
    lab("Lpc")
    e("s_load_dwordx4 s[4:7], s[0:1], 0")
    e("s_load_dwordx2 s[8:9], s[0:1], 16")
    e("s_load_dwordx2 s[10:11], s[0:1], 32")
    e(f"s_add_u32 s{sPC}, s{sPC}, Ltab-Lpc")
    e(f"s_addc_u32 s{sPC+1}, s{sPC+1}, 0")
    e("s_lshl_b32 s3, s2, 3")
    e(f"s_load_dwordx2 s[{sD0}:{sD1}], s[{sPC}:{sPC+1}], s3")
    if opts["stamp"]:
        e("s_load_dwordx2 s[60:61], s[0:1], 48")
        e("s_memtime s[62:63]")
        e("s_memrealtime s[76:77]")
    x0, x1, x2, x3, x4, x5 = range(vX, vX + 6)
    e(f"v_lshrrev_b32 v{x0}, 6, v0")
    e(f"v_and_b32 v{x1}, 63, v0")
    e(f"v_readfirstlane_b32 s{sW}, v{x0}")
    e(f"v_and_b32 v{x2}, 31, v{x1}")
    e(f"v_lshrrev_b32 v{x3}, 5, v{x1}")
    e(f"v_lshrrev_b32 v{x4}, 3, v{x2}")
    e(f"v_lshlrev_b32 v{x4}, 12, v{x4}")
    e(f"v_and_b32 v{x5}, 7, v{x2}")
    e(f"v_lshl_add_u32 v{x4}, v{x5}, 8, v{x4}")
    e(f"v_add_u32 v{x4}, 2048, v{x4}")
    e(f"v_and_b32 v{x5}, 15, v{x2}")
    e(f"v_xor_b32 v{x5}, v{x5}, v{x3}")
    e(f"v_lshl_add_u32 v{vKa}, v{x5}, 4, v{x4}")
    for s in range(1, 8):
        e(f"v_xor_b32 v{vKa+s}, {s*32}, v{vKa}")
    e(f"v_bfe_u32 v{x4}, v{x1}, 2, 2")
    e(f"v_lshl_add_u32 v{x5}, v{x3}, 2, v{x4}")
    e(f"v_lshlrev_b32 v{x5}, 8, v{x5}")
    e(f"v_lshl_add_u32 v{x5}, v{x4}, 6, v{x5}")
    e(f"v_bfe_u32 v{x4}, v{x1}, 4, 1")
    e(f"v_lshl_add_u32 v{x5}, v{x4}, 5, v{x5}")
    e(f"v_and_b32 v{x4}, 3, v{x1}")
    e(f"v_lshl_add_u32 v{vVa}, v{x4}, 3, v{x5}")
    for db in range(1, 4):
        e(f"v_xor_b32 v{vVa+db}, {db*64}, v{vVa}")
    e(f"v_lshrrev_b32 v{x4}, 4, v{x1}")
    e(f"v_lshl_add_u32 v{x5}, v{x0}, 3, v{x4}")
    e(f"v_and_b32 v{x1}, 15, v{x1}")
    e(f"v_lshlrev_b32 v{x4}, 2, v{x4}")
    e(f"v_xor_b32 v{x4}, v{x4}, v{x1}")
    e(f"v_lshlrev_b32 v{x4}, 4, v{x4}")
    e(f"v_lshl_add_u32 v{vDV}, v{x5}, 12, v{x4}")
    e(f"v_add_u32 v{vDV+1}, {4*ROWB-1024}, v{vDV}")
    e(f"v_and_b32 v{x4}, 15, v{x5}")
    e(f"v_xor_b32 v{x4}, v{x4}, v{x1}")
    e(f"v_lshlrev_b32 v{x4}, 4, v{x4}")
    e(f"v_lshl_add_u32 v{vDK}, v{x5}, 12, v{x4}")
    e(f"v_xor_b32 v{vDK+1}, 64, v{vDK}")
    e(f"v_add_u32 v{vDK+1}, {4*ROWB-1024}, v{vDK+1}")
    e(f"v_lshl_add_u32 v{x4}, v{x0}, 5, v{x2}")
    e(f"v_lshlrev_b32 v{x4}, 12, v{x4}")
    e(f"v_lshl_add_u32 v{vOa}, v{x3}, 4, v{x4}")
    e(f"v_lshlrev_b32 v{vRem}, 2, v{x3}")
    e(f"s_lshl_b32 s{sWB}, s{sW}, 12")
    e(f"s_mov_b32 s{sThr}, {hex(f32bits(4096.0))}")
    e(f"s_mov_b32 s{sC}, {hex(f32bits(128 ** -0.5 * math.log2(math.e)))}")
    e(f"s_mov_b32 s{sNeg}, {hex(f32bits(-1e30))}")
    e(f"s_mov_b32 s{sFlag}, 0")
    e("s_waitcnt lgkmcnt(0)")
    stamp(1)
    e(f"s_and_b32 s{sL}, s{sD1}, 0xffff")
    e(f"s_lshr_b32 s{sT0}, s{sD1}, 16")
    e(f"s_lshl_b32 s{sT0}, s{sT0}, 12")
    e(f"v_add_u32 v{vOa}, s{sT0}, v{vOa}")
    e(f"s_lshl_b32 s{sT0+1}, s{sL}, 12")
    e(f"s_add_u32 s{sT0+1}, s{sT0+1}, s{sD0}")
    e(f"s_sub_u32 s{sT0+1}, s{sT0+1}, {ROWB-256}")
    for srd, ptr in ((sQ, 4), (sK, 6), (sV, 8), (sOut, 10)):
        e(f"s_mov_b32 s{srd}, s{ptr}")
        e(f"s_mov_b32 s{srd+1}, s{ptr+1}")
        e(f"s_mov_b32 s{srd+2}, s{sT0+1}")
        e(f"s_mov_b32 s{srd+3}, 0x20000")
    if opts["pre"]:
        e("s_cmp_ge_u32 s2, 512"); e("s_cbranch_scc1 Lnopre")
        for srd in (sQ, sK, sV): e(f"s_mov_b32 s{srd+2}, 19845120")
        e("v_lshlrev_b32 v1, 4, v0")
        e(f"s_mul_i32 s58, s2, {10*4096}")
        c = 0
        for i in range(10):
            for srd in (sQ, sK, sV):
                e(f"buffer_load_dwordx4 {vr(64+4*c,4)}, v1, s[{srd}:{srd+3}], s58 offen"); c += 1
            e("s_add_u32 s58, s58, 4096")
        e("s_waitcnt vmcnt(0)")
        for srd in (sQ, sK, sV): e(f"s_mov_b32 s{srd+2}, s{sT0+1}")
        lab("Lnopre")
    e(f"s_add_u32 m0, s{sWB}, 2048")
    e(f"s_add_u32 s{sN}, s{sL}, 31")
    e(f"buffer_load_dwordx4 v{vDK}, s[{sK}:{sK+3}], s{sD0} offen lds")
    e(f"buffer_load_dwordx4 v{vDK+1}, s[{sK}:{sK+3}], s{sD0} offen offset:1024 lds")
    for s in range(8):
        e(f"buffer_load_dwordx4 {vr(vQ+4*s,4)}, v{vOa}, s[{sQ}:{sQ+3}], s{sD0} offen offset:{s*32}")
    e(f"s_add_u32 m0, s{sWB}, {16384+2048}")
    e(f"s_add_u32 s{sOff}, s{sD0}, {TILEB}")
    e(f"buffer_load_dwordx4 v{vDK}, s[{sK}:{sK+3}], s{sOff} offen lds")
    e(f"buffer_load_dwordx4 v{vDK+1}, s[{sK}:{sK+3}], s{sOff} offen offset:1024 lds")
    e(f"v_add_u32 v{vDK}, {2*TILEB-2048}, v{vDK}")
    e(f"v_add_u32 v{vDK+1}, {2*TILEB-2048}, v{vDK+1}")
    e(f"s_sub_u32 s{sOff}, s{sD0}, {TILEB}")
    for x in dma(2): e(x)
    for x in dma(3): e(x)
    e(f"s_lshr_b32 s{sN}, s{sN}, 5")
    e(f"s_sub_u32 s{sCnt}, s{sN}, 3")
    e(f"s_sub_u32 s{sT0}, s{sN}, 1")
    e(f"s_lshl_b32 s{sT0}, s{sT0}, 5")
    e(f"s_sub_u32 s{sRem}, s{sL}, s{sT0}")
    e(f"v_sub_u32 v{vRem}, s{sRem}, v{vRem}")
    for i in range(64):
        e(f"v_mov_b32 v{vO+i}, 0")
    e(f"v_mov_b32 v{vL}, 0")
    for s in range(8):
        e(f"s_waitcnt vmcnt({17-s})")
        for i in range(4):
            q = vQ + 4 * s + i
            a, b = vX + 2 * (i & 1), vX + 2 * (i & 1) + 1
            e(f"v_lshlrev_b32 v{a}, 16, v{q}")
            e(f"v_and_b32 v{b}, 0xffff0000, v{q}")
            e(f"v_mul_f32 v{a}, s{sC}, v{a}")
            e(f"v_mul_f32 v{b}, s{sC}, v{b}")
            e(f"v_cvt_pk_bf16_f32 v{q}, v{a}, v{b}")
    stamp(2)
    if opts["stamp"]: e("s_waitcnt lgkmcnt(0)")
    e("s_barrier")
    for x in k_reads(0): e(x)
    for s, x in enumerate(qk_mfmas(0, None)):
        e(f"s_waitcnt lgkmcnt({7-s})")
        e(x)
    e("s_waitcnt vmcnt(8)")
    e("s_barrier")
    for x in k_reads(1): e(x)
    for x in dma(0): e(x)
    e("s_nop 4")
    s0 = vS
    e(f"v_max3_f32 v{vX}, v{s0}, v{s0+1}, v{s0+2}")
    for i in range(3, 15, 2):
        e(f"v_max3_f32 v{vX}, v{vX}, v{s0+i}, v{s0+i+1}")
    e(f"v_max_f32 v{vX}, v{vX}, v{s0+15}")
    e(f"v_mov_b32 v{vX+1}, v{vX}")
    e("s_nop 1")
    e(f"v_permlane32_swap_b32 v{vX}, v{vX+1}")
    e("s_nop 1")
    e(f"v_max_f32 v{vX}, v{vX}, v{vX+1}")
    for i in range(16):
        e(f"v_sub_f32 v{vNM+i}, 0, v{vX}")
    for i in range(16):
        e(f"v_sub_f32 v{s0+i}, v{s0+i}, v{vX}")
    e("s_waitcnt lgkmcnt(0)")
    step(0, first=True)
    stamp(3)
    if opts["stamp"]: e("s_memrealtime s[86:87]")
    e(".p2align 3")
    lab("Lloop")
    for t in (1, 2, 3, 4):
        p = t % 4
        e(f"s_sub_u32 s{sCnt}, s{sCnt}, 1")
        e(f"s_cbranch_scc1 Lh_{p}")
        lab(f"Lgo_{p}")
        step(t)
    e("s_branch Lloop")
    for p in range(4):
        lab(f"Lh_{p}")
        e(f"s_cmp_lg_u32 s{sFlag}, 0")
        e(f"s_cbranch_scc1 Ltail_{p}")
        e(f"s_call_b64 s[{sRet}:{sRet+1}], Lmask")
        e(f"s_branch Lgo_{p}")
    lab("Lmask")
    e(f"s_mov_b32 s{sFlag}, 1")
    e(f"s_mov_b32 s{sCnt}, 0")
    e(f"v_mov_b32 v{vX}, s{sNeg}")
    for g in range(4):
        for i in range(4):
            r = 4 * g + i
            e(f"v_cmp_lt_i32 s[{sM+2*i}:{sM+2*i+1}], {8*g+i}, v{vRem}")
        e("s_nop 0")
        for i in range(4):
            r = 4 * g + i
            e(f"v_cndmask_b32 v{vNM+r}, v{vX}, v{vNM+r}, s[{sM+2*i}:{sM+2*i+1}]")
    e("s_nop 1")
    e(f"s_setpc_b64 s[{sRet}:{sRet+1}]")
    for p in range(4):
        tail(p)
    lab("Lepi")
    stamp(5)
    e(f"v_mov_b32 v{vX}, v{vL}")
    e("s_nop 1")
    e(f"v_permlane32_swap_b32 v{vL}, v{vX}")
    e("s_nop 1")
    e(f"v_add_f32 v{vL}, v{vL}, v{vX}")
    e(f"v_rcp_f32 v{vL}, v{vL}")
    e("s_nop 7")
    for db in range(4):
        o = vO + 16 * db
        pk = vS + 8 * db
        for i in range(16):
            e(f"v_mul_f32 v{o+i}, v{o+i}, v{vL}")
        for i in range(8):
            e(f"v_cvt_pk_bf16_f32 v{pk+i}, v{o+2*i}, v{o+2*i+1}")
        e("s_nop 1")
        for g in (0, 2):
            e(f"v_permlane32_swap_b32 v{pk+2*g}, v{pk+2*g+2}")
            e(f"v_permlane32_swap_b32 v{pk+2*g+1}, v{pk+2*g+3}")
        e("s_nop 0")
        for g in (0, 2):
            e(f"buffer_store_dwordx4 {vr(pk+2*g,4)}, v{vOa}, s[{sOut}:{sOut+3}], s{sD0} offen offset:{db*64+g*16} {opts['st'].replace('+',' ')}")
    if opts["stamp"]:
        e("s_waitcnt vmcnt(0)")
        stamp(6)
        e("s_memrealtime s[88:89]")
        e("s_getreg_b32 s78, hwreg(HW_REG_HW_ID)")
        e("s_getreg_b32 s79, hwreg(HW_REG_XCC_ID)")
        e("s_waitcnt lgkmcnt(0)")
        e("s_mov_b32 s80, s60"); e("s_mov_b32 s81, s61"); e("s_mov_b32 s82, 0x100000"); e("s_mov_b32 s83, 0x20000")
        e(f"s_lshl_b32 s84, s2, 2"); e(f"s_add_u32 s84, s84, s{sW}"); e("s_lshl_b32 s84, s84, 6")
        for i in range(7): e(f"v_mov_b32 v{i}, s{62+2*i}")
        e("v_mov_b32 v7, s76"); e("v_mov_b32 v8, s78"); e("v_mov_b32 v9, s79"); e(f"v_mov_b32 v10, s{sN}"); e("v_mov_b32 v11, s86"); e("v_mov_b32 v13, s88")
        e("v_mov_b32 v12, 0")
        e("s_mov_b64 exec, 1")
        e("buffer_store_dwordx4 v[0:3], v12, s[80:83], s84 offen")
        e("buffer_store_dwordx4 v[4:7], v12, s[80:83], s84 offen offset:16")
        e("buffer_store_dwordx4 v[8:11], v12, s[80:83], s84 offen offset:32")
        e("buffer_store_dword v13, v12, s[80:83], s84 offen offset:48")
    lab("Lend")
    e("s_endpgm")
    for tag, buf in STUBS:
        lab(f"Lrare_{tag}")
        e(f"s_call_b64 s[{sRet}:{sRet+1}], Lresc_{buf}")
        e(f"s_branch Lback_{tag}")
    for b in range(2):
        lab(f"Lresc_{b}")
        s = vS + 16 * b
        s2 = vS + 16 * (b ^ 1)
        e("s_nop 15")
        e(f"v_max3_f32 v{vX}, v{s}, v{s+1}, v{s+2}")
        for i in range(3, 15, 2):
            e(f"v_max3_f32 v{vX}, v{vX}, v{s+i}, v{s+i+1}")
        e(f"v_max_f32 v{vX}, v{vX}, v{s+15}")
        e(f"v_mov_b32 v{vX+1}, v{vX}")
        e("s_nop 1")
        e(f"v_permlane32_swap_b32 v{vX}, v{vX+1}")
        e("s_nop 1")
        e(f"v_max3_f32 v{vX}, v{vX}, v{vX+1}, 0")
        e(f"v_sub_f32 v{vX+1}, 0, v{vX}")
        e(f"v_exp_f32 v{vX+1}, v{vX+1}")
        for i in range(16):
            e(f"v_sub_f32 v{s+i}, v{s+i}, v{vX}")
            e(f"v_sub_f32 v{s2+i}, v{s2+i}, v{vX}")
            e(f"v_sub_f32 v{vNM+i}, v{vNM+i}, v{vX}")
        for i in range(64):
            e(f"v_mul_f32 v{vO+i}, v{vO+i}, v{vX+1}")
        e(f"v_mul_f32 v{vL}, v{vL}, v{vX+1}")
        for x, _ in softmax_valu(b): e(x)
        e("s_nop 1")
        e(f"s_setpc_b64 s[{sRet}:{sRet+1}]")
    e(".p2align 3")
    L.append(".type Ltab,@object")
    lab("Ltab")
    for d0, d1 in TAB:
        e(f".long {d0}, {d1}")
    L.append('.section .rodata,"a"')
    L.append(".p2align 6")
    L.append(f".amdhsa_kernel {NAME}_kernel")
    L.append("  .amdhsa_next_free_vgpr 256")
    L.append("  .amdhsa_next_free_sgpr 96")
    L.append("  .amdhsa_accum_offset 256")
    L.append("  .amdhsa_group_segment_fixed_size 0")
    L.append("  .amdhsa_kernarg_size 56")
    L.append("  .amdhsa_user_sgpr_count 2")
    L.append("  .amdhsa_user_sgpr_kernarg_segment_ptr 1")
    L.append("  .amdhsa_system_sgpr_workgroup_id_x 1")
    L.append(".end_amdhsa_kernel")

gen()
open(sys.argv[1], "w").write("\n".join(L) + "\n")
```

```python
import sys, struct, math, os

NAME = "standalone__varlen_attn_packed__ragged"
CU = [0, 534, 1426, 1714, 2675, 3469, 4036, 4628, 4845]
ROWB = 4096
TILEB = 32 * ROWB
QS = 65536
QW = 20480
OS = QS + 4 * QW
LDSZ = 163840
TM = 5

opts = dict(stamp=0, st="sc0+sc1", ld="nt", plan="a", rev=1, lc=4)
for a in sys.argv[2:]:
    k, v = a.split("=")
    opts[k] = int(v) if v.lstrip("-").isdigit() else v
LD = (" " + opts["ld"].replace("+", " ")) if opts["ld"] else ""
ST = (" " + opts["st"].replace("+", " ")) if opts["st"] else ""
DG = str(opts.get("diag", ""))

def f32bits(x):
    return struct.unpack("<I", struct.pack("<f", x))[0]

vQ = 0
vS = 64
vP = 144
vNM = 184
vKa = 204
vVa = 208
vDK = 216
vDV = 218
vQd = 220
vE = 224
vT = 228
vL = 233
vU = 238
vQa = 239
vOw = 240
vOr = 241
vG4 = 242
vX = 244
aO = 0
aKf = 160
aVf = 192
aQ = 224

sQ, sK, sV, sOut = 12, 16, 20, 24
sJ = 28
sD0, sD1 = 36, 37
sL, sN, sOff, sWB, sCnt, sLast, sThr, sC, sNeg, sW = 38, 39, 40, 41, 42, 43, 44, 45, 46, 47
sRet, sPC = 48, 52
sTn, sLastn = 50, 51
sRem, sQoffn, sOoff, sBig, sD0n, sNRn, sD1n = 54, 55, 56, 57, 58, 59, 60
sT0 = 61
sOffK = 63
sQW = 3
sM = 68
sST = 76

L = []
def e(s): L.append("    " + s)
def lab(s): L.append(s + ":")
def vr(b, n): return f"v[{b}:{b+n-1}]"
def ar(b, n): return f"a[{b}:{b+n-1}]"
def emit(lines):
    for x in lines:
        if x.endswith(":"): L.append(x)
        else: e(x)
def stamp(idx):
    if opts["stamp"]:
        e(f"s_memtime s[{sST+2*idx}:{sST+1+2*idx}]")

SEQ = []
for si in range(8):
    ln = CU[si + 1] - CU[si]
    SEQ.append((CU[si], ln, (ln + 63) // 64, (ln + 31) // 32))

PLANS = {
    "a": [[(31, 4)]] * 4 + [[(25, 5)]] * 2 + [[(17, 4), (18, 2)], [(19, 5), (7, 2)], [(25, 3), (9, 3)], [(28, 2), (18, 2)],
          [(17, 5), (9, 2)], [(18, 5), (7, 2)]] + [[(28, 4)]] * 3 + [[(19, 5)]],
}

def plan_head():
    n2s = {SEQ[i][3]: i for i in range(8)}
    nxt = {i: 0 for i in range(8)}
    spec = PLANS[opts["plan"]]
    res = [[None] * len(s) for s in spec]
    for want in (2, 3, 4, 5):
        for i, s in enumerate(spec):
            for k, (n, t) in enumerate(s):
                if t == want:
                    si = n2s[n]
                    res[i][k] = (si, nxt[si], t); nxt[si] += 64 * t
    for i in range(8):
        assert nxt[i] == SEQ[i][2] * 64, (i, nxt[i])
    if opts["rev"]:
        res = [list(reversed(r)) for r in res]
    return res

def make_table():
    ph = plan_head()
    tab = []
    for wg in range(256):
        x, j = wg & 7, wg >> 3
        head = 2 * x + (j & 1)
        ent = []
        for (si, q0, t) in ph[j >> 1]:
            st, ln, nb, n = SEQ[si]
            ent += [st * ROWB + head * 256, ln | (q0 << 12) | (t << 24)]
        ent += [0] * (8 - len(ent))
        tab.append(ent)
    return tab

TAB = make_table()
TS = sorted({t for jl in PLANS[opts["plan"]] for _, t in jl}, reverse=True)
NWG = 256

MF = "v_mfma_f32_16x16x32_bf16"
def qreg(t, s):
    return vr(vQ + 16 * t + 4 * s, 4) if t < 4 else ar(aQ + 4 * s, 4)
def sreg(buf, t, a=0): return vS + 40 * buf + 8 * t + 4 * a
def preg(buf, t): return vP + 20 * buf + 4 * t

def qk1(buf, t, a, s, cinit):
    d = sreg(buf, t, a)
    return f"{MF} {vr(d,4)}, {ar(aKf+4*(a*4+s),4)}, {qreg(t,s)}, {vr(cinit if s == 0 else d,4)}"

def qk_mfmas(T, buf):
    return [qk1(buf, t, a, s, vNM + 4 * t) for a in range(2) for s in range(4) for t in range(T)]

def pv1(buf, t, dt, vf):
    o = aO + 32 * t + 4 * dt
    return f"{MF} {ar(o,4)}, {ar(vf+4*dt,4)}, {vr(preg(buf,t),4)}, {ar(o,4)}"

def pv_mfmas(T, buf, vf=aVf):
    return [pv1(buf, t, dt, vf) for dt in range(8) for t in range(T)]

def zero_mfmas(T):
    return [f"v_mfma_f32_32x32x16_bf16 {ar(aO+16*i,16)}, {vr(vE,4)}, {vr(vE,4)}, 0" for i in range(2 * T)]

def k_reads(slot):
    return [f"ds_read_b128 {ar(aKf+4*(a*4+s),4)}, v{vKa+s} offset:{slot*16384+a*8192}" for a in range(2) for s in range(4)]

def v_reads(slot, vf=aVf):
    return [f"ds_read_b64_tr_b16 {ar(vf+4*dt+2*a,2)}, v{vVa+dt} offset:{slot*16384+a*8192}" for dt in range(8) for a in range(2)]

def m0set(off):
    return f"s_add_u32 m0, s{sWB}, {off}" if off else f"s_mov_b32 m0, s{sWB}"
def ldv(j, so):
    return f"buffer_load_dwordx4 v{vDV+j}, s[{sV}:{sV+3}], s{so} offen" + (f" offset:{j*1024}" if j else "") + f"{LD} lds"
def ldk(j, so):
    return f"buffer_load_dwordx4 v{vDK+j}, s[{sK}:{sK+3}], s{so} offen offset:{2048+j*1024}{LD} lds"

def dma(slot):
    return [m0set(slot * 16384),
            f"s_add_u32 s{sOff}, s{sOff}, {TILEB}",
            f"s_add_u32 s{sOffK}, s{sOffK}, {TILEB}",
            ldv(0, sOff), ldv(1, sOff), ldk(0, sOffK), ldk(1, sOffK)]

def softmax_valu(T, buf, full=True):
    def ex(k, w):
        t, kk = divmod(k, 4)
        return (f"v_exp_f32 v{vE + 2*(k&1) + w}, v{sreg(buf,t) + 2*kk + w}", 8)
    def cons(k):
        t, kk = divmod(k, 4)
        a, b = vE + 2 * (k & 1), vE + 2 * (k & 1) + 1
        p = preg(buf, t) + kk
        if kk == 0:
            r = [(f"v_add_f32 v{vL+t}, v{vL+t}, v{vT+t}", 4)] if full else []
            return r + [(f"v_cvt_pk_bf16_f32 v{p}, v{a}, v{b}", 4), (f"v_add_f32 v{vT+t}, v{a}, v{b}", 4)]
        return [(f"v_add_f32 v{vU}, v{a}, v{b}", 4), (f"v_cvt_pk_bf16_f32 v{p}, v{a}, v{b}", 4),
                (f"v_add_f32 v{vT+t}, v{vT+t}, v{vU}", 4)]
    n = 4 * T
    r = [ex(0, 0), ex(0, 1)]
    for k in range(1, n):
        r += [ex(k, 0), ex(k, 1)] + cons(k - 1)
    r += [("s_nop 0", 4)] if False else []
    r += cons(n - 1)
    if full:
        m = [vT + t for t in range(T)]
        cur = m.pop(0)
        while m:
            if len(m) >= 2:
                r.append((f"v_max3_f32 v{vX}, v{cur}, v{m[0]}, v{m[1]}", 4)); m = m[2:]
            else:
                r.append((f"v_max_f32 v{vX}, v{cur}, v{m[0]}", 4)); m = []
            cur = vX
        r.append((f"v_cmp_lt_f32 vcc, s{sThr}, v{cur}", 4))
    return r

def pack(mf, fixed, valu, novalu=()):
    n = len(mf)
    def cost(x):
        t = x[0] if isinstance(x, tuple) else x
        return opts["lc"] if t.startswith("ds_read") else 4
    fc = [sum(cost(x) for x in fixed.get(g, [])) for g in range(n)]
    ok = [g for g in range(n) if g not in novalu]
    total = sum(fc[g] for g in ok) + sum(c for _, c in valu)
    out = []
    vi = acc = k = 0
    for g in range(n):
        out.append(mf[g])
        vs = []
        if g in ok:
            k += 1
            acc += fc[g]
            target = total * k / len(ok)
            while vi < len(valu) and (acc + valu[vi][1] / 2 <= target or g == ok[-1]):
                vs.append(valu[vi][0]); acc += valu[vi][1]; vi += 1
        out += fixed.get(g, []) + vs
    assert vi == len(valu)
    return out

STUBS = []
def check_rare(buf, tag):
    e(f"s_cbranch_vccnz Lrare_{tag}")
    lab(f"Lback_{tag}")
    STUBS.append((tag, buf))

def spread(items, gaps):
    d = {}
    gaps = list(gaps)
    for i, x in enumerate(items):
        d.setdefault(gaps[i * len(gaps) // len(items)], []).append(x)
    return d

def merge(*ds):
    r = {}
    for d in ds:
        for k, v in d.items():
            r.setdefault(k, []).extend(v)
    return r

def interleave(a, b):
    out = []
    if not a: return list(b)
    j = 0
    for i, x in enumerate(a):
        out.append(x)
        nj = (i + 1) * len(b) // len(a)
        out += b[j:nj]; j = nj
    return out

CNT = f"s_sub_u32 s{sCnt}, s{sCnt}, 1"

def step(T, t, first=False):
    p = t % 4
    b = t % 2
    h = 8 * T
    mf = qk_mfmas(T, b ^ 1)
    kr = k_reads((t + 2) % 4)
    d = dma((t + 1) % 4)
    sm = softmax_valu(T, b)
    if first:
        cut = len(sm) - 16
        emit(pack(mf, {}, sm[:cut]))
        e("s_waitcnt vmcnt(8)")
        e("s_barrier")
        emit(interleave(kr + d + [CNT], [x for x, _ in sm[cut:]]))
        check_rare(b, f"t{T}f")
        return
    mf = mf + pv_mfmas(T, b ^ 1)
    n = 2 * h
    vrd = v_reads((t + 1) % 4)
    fixed = merge(spread(vrd, range(0, h * 3 // 4)),
                  {h - 1: ["s_waitcnt vmcnt(8) lgkmcnt(0)", "s_barrier"]},
                  spread(kr, range(h, h + h // 2)),
                  spread(d, range(h + h // 2 - 3, h + h // 2 - 3 + max(7, h * 3 // 8))),
                  {n - 2: [CNT]})
    e("s_waitcnt lgkmcnt(0)")
    for x in pack(mf, fixed, sm, (h - 1, n - 1)):
        if "d" in DG and x.startswith("buffer_load"): continue
        if "b" in DG and x.startswith("s_barrier"): continue
        if "l" in DG and x.startswith("ds_read"): continue
        e(x)
    check_rare(b, f"t{T}s{p}")

def qgroup(g):
    r = [f"s_add_u32 m0, s{sQW}, {g*4096}" if g else f"s_mov_b32 m0, s{sQW}",
         f"s_add_u32 s{sT0}, s{sQoffn}, {g*16*ROWB}"]
    if g >= 2:
        r += [f"s_cmp_gt_u32 s{sTn}, {g}", f"s_cselect_b32 s{sT0}, s{sT0}, s{sBig}"]
    r += [f"buffer_load_dwordx4 v{vQd+i}, s[{sQ}:{sQ+3}], s{sT0} offen offset:{i*1024}{LD} lds" for i in range(4)]
    return r

def ktile(u):
    return [m0set(u * 16384), f"s_add_u32 s{sT0}, s{sD0}, {(u-1)*TILEB}", ldk(0, sT0), ldk(1, sT0)]
def vtile(u):
    so = sLast if u == 0 else sD0
    return [m0set(((u + 2) % 4) * 16384), "s_nop 0", ldv(0, so), ldv(1, so)]

def next_a():
    return [m0set(0), f"s_add_u32 s{sK+2}, s{sNRn}, 4096", ldk(0, sLastn), ldk(1, sLastn)] + qgroup(0) + qgroup(1) + qgroup(2)
def next_b():
    return qgroup(3) + qgroup(4)

def tail(T, p):
    b = p % 2
    lab(f"Ltail{T}_{p}")
    stamp(3)
    vrd = v_reads((p + 1) % 4)
    vrd2 = v_reads((p + 2) % 4, aKf)
    sm = softmax_valu(T, b)
    j = 20
    emit(interleave(vrd, [x for x, _ in sm[:j]]))
    e("s_waitcnt vmcnt(8) lgkmcnt(0)")
    e("s_barrier")
    mf = pv_mfmas(T, b ^ 1)
    fixed = merge(spread(vrd2, range(len(mf) * 3 // 4)), spread(next_a(), range(len(mf))))
    emit(pack(mf, fixed, sm[j:]))
    check_rare(b, f"t{T}t{p}")
    e(f"s_branch Lfin{T}_{b}")

def xlane(op, regs, tmp):
    r = []
    for sw in ("v_permlane32_swap_b32", "v_permlane16_swap_b32"):
        r += [f"v_mov_b32 v{tmp+i}, v{x}" for i, x in enumerate(regs)]
        r += ["s_nop 1"]
        r += [f"{sw} v{x}, v{tmp+i}" for i, x in enumerate(regs)]
        r += ["s_nop 1"]
        r += [f"{op} v{x}, v{x}, v{tmp+i}" for i, x in enumerate(regs)]
    return r

vOA = vNM
def epi_convert(t):
    r = []
    for dt in range(8):
        x = vX + 4 * (dt & 1)
        pk = vQ + 16 * (t & 1) + 2 * dt
        r += [f"v_accvgpr_read_b32 v{x+i}, a{aO+32*t+4*dt+i}" for i in range(4)]
        r += [f"v_mul_f32 v{x+i}, v{x+i}, v{vL+t}" for i in range(4)]
        r += [f"v_cvt_pk_bf16_f32 v{pk}, v{x}, v{x+1}", f"v_cvt_pk_bf16_f32 v{pk+1}, v{x+2}, v{x+3}",
              f"ds_write_b64 v{vOA+dt}, {vr(pk,2)}"]
    return r
def epi_reads(t):
    return [f"ds_read_b128 {vr(vS+16*t+4*i,4)}, v{vOr} offset:{i*1024}" for i in range(4)]
def epi_stores(t):
    return [f"s_add_u32 s{sT0}, s{sOoff}, {t*16*ROWB}"] + \
           [f"buffer_store_dwordx4 {vr(vS+16*t+4*i,4)}, v{vQd+i}, s[{sOut}:{sOut+3}], s{sT0} offen offset:{i*1024}{ST}" for i in range(4)]

def epi_pre(T):
    return 11 * min(8, max(0, (8 * (T - 2) * 2) // 11))

def fin(T, b):
    lab(f"Lfin{T}_{b}")
    e("s_waitcnt lgkmcnt(0)")
    mf = [pv1(b, t, dt, aKf) for t in range(T) for dt in range(8)]
    regs = [vL + t for t in range(T)]
    ls = [f"v_add_f32 v{vL+t}, v{vL+t}, v{vT+t}" for t in range(T)] + xlane("v_add_f32", regs, vX) + \
         [f"v_rcp_f32 v{x}, v{x}" for x in regs] + [f"v_xor_b32 v{vOA+dt}, {dt*32}, v{vOw}" for dt in range(8)]
    fixed = merge(spread(ls, range(16)), spread(next_b(), range(len(mf))))
    if T > 2:
        fixed = merge(fixed, spread(epi_convert(0)[:epi_pre(T)], range(16, len(mf))))
    emit(pack(mf, fixed, []))
    if b == 0: e(f"s_branch Lepi{T}")

def first_max(t):
    s0 = sreg(0, t)
    m = vX + 4
    r = [f"v_max3_f32 v{m}, v{s0}, v{s0+1}, v{s0+2}", f"v_max3_f32 v{m}, v{m}, v{s0+3}, v{s0+4}",
         f"v_max3_f32 v{m}, v{m}, v{s0+5}, v{s0+6}", f"v_max_f32 v{m}, v{m}, v{s0+7}"]
    r += xlane("v_max_f32", [m], vX + 5)
    r += [f"v_sub_f32 v{vNM+4*t+i}, 0, v{m}" for i in range(4)]
    r += [f"v_sub_f32 v{s0+i}, v{s0+i}, v{m}" for i in range(8)]
    return r

def qraw(t):
    return vQ + 16 * t if t < 4 else sreg(1, 3)
def prescale(t):
    r = []
    for k in range(16):
        q = qraw(t) + k
        a, b = vX + 2 * (k & 1), vX + 2 * (k & 1) + 1
        r += [f"v_lshlrev_b32 v{a}, 16, v{q}", f"v_and_b32 v{b}, 0xffff0000, v{q}",
              f"v_mul_f32 v{a}, s{sC}, v{a}", f"v_mul_f32 v{b}, s{sC}, v{b}", f"v_cvt_pk_bf16_f32 v{q}, v{a}, v{b}"]
        if t == 4: r.append(f"v_accvgpr_write_b32 a{aQ+k}, v{q}")
    return r

vMK = vP
def prologue(T):
    lab(f"Lpro{T}")
    for s in range(4):
        e(f"v_xor_b32 v{vX+8+s}, {s*64}, v{vQa}")
    e(f"v_sub_u32 v{vX}, s{sRem}, v{vG4}")
    e(f"v_mov_b32 v{vX+1}, s{sNeg}")
    for a in range(2):
        for i in range(4):
            e(f"v_cmp_lt_i32 s[{sM+2*i}:{sM+2*i+1}], {16*a+i}, v{vX}")
        e("s_nop 0")
        for i in range(4):
            e(f"v_cndmask_b32 v{vMK+4*a+i}, v{vX+1}, 0, s[{sM+2*i}:{sM+2*i+1}]")
    for t in range(T):
        e(f"v_mov_b32 v{vL+t}, 0")
        e(f"v_mov_b32 v{vT+t}, 0")
    for i in range(4):
        e(f"v_mov_b32 v{vE+i}, 0")
    def qreads(t):
        return [f"ds_read_b128 {vr(qraw(t)+4*s,4)}, v{vX+8+s} offset:{t*4096}" for s in range(4)]
    def qk0(t):
        return [qk1(0, t, a, s, vMK + 4 * a) for a in range(2) for s in range(4)]
    extra = 0
    later = [ktile(1) + ktile(2), vtile(0) + ktile(3) + vtile(1)]
    e(f"s_waitcnt vmcnt(16)")
    emit(qreads(0))
    e("s_barrier")
    emit(k_reads(0))
    for t in range(T):
        ps = prescale(t)
        mfs = (zero_mfmas(T) if t == 0 else qk0(t - 1))
        fm = first_max(t - 2) if t >= 2 else []
        half = len(ps) // 2
        e(f"s_waitcnt lgkmcnt({8 if t == 0 else 0})")
        emit(interleave(mfs, ps[:half]))
        if t == T - 2 or t == T - 1:
            g = later.pop(0); emit(g); extra += sum(x.startswith("buffer") for x in g)
        if t + 1 < T:
            e(f"s_waitcnt vmcnt({4*(3-t)+extra})")
            emit(qreads(t + 1))
        emit(ps[half:])
        emit(fm)
    stamp(1)
    if opts["stamp"]: e("s_waitcnt lgkmcnt(0)")
    e("s_nop 0")
    emit(interleave(qk0(T - 1), first_max(T - 2)))
    e("s_waitcnt vmcnt(8)")
    e("s_barrier")
    emit(k_reads(1))
    emit(dma(0))
    emit(first_max(T - 1))
    e("s_waitcnt lgkmcnt(0)")
    step(T, 0, first=True)
    stamp(2)
    e(".p2align 3")
    lab(f"Lloop{T}")
    for t in (1, 2, 3, 4):
        e(f"s_cbranch_scc1 Ltail{T}_{t%4}")
        step(T, t)
    e(f"s_branch Lloop{T}")
    for p in range(4):
        tail(T, p)
    for b in range(2):
        fin(T, b)

def stamp_store(final=False):
    if not opts["stamp"]: return
    B = vP + 20
    e("s_waitcnt lgkmcnt(0)")
    e("s_mov_b32 s92, s90"); e("s_mov_b32 s93, s91"); e("s_mov_b32 s94, 0x100000"); e("s_mov_b32 s95, 0x20000")
    e(f"s_lshl_b32 s96, s2, 2"); e(f"s_add_u32 s96, s96, s{sW}"); e("s_lshl_b32 s96, s96, 2")
    if final: e("s_add_u32 s96, s96, 3")
    else: e("s_add_u32 s96, s96, s97"); e("s_add_u32 s97, s97, 1")
    e("s_lshl_b32 s96, s96, 5")
    for i in range(5): e(f"v_mov_b32 v{B+i}, s{sST+2*i}")
    e(f"v_mov_b32 v{B+5}, s{sST+10}"); e(f"v_mov_b32 v{B+6}, s{sST+12}"); e(f"v_mov_b32 v{B+7}, s98")
    e(f"v_mov_b32 v{B+8}, 0")
    e("s_mov_b64 exec, 1")
    e(f"buffer_store_dwordx4 {vr(B,4)}, v{B+8}, s[92:95], s96 offen")
    e(f"buffer_store_dwordx4 {vr(B+4,4)}, v{B+8}, s[92:95], s96 offen offset:16")
    e("s_mov_b64 exec, -1")
    e("s_nop 2")

def epilogue(T):
    lab(f"Lepi{T}")
    stamp(4)
    if opts["stamp"]: e(f"s_memrealtime s[{sST+12}:{sST+13}]")
    stamp_store()
    emit(epi_convert(0)[epi_pre(T):])
    emit(epi_reads(0))
    for t in range(1, T):
        cv = epi_convert(t)
        emit(cv[:21])
        e("s_waitcnt lgkmcnt(1)")
        emit(interleave(epi_stores(t - 1), cv[21:]))
        emit(epi_reads(t))
    n = 4
    for x in epi_stores(T - 1):
        if x.startswith("buffer"):
            n -= 1
            e(f"s_waitcnt lgkmcnt({n})")
        e(x)
    e(f"s_cmp_eq_u32 s{sD1n}, 0")
    e("s_cbranch_scc1 Ldone")
    e(f"s_waitcnt vmcnt({4*T})")
    e("s_branch Lstart")

def gen():
    L.append(open(os.path.join(os.path.dirname(os.path.abspath(__file__)), "header.txt")).read().rstrip())
    L.append(f"; @launch grid=({NWG},1,1) block=(256,1,1) lds={LDSZ}")
    L.append('.amdgcn_target "amdgcn-amd-amdhsa--gfx950"')
    L.append(".text")
    L.append(f".globl {NAME}_kernel")
    L.append(".p2align 8")
    L.append(f".type {NAME}_kernel,@function")
    lab(f"{NAME}_kernel")
    e(f"s_cmp_ge_u32 s2, {NWG}")
    e("s_cbranch_scc1 Lend")
    e(f"s_getpc_b64 s[{sPC}:{sPC+1}]")
    lab("Lpc")
    e("s_load_dwordx4 s[4:7], s[0:1], 0")
    e("s_load_dwordx2 s[8:9], s[0:1], 16")
    e("s_load_dwordx2 s[10:11], s[0:1], 32")
    e(f"s_add_u32 s{sPC}, s{sPC}, Ltab-Lpc")
    e(f"s_addc_u32 s{sPC+1}, s{sPC+1}, 0")
    e("s_lshl_b32 s3, s2, 5")
    e(f"s_load_dwordx8 s[{sJ}:{sJ+7}], s[{sPC}:{sPC+1}], s3")
    if opts["stamp"]:
        e("s_load_dwordx2 s[90:91], s[0:1], 48")
        e("s_memrealtime s[100:101]")
        e("s_mov_b32 s97, 0")
    w, ln, i16, g, x4, x5, x6 = range(vX, vX + 7)
    e(f"v_lshrrev_b32 v{w}, 6, v0")
    e(f"v_and_b32 v{ln}, 63, v0")
    e(f"v_readfirstlane_b32 s{sW}, v{w}")
    e(f"v_and_b32 v{i16}, 15, v{ln}")
    e(f"v_lshrrev_b32 v{g}, 4, v{ln}")
    e(f"v_xor_b32 v{x6}, v{i16}, v{g}")
    e(f"v_lshlrev_b32 v{x6}, 4, v{x6}")
    e(f"v_bfe_u32 v{x4}, v{ln}, 3, 1")
    e(f"v_lshlrev_b32 v{x4}, 12, v{x4}")
    e(f"v_and_b32 v{x5}, 7, v{ln}")
    e(f"v_lshl_add_u32 v{x4}, v{x5}, 8, v{x4}")
    e(f"v_add3_u32 v{vKa}, v{x4}, v{x6}, 0")
    e(f"v_add_u32 v{vKa}, 2048, v{vKa}")
    for s in range(1, 4):
        e(f"v_xor_b32 v{vKa+s}, {s*64}, v{vKa}")
    e(f"v_mul_u32_u24 v{x4}, {QW}, v{w}")
    e(f"v_lshl_add_u32 v{x4}, v{i16}, 8, v{x4}")
    e(f"v_add3_u32 v{x4}, v{x4}, v{x6}, 0")
    e(f"v_add_u32 v{vQa}, {QS}, v{x4}")
    e(f"v_lshlrev_b32 v{x4}, 12, v{w}")
    e(f"v_add_u32 v{x4}, {OS}, v{x4}")
    e(f"v_lshl_add_u32 v{vOr}, v{ln}, 4, v{x4}")
    e(f"v_lshl_add_u32 v{x4}, v{i16}, 8, v{x4}")
    e(f"v_lshrrev_b32 v{x5}, 1, v{g}")
    e(f"v_xor_b32 v{x5}, v{x5}, v{i16}")
    e(f"v_lshl_add_u32 v{x4}, v{x5}, 4, v{x4}")
    e(f"v_and_b32 v{x5}, 1, v{g}")
    e(f"v_lshl_add_u32 v{vOw}, v{x5}, 3, v{x4}")
    e(f"v_lshrrev_b32 v{x4}, 1, v{g}")
    e(f"v_lshlrev_b32 v{x4}, 12, v{x4}")
    e(f"v_mul_u32_u24 v{x5}, {4*256+32}, v{x5}")
    e(f"v_add_u32 v{x4}, v{x4}, v{x5}")
    e(f"v_lshrrev_b32 v{x5}, 2, v{i16}")
    e(f"v_mul_u32_u24 v{x5}, {256+64}, v{x5}")
    e(f"v_add_u32 v{x4}, v{x4}, v{x5}")
    e(f"v_and_b32 v{x5}, 3, v{ln}")
    e(f"v_lshl_add_u32 v{vVa}, v{x5}, 3, v{x4}")
    for dt in range(1, 8):
        e(f"v_xor_b32 v{vVa+dt}, {dt*32}, v{vVa}")
    e(f"v_lshlrev_b32 v{vG4}, 2, v{g}")
    e(f"v_lshl_add_u32 v{vQd}, v{g}, 12, v{x6}")
    for i in range(1, 4):
        e(f"v_xor_b32 v{vQd+i}, {i*64}, v{vQd}")
        e(f"v_add_u32 v{vQd+i}, {i*(4*ROWB-1024)}, v{vQd+i}")
    e(f"v_lshl_add_u32 v{x5}, v{w}, 3, v{g}")
    e(f"v_xor_b32 v{x4}, v{vG4}, v{i16}")
    e(f"v_lshlrev_b32 v{x4}, 4, v{x4}")
    e(f"v_lshl_add_u32 v{vDV}, v{x5}, 12, v{x4}")
    e(f"v_xor_b32 v{vDV+1}, 32, v{vDV}")
    e(f"v_add_u32 v{vDV+1}, {4*ROWB-1024}, v{vDV+1}")
    e(f"v_and_b32 v{x4}, 15, v{x5}")
    e(f"v_xor_b32 v{x4}, v{x4}, v{i16}")
    e(f"v_lshlrev_b32 v{x4}, 4, v{x4}")
    e(f"v_lshl_add_u32 v{vDK}, v{x5}, 12, v{x4}")
    e(f"v_xor_b32 v{vDK+1}, 64, v{vDK}")
    e(f"v_add_u32 v{vDK}, {4096-2048}, v{vDK}")
    e(f"v_add_u32 v{vDK+1}, {4*ROWB+4096-3072}, v{vDK+1}")
    e(f"s_lshl_b32 s{sWB}, s{sW}, 12")
    e(f"s_mov_b32 s{sThr}, {hex(f32bits(4096.0))}")
    e(f"s_mov_b32 s{sC}, {hex(f32bits(128 ** -0.5 * math.log2(math.e)))}")
    e(f"s_mov_b32 s{sNeg}, {hex(f32bits(-1e30))}")
    e(f"s_mov_b32 s{sBig}, 0x40000000")
    e(f"s_mul_i32 s{sQW}, s{sW}, {QW}")
    e(f"s_add_u32 s{sQW}, s{sQW}, {QS}")
    e("s_waitcnt lgkmcnt(0)")
    for srd, ptr in ((sQ, 4), (sK, 6), (sV, 8), (sOut, 10)):
        e(f"s_mov_b32 s{srd}, s{ptr}")
        e(f"s_mov_b32 s{srd+1}, s{ptr+1}")
        e(f"s_mov_b32 s{srd+2}, 0")
        e(f"s_mov_b32 s{srd+3}, 0x20000")
    e(f"s_sub_u32 s{sK}, s{sK}, 4096")
    e(f"s_subb_u32 s{sK+1}, s{sK+1}, 0")
    def decode():
        e(f"s_mov_b32 s{sD0n}, s{sJ}")
        e(f"s_mov_b32 s{sD1n}, s{sJ+1}")
        e(f"s_mov_b64 s[{sJ}:{sJ+1}], s[{sJ+2}:{sJ+3}]")
        e(f"s_mov_b64 s[{sJ+2}:{sJ+3}], s[{sJ+4}:{sJ+5}]")
        e(f"s_mov_b64 s[{sJ+4}:{sJ+5}], s[{sJ+6}:{sJ+7}]")
        e(f"s_and_b32 s{sT0}, s{sD1n}, 0xfff")
        e(f"s_lshl_b32 s{sNRn}, s{sT0}, 12")
        e(f"s_add_u32 s{sNRn}, s{sNRn}, s{sD0n}")
        e(f"s_sub_u32 s{sNRn}, s{sNRn}, {ROWB-256}")
        e(f"s_sub_u32 s{sT0}, s{sT0}, 1")
        e(f"s_and_b32 s{sT0}, s{sT0}, 0xfe0")
        e(f"s_lshl_b32 s{sT0}, s{sT0}, 12")
        e(f"s_add_u32 s{sLastn}, s{sT0}, s{sD0n}")
        e(f"s_cmp_lg_u32 s{sD1n}, 0")
        e(f"s_cselect_b32 s{sNRn}, s{sNRn}, 0")
        e(f"s_mov_b32 s{sQ+2}, s{sNRn}")
        e(f"s_lshr_b32 s{sTn}, s{sD1n}, 24")
        e(f"s_mul_i32 s{sT0}, s{sTn}, s{sW}")
        e(f"s_lshl_b32 s{sT0}, s{sT0}, 16")
        e(f"s_and_b32 s{sQoffn}, s{sD1n}, 0xfff000")
        e(f"s_add_u32 s{sQoffn}, s{sQoffn}, s{sD0n}")
        e(f"s_add_u32 s{sQoffn}, s{sQoffn}, s{sT0}")
    decode()
    emit(next_a() + next_b())
    lab("Lstart")
    e(f"s_mov_b32 s{sD0}, s{sD0n}")
    e(f"s_mov_b32 s{sD1}, s{sD1n}")
    e(f"s_mov_b32 s{sLast}, s{sLastn}")
    e(f"s_mov_b32 s{sOut+2}, s{sNRn}")
    e(f"s_mov_b32 s{sV+2}, s{sNRn}")
    e(f"s_mov_b32 s{sOoff}, s{sQoffn}")
    decode()
    e(f"s_and_b32 s{sL}, s{sD1}, 0xfff")
    e(f"s_add_u32 s{sN}, s{sL}, 31")
    e(f"s_lshr_b32 s{sN}, s{sN}, 5")
    e(f"s_sub_u32 s{sCnt}, s{sN}, 2")
    e(f"s_sub_u32 s{sT0}, s{sN}, 1")
    e(f"s_lshl_b32 s{sT0}, s{sT0}, 5")
    e(f"s_sub_u32 s{sRem}, s{sL}, s{sT0}")
    e(f"s_mov_b32 s{sOff}, s{sD0}")
    e(f"s_add_u32 s{sOffK}, s{sD0}, {2*TILEB}")
    stamp(0)
    e(f"s_lshr_b32 s{sT0}, s{sD1}, 24")
    if opts["stamp"]:
        e(f"s_memrealtime s[{sST+10}:{sST+11}]")
        e(f"s_lshl_b32 s98, s{sT0}, 8"); e(f"s_add_u32 s98, s98, s{sN}")
        e("s_waitcnt lgkmcnt(0)")
    order = sorted(TS, key=lambda t: (t != 4, -t))
    for T in order[1:]:
        e(f"s_cmp_eq_u32 s{sT0}, {T}")
        e(f"s_cbranch_scc1 Lpro{T}")
    for T in order:
        prologue(T)
        epilogue(T)
    lab("Ldone")
    if opts["stamp"]:
        e("s_waitcnt vmcnt(0)")
        stamp(0)
        e(f"s_memrealtime s[{sST+12}:{sST+13}]")
        e(f"s_mov_b32 s{sST+10}, s100")
        e("s_getreg_b32 s98, hwreg(HW_REG_HW_ID)")
        stamp_store(True)
    lab("Lend")
    e("s_endpgm")

    for tag, buf in STUBS:
        lab(f"Lrare_{tag}")
        e(f"s_call_b64 s[{sRet}:{sRet+1}], Lresc_{buf}")
        e(f"s_branch Lback_{tag}")
    for b in range(2):
        lab(f"Lresc_{b}")
        e("s_nop 15")
        for t in range(TM):
            s, s2 = sreg(b, t), sreg(b ^ 1, t)
            dl, al = vX, vX + 2 + t
            e(f"v_max3_f32 v{dl}, v{s}, v{s+1}, v{s+2}")
            e(f"v_max3_f32 v{dl}, v{dl}, v{s+3}, v{s+4}")
            e(f"v_max3_f32 v{dl}, v{dl}, v{s+5}, v{s+6}")
            e(f"v_max3_f32 v{dl}, v{dl}, v{s+7}, 0")
            emit(xlane("v_max_f32", [dl], vX + 1))
            e(f"v_sub_f32 v{al}, 0, v{dl}")
            e(f"v_exp_f32 v{al}, v{al}")
            for i in range(8):
                e(f"v_sub_f32 v{s+i}, v{s+i}, v{dl}")
                e(f"v_sub_f32 v{s2+i}, v{s2+i}, v{dl}")
            for i in range(4):
                e(f"v_sub_f32 v{vNM+4*t+i}, v{vNM+4*t+i}, v{dl}")
            e(f"v_mul_f32 v{vL+t}, v{vL+t}, v{al}")
        for x, _ in softmax_valu(TM, b, False): e(x)
        if b == 0: e("s_branch LrescO")
    lab("LrescO")
    for t in range(TM):
        for i in range(0, 32, 4):
            for k in range(4): e(f"v_accvgpr_read_b32 v{vX+8+k}, a{aO+32*t+i+k}")
            for k in range(4): e(f"v_mul_f32 v{vX+8+k}, v{vX+8+k}, v{vX+2+t}")
            for k in range(4): e(f"v_accvgpr_write_b32 a{aO+32*t+i+k}, v{vX+8+k}")
    e("s_nop 1")
    e(f"s_setpc_b64 s[{sRet}:{sRet+1}]")

    e(".p2align 5")
    L.append(".type Ltab,@object")
    lab("Ltab")
    for ent in TAB:
        e(".long " + ", ".join(str(x) for x in ent))
    L.append('.section .rodata,"a"')
    L.append(".p2align 6")
    L.append(f".amdhsa_kernel {NAME}_kernel")
    L.append("  .amdhsa_next_free_vgpr 512")
    L.append("  .amdhsa_next_free_sgpr 102")
    L.append("  .amdhsa_accum_offset 256")
    L.append("  .amdhsa_group_segment_fixed_size 0")
    L.append("  .amdhsa_kernarg_size 56")
    L.append("  .amdhsa_user_sgpr_count 2")
    L.append("  .amdhsa_user_sgpr_kernarg_segment_ptr 1")
    L.append("  .amdhsa_system_sgpr_workgroup_id_x 1")
    L.append(".end_amdhsa_kernel")

gen()
open(sys.argv[1], "w").write("\n".join(L) + "\n")
```

```python
import sys, struct, math, os

NAME = "standalone__varlen_attn_packed__ragged"
CU = [0, 534, 1426, 1714, 2675, 3469, 4036, 4628, 4845]
ROWB = 4096
TILEB = 32 * ROWB
QS = 65536
QW = 20480
OS = QS + 4 * QW
LDSZ = 163840
TM = 5

opts = dict(stamp=0, st="sc0+sc1", ld="nt", plan="a", rev=1, lc=4)
for a in sys.argv[2:]:
    k, v = a.split("=")
    opts[k] = int(v) if v.lstrip("-").isdigit() else v
LD = (" " + opts["ld"].replace("+", " ")) if opts["ld"] else ""
ST = (" " + opts["st"].replace("+", " ")) if opts["st"] else ""
DG = str(opts.get("diag", ""))

def f32bits(x):
    return struct.unpack("<I", struct.pack("<f", x))[0]

vQ = 0
vS = 64
vP = 144
vNM = 184
vKa = 204
vVa = 208
vDK = 216
vDV = 218
vQd = 220
vE = 224
vT = 228
vL = 233
vU = 238
vQa = 239
vOw = 240
vOr = 241
vG4 = 242
vX = 244
aO = 0
aKf = 160
aVf = 192
aQ = 224

sQ, sK, sV, sOut = 12, 16, 20, 24
sJ = 28
sD0, sD1 = 36, 37
sL, sN, sOff, sWB, sCnt, sLast, sThr, sC, sNeg, sW = 38, 39, 40, 41, 42, 43, 44, 45, 46, 47
sRet, sPC = 48, 52
sTn, sLastn = 50, 51
sRem, sQoffn, sOoff, sBig, sD0n, sNRn, sD1n = 54, 55, 56, 57, 58, 59, 60
sT0 = 61
sOffK = 63
sQW = 3
sM = 68
sST = 76

L = []
def e(s): L.append("    " + s)
def lab(s): L.append(s + ":")
def vr(b, n): return f"v[{b}:{b+n-1}]"
def ar(b, n): return f"a[{b}:{b+n-1}]"
def emit(lines):
    for x in lines:
        if x.endswith(":"): L.append(x)
        else: e(x)
def stamp(idx):
    if opts["stamp"]:
        e(f"s_memtime s[{sST+2*idx}:{sST+1+2*idx}]")

SEQ = []
for si in range(8):
    ln = CU[si + 1] - CU[si]
    SEQ.append((CU[si], ln, (ln + 63) // 64, (ln + 31) // 32))

PLANS = {
    "a": [[(31, 4)]] * 4 + [[(25, 5)]] * 2 + [[(17, 4), (18, 2)], [(19, 5), (7, 2)], [(25, 3), (9, 3)], [(28, 2), (18, 2)],
          [(17, 5), (9, 2)], [(18, 5), (7, 2)]] + [[(28, 4)]] * 3 + [[(19, 5)]],
}

def plan_head():
    n2s = {SEQ[i][3]: i for i in range(8)}
    nxt = {i: 0 for i in range(8)}
    spec = PLANS[opts["plan"]]
    res = [[None] * len(s) for s in spec]
    for want in (2, 3, 4, 5):
        for i, s in enumerate(spec):
            for k, (n, t) in enumerate(s):
                if t == want:
                    si = n2s[n]
                    res[i][k] = (si, nxt[si], t); nxt[si] += 64 * t
    for i in range(8):
        assert nxt[i] == SEQ[i][2] * 64, (i, nxt[i])
    if opts["rev"]:
        res = [list(reversed(r)) for r in res]
    return res

def make_table():
    ph = plan_head()
    tab = []
    for wg in range(256):
        x, j = wg & 7, wg >> 3
        head = 2 * x + (j & 1)
        ent = []
        for (si, q0, t) in ph[j >> 1]:
            st, ln, nb, n = SEQ[si]
            ent += [st * ROWB + head * 256, ln | (q0 << 12) | (t << 24)]
        ent += [0] * (8 - len(ent))
        tab.append(ent)
    return tab

TAB = make_table()
TS = sorted({t for jl in PLANS[opts["plan"]] for _, t in jl}, reverse=True)
NWG = 256

MF = "v_mfma_f32_16x16x32_bf16"
def qreg(t, s):
    return vr(vQ + 16 * t + 4 * s, 4) if t < 4 else ar(aQ + 4 * s, 4)
def sreg(buf, t, a=0): return vS + 40 * buf + 8 * t + 4 * a
def preg(buf, t): return vP + 20 * buf + 4 * t

def qk1(buf, t, a, s, cinit):
    d = sreg(buf, t, a)
    return f"{MF} {vr(d,4)}, {ar(aKf+4*(a*4+s),4)}, {qreg(t,s)}, {vr(cinit if s == 0 else d,4)}"

def qk_mfmas(T, buf):
    return [qk1(buf, t, a, s, vNM + 4 * t) for a in range(2) for s in range(4) for t in range(T)]

def pv1(buf, t, dt, vf):
    o = aO + 32 * t + 4 * dt
    return f"{MF} {ar(o,4)}, {ar(vf+4*dt,4)}, {vr(preg(buf,t),4)}, {ar(o,4)}"

def pv_mfmas(T, buf, vf=aVf):
    return [pv1(buf, t, dt, vf) for dt in range(8) for t in range(T)]

def zero_mfmas(T):
    return [f"v_mfma_f32_32x32x16_bf16 {ar(aO+16*i,16)}, {vr(vE,4)}, {vr(vE,4)}, 0" for i in range(2 * T)]

def k_reads(slot):
    return [f"ds_read_b128 {ar(aKf+4*(a*4+s),4)}, v{vKa+s} offset:{slot*16384+a*8192}" for a in range(2) for s in range(4)]

def v_reads(slot, vf=aVf):
    return [f"ds_read_b64_tr_b16 {ar(vf+4*dt+2*a,2)}, v{vVa+dt} offset:{slot*16384+a*8192}" for dt in range(8) for a in range(2)]

def m0set(off):
    return f"s_add_u32 m0, s{sWB}, {off}" if off else f"s_mov_b32 m0, s{sWB}"
def ldv(j, so):
    return f"buffer_load_dwordx4 v{vDV+j}, s[{sV}:{sV+3}], s{so} offen" + (f" offset:{j*1024}" if j else "") + f"{LD} lds"
def ldk(j, so):
    return f"buffer_load_dwordx4 v{vDK+j}, s[{sK}:{sK+3}], s{so} offen offset:{2048+j*1024}{LD} lds"

def dma(slot):
    return [m0set(slot * 16384),
            f"s_add_u32 s{sOff}, s{sOff}, {TILEB}",
            f"s_add_u32 s{sOffK}, s{sOffK}, {TILEB}",
            ldv(0, sOff), ldv(1, sOff), ldk(0, sOffK), ldk(1, sOffK)]

def softmax_valu(T, buf, full=True):
    def ex(k, w):
        t, kk = divmod(k, 4)
        return (f"v_exp_f32 v{vE + 2*(k&1) + w}, v{sreg(buf,t) + 2*kk + w}", 8)
    def cons(k):
        t, kk = divmod(k, 4)
        a, b = vE + 2 * (k & 1), vE + 2 * (k & 1) + 1
        p = preg(buf, t) + kk
        if kk == 0:
            r = [(f"v_add_f32 v{vL+t}, v{vL+t}, v{vT+t}", 4)] if full else []
            return r + [(f"v_cvt_pk_bf16_f32 v{p}, v{a}, v{b}", 4), (f"v_add_f32 v{vT+t}, v{a}, v{b}", 4)]
        return [(f"v_add_f32 v{vU}, v{a}, v{b}", 4), (f"v_cvt_pk_bf16_f32 v{p}, v{a}, v{b}", 4),
                (f"v_add_f32 v{vT+t}, v{vT+t}, v{vU}", 4)]
    n = 4 * T
    r = [ex(0, 0), ex(0, 1)]
    for k in range(1, n):
        r += [ex(k, 0), ex(k, 1)] + cons(k - 1)
    r += [("s_nop 0", 4)] if False else []
    r += cons(n - 1)
    if full:
        m = [vT + t for t in range(T)]
        cur = m.pop(0)
        while m:
            if len(m) >= 2:
                r.append((f"v_max3_f32 v{vX}, v{cur}, v{m[0]}, v{m[1]}", 4)); m = m[2:]
            else:
                r.append((f"v_max_f32 v{vX}, v{cur}, v{m[0]}", 4)); m = []
            cur = vX
        r.append((f"v_cmp_lt_f32 vcc, s{sThr}, v{cur}", 4))
    return r

def pack(mf, fixed, valu, novalu=()):
    n = len(mf)
    def cost(x):
        t = x[0] if isinstance(x, tuple) else x
        return opts["lc"] if t.startswith("ds_read") else 4
    fc = [sum(cost(x) for x in fixed.get(g, [])) for g in range(n)]
    ok = [g for g in range(n) if g not in novalu]
    total = sum(fc[g] for g in ok) + sum(c for _, c in valu)
    out = []
    vi = acc = k = 0
    for g in range(n):
        out.append(mf[g])
        vs = []
        if g in ok:
            k += 1
            acc += fc[g]
            target = total * k / len(ok)
            while vi < len(valu) and (acc + valu[vi][1] / 2 <= target or g == ok[-1]):
                vs.append(valu[vi][0]); acc += valu[vi][1]; vi += 1
        out += fixed.get(g, []) + vs
    assert vi == len(valu)
    return out

STUBS = []
def check_rare(buf, tag):
    e(f"s_cbranch_vccnz Lrare_{tag}")
    lab(f"Lback_{tag}")
    STUBS.append((tag, buf))

def spread(items, gaps):
    d = {}
    gaps = list(gaps)
    for i, x in enumerate(items):
        d.setdefault(gaps[i * len(gaps) // len(items)], []).append(x)
    return d

def merge(*ds):
    r = {}
    for d in ds:
        for k, v in d.items():
            r.setdefault(k, []).extend(v)
    return r

def interleave(a, b):
    out = []
    if not a: return list(b)
    j = 0
    for i, x in enumerate(a):
        out.append(x)
        nj = (i + 1) * len(b) // len(a)
        out += b[j:nj]; j = nj
    return out

CNT = f"s_sub_u32 s{sCnt}, s{sCnt}, 1"

def step(T, t, first=False):
    p = t % 4
    b = t % 2
    h = 8 * T
    mf = qk_mfmas(T, b ^ 1)
    kr = k_reads((t + 2) % 4)
    d = dma((t + 1) % 4)
    sm = softmax_valu(T, b)
    if first:
        cut = len(sm) - 16
        emit(pack(mf, {}, sm[:cut]))
        e("s_waitcnt vmcnt(8)")
        e("s_barrier")
        emit(interleave(kr + d + [CNT], [x for x, _ in sm[cut:]]))
        check_rare(b, f"t{T}f")
        return
    mf = mf + pv_mfmas(T, b ^ 1)
    n = 2 * h
    vrd = v_reads((t + 1) % 4)
    fixed = merge(spread(vrd, range(0, h * 3 // 4)),
                  {h - 1: ["s_waitcnt vmcnt(8) lgkmcnt(0)", "s_barrier"]},
                  spread(kr, range(h, h + h // 2)),
                  spread(d, range(h + h // 2 - 3, h + h // 2 - 3 + max(7, h * 3 // 8))),
                  {n - 2: [CNT]})
    e("s_waitcnt lgkmcnt(0)")
    for x in pack(mf, fixed, sm, (h - 1, n - 1)):
        if "d" in DG and x.startswith("buffer_load"): continue
        if "b" in DG and x.startswith("s_barrier"): continue
        if "l" in DG and x.startswith("ds_read"): continue
        e(x)
    check_rare(b, f"t{T}s{p}")

def qgroup(g):
    r = [f"s_add_u32 m0, s{sQW}, {g*4096}" if g else f"s_mov_b32 m0, s{sQW}",
         f"s_add_u32 s{sT0}, s{sQoffn}, {g*16*ROWB}"]
    if g >= 2:
        r += [f"s_cmp_gt_u32 s{sTn}, {g}", f"s_cselect_b32 s{sT0}, s{sT0}, s{sBig}"]
    r += [f"buffer_load_dwordx4 v{vQd+i}, s[{sQ}:{sQ+3}], s{sT0} offen offset:{i*1024}{LD} lds" for i in range(4)]
    return r

def ktile(u):
    return [m0set(u * 16384), f"s_add_u32 s{sT0}, s{sD0}, {(u-1)*TILEB}", ldk(0, sT0), ldk(1, sT0)]
def vtile(u):
    so = sLast if u == 0 else sD0
    return [m0set(((u + 2) % 4) * 16384), "s_nop 0", ldv(0, so), ldv(1, so)]

def next_a():
    return [m0set(0), f"s_add_u32 s{sK+2}, s{sNRn}, 4096", ldk(0, sLastn), ldk(1, sLastn)] + qgroup(0) + qgroup(1) + qgroup(2)
def next_b():
    return qgroup(3) + qgroup(4)

def tail(T, p):
    b = p % 2
    lab(f"Ltail{T}_{p}")
    stamp(3)
    vrd = v_reads((p + 1) % 4)
    vrd2 = v_reads((p + 2) % 4, aKf)
    sm = softmax_valu(T, b)
    j = 20
    emit(interleave(vrd, [x for x, _ in sm[:j]]))
    e("s_waitcnt vmcnt(8) lgkmcnt(0)")
    e("s_barrier")
    mf = pv_mfmas(T, b ^ 1)
    fixed = merge(spread(vrd2, range(len(mf) * 3 // 4)), spread(next_a(), range(len(mf))))
    emit(pack(mf, fixed, sm[j:]))
    check_rare(b, f"t{T}t{p}")
    e(f"s_branch Lfin{T}_{b}")

def xlane(op, regs, tmp):
    r = []
    for sw in ("v_permlane32_swap_b32", "v_permlane16_swap_b32"):
        r += [f"v_mov_b32 v{tmp+i}, v{x}" for i, x in enumerate(regs)]
        r += ["s_nop 1"]
        r += [f"{sw} v{x}, v{tmp+i}" for i, x in enumerate(regs)]
        r += ["s_nop 1"]
        r += [f"{op} v{x}, v{x}, v{tmp+i}" for i, x in enumerate(regs)]
    return r

vOA = vNM
def epi_convert(t):
    r = []
    for dt in range(8):
        x = vX + 4 * (dt & 1)
        pk = vQ + 16 * (t & 1) + 2 * dt
        r += [f"v_accvgpr_read_b32 v{x+i}, a{aO+32*t+4*dt+i}" for i in range(4)]
        r += [f"v_mul_f32 v{x+i}, v{x+i}, v{vL+t}" for i in range(4)]
        r += [f"v_cvt_pk_bf16_f32 v{pk}, v{x}, v{x+1}", f"v_cvt_pk_bf16_f32 v{pk+1}, v{x+2}, v{x+3}",
              f"ds_write_b64 v{vOA+dt}, {vr(pk,2)}"]
    return r
def epi_reads(t):
    return [f"ds_read_b128 {vr(vS+16*t+4*i,4)}, v{vOr} offset:{i*1024}" for i in range(4)]
def epi_stores(t):
    return [f"s_add_u32 s{sT0}, s{sOoff}, {t*16*ROWB}"] + \
           [f"buffer_store_dwordx4 {vr(vS+16*t+4*i,4)}, v{vQd+i}, s[{sOut}:{sOut+3}], s{sT0} offen offset:{i*1024}{ST}" for i in range(4)]

def epi_pre(T):
    return 11 * min(8, max(0, (8 * (T - 2) * 2) // 11))

def fin(T, b):
    lab(f"Lfin{T}_{b}")
    e("s_waitcnt lgkmcnt(0)")
    mf = [pv1(b, t, dt, aKf) for t in range(T) for dt in range(8)]
    regs = [vL + t for t in range(T)]
    ls = [f"v_add_f32 v{vL+t}, v{vL+t}, v{vT+t}" for t in range(T)] + xlane("v_add_f32", regs, vX) + \
         [f"v_rcp_f32 v{x}, v{x}" for x in regs] + [f"v_xor_b32 v{vOA+dt}, {dt*32}, v{vOw}" for dt in range(8)]
    fixed = merge(spread(ls, range(16)), spread(next_b(), range(len(mf))))
    if T > 2:
        fixed = merge(fixed, spread(epi_convert(0)[:epi_pre(T)], range(16, len(mf))))
    emit(pack(mf, fixed, []))
    if b == 0: e(f"s_branch Lepi{T}")

def first_max(t):
    s0 = sreg(0, t)
    m = vX + 4
    r = [f"v_max3_f32 v{m}, v{s0}, v{s0+1}, v{s0+2}", f"v_max3_f32 v{m}, v{m}, v{s0+3}, v{s0+4}",
         f"v_max3_f32 v{m}, v{m}, v{s0+5}, v{s0+6}", f"v_max_f32 v{m}, v{m}, v{s0+7}"]
    r += xlane("v_max_f32", [m], vX + 5)
    r += [f"v_sub_f32 v{vNM+4*t+i}, 0, v{m}" for i in range(4)]
    r += [f"v_sub_f32 v{s0+i}, v{s0+i}, v{m}" for i in range(8)]
    return r

def qraw(t):
    return vQ + 16 * t if t < 4 else sreg(1, 3)
def prescale(t):
    r = []
    for k in range(16):
        q = qraw(t) + k
        a, b = vX + 2 * (k & 1), vX + 2 * (k & 1) + 1
        r += [f"v_lshlrev_b32 v{a}, 16, v{q}", f"v_and_b32 v{b}, 0xffff0000, v{q}",
              f"v_mul_f32 v{a}, s{sC}, v{a}", f"v_mul_f32 v{b}, s{sC}, v{b}", f"v_cvt_pk_bf16_f32 v{q}, v{a}, v{b}"]
        if t == 4: r.append(f"v_accvgpr_write_b32 a{aQ+k}, v{q}")
    return r

vMK = vP
def prologue(T):
    lab(f"Lpro{T}")
    for s in range(4):
        e(f"v_xor_b32 v{vX+8+s}, {s*64}, v{vQa}")
    e(f"v_sub_u32 v{vX}, s{sRem}, v{vG4}")
    e(f"v_mov_b32 v{vX+1}, s{sNeg}")
    for a in range(2):
        for i in range(4):
            e(f"v_cmp_lt_i32 s[{sM+2*i}:{sM+2*i+1}], {16*a+i}, v{vX}")
        e("s_nop 0")
        for i in range(4):
            e(f"v_cndmask_b32 v{vMK+4*a+i}, v{vX+1}, 0, s[{sM+2*i}:{sM+2*i+1}]")
    for t in range(T):
        e(f"v_mov_b32 v{vL+t}, 0")
        e(f"v_mov_b32 v{vT+t}, 0")
    for i in range(4):
        e(f"v_mov_b32 v{vE+i}, 0")
    def qreads(t):
        return [f"ds_read_b128 {vr(qraw(t)+4*s,4)}, v{vX+8+s} offset:{t*4096}" for s in range(4)]
    def qk0(t):
        return [qk1(0, t, a, s, vMK + 4 * a) for a in range(2) for s in range(4)]
    extra = 0
    later = [ktile(1) + ktile(2), vtile(0) + ktile(3) + vtile(1)]
    e(f"s_waitcnt vmcnt(16)")
    emit(qreads(0))
    e("s_barrier")
    emit(k_reads(0))
    for t in range(T):
        ps = prescale(t)
        mfs = (zero_mfmas(T) if t == 0 else qk0(t - 1))
        fm = first_max(t - 2) if t >= 2 else []
        half = len(ps) // 2
        e(f"s_waitcnt lgkmcnt({8 if t == 0 else 0})")
        emit(interleave(mfs, ps[:half]))
        if t == T - 2 or t == T - 1:
            g = later.pop(0); emit(g); extra += sum(x.startswith("buffer") for x in g)
        if t + 1 < T:
            e(f"s_waitcnt vmcnt({4*(3-t)+extra})")
            emit(qreads(t + 1))
        emit(ps[half:])
        emit(fm)
    stamp(1)
    if opts["stamp"]: e("s_waitcnt lgkmcnt(0)")
    e("s_nop 0")
    emit(interleave(qk0(T - 1), first_max(T - 2)))
    e("s_waitcnt vmcnt(8)")
    e("s_barrier")
    emit(k_reads(1))
    emit(dma(0))
    emit(first_max(T - 1))
    e("s_waitcnt lgkmcnt(0)")
    step(T, 0, first=True)
    stamp(2)
    e(".p2align 3")
    lab(f"Lloop{T}")
    for t in (1, 2, 3, 4):
        e(f"s_cbranch_scc1 Ltail{T}_{t%4}")
        step(T, t)
    e(f"s_branch Lloop{T}")
    for p in range(4):
        tail(T, p)
    for b in range(2):
        fin(T, b)

def stamp_store(final=False):
    if not opts["stamp"]: return
    B = vP + 20
    if opts["stamp"] == 2:
        if not final: return
        e("s_waitcnt lgkmcnt(0)")
        e("s_mov_b32 s92, s90"); e("s_mov_b32 s93, s91"); e("s_mov_b32 s94, 256"); e("s_mov_b32 s95, 0x20000")
        e("s_mov_b64 exec, 1")
        e(f"v_mov_b32 v{B+8}, 0")
        e("s_not_b32 s96, s100"); e(f"v_mov_b32 v{B}, s96")
        e(f"buffer_atomic_umax v{B}, v{B+8}, s[92:95], 0 offen offset:32")
        e(f"v_mov_b32 v{B+1}, s{sST+12}")
        e(f"buffer_atomic_umax v{B+1}, v{B+8}, s[92:95], 0 offen offset:36")
        e(f"v_mov_b32 v{B+2}, s100")
        e(f"buffer_atomic_umax v{B+2}, v{B+8}, s[92:95], 0 offen offset:40")
        e(f"s_lshl_b32 s96, s2, 2"); e(f"s_add_u32 s96, s96, s{sW}")
        e("s_cmp_lg_u32 s96, 32"); e("s_cbranch_scc1 Lnodbg")
        e(f"s_sub_u32 s96, s99, s100"); e(f"v_mov_b32 v{B}, s96")
        e(f"s_sub_u32 s96, s{sST+2}, s97"); e(f"v_mov_b32 v{B+1}, s96")
        for i in range(1, 4):
            e(f"s_sub_u32 s96, s{sST+2*i+2}, s{sST+2*i}"); e(f"v_mov_b32 v{B+1+i}, s96")
        e(f"s_sub_u32 s96, s{sST}, s{sST+8}"); e(f"v_mov_b32 v{B+5}, s96")
        e(f"s_sub_u32 s96, s{sST+12}, s100"); e(f"v_mov_b32 v{B+6}, s96")
        e(f"v_mov_b32 v{B+7}, s100")
        e(f"buffer_store_dwordx4 {vr(B,4)}, v{B+8}, s[92:95], 0 offen")
        e(f"buffer_store_dwordx4 {vr(B+4,4)}, v{B+8}, s[92:95], 0 offen offset:16")
        lab("Lnodbg")
        return
    e("s_waitcnt lgkmcnt(0)")
    e("s_mov_b32 s92, s90"); e("s_mov_b32 s93, s91"); e("s_mov_b32 s94, 0x100000"); e("s_mov_b32 s95, 0x20000")
    e(f"s_lshl_b32 s96, s2, 2"); e(f"s_add_u32 s96, s96, s{sW}"); e("s_lshl_b32 s96, s96, 2")
    if final: e("s_add_u32 s96, s96, 3")
    else: e("s_add_u32 s96, s96, s97"); e("s_add_u32 s97, s97, 1")
    e("s_lshl_b32 s96, s96, 5")
    for i in range(5): e(f"v_mov_b32 v{B+i}, s{sST+2*i}")
    e(f"v_mov_b32 v{B+5}, s{sST+10}"); e(f"v_mov_b32 v{B+6}, s{sST+12}"); e(f"v_mov_b32 v{B+7}, s98")
    e(f"v_mov_b32 v{B+8}, 0")
    e("s_mov_b64 exec, 1")
    e(f"buffer_store_dwordx4 {vr(B,4)}, v{B+8}, s[92:95], s96 offen")
    e(f"buffer_store_dwordx4 {vr(B+4,4)}, v{B+8}, s[92:95], s96 offen offset:16")
    e("s_mov_b64 exec, -1")
    e("s_nop 2")

def epilogue(T):
    lab(f"Lepi{T}")
    stamp(4)
    if opts["stamp"]: e(f"s_memrealtime s[{sST+12}:{sST+13}]")
    stamp_store()
    emit(epi_convert(0)[epi_pre(T):])
    emit(epi_reads(0))
    for t in range(1, T):
        cv = epi_convert(t)
        emit(cv[:21])
        e("s_waitcnt lgkmcnt(1)")
        emit(interleave(epi_stores(t - 1), cv[21:]))
        emit(epi_reads(t))
    n = 4
    for x in epi_stores(T - 1):
        if x.startswith("buffer"):
            n -= 1
            e(f"s_waitcnt lgkmcnt({n})")
        e(x)
    e(f"s_cmp_eq_u32 s{sD1n}, 0")
    e("s_cbranch_scc1 Ldone")
    e(f"s_waitcnt vmcnt({4*T})")
    e("s_branch Lstart")

def gen():
    L.append(open(os.path.join(os.path.dirname(os.path.abspath(__file__)), "header.txt")).read().rstrip())
    L.append(f"; @launch grid=({NWG},1,1) block=(256,1,1) lds={LDSZ}")
    L.append('.amdgcn_target "amdgcn-amd-amdhsa--gfx950"')
    L.append(".text")
    L.append(f".globl {NAME}_kernel")
    L.append(".p2align 8")
    L.append(f".type {NAME}_kernel,@function")
    lab(f"{NAME}_kernel")
    e(f"s_cmp_ge_u32 s2, {NWG}")
    e("s_cbranch_scc1 Lend")
    e(f"s_getpc_b64 s[{sPC}:{sPC+1}]")
    lab("Lpc")
    e("s_load_dwordx4 s[4:7], s[0:1], 0")
    e("s_load_dwordx2 s[8:9], s[0:1], 16")
    e("s_load_dwordx2 s[10:11], s[0:1], 32")
    e(f"s_add_u32 s{sPC}, s{sPC}, Ltab-Lpc")
    e(f"s_addc_u32 s{sPC+1}, s{sPC+1}, 0")
    e("s_lshl_b32 s3, s2, 5")
    e(f"s_load_dwordx8 s[{sJ}:{sJ+7}], s[{sPC}:{sPC+1}], s3")
    if opts["stamp"]:
        e(f"s_load_dwordx2 s[90:91], s[0:1], {40 if opts['stamp'] == 2 else 48}")
        e("s_memrealtime s[100:101]")
        e("s_mov_b32 s97, 0")
    w, ln, i16, g, x4, x5, x6 = range(vX, vX + 7)
    e(f"v_lshrrev_b32 v{w}, 6, v0")
    e(f"v_and_b32 v{ln}, 63, v0")
    e(f"v_readfirstlane_b32 s{sW}, v{w}")
    e(f"v_and_b32 v{i16}, 15, v{ln}")
    e(f"v_lshrrev_b32 v{g}, 4, v{ln}")
    e(f"v_xor_b32 v{x6}, v{i16}, v{g}")
    e(f"v_lshlrev_b32 v{x6}, 4, v{x6}")
    e(f"v_bfe_u32 v{x4}, v{ln}, 3, 1")
    e(f"v_lshlrev_b32 v{x4}, 12, v{x4}")
    e(f"v_and_b32 v{x5}, 7, v{ln}")
    e(f"v_lshl_add_u32 v{x4}, v{x5}, 8, v{x4}")
    e(f"v_add3_u32 v{vKa}, v{x4}, v{x6}, 0")
    e(f"v_add_u32 v{vKa}, 2048, v{vKa}")
    for s in range(1, 4):
        e(f"v_xor_b32 v{vKa+s}, {s*64}, v{vKa}")
    e(f"v_mul_u32_u24 v{x4}, {QW}, v{w}")
    e(f"v_lshl_add_u32 v{x4}, v{i16}, 8, v{x4}")
    e(f"v_add3_u32 v{x4}, v{x4}, v{x6}, 0")
    e(f"v_add_u32 v{vQa}, {QS}, v{x4}")
    e(f"v_lshlrev_b32 v{x4}, 12, v{w}")
    e(f"v_add_u32 v{x4}, {OS}, v{x4}")
    e(f"v_lshl_add_u32 v{vOr}, v{ln}, 4, v{x4}")
    e(f"v_lshl_add_u32 v{x4}, v{i16}, 8, v{x4}")
    e(f"v_lshrrev_b32 v{x5}, 1, v{g}")
    e(f"v_xor_b32 v{x5}, v{x5}, v{i16}")
    e(f"v_lshl_add_u32 v{x4}, v{x5}, 4, v{x4}")
    e(f"v_and_b32 v{x5}, 1, v{g}")
    e(f"v_lshl_add_u32 v{vOw}, v{x5}, 3, v{x4}")
    e(f"v_lshrrev_b32 v{x4}, 1, v{g}")
    e(f"v_lshlrev_b32 v{x4}, 12, v{x4}")
    e(f"v_mul_u32_u24 v{x5}, {4*256+32}, v{x5}")
    e(f"v_add_u32 v{x4}, v{x4}, v{x5}")
    e(f"v_lshrrev_b32 v{x5}, 2, v{i16}")
    e(f"v_mul_u32_u24 v{x5}, {256+64}, v{x5}")
    e(f"v_add_u32 v{x4}, v{x4}, v{x5}")
    e(f"v_and_b32 v{x5}, 3, v{ln}")
    e(f"v_lshl_add_u32 v{vVa}, v{x5}, 3, v{x4}")
    for dt in range(1, 8):
        e(f"v_xor_b32 v{vVa+dt}, {dt*32}, v{vVa}")
    e(f"v_lshlrev_b32 v{vG4}, 2, v{g}")
    e(f"v_lshl_add_u32 v{vQd}, v{g}, 12, v{x6}")
    for i in range(1, 4):
        e(f"v_xor_b32 v{vQd+i}, {i*64}, v{vQd}")
        e(f"v_add_u32 v{vQd+i}, {i*(4*ROWB-1024)}, v{vQd+i}")
    e(f"v_lshl_add_u32 v{x5}, v{w}, 3, v{g}")
    e(f"v_xor_b32 v{x4}, v{vG4}, v{i16}")
    e(f"v_lshlrev_b32 v{x4}, 4, v{x4}")
    e(f"v_lshl_add_u32 v{vDV}, v{x5}, 12, v{x4}")
    e(f"v_xor_b32 v{vDV+1}, 32, v{vDV}")
    e(f"v_add_u32 v{vDV+1}, {4*ROWB-1024}, v{vDV+1}")
    e(f"v_and_b32 v{x4}, 15, v{x5}")
    e(f"v_xor_b32 v{x4}, v{x4}, v{i16}")
    e(f"v_lshlrev_b32 v{x4}, 4, v{x4}")
    e(f"v_lshl_add_u32 v{vDK}, v{x5}, 12, v{x4}")
    e(f"v_xor_b32 v{vDK+1}, 64, v{vDK}")
    e(f"v_add_u32 v{vDK}, {4096-2048}, v{vDK}")
    e(f"v_add_u32 v{vDK+1}, {4*ROWB+4096-3072}, v{vDK+1}")
    e(f"s_lshl_b32 s{sWB}, s{sW}, 12")
    e(f"s_mov_b32 s{sThr}, {hex(f32bits(4096.0))}")
    e(f"s_mov_b32 s{sC}, {hex(f32bits(128 ** -0.5 * math.log2(math.e)))}")
    e(f"s_mov_b32 s{sNeg}, {hex(f32bits(-1e30))}")
    e(f"s_mov_b32 s{sBig}, 0x40000000")
    e(f"s_mul_i32 s{sQW}, s{sW}, {QW}")
    e(f"s_add_u32 s{sQW}, s{sQW}, {QS}")
    e("s_waitcnt lgkmcnt(0)")
    for srd, ptr in ((sQ, 4), (sK, 6), (sV, 8), (sOut, 10)):
        e(f"s_mov_b32 s{srd}, s{ptr}")
        e(f"s_mov_b32 s{srd+1}, s{ptr+1}")
        e(f"s_mov_b32 s{srd+2}, 0")
        e(f"s_mov_b32 s{srd+3}, 0x20000")
    e(f"s_sub_u32 s{sK}, s{sK}, 4096")
    e(f"s_subb_u32 s{sK+1}, s{sK+1}, 0")
    def decode():
        e(f"s_mov_b32 s{sD0n}, s{sJ}")
        e(f"s_mov_b32 s{sD1n}, s{sJ+1}")
        e(f"s_mov_b64 s[{sJ}:{sJ+1}], s[{sJ+2}:{sJ+3}]")
        e(f"s_mov_b64 s[{sJ+2}:{sJ+3}], s[{sJ+4}:{sJ+5}]")
        e(f"s_mov_b64 s[{sJ+4}:{sJ+5}], s[{sJ+6}:{sJ+7}]")
        e(f"s_and_b32 s{sT0}, s{sD1n}, 0xfff")
        e(f"s_lshl_b32 s{sNRn}, s{sT0}, 12")
        e(f"s_add_u32 s{sNRn}, s{sNRn}, s{sD0n}")
        e(f"s_sub_u32 s{sNRn}, s{sNRn}, {ROWB-256}")
        e(f"s_sub_u32 s{sT0}, s{sT0}, 1")
        e(f"s_and_b32 s{sT0}, s{sT0}, 0xfe0")
        e(f"s_lshl_b32 s{sT0}, s{sT0}, 12")
        e(f"s_add_u32 s{sLastn}, s{sT0}, s{sD0n}")
        e(f"s_cmp_lg_u32 s{sD1n}, 0")
        e(f"s_cselect_b32 s{sNRn}, s{sNRn}, 0")
        e(f"s_mov_b32 s{sQ+2}, s{sNRn}")
        e(f"s_lshr_b32 s{sTn}, s{sD1n}, 24")
        e(f"s_mul_i32 s{sT0}, s{sTn}, s{sW}")
        e(f"s_lshl_b32 s{sT0}, s{sT0}, 16")
        e(f"s_and_b32 s{sQoffn}, s{sD1n}, 0xfff000")
        e(f"s_add_u32 s{sQoffn}, s{sQoffn}, s{sD0n}")
        e(f"s_add_u32 s{sQoffn}, s{sQoffn}, s{sT0}")
    decode()
    emit(next_a() + next_b())
    lab("Lstart")
    e(f"s_mov_b32 s{sD0}, s{sD0n}")
    e(f"s_mov_b32 s{sD1}, s{sD1n}")
    e(f"s_mov_b32 s{sLast}, s{sLastn}")
    e(f"s_mov_b32 s{sOut+2}, s{sNRn}")
    e(f"s_mov_b32 s{sV+2}, s{sNRn}")
    e(f"s_mov_b32 s{sOoff}, s{sQoffn}")
    decode()
    e(f"s_and_b32 s{sL}, s{sD1}, 0xfff")
    e(f"s_add_u32 s{sN}, s{sL}, 31")
    e(f"s_lshr_b32 s{sN}, s{sN}, 5")
    e(f"s_sub_u32 s{sCnt}, s{sN}, 2")
    e(f"s_sub_u32 s{sT0}, s{sN}, 1")
    e(f"s_lshl_b32 s{sT0}, s{sT0}, 5")
    e(f"s_sub_u32 s{sRem}, s{sL}, s{sT0}")
    e(f"s_mov_b32 s{sOff}, s{sD0}")
    e(f"s_add_u32 s{sOffK}, s{sD0}, {2*TILEB}")
    stamp(0)
    e(f"s_lshr_b32 s{sT0}, s{sD1}, 24")
    if opts["stamp"]:
        e(f"s_memrealtime s[{sST+10}:{sST+11}]")
        e(f"s_lshl_b32 s98, s{sT0}, 8"); e(f"s_add_u32 s98, s98, s{sN}")
        e("s_waitcnt lgkmcnt(0)")
        if opts["stamp"] == 2:
            e(f"s_mov_b32 s97, s{sST}"); e(f"s_mov_b32 s99, s{sST+10}")
    order = sorted(TS, key=lambda t: (t != 4, -t))
    for T in order[1:]:
        e(f"s_cmp_eq_u32 s{sT0}, {T}")
        e(f"s_cbranch_scc1 Lpro{T}")
    for T in order:
        prologue(T)
        epilogue(T)
    lab("Ldone")
    if opts["stamp"]:
        e("s_waitcnt vmcnt(0)")
        stamp(0)
        e(f"s_memrealtime s[{sST+12}:{sST+13}]")
        e(f"s_mov_b32 s{sST+10}, s100")
        e("s_getreg_b32 s98, hwreg(HW_REG_HW_ID)")
        stamp_store(True)
    lab("Lend")
    e("s_endpgm")

    for tag, buf in STUBS:
        lab(f"Lrare_{tag}")
        e(f"s_call_b64 s[{sRet}:{sRet+1}], Lresc_{buf}")
        e(f"s_branch Lback_{tag}")
    for b in range(2):
        lab(f"Lresc_{b}")
        e("s_nop 15")
        for t in range(TM):
            s, s2 = sreg(b, t), sreg(b ^ 1, t)
            dl, al = vX, vX + 2 + t
            e(f"v_max3_f32 v{dl}, v{s}, v{s+1}, v{s+2}")
            e(f"v_max3_f32 v{dl}, v{dl}, v{s+3}, v{s+4}")
            e(f"v_max3_f32 v{dl}, v{dl}, v{s+5}, v{s+6}")
            e(f"v_max3_f32 v{dl}, v{dl}, v{s+7}, 0")
            emit(xlane("v_max_f32", [dl], vX + 1))
            e(f"v_sub_f32 v{al}, 0, v{dl}")
            e(f"v_exp_f32 v{al}, v{al}")
            for i in range(8):
                e(f"v_sub_f32 v{s+i}, v{s+i}, v{dl}")
                e(f"v_sub_f32 v{s2+i}, v{s2+i}, v{dl}")
            for i in range(4):
                e(f"v_sub_f32 v{vNM+4*t+i}, v{vNM+4*t+i}, v{dl}")
            e(f"v_mul_f32 v{vL+t}, v{vL+t}, v{al}")
        for x, _ in softmax_valu(TM, b, False): e(x)
        if b == 0: e("s_branch LrescO")
    lab("LrescO")
    for t in range(TM):
        for i in range(0, 32, 4):
            for k in range(4): e(f"v_accvgpr_read_b32 v{vX+8+k}, a{aO+32*t+i+k}")
            for k in range(4): e(f"v_mul_f32 v{vX+8+k}, v{vX+8+k}, v{vX+2+t}")
            for k in range(4): e(f"v_accvgpr_write_b32 a{aO+32*t+i+k}, v{vX+8+k}")
    e("s_nop 1")
    e(f"s_setpc_b64 s[{sRet}:{sRet+1}]")

    e(".p2align 5")
    L.append(".type Ltab,@object")
    lab("Ltab")
    for ent in TAB:
        e(".long " + ", ".join(str(x) for x in ent))
    L.append('.section .rodata,"a"')
    L.append(".p2align 6")
    L.append(f".amdhsa_kernel {NAME}_kernel")
    L.append("  .amdhsa_next_free_vgpr 512")
    L.append("  .amdhsa_next_free_sgpr 102")
    L.append("  .amdhsa_accum_offset 256")
    L.append("  .amdhsa_group_segment_fixed_size 0")
    L.append("  .amdhsa_kernarg_size 56")
    L.append("  .amdhsa_user_sgpr_count 2")
    L.append("  .amdhsa_user_sgpr_kernarg_segment_ptr 1")
    L.append("  .amdhsa_system_sgpr_workgroup_id_x 1")
    L.append(".end_amdhsa_kernel")

gen()
open(sys.argv[1], "w").write("\n".join(L) + "\n")
```

```python
import sys, struct, math, os

NAME = "standalone__varlen_attn_packed__ragged"
CU = [0, 534, 1426, 1714, 2675, 3469, 4036, 4628, 4845]
ROWB = 4096
TILEB = 32 * ROWB
QS = 65536
QW = 20480
OS = QS + 4 * QW
LDSZ = 163840
TM = 5

opts = dict(stamp=0, st="sc0+sc1", ld="nt", plan="a", rev=0, lc=4, pf=1)
for a in sys.argv[2:]:
    k, v = a.split("=")
    opts[k] = int(v) if v.lstrip("-").isdigit() else v
LD = (" " + opts["ld"].replace("+", " ")) if opts["ld"] else ""
LDQ = (" " + opts["ldq"].replace("+", " ")) if opts.get("ldq", opts["ld"]) and "ldq" in opts else ("" if "ldq" in opts else LD)
ST = (" " + opts["st"].replace("+", " ")) if opts["st"] else ""
DG = str(opts.get("diag", ""))

def f32bits(x):
    return struct.unpack("<I", struct.pack("<f", x))[0]

vQ = 0
vS = 64
vP = 144
vNM = 184
vKa = 204
vVa = 208
vDK = 216
vDV = 218
vQd = 220
vE = 224
vT = 228
vL = 233
vU = 238
vQa = 239
vOw = 240
vOr = 241
vG4 = 242
vU2 = 243
vX = 244
aO = 0
aKf = 160
aVf = 192
aQ = 224

sQ, sK, sV, sOut = 12, 16, 20, 24
sJ = 28
sD0, sD1 = 36, 37
sL, sN, sOff, sWB, sCnt, sLast, sThr, sC, sNeg, sW = 38, 39, 40, 41, 42, 43, 44, 45, 46, 47
sRet, sPC = 48, 52
sTn, sLastn = 50, 51
sRem, sQoffn, sOoff, sBig, sD0n, sNRn, sD1n = 54, 55, 56, 57, 58, 59, 60
sT0 = 61
sOffK = 63
sQW = 3
sFirst = 64
sQc = 8
sM = 68
sST = 76

L = []
def e(s): L.append("    " + s)
def lab(s): L.append(s + ":")
def vr(b, n): return f"v[{b}:{b+n-1}]"
def ar(b, n): return f"a[{b}:{b+n-1}]"
def emit(lines):
    for x in lines:
        if x.endswith(":"): L.append(x)
        else: e(x)
def stamp(idx):
    if opts["stamp"]:
        e(f"s_memtime s[{sST+2*idx}:{sST+1+2*idx}]")

SEQ = []
for si in range(8):
    ln = CU[si + 1] - CU[si]
    SEQ.append((CU[si], ln, (ln + 63) // 64, (ln + 31) // 32))

PLANS = {
    "a": [[(31, 4)]] * 4 + [[(25, 5)]] * 2 + [[(17, 4), (18, 2)], [(19, 5), (7, 2)], [(25, 3), (9, 3)], [(28, 2), (18, 2)],
          [(17, 5), (9, 2)], [(18, 5), (7, 2)]] + [[(28, 4)]] * 3 + [[(19, 5)]],
}

def plan_head():
    n2s = {SEQ[i][3]: i for i in range(8)}
    nxt = {i: 0 for i in range(8)}
    spec = PLANS[opts["plan"]]
    res = [[None] * len(s) for s in spec]
    for want in (2, 3, 4, 5):
        for i, s in enumerate(spec):
            for k, (n, t) in enumerate(s):
                if t == want:
                    si = n2s[n]
                    res[i][k] = (si, nxt[si], t); nxt[si] += 64 * t
    for i in range(8):
        assert nxt[i] == SEQ[i][2] * 64, (i, nxt[i])
    if opts["rev"]:
        res = [list(reversed(r)) for r in res]
    return res

def make_table():
    ph = plan_head()
    tab = []
    for wg in range(256):
        x, j = wg & 7, wg >> 3
        head = 2 * x + (j & 1)
        ent = []
        for (si, q0, t) in ph[j >> 1]:
            st, ln, nb, n = SEQ[si]
            ent += [st * ROWB + head * 256, ln | (q0 << 12) | (t << 24)]
        ent += [0] * (8 - len(ent))
        tab.append(ent)
    return tab

TAB = make_table()
PH = plan_head()
TS = sorted({t for jl in PH for _, _, t in jl}, reverse=True)
TAILS = {}
for jl in PH:
    for k, (si, q0, t) in enumerate(jl):
        TAILS.setdefault((t, (SEQ[si][3] - 1) % 4), set()).add(jl[k + 1][2] if k + 1 < len(jl) else 0)
PROD = {t for (t, p), v in TAILS.items() if v - {0}}
NWG = 256

MF = "v_mfma_f32_16x16x32_bf16"
def qreg(t, s):
    return vr(vQ + 16 * t + 4 * s, 4) if t < 4 else ar(aQ + 4 * s, 4)
def sreg(buf, t, a=0): return vS + 40 * buf + 8 * t + 4 * a
def preg(buf, t): return vP + 20 * buf + 4 * t

def qk1(buf, t, a, s, cinit, kf=None):
    d = sreg(buf, t, a)
    kf = aKf if kf is None else kf
    return f"{MF} {vr(d,4)}, {ar(kf+4*(a*4+s),4)}, {qreg(t,s)}, {vr(cinit if s == 0 else d,4)}"

def qk_mfmas(T, buf):
    return [qk1(buf, t, a, s, vNM + 4 * t) for a in range(2) for s in range(4) for t in range(T)]

def pv1(buf, t, dt, vf):
    o = aO + 32 * t + 4 * dt
    return f"{MF} {ar(o,4)}, {ar(vf+4*dt,4)}, {vr(preg(buf,t),4)}, {ar(o,4)}"

def pv_mfmas(T, buf, vf=aVf):
    return [pv1(buf, t, dt, vf) for dt in range(8) for t in range(T)]

def zero_mfmas(T):
    return [f"v_mfma_f32_32x32x16_bf16 {ar(aO+16*i,16)}, {vr(vP+28,4)}, {vr(vP+28,4)}, 0" for i in range(2 * T)]

def k_reads(slot, kf=None):
    kf = aKf if kf is None else kf
    return [f"ds_read_b128 {ar(kf+4*(a*4+s),4)}, v{vKa+s} offset:{slot*16384+a*8192}" for a in range(2) for s in range(4)]

def v_reads(slot, vf=aVf):
    return [f"ds_read_b64_tr_b16 {ar(vf+4*dt+2*a,2)}, v{vVa+dt} offset:{slot*16384+a*8192}" for dt in range(8) for a in range(2)]

def m0set(off):
    return f"s_add_u32 m0, s{sWB}, {off}" if off else f"s_mov_b32 m0, s{sWB}"
def ldv(j, so):
    return f"buffer_load_dwordx4 v{vDV+j}, s[{sV}:{sV+3}], s{so} offen" + (f" offset:{j*1024}" if j else "") + f"{LD} lds"
def ldk(j, so):
    return f"buffer_load_dwordx4 v{vDK+j}, s[{sK}:{sK+3}], s{so} offen offset:{2048+j*1024}{LD} lds"

def dma(slot):
    return [m0set(slot * 16384),
            f"s_add_u32 s{sOff}, s{sOff}, {TILEB}",
            f"s_add_u32 s{sOffK}, s{sOffK}, {TILEB}",
            ldv(0, sOff), ldv(1, sOff), ldk(0, sOffK), ldk(1, sOffK)]

ERING = [vE, vE + 2, vX + 4, vX + 6]
def softmax_ops(T, buf, full=True, R=4, t0=0):
    exps, sims = [], []
    done_after = []
    n = 4 * T
    for k in range(n):
        t, kk = divmod(k, 4)
        t += t0
        a = ERING[k % R]; b = a + 1
        need = done_after[k - R] if k >= R else 0
        exps += [(f"v_exp_f32 v{a}, v{sreg(buf,t)+2*kk}", need), (f"v_exp_f32 v{b}, v{sreg(buf,t)+2*kk+1}", need)]
        p = preg(buf, t) + kk
        u = vU if k & 1 else vU2
        ne = 2 * k + 2
        if kk == 0:
            if full: sims.append((f"v_add_f32 v{vL+t}, v{vL+t}, v{vT+t}", 0))
            sims += [(f"v_cvt_pk_bf16_f32 v{p}, v{a}, v{b}", ne), (f"v_add_f32 v{vT+t}, v{a}, v{b}", ne)]
            done_after.append(len(sims))
        else:
            sims += [(f"v_add_f32 v{u}, v{a}, v{b}", ne), (f"v_cvt_pk_bf16_f32 v{p}, v{a}, v{b}", ne)]
            done_after.append(len(sims))
            sims.append((f"v_add_f32 v{vT+t}, v{vT+t}, v{u}", ne))
    if full:
        m = [vT + t for t in range(T)]
        cur = m.pop(0)
        while m:
            if len(m) >= 2:
                sims.append((f"v_max3_f32 v{vX}, v{cur}, v{m[0]}, v{m[1]}", 2 * n)); m = m[2:]
            else:
                sims.append((f"v_max_f32 v{vX}, v{cur}, v{m[0]}", 2 * n)); m = []
            cur = vX
        sims.append((f"v_cmp_lt_f32 vcc, s{sThr}, v{cur}", 2 * n))
    return exps, sims

class SM:
    def __init__(s, T, buf, full=True, t0=0, R=4):
        s.ex, s.si = softmax_ops(T, buf, full, R, t0)
        s.i = s.j = 0
        s.last_exp = False
    def left(s): return 8 * (len(s.ex) - s.i) + 4 * (len(s.si) - s.j)
    def can_exp(s): return s.i < len(s.ex) and s.ex[s.i][1] <= s.j
    def can_sim(s):
        if s.j >= len(s.si): return False
        need = s.si[s.j][1]
        return need < s.i or (need == s.i and not s.last_exp)
    def exp(s): s.i += 1; s.last_exp = True; return s.ex[s.i - 1][0]
    def sim(s): s.j += 1; s.last_exp = False; return s.si[s.j - 1][0]
    def other(s): s.last_exp = False
    def any(s):
        if s.can_sim() and (s.si[s.j][1] <= s.i - 2 or not s.can_exp()): return s.sim()
        if s.can_exp(): return s.exp()
        if s.can_sim(): return s.sim()
        s.last_exp = False
        return "s_nop 0"
    def take(s, n): return [s.any() for _ in range(n) if s.left()]
    def rest(s):
        r = []
        while s.left(): r.append(s.any())
        return r

def is_mem(x): return x.startswith("ds_") or x.startswith("buffer_")

def pack(mf, fixed, sm=None, novalu=(), keep=0, cap=8):
    n = len(mf)
    def fcost(l):
        c = 0; ns = 0; nm = 0
        for x in l:
            if is_mem(x): c += 8 if nm else 4; nm += 1
            elif x.startswith("s_"): c += 4 if (ns or nm) else 0; ns += 1
            else: c += 4
        return c
    fc = [fcost(fixed.get(g, [])) for g in range(n)]
    out = []
    for g in range(n):
        out.append(mf[g])
        out += fixed.get(g, [])
        if sm is None: continue
        sm.other()
        if g in novalu: continue
        rem = [k for k in range(g, n) if k not in novalu]
        last = g == rem[-1]
        used = fc[g]
        while sm.left() > keep:
            later = sum(max(0, cap - fc[k]) for k in rem[1:])
            over = sm.left() - keep - later
            room = cap - used
            if room <= 0:
                if not last and over * 1.0 < 4 * 1.0 + 0 : break
                if not last and (used - cap + 4) * len(rem) > over + (used - cap) + 2 * len(rem): break
            nexp = len(sm.ex) - sm.i
            full_later = sum(1 for k in rem[1:] if cap - fc[k] >= 8)
            if room >= 8 and sm.can_exp() and (not sm.can_sim() or nexp > full_later * opts.get("eb", 70) // 100 or sm.si[sm.j][1] > sm.i - 4):
                out.append(sm.exp()); used += 8
            elif sm.can_sim():
                out.append(sm.sim()); used += 4
            elif sm.can_exp():
                out.append(sm.exp()); used += 8
            else:
                if last: out.append(sm.any()); used += 4
                else: break
    return out

STUBS = []
def check_rare(buf, tag):
    e(f"s_cbranch_vccnz Lrare_{tag}")
    lab(f"Lback_{tag}")
    STUBS.append((tag, buf))

def spread(items, gaps):
    d = {}
    gaps = list(gaps)
    for i, x in enumerate(items):
        d.setdefault(gaps[i * len(gaps) // len(items)], []).append(x)
    return d

def merge(*ds):
    r = {}
    for d in ds:
        for k, v in d.items():
            r.setdefault(k, []).extend(v)
    return r

def interleave(a, b):
    out = []
    if not a: return list(b)
    j = 0
    for i, x in enumerate(a):
        out.append(x)
        nj = (i + 1) * len(b) // len(a)
        out += b[j:nj]; j = nj
    return out

CNT = f"s_sub_u32 s{sCnt}, s{sCnt}, 1"

def place(items, gaps):
    groups = []
    cur = []
    for x in items:
        cur.append(x)
        if is_mem(x): groups.append(cur); cur = []
    if cur: groups.append(cur)
    gaps = list(gaps)
    d = {}
    for i, gr in enumerate(groups):
        d.setdefault(gaps[i * len(gaps) // len(groups)], []).extend(gr)
    return d

def qgroup(g, dyn=True):
    r = [f"s_add_u32 m0, s{sQW}, {g*4096}" if g else f"s_mov_b32 m0, s{sQW}",
         f"s_add_u32 s{sT0}, s{sQoffn}, {g*16*ROWB}"]
    if g >= 2 and dyn:
        r += [f"s_cmp_gt_u32 s{sTn}, {g}", f"s_cselect_b32 s{sT0}, s{sT0}, s{sBig}"]
    r += [f"buffer_load_dwordx4 v{vQd+i}, s[{sQ}:{sQ+3}], s{sT0} offen offset:{i*1024}{LDQ} lds" for i in range(4)]
    return r

def step(T, t, prod=False):
    p = t % 4
    b = t % 2
    h = 8 * T
    mf = qk_mfmas(T, b ^ 1) + pv_mfmas(T, b ^ 1)
    kr = k_reads((t + 2) % 4)
    d = dma((t + 1) % 4)
    sm = SM(T, b)
    n = 2 * h
    vrd = v_reads((t + 1) % 4)
    vm = 8
    if prod:
        q = qgroup(t - 1)
        sc, ql = q[:-4], q[-4:]
        vrd = sc + vrd[:3] + [ql[0]] + vrd[3:7] + [ql[1]] + vrd[7:11] + [ql[2]] + vrd[11:15] + [ql[3]] + vrd[15:]
        vm = {1: 12, 2: 16, 3: 20, 4: 20}[t]
    end = [CNT] if prod else [CNT, "s_cselect_b64 vcc, -1, vcc"]
    if T >= 3:
        kd = [kr[0], kr[1], d[3], kr[2], kr[3], d[4], kr[4], kr[5], d[5], kr[6], kr[7], d[6]]
        fixed = merge(place(vrd, range(0, h - 5)),
                      {h - 1: [f"s_waitcnt vmcnt({vm}) lgkmcnt(0)", "s_barrier"]},
                      {h - 4: [d[0]], h - 3: [d[1]], h - 2: [d[2]]},
                      place(kd, range(h, n - 3)),
                      {n - 2: [end[0]], n - 1: end[1:]})
    else:
        kd = [kr[0], kr[1], d[3], kr[2], kr[3], kr[4], d[4], kr[5], kr[6], kr[7], d[5]]
        fixed = merge(place(vrd, range(0, 12)),
                      {h - 1: [f"s_waitcnt vmcnt({vm}) lgkmcnt(0)", "s_barrier"]},
                      {h - 4: [d[0]], h - 3: [d[1]], h - 2: [d[2]]},
                      place(kd, range(h, h + 11)),
                      {n - 2: [end[0], d[6]], n - 1: end[1:]})
    e("s_waitcnt lgkmcnt(0)")
    emit(pack(mf, fixed, sm, (h - 1, n - 1)))
    assert sm.left() == 0
    if prod:
        check_rare(b, f"t{T}p{p}")
    else:
        e(f"s_cbranch_vccnz Lx{T}_{p}")
        lab(f"Lxb{T}_{p}")

def exit_stub(T, p):
    lab(f"Lx{T}_{p}")
    e(f"v_cmp_lt_f32 vcc, s{sThr}, v{vX}")
    e(f"s_cbranch_vccz Lxs{T}_{p}")
    e(f"s_call_b64 s[{sRet}:{sRet+1}], Lresc_{p%2}")
    lab(f"Lxs{T}_{p}")
    np_ = (p + 1) % 4
    nx = sorted(TAILS.get((T, np_), ()))
    if not nx:
        e(f"s_branch Lxb{T}_{p}")
        return
    e(f"s_cbranch_scc0 Lxb{T}_{p}")
    for tn in nx[1:]:
        e(f"s_cmp_eq_u32 s{sTn}, {tn}")
        e(f"s_cbranch_scc1 Ltail{T}_{np_}_{tn}")
    for tn in nx:
        tail(T, np_, tn)

def ktile(u):
    return [m0set(u * 16384), f"s_add_u32 s{sT0}, s{sD0}, {(u-1)*TILEB}", ldk(0, sT0), ldk(1, sT0)]
def vtile(u):
    so = sLast if u == 0 else sD0
    return [m0set(((u + 2) % 4) * 16384), "s_nop 0", ldv(0, so), ldv(1, so)]
def next_k0():
    return [m0set(0), f"s_add_u32 s{sK+2}, s{sNRn}, 4096", ldk(0, sLastn), ldk(1, sLastn)]
def next_k1():
    return [m0set(16384), "s_nop 0", ldk(0, sD0n), ldk(1, sD0n)]

def tail(T, p, tn):
    b = p % 2
    lab(f"Ltail{T}_{p}_{tn}")
    stamp(3)
    vrd = v_reads((p + 1) % 4)
    vrd2 = v_reads((p + 2) % 4, aKf)
    sm = SM(T, b)
    emit(vrd)
    emit(sm.take(12))
    e("s_waitcnt vmcnt(8) lgkmcnt(0)")
    e("s_barrier")
    mf = pv_mfmas(T, b ^ 1)
    fixed = place(vrd2, range(len(mf) - 2))
    if tn:
        fixed = merge(fixed, place(next_loads(tn)[0], range(len(mf))))
    emit(pack(mf, fixed, sm))
    assert sm.left() == 0
    check_rare(b, f"t{T}t{p}_{tn}")
    fin(T, b, tn)

def next_loads(tn):
    l = [next_k0(), qgroup(0, False), next_k1()] + [qgroup(g, False) for g in range(1, tn)]
    k = 3 if tn <= 3 else 4
    return sum(l[:k], []), sum(l[k:], [])

def xlane(op, regs, tmp):
    r = []
    for sw in ("v_permlane32_swap_b32", "v_permlane16_swap_b32"):
        r += [f"v_mov_b32 v{tmp+i}, v{x}" for i, x in enumerate(regs)]
        r += ["s_nop 1"]
        r += [f"{sw} v{x}, v{tmp+i}" for i, x in enumerate(regs)]
        r += ["s_nop 1"]
        r += [f"{op} v{x}, v{x}, v{tmp+i}" for i, x in enumerate(regs)]
    return r

vOA = vNM
vLI = vNM + 8
def epi_acc(t):
    return [f"v_accvgpr_read_b32 v{vQ+i}, a{aO+32*t+i}" for i in range(32)]
def epi_cvt(t):
    r = [f"v_pk_mul_f32 {vr(vQ+2*i,2)}, {vr(vQ+2*i,2)}, {vr(vLI+2*(t//2),2)} " +
         ("op_sel:[0,1] op_sel_hi:[1,1]" if t & 1 else "op_sel_hi:[1,0]") for i in range(16)]
    r += [f"v_cvt_pk_bf16_f32 v{vQ+32+i}, v{vQ+2*i}, v{vQ+2*i+1}" for i in range(16)]
    return r
def epi_writes(t):
    return [f"ds_write_b64 v{vOA+dt}, {vr(vQ+32+2*dt,2)}" for dt in range(8)]
def epi_reads(t):
    return [f"ds_read_b128 {vr(vS+16*t+4*i,4)}, v{vOr} offset:{i*1024}" for i in range(4)]
def epi_stores(t):
    return [f"s_add_u32 s{sT0}, s{sOoff}, {t*16*ROWB}"] + \
           [f"buffer_store_dwordx4 {vr(vS+16*t+4*i,4)}, v{vQd+i}, s[{sOut}:{sOut+3}], s{sT0} offen offset:{i*1024}{ST}" for i in range(4)]

def fin(T, b, tn):
    e("s_waitcnt lgkmcnt(0)")
    mf = [pv1(b, t, dt, aKf) for t in range(T) for dt in range(8)]
    regs = [vL + t for t in range(T)]
    ls = [f"v_add_f32 v{vL+t}, v{vL+t}, v{vT+t}" for t in range(T)] + xlane("v_add_f32", regs, vX) + \
         [f"v_rcp_f32 v{vLI+t}, v{vL+t}" for t in range(T)] + [f"v_xor_b32 v{vOA+dt}, {dt*32}, v{vOw}" for dt in range(8)] + epi_acc(0)
    fixed = spread(ls, range(len(mf)))
    if tn: fixed = merge(place(next_loads(tn)[1], range(len(mf))), fixed)
    emit(pack(mf, fixed))
    e(f"s_branch Lepi{T}")

def first_max(t):
    s0 = sreg(0, t)
    m = vX + 2
    r = [f"v_max3_f32 v{m}, v{s0}, v{s0+1}, v{s0+2}", f"v_max3_f32 v{m}, v{m}, v{s0+3}, v{s0+4}",
         f"v_max3_f32 v{m}, v{m}, v{s0+5}, v{s0+6}", f"v_max_f32 v{m}, v{m}, v{s0+7}"]
    r += xlane("v_max_f32", [m], vX + 3)
    r += [f"v_sub_f32 v{vNM+4*t+i}, 0, v{m}" for i in range(4)]
    r += [f"v_sub_f32 v{s0+i}, v{s0+i}, v{m}" for i in range(8)]
    return r

def qraw(t):
    return vQ + 16 * t if t < 4 else sreg(1, 3)
def prescale(t):
    r = []
    for k in range(0, 16, 2):
        q = qraw(t) + k
        for i in range(2):
            r += [f"v_lshlrev_b32 v{vX+2*i}, 16, v{q+i}", f"v_and_b32 v{vX+2*i+1}, 0xffff0000, v{q+i}"]
        for i in range(2):
            r += [f"v_pk_mul_f32 {vr(vX+2*i,2)}, {vr(vX+2*i,2)}, s[{sThr}:{sC}] op_sel:[0,1] op_sel_hi:[1,1]"]
        for i in range(2):
            r += [f"v_cvt_pk_bf16_f32 v{q+i}, v{vX+2*i}, v{vX+2*i+1}"]
        if t == 4: r += [f"v_accvgpr_write_b32 a{aQ+k+i}, v{q+i}" for i in range(2)]
    return r

def first_only(lines):
    i = len(L)
    e(f"s_cmp_eq_u32 s{sFirst}, 0")
    e(f"s_cbranch_scc1 Lw{i}")
    emit(lines)
    lab(f"Lw{i}")

def nvm(l): return sum(x.startswith("buffer") for x in l)

vMK = vP + 20
def weave(mfs, valu, mem):
    d = place(mem, range(len(mfs))) if mem else {}
    out = []
    j = 0
    for i, x in enumerate(mfs):
        out.append(x)
        out += d.get(i, [])
        nj = (i + 1) * len(valu) // len(mfs)
        out += valu[j:nj]; j = nj
    return out

def prologue(T):
    lab(f"Lpro{T}")
    def qcur(g):
        return [x.replace(f"s{sQoffn}", f"s{sOoff}").replace(f"s[{sQ}:{sQ+3}]", f"s[{sQc}:{sQc+3}]") for x in qgroup(g, False)]
    q = ["K0"] * 2 + ["Q0"] * 4
    def younger(tag): return len(q) - 1 - max(i for i, x in enumerate(q) if x == tag)
    for s in range(4):
        e(f"v_xor_b32 v{vX+8+s}, {s*64}, v{vQa}")
    pre = [f"v_sub_u32 v{vX}, s{sRem}, v{vG4}", f"v_mov_b32 v{vX+1}, s{sNeg}"]
    for a in range(2):
        pre += [f"v_cmp_lt_i32 s[{sM+2*i}:{sM+2*i+1}], {16*a+i}, v{vX}" for i in range(4)] + ["s_nop 0"]
        pre += [f"v_cndmask_b32 v{vMK+4*a+i}, v{vX+1}, 0, s[{sM+2*i}:{sM+2*i+1}]" for i in range(4)]
    pre += [f"v_mov_b32 v{vL+t}, 0" for t in range(T)] + [f"v_mov_b32 v{vP+28+i}, 0" for i in range(4)]
    def qreads(t):
        return [f"ds_read_b128 {vr(qraw(t)+4*s,4)}, v{vX+8+s} offset:{t*4096}" for s in range(4)]
    A = lambda t: [qk1(0, t, a, s, vMK + 4 * a) for a in range(2) for s in range(4)]
    C = lambda t: [qk1(1, t, a, s, vNM + 4 * t, aVf) for a in range(2) for s in range(4)]
    blk = qcur(1) + ktile(1); q += ["Q1"] * 4 + ["K1"] * 2
    if T > 2: blk += qcur(2); q += ["Q2"] * 4
    first_only(blk + [f"s_waitcnt vmcnt({younger('Q0')})"])
    emit(qreads(0))
    emit(pre)
    e("s_waitcnt lgkmcnt(0)")
    emit(prescale(0))
    blk = []
    if T > 3: blk += qcur(3); q += ["Q3"] * 4
    first_only(blk + [f"s_waitcnt vmcnt({younger('K1')})"])
    emit(qreads(1))
    e("s_barrier")
    emit(k_reads(0))
    e("s_waitcnt lgkmcnt(8)")
    ps = prescale(1)
    emit(ps[:32])
    emit(k_reads(1, aVf))
    e("s_waitcnt lgkmcnt(8)")
    bulk = [("K2", ktile(2)), ("V0", vtile(0)), ("K3", ktile(3)), ("V1", vtile(1)), ("G", dma(0)[:5]), ("G", dma(0)[5:]),
            ("H", dma(1)[:5]), ("H", dma(1)[5:])]
    def takeb(n):
        nonlocal bulk
        r = []
        for tag, l in bulk[:n]:
            r += l; q.extend([tag] * nvm(l))
        bulk = bulk[n:]
        return r
    emit(weave(A(0), [], takeb(1) if T == 2 else []))
    emit(ps[32:])
    zm = zero_mfmas(T)
    per = {2: [2, 2, 3], 3: [1, 1, 2, 2, 2], 4: [1, 1, 1, 1, 1, 1, 2], 5: [0, 1, 1, 1, 1, 1, 1, 1, 1]}[T]
    for k in range(2, T + 2):
        fm = first_max(k - 2)
        dd = SM(1, 0, False, k - 2, 2).rest()
        if k - 1 < T:
            emit(weave(A(k - 1), fm, takeb(per.pop(0))))
        else:
            emit(fm)
        if k == 2:
            e("s_waitcnt lgkmcnt(0)")
            e("s_barrier")
        if k < T:
            blk = []
            if k == 2 and T > 4: blk += qcur(4); q.extend(["Q4"] * 4)
            first_only(blk + [f"s_waitcnt vmcnt({younger(f'Q{k}')})"])
            emit(qreads(k))
        emit(weave(zm[2 * (k - 2):2 * (k - 1)] + C(k - 2), dd, takeb(per.pop(0))))
        if k < T:
            e("s_waitcnt lgkmcnt(0)")
            emit(prescale(k))
        if k == T - 1 or (T == 2 and k == 2):
            stamp(1)
            if opts["stamp"]: e("s_waitcnt lgkmcnt(0)")
    assert not bulk and not per
    assert younger('V0') == 12
    e(f"s_waitcnt vmcnt(12)")
    e("s_barrier")
    emit(k_reads(2) + [CNT])
    stamp(2)
    e(".p2align 3")
    lab(f"Lloop{T}")
    for t in (1, 2, 3, 4):
        step(T, t)
    e(f"s_branch Lloop{T}")
    for p in range(4):
        exit_stub(T, p)

def stamp_store(final=False):
    if not opts["stamp"]: return
    B = vP + 20
    if opts["stamp"] == 2:
        if not final: return
        e("s_waitcnt lgkmcnt(0)")
        e("s_mov_b32 s92, s90"); e("s_mov_b32 s93, s91"); e("s_mov_b32 s94, 256"); e("s_mov_b32 s95, 0x20000")
        e("s_mov_b64 exec, 1")
        e(f"v_mov_b32 v{B+8}, 0")
        e("s_not_b32 s96, s100"); e(f"v_mov_b32 v{B}, s96")
        e(f"buffer_atomic_umax v{B}, v{B+8}, s[92:95], 0 offen offset:32")
        e(f"v_mov_b32 v{B+1}, s{sST+12}")
        e(f"buffer_atomic_umax v{B+1}, v{B+8}, s[92:95], 0 offen offset:36")
        e(f"v_mov_b32 v{B+2}, s100")
        e(f"buffer_atomic_umax v{B+2}, v{B+8}, s[92:95], 0 offen offset:40")
        e(f"s_lshl_b32 s96, s2, 2"); e(f"s_add_u32 s96, s96, s{sW}")
        e("s_cmp_lg_u32 s96, 32"); e("s_cbranch_scc1 Lnodbg")
        e(f"s_sub_u32 s96, s99, s100"); e(f"v_mov_b32 v{B}, s96")
        e(f"s_sub_u32 s96, s{sST+2}, s97"); e(f"v_mov_b32 v{B+1}, s96")
        for i in range(1, 4):
            e(f"s_sub_u32 s96, s{sST+2*i+2}, s{sST+2*i}"); e(f"v_mov_b32 v{B+1+i}, s96")
        e(f"s_sub_u32 s96, s{sST}, s{sST+8}"); e(f"v_mov_b32 v{B+5}, s96")
        e(f"s_sub_u32 s96, s{sST+12}, s100"); e(f"v_mov_b32 v{B+6}, s96")
        e(f"v_mov_b32 v{B+7}, s100")
        e(f"buffer_store_dwordx4 {vr(B,4)}, v{B+8}, s[92:95], 0 offen")
        e(f"buffer_store_dwordx4 {vr(B+4,4)}, v{B+8}, s[92:95], 0 offen offset:16")
        lab("Lnodbg")
        return
    e("s_waitcnt lgkmcnt(0)")
    e("s_mov_b32 s92, s90"); e("s_mov_b32 s93, s91"); e("s_mov_b32 s94, 0x100000"); e("s_mov_b32 s95, 0x20000")
    e(f"s_lshl_b32 s96, s2, 2"); e(f"s_add_u32 s96, s96, s{sW}"); e("s_lshl_b32 s96, s96, 2")
    if final: e("s_add_u32 s96, s96, 3")
    else: e("s_add_u32 s96, s96, s97"); e("s_add_u32 s97, s97, 1")
    e("s_lshl_b32 s96, s96, 5")
    for i in range(5): e(f"v_mov_b32 v{B+i}, s{sST+2*i}")
    e(f"v_mov_b32 v{B+5}, s{sST+10}"); e(f"v_mov_b32 v{B+6}, s{sST+12}"); e(f"v_mov_b32 v{B+7}, s98")
    e(f"v_mov_b32 v{B+8}, 0")
    e("s_mov_b64 exec, 1")
    e(f"buffer_store_dwordx4 {vr(B,4)}, v{B+8}, s[92:95], s96 offen")
    e(f"buffer_store_dwordx4 {vr(B+4,4)}, v{B+8}, s[92:95], s96 offen offset:16")
    e("s_mov_b64 exec, -1")
    e("s_nop 2")

def epilogue(T):
    lab(f"Lepi{T}")
    stamp(4)
    if opts["stamp"]: e(f"s_memrealtime s[{sST+12}:{sST+13}]")
    stamp_store()
    for t in range(T):
        if t: emit(epi_acc(t))
        emit(epi_cvt(t))
        if t:
            e("s_waitcnt lgkmcnt(0)")
            emit(epi_stores(t - 1))
        emit(epi_writes(t) + epi_reads(t))
    n = 4
    for x in epi_stores(T - 1):
        if x.startswith("buffer"):
            n -= 1
            e(f"s_waitcnt lgkmcnt({n})")
        e(x)
    if T in PROD:
        e(f"s_cmp_eq_u32 s{sD1n}, 0")
        e("s_cbranch_scc1 Ldone")
        e(f"s_mov_b32 s{sFirst}, 0")
        e(f"s_waitcnt vmcnt({4*T})")
        e("s_branch Lstart")
    else:
        e("s_branch Ldone")

def gen():
    L.append(open(os.path.join(os.path.dirname(os.path.abspath(__file__)), "header.txt")).read().rstrip())
    L.append(f"; @launch grid=({NWG},1,1) block=(256,1,1) lds={LDSZ}")
    L.append('.amdgcn_target "amdgcn-amd-amdhsa--gfx950"')
    L.append(".text")
    L.append(f".globl {NAME}_kernel")
    L.append(".p2align 8")
    L.append(f".type {NAME}_kernel,@function")
    lab(f"{NAME}_kernel")
    e(f"s_cmp_ge_u32 s2, {NWG}")
    e("s_cbranch_scc1 Lend")
    e(f"s_getpc_b64 s[{sPC}:{sPC+1}]")
    lab("Lpc")
    e("s_load_dwordx4 s[4:7], s[0:1], 0")
    e("s_load_dwordx2 s[8:9], s[0:1], 16")
    e("s_load_dwordx2 s[10:11], s[0:1], 32")
    if opts["pf"]:
        e(f"v_lshlrev_b32 v1, 7, v0")
        for i in range(opts["pf"] * 2):
            e(f"global_load_dword v{2+i}, v1, s[{sPC}:{sPC+1}]")
            e(f"v_add_u32 v1, 32768, v1")
    e(f"s_add_u32 s{sPC}, s{sPC}, Ltab-Lpc")
    e(f"s_addc_u32 s{sPC+1}, s{sPC+1}, 0")
    e("s_lshl_b32 s3, s2, 5")
    e(f"s_load_dwordx8 s[{sJ}:{sJ+7}], s[{sPC}:{sPC+1}], s3")
    if opts["stamp"]:
        e(f"s_load_dwordx2 s[90:91], s[0:1], {40 if opts['stamp'] == 2 else 48}")
        e("s_memrealtime s[100:101]")
        e("s_mov_b32 s97, 0")
    w, ln, i16, g, x4, x5, x6 = range(vX, vX + 7)
    e(f"v_lshrrev_b32 v{w}, 6, v0")
    e(f"v_and_b32 v{ln}, 63, v0")
    e(f"v_readfirstlane_b32 s{sW}, v{w}")
    e(f"v_and_b32 v{i16}, 15, v{ln}")
    e(f"v_lshrrev_b32 v{g}, 4, v{ln}")
    e(f"v_xor_b32 v{x6}, v{i16}, v{g}")
    e(f"v_lshlrev_b32 v{x6}, 4, v{x6}")
    e(f"v_bfe_u32 v{x4}, v{ln}, 3, 1")
    e(f"v_lshlrev_b32 v{x4}, 12, v{x4}")
    e(f"v_and_b32 v{x5}, 7, v{ln}")
    e(f"v_lshl_add_u32 v{x4}, v{x5}, 8, v{x4}")
    e(f"v_add3_u32 v{vKa}, v{x4}, v{x6}, 0")
    e(f"v_add_u32 v{vKa}, 2048, v{vKa}")
    for s in range(1, 4):
        e(f"v_xor_b32 v{vKa+s}, {s*64}, v{vKa}")
    e(f"v_mul_u32_u24 v{x4}, {QW}, v{w}")
    e(f"v_lshl_add_u32 v{x4}, v{i16}, 8, v{x4}")
    e(f"v_add3_u32 v{x4}, v{x4}, v{x6}, 0")
    e(f"v_add_u32 v{vQa}, {QS}, v{x4}")
    e(f"v_lshlrev_b32 v{x4}, 12, v{w}")
    e(f"v_add_u32 v{x4}, {OS}, v{x4}")
    e(f"v_lshl_add_u32 v{vOr}, v{ln}, 4, v{x4}")
    e(f"v_lshl_add_u32 v{x4}, v{i16}, 8, v{x4}")
    e(f"v_lshrrev_b32 v{x5}, 1, v{g}")
    e(f"v_xor_b32 v{x5}, v{x5}, v{i16}")
    e(f"v_lshl_add_u32 v{x4}, v{x5}, 4, v{x4}")
    e(f"v_and_b32 v{x5}, 1, v{g}")
    e(f"v_lshl_add_u32 v{vOw}, v{x5}, 3, v{x4}")
    e(f"v_lshrrev_b32 v{x4}, 1, v{g}")
    e(f"v_lshlrev_b32 v{x4}, 12, v{x4}")
    e(f"v_mul_u32_u24 v{x5}, {4*256+32}, v{x5}")
    e(f"v_add_u32 v{x4}, v{x4}, v{x5}")
    e(f"v_lshrrev_b32 v{x5}, 2, v{i16}")
    e(f"v_mul_u32_u24 v{x5}, {256+64}, v{x5}")
    e(f"v_add_u32 v{x4}, v{x4}, v{x5}")
    e(f"v_and_b32 v{x5}, 3, v{ln}")
    e(f"v_lshl_add_u32 v{vVa}, v{x5}, 3, v{x4}")
    for dt in range(1, 8):
        e(f"v_xor_b32 v{vVa+dt}, {dt*32}, v{vVa}")
    e(f"v_lshlrev_b32 v{vG4}, 2, v{g}")
    e(f"v_lshl_add_u32 v{vQd}, v{g}, 12, v{x6}")
    for i in range(1, 4):
        e(f"v_xor_b32 v{vQd+i}, {i*64}, v{vQd}")
        e(f"v_add_u32 v{vQd+i}, {i*(4*ROWB-1024)}, v{vQd+i}")
    e(f"v_lshl_add_u32 v{x5}, v{w}, 3, v{g}")
    e(f"v_xor_b32 v{x4}, v{vG4}, v{i16}")
    e(f"v_lshlrev_b32 v{x4}, 4, v{x4}")
    e(f"v_lshl_add_u32 v{vDV}, v{x5}, 12, v{x4}")
    e(f"v_xor_b32 v{vDV+1}, 32, v{vDV}")
    e(f"v_add_u32 v{vDV+1}, {4*ROWB-1024}, v{vDV+1}")
    e(f"v_and_b32 v{x4}, 15, v{x5}")
    e(f"v_xor_b32 v{x4}, v{x4}, v{i16}")
    e(f"v_lshlrev_b32 v{x4}, 4, v{x4}")
    e(f"v_lshl_add_u32 v{vDK}, v{x5}, 12, v{x4}")
    e(f"v_xor_b32 v{vDK+1}, 64, v{vDK}")
    e(f"v_add_u32 v{vDK}, {4096-2048}, v{vDK}")
    e(f"v_add_u32 v{vDK+1}, {4*ROWB+4096-3072}, v{vDK+1}")
    e(f"s_lshl_b32 s{sWB}, s{sW}, 12")
    e(f"s_mov_b32 s{sThr}, {hex(f32bits(4096.0))}")
    e(f"s_mov_b32 s{sC}, {hex(f32bits(128 ** -0.5 * math.log2(math.e)))}")
    e(f"s_mov_b32 s{sNeg}, {hex(f32bits(-1e30))}")
    e(f"s_mov_b32 s{sBig}, 0x40000000")
    e(f"s_mov_b32 s{sFirst}, 1")
    e(f"s_mul_i32 s{sQW}, s{sW}, {QW}")
    e(f"s_add_u32 s{sQW}, s{sQW}, {QS}")
    e("s_waitcnt lgkmcnt(0)")
    for srd, ptr in ((sQ, 4), (sK, 6), (sV, 8), (sOut, 10)):
        e(f"s_mov_b32 s{srd}, s{ptr}")
        e(f"s_mov_b32 s{srd+1}, s{ptr+1}")
        e(f"s_mov_b32 s{srd+2}, 0")
        e(f"s_mov_b32 s{srd+3}, 0x20000")
    e(f"s_mov_b32 s{sQc}, s4")
    e(f"s_mov_b32 s{sQc+1}, s5")
    e(f"s_mov_b32 s{sQc+2}, 0")
    e(f"s_mov_b32 s{sQc+3}, 0x20000")
    e(f"s_sub_u32 s{sK}, s{sK}, 4096")
    e(f"s_subb_u32 s{sK+1}, s{sK+1}, 0")
    def decode():
        e(f"s_mov_b32 s{sD0n}, s{sJ}")
        e(f"s_mov_b32 s{sD1n}, s{sJ+1}")
        e(f"s_mov_b64 s[{sJ}:{sJ+1}], s[{sJ+2}:{sJ+3}]")
        e(f"s_mov_b64 s[{sJ+2}:{sJ+3}], s[{sJ+4}:{sJ+5}]")
        e(f"s_mov_b64 s[{sJ+4}:{sJ+5}], s[{sJ+6}:{sJ+7}]")
        e(f"s_and_b32 s{sT0}, s{sD1n}, 0xfff")
        e(f"s_lshl_b32 s{sNRn}, s{sT0}, 12")
        e(f"s_add_u32 s{sNRn}, s{sNRn}, s{sD0n}")
        e(f"s_sub_u32 s{sNRn}, s{sNRn}, {ROWB-256}")
        e(f"s_sub_u32 s{sT0}, s{sT0}, 1")
        e(f"s_and_b32 s{sT0}, s{sT0}, 0xfe0")
        e(f"s_lshl_b32 s{sT0}, s{sT0}, 12")
        e(f"s_add_u32 s{sLastn}, s{sT0}, s{sD0n}")
        e(f"s_cmp_lg_u32 s{sD1n}, 0")
        e(f"s_cselect_b32 s{sNRn}, s{sNRn}, 0")
        e(f"s_mov_b32 s{sQ+2}, s{sNRn}")
        e(f"s_lshr_b32 s{sTn}, s{sD1n}, 24")
        e(f"s_mul_i32 s{sT0}, s{sTn}, s{sW}")
        e(f"s_lshl_b32 s{sT0}, s{sT0}, 16")
        e(f"s_and_b32 s{sQoffn}, s{sD1n}, 0xfff000")
        e(f"s_add_u32 s{sQoffn}, s{sQoffn}, s{sD0n}")
        e(f"s_add_u32 s{sQoffn}, s{sQoffn}, s{sT0}")
    decode()
    emit(next_k0() + qgroup(0))
    lab("Lstart")
    e(f"s_mov_b32 s{sD0}, s{sD0n}")
    e(f"s_mov_b32 s{sD1}, s{sD1n}")
    e(f"s_mov_b32 s{sLast}, s{sLastn}")
    e(f"s_mov_b32 s{sOut+2}, s{sNRn}")
    e(f"s_mov_b32 s{sV+2}, s{sNRn}")
    e(f"s_mov_b32 s{sQc+2}, s{sNRn}")
    e(f"s_mov_b32 s{sOoff}, s{sQoffn}")
    decode()
    e(f"s_and_b32 s{sL}, s{sD1}, 0xfff")
    e(f"s_add_u32 s{sN}, s{sL}, 31")
    e(f"s_lshr_b32 s{sN}, s{sN}, 5")
    e(f"s_sub_u32 s{sCnt}, s{sN}, 2")
    e(f"s_sub_u32 s{sT0}, s{sN}, 1")
    e(f"s_lshl_b32 s{sT0}, s{sT0}, 5")
    e(f"s_sub_u32 s{sRem}, s{sL}, s{sT0}")
    e(f"s_mov_b32 s{sOff}, s{sD0}")
    e(f"s_add_u32 s{sOffK}, s{sD0}, {2*TILEB}")
    stamp(0)
    e(f"s_lshr_b32 s{sT0}, s{sD1}, 24")
    if opts["stamp"]:
        e(f"s_memrealtime s[{sST+10}:{sST+11}]")
        e(f"s_lshl_b32 s98, s{sT0}, 8"); e(f"s_add_u32 s98, s98, s{sN}")
        e("s_waitcnt lgkmcnt(0)")
        if opts["stamp"] == 2:
            e(f"s_mov_b32 s97, s{sST}"); e(f"s_mov_b32 s99, s{sST+10}")
    order = sorted(TS, key=lambda t: (t != 4, -t))
    for T in order[1:]:
        e(f"s_cmp_eq_u32 s{sT0}, {T}")
        e(f"s_cbranch_scc1 Lpro{T}")
    for T in order:
        prologue(T)
        epilogue(T)
    lab("Ldone")
    if opts["stamp"]:
        e("s_waitcnt vmcnt(0)")
        stamp(0)
        e(f"s_memrealtime s[{sST+12}:{sST+13}]")
        e(f"s_mov_b32 s{sST+10}, s100")
        e("s_getreg_b32 s98, hwreg(HW_REG_HW_ID)")
        stamp_store(True)
    lab("Lend")
    e("s_endpgm")

    for tag, buf in STUBS:
        lab(f"Lrare_{tag}")
        e(f"s_call_b64 s[{sRet}:{sRet+1}], Lresc_{buf}")
        e(f"s_branch Lback_{tag}")
    for b in range(2):
        lab(f"Lresc_{b}")
        e("s_nop 15")
        for t in range(TM):
            s, s2 = sreg(b, t), sreg(b ^ 1, t)
            dl, al = vX, (vX + 8 + t if t < 4 else vX + 2)
            e(f"v_max3_f32 v{dl}, v{s}, v{s+1}, v{s+2}")
            e(f"v_max3_f32 v{dl}, v{dl}, v{s+3}, v{s+4}")
            e(f"v_max3_f32 v{dl}, v{dl}, v{s+5}, v{s+6}")
            e(f"v_max3_f32 v{dl}, v{dl}, v{s+7}, 0")
            emit(xlane("v_max_f32", [dl], vX + 1))
            e(f"v_sub_f32 v{al}, 0, v{dl}")
            e(f"v_exp_f32 v{al}, v{al}")
            for i in range(8):
                e(f"v_sub_f32 v{s+i}, v{s+i}, v{dl}")
                e(f"v_sub_f32 v{s2+i}, v{s2+i}, v{dl}")
            for i in range(4):
                e(f"v_sub_f32 v{vNM+4*t+i}, v{vNM+4*t+i}, v{dl}")
            e(f"v_mul_f32 v{vL+t}, v{vL+t}, v{al}")
        emit(SM(TM, b, False).rest())
        if b == 0: e("s_branch LrescO")
    lab("LrescO")
    for t in range(TM):
        for i in range(0, 32, 4):
            al = vX + 8 + t if t < 4 else vX + 2
            for k in range(4): e(f"v_accvgpr_read_b32 v{vX+4+k}, a{aO+32*t+i+k}")
            for k in range(4): e(f"v_mul_f32 v{vX+4+k}, v{vX+4+k}, v{al}")
            for k in range(4): e(f"v_accvgpr_write_b32 a{aO+32*t+i+k}, v{vX+4+k}")
    e("s_nop 1")
    e(f"s_setpc_b64 s[{sRet}:{sRet+1}]")

    e(".p2align 5")
    L.append(".type Ltab,@object")
    lab("Ltab")
    for ent in TAB:
        e(".long " + ", ".join(str(x) for x in ent))
    L.append('.section .rodata,"a"')
    L.append(".p2align 6")
    L.append(f".amdhsa_kernel {NAME}_kernel")
    L.append("  .amdhsa_next_free_vgpr 512")
    L.append("  .amdhsa_next_free_sgpr 102")
    L.append("  .amdhsa_accum_offset 256")
    L.append("  .amdhsa_group_segment_fixed_size 0")
    L.append("  .amdhsa_kernarg_size 56")
    L.append("  .amdhsa_user_sgpr_count 2")
    L.append("  .amdhsa_user_sgpr_kernarg_segment_ptr 1")
    L.append("  .amdhsa_system_sgpr_workgroup_id_x 1")
    L.append(".end_amdhsa_kernel")

gen()
open(sys.argv[1], "w").write("\n".join(L) + "\n")
```

```python
import sys, struct, math, os

NAME = "standalone__varlen_attn_packed__ragged"
CU = [0, 534, 1426, 1714, 2675, 3469, 4036, 4628, 4845]
ROWB = 4096
TILEB = 32 * ROWB
QS = 65536
QW = 20480
OS = QS + 4 * QW
LDSZ = 163840
TM = 5

opts = dict(stamp=0, st="sc0+sc1", ld="", ldq="nt", al=3, e64=0, rs=1, epi=0, late=1, plan="b", rev=0, lc=4, pf=0, lazy=0)
for a in sys.argv[2:]:
    k, v = a.split("=")
    opts[k] = int(v) if v.lstrip("-").isdigit() else v
LD = (" " + opts["ld"].replace("+", " ")) if opts["ld"] else ""
LDQ = (" " + opts["ldq"].replace("+", " ")) if opts.get("ldq", opts["ld"]) and "ldq" in opts else ("" if "ldq" in opts else LD)
ST = (" " + opts["st"].replace("+", " ")) if opts["st"] else ""
DG = str(opts.get("diag", ""))

def f32bits(x):
    return struct.unpack("<I", struct.pack("<f", x))[0]

vQ = 0
vS = 64
vP = 144
vNM = 184
vKa = 204
vVa = 208
vDK = 216
vDV = 218
vQd = 220
vE = 224
vT = 228
vL = 233
vU = 238
vQa = 239
vOw = 240
vOr = 241
vG4 = 242
vU2 = 243
vX = 244
aO = 0
aKf = 160
aVf = 192
aQ = 224
aL = 240
vOne = 228
vL4 = 232
vAc = 236
BIAS = 20.0
RS = opts['rs']

sQ, sK, sV, sOut = 12, 16, 20, 24
sJ = 28
sD0, sD1 = 36, 37
sL, sN, sOff, sWB, sCnt, sLast, sThr, sC, sNeg, sW = 38, 39, 40, 41, 42, 43, 44, 45, 46, 47
sRet, sPC = 48, 52
sTn, sLastn = 50, 51
sRem, sQoffn, sOoff, sBig, sD0n, sNRn, sD1n = 54, 55, 56, 57, 58, 59, 60
sT0 = 61
sOffK = 63
sQW = 3
sFirst = 64
sQc = 8
sM = 68
sST = 76

L = []
def e(s): L.append("    " + s)
def lab(s): L.append(s + ":")
def vr(b, n): return f"v[{b}:{b+n-1}]"
def ar(b, n): return f"a[{b}:{b+n-1}]"
def emit(lines):
    for x in lines:
        if x.endswith(":"): L.append(x)
        else: e(x)
LIGHT = opts["stamp"] == 3
if LIGHT: opts["stamp"] = 0
def pstamp(idx):
    if opts["stamp"] and opts.get("pst"):
        e(f"s_memtime s[{sST+2*idx}:{sST+1+2*idx}]")
        e("s_waitcnt lgkmcnt(0)")
def stamp(idx):
    if opts.get("pst") and 1 <= idx <= 4: return
    if opts["stamp"]:
        e(f"s_memtime s[{sST+2*idx}:{sST+1+2*idx}]")

SEQ = []
for si in range(8):
    ln = CU[si + 1] - CU[si]
    SEQ.append((CU[si], ln, (ln + 63) // 64, (ln + 31) // 32))

PLANS = {
    "b": [[(31, 4)]] * 4 + [[(25, 5)]] * 2 + [[(25, 3), (7, 4)], [(18, 3), (17, 3)], [(18, 3), (17, 3)], [(18, 3), (17, 3)],
          [(19, 4), (9, 3)], [(28, 2), (19, 2)], [(19, 4), (9, 2)]] + [[(28, 4)]] * 3,
    "a": [[(31, 4)]] * 4 + [[(25, 5)]] * 2 + [[(17, 4), (18, 2)], [(19, 5), (7, 2)], [(25, 3), (9, 3)], [(28, 2), (18, 2)],
          [(17, 5), (9, 2)], [(18, 5), (7, 2)]] + [[(28, 4)]] * 3 + [[(19, 5)]],
}

def plan_head():
    n2s = {SEQ[i][3]: i for i in range(8)}
    nxt = {i: 0 for i in range(8)}
    spec = PLANS[opts["plan"]]
    res = [[None] * len(s) for s in spec]
    for want in (2, 3, 4, 5):
        for i, s in enumerate(spec):
            for k, (n, t) in enumerate(s):
                if t == want:
                    si = n2s[n]
                    res[i][k] = (si, nxt[si], t); nxt[si] += 64 * t
    for i in range(8):
        assert nxt[i] == SEQ[i][2] * 64, (i, nxt[i])
    if opts["rev"]:
        res = [list(reversed(r)) for r in res]
    return res

def make_table():
    ph = plan_head()
    tab = []
    for wg in range(256):
        x, j = wg & 7, wg >> 3
        head = 2 * x + (j & 1)
        ent = []
        for (si, q0, t) in ph[j >> 1]:
            st, ln, nb, n = SEQ[si]
            lazy = (opts["lazy"] >> (j >> 1)) & 1
            ent += [st * ROWB + head * 256, ln | (q0 << 12) | (t << 24) | (lazy << 28)]
        ent += [0] * (8 - len(ent))
        tab.append(ent)
    return tab

TAB = make_table()
PH = plan_head()
TS = sorted({t for jl in PH for _, _, t in jl}, reverse=True)
TAILS = {}
for jl in PH:
    for k, (si, q0, t) in enumerate(jl):
        TAILS.setdefault((t, (SEQ[si][3] - 1) % 4), set()).add(1 if k + 1 < len(jl) else 0)
PROD = {t for (t, p), v in TAILS.items() if v - {0}}
NWG = 256

MF = "v_mfma_f32_16x16x32_bf16"
def qreg(t, s):
    return vr(vQ + 16 * t + 4 * s, 4) if t < 4 else ar(aQ + 4 * s, 4)
def sreg(buf, t, a=0): return vS + 40 * buf + 8 * t + 4 * a
def preg(buf, t): return vP + 20 * buf + 4 * t

def qk1(buf, t, a, s, cinit, kf=None):
    d = sreg(buf, t, a)
    kf = aKf if kf is None else kf
    return f"{MF} {vr(d,4)}, {ar(kf+4*(a*4+s),4)}, {qreg(t,s)}, {vr(cinit if s == 0 else d,4)}"

def qk_mfmas(T, buf):
    return [qk1(buf, t, a, s, vNM + 4 * t) for a in range(2) for s in range(4) for t in range(T)]

ZERO = [False]
def pv1(buf, t, dt, vf):
    o = aO + 32 * t + 4 * dt
    return f"{MF} {ar(o,4)}, {ar(vf+4*dt,4)}, {vr(preg(buf,t),4)}, {'0' if ZERO[0] else ar(o,4)}"

def rs1(buf, t):
    l = ar(aL + 4 * t, 4) if t < 4 else vr(vL4, 4)
    return f"{MF} {l}, {vr(vOne,4)}, {vr(preg(buf,t),4)}, {'0' if ZERO[0] else l}"

def pv_mfmas(T, buf, vf=aVf):
    return [pv1(buf, t, dt, vf) for dt in range(8) for t in range(T)] + ([rs1(buf, t) for t in range(T)] if RS else [])

def zero_mfmas(T):
    return [f"v_mfma_f32_32x32x16_bf16 {ar(aO+16*i,16)}, {vr(vP+28,4)}, {vr(vP+28,4)}, 0" for i in range(2 * T)]

def k_reads(slot, kf=None):
    kf = aKf if kf is None else kf
    return [f"ds_read_b128 {ar(kf+4*(a*4+s),4)}, v{vKa+s} offset:{slot*16384+a*8192}" for a in range(2) for s in range(4)]

def v_reads(slot, vf=aVf):
    return [f"ds_read_b64_tr_b16 {ar(vf+4*dt+2*a,2)}, v{vVa+dt} offset:{slot*16384+a*8192}" for dt in range(8) for a in range(2)]

def m0set(off):
    return f"s_add_u32 m0, s{sWB}, {off}" if off else f"s_mov_b32 m0, s{sWB}"
def ldv(j, so):
    return f"buffer_load_dwordx4 v{vDV+j}, s[{sV}:{sV+3}], s{so} offen" + (f" offset:{j*1024}" if j else "") + f"{LD} lds"
def ldk(j, so):
    return f"buffer_load_dwordx4 v{vDK+j}, s[{sK}:{sK+3}], s{so} offen offset:{2048+j*1024}{LD} lds"

def dma(slot):
    return [m0set(slot * 16384),
            f"s_add_u32 s{sOff}, s{sOff}, {TILEB}",
            f"s_add_u32 s{sOffK}, s{sOffK}, {TILEB}",
            ldv(0, sOff), ldv(1, sOff), ldk(0, sOffK), ldk(1, sOffK)]

CHK = f"v_cmp_ne_u32 vcc, 0, v{vX}" if RS else f"v_cmp_lt_f32 vcc, s{sThr}, v{vX}"
ERING = [vE, vE + 2, vX + 4, vX + 6]
def softmax_ops(T, buf, full=True, R=4, t0=0):
    exps, sims = [], []
    done_after = []
    n = 4 * T
    for k in range(n):
        t, kk = divmod(k, 4)
        t += t0
        a = ERING[k % R]; b = a + 1
        need = done_after[k - R] if k >= R else 0
        exps += [(f"v_exp_f32 v{a}, v{sreg(buf,t)+2*kk}", need), (f"v_exp_f32 v{b}, v{sreg(buf,t)+2*kk+1}", need)]
        p = preg(buf, t) + kk
        u = vU if k & 1 else vU2
        ne = 2 * k + 2
        if RS:
            sims.append((f"v_cvt_pk_bf16_f32 v{p}, v{a}, v{b}", ne))
            done_after.append(len(sims))
            if full and (k & 1):
                sims.append((f"v_or_b32 v{vAc}, v{p-1}, v{p}" if k == 1 else f"v_or3_b32 v{vAc}, v{vAc}, v{p-1}, v{p}", ne))
        elif kk == 0:
            if full: sims.append((f"v_add_f32 v{vL+t}, v{vL+t}, v{vT+t}", 0))
            sims += [(f"v_cvt_pk_bf16_f32 v{p}, v{a}, v{b}", ne), (f"v_add_f32 v{vT+t}, v{a}, v{b}", ne)]
            done_after.append(len(sims))
        else:
            sims += [(f"v_add_f32 v{u}, v{a}, v{b}", ne), (f"v_cvt_pk_bf16_f32 v{p}, v{a}, v{b}", ne)]
            done_after.append(len(sims))
            sims.append((f"v_add_f32 v{vT+t}, v{vT+t}, v{u}", ne))
    if full and RS:
        sims += [(f"v_and_b32 v{vX}, 0x40004000, v{vAc}", 2 * n), (CHK, 2 * n)]
    elif full:
        m = [vT + t for t in range(T)]
        cur = m.pop(0)
        while m:
            if len(m) >= 2:
                sims.append((f"v_max3_f32 v{vX}, v{cur}, v{m[0]}, v{m[1]}", 2 * n)); m = m[2:]
            else:
                sims.append((f"v_max_f32 v{vX}, v{cur}, v{m[0]}", 2 * n)); m = []
            cur = vX
        sims.append((f"v_cmp_lt_f32 vcc, s{sThr}, v{cur}", 2 * n))
    return exps, sims

class SM:
    def __init__(s, T, buf, full=True, t0=0, R=4):
        s.ex, s.si = softmax_ops(T, buf, full, R, t0)
        s.i = s.j = 0
        s.last_exp = False
    def left(s): return 8 * (len(s.ex) - s.i) + 4 * (len(s.si) - s.j)
    def can_exp(s): return s.i < len(s.ex) and s.ex[s.i][1] <= s.j
    def can_sim(s):
        if s.j >= len(s.si): return False
        need = s.si[s.j][1]
        return need < s.i or (need == s.i and not s.last_exp)
    def exp(s): s.i += 1; s.last_exp = True; return s.ex[s.i - 1][0]
    def sim(s): s.j += 1; s.last_exp = False; return s.si[s.j - 1][0]
    def other(s): s.last_exp = False
    def any(s):
        if s.can_sim() and (s.si[s.j][1] <= s.i - 2 or not s.can_exp()): return s.sim()
        if s.can_exp(): return s.exp()
        if s.can_sim(): return s.sim()
        s.last_exp = False
        return "s_nop 0"
    def take(s, n): return [s.any() for _ in range(n) if s.left()]
    def rest(s):
        r = []
        while s.left(): r.append(s.any())
        return r

def is_mem(x): return x.startswith("ds_") or x.startswith("buffer_")

def pack(mf, fixed, sm=None, novalu=(), keep=0, cap=8):
    n = len(mf)
    def fcost(l):
        c = 0; ns = 0; nm = 0
        for x in l:
            if is_mem(x): c += 8 if nm else 4; nm += 1
            elif x.startswith("s_"): c += 4 if (ns or nm) else 0; ns += 1
            else: c += 4
        return c
    fc = [fcost(fixed.get(g, [])) for g in range(n)]
    out = []
    for g in range(n):
        out.append(mf[g])
        out += fixed.get(g, [])
        if sm is None: continue
        sm.other()
        if g in novalu: continue
        rem = [k for k in range(g, n) if k not in novalu]
        last = g == rem[-1]
        used = fc[g]
        while sm.left() > keep:
            later = sum(max(0, cap - fc[k]) for k in rem[1:])
            over = sm.left() - keep - later
            room = cap - used
            if room <= 0:
                if not last and over * 1.0 < 4 * 1.0 + 0 : break
                if not last and (used - cap + 4) * len(rem) > over + (used - cap) + 2 * len(rem): break
            nexp = len(sm.ex) - sm.i
            full_later = sum(1 for k in rem[1:] if cap - fc[k] >= 8)
            if room >= 8 and sm.can_exp() and (not sm.can_sim() or nexp > full_later * opts.get("eb", 70) // 100 or sm.si[sm.j][1] > sm.i - 4):
                out.append(sm.exp()); used += 8
            elif sm.can_sim():
                out.append(sm.sim()); used += 4
            elif sm.can_exp() and (room >= 8 or last or nexp + opts.get("slk", 2) > full_later or over > 0):
                out.append(sm.exp()); used += 8
            else:
                if last: out.append(sm.any()); used += 4
                else: break
    return out

STUBS = []
def check_rare(buf, tag):
    e(f"s_cbranch_vccnz Lrare_{tag}")
    lab(f"Lback_{tag}")
    STUBS.append((tag, buf))

def spread(items, gaps):
    d = {}
    gaps = list(gaps)
    for i, x in enumerate(items):
        d.setdefault(gaps[i * len(gaps) // len(items)], []).append(x)
    return d

def merge(*ds):
    r = {}
    for d in ds:
        for k, v in d.items():
            r.setdefault(k, []).extend(v)
    return r

def interleave(a, b):
    out = []
    if not a: return list(b)
    j = 0
    for i, x in enumerate(a):
        out.append(x)
        nj = (i + 1) * len(b) // len(a)
        out += b[j:nj]; j = nj
    return out

CNT = f"s_sub_u32 s{sCnt}, s{sCnt}, 1"

def place(items, gaps):
    groups = []
    cur = []
    for x in items:
        cur.append(x)
        if is_mem(x): groups.append(cur); cur = []
    if cur: groups.append(cur)
    gaps = list(gaps)
    d = {}
    for i, gr in enumerate(groups):
        d.setdefault(gaps[i * len(gaps) // len(groups)], []).extend(gr)
    return d

def qgroup(g, dyn=True):
    r = [f"s_add_u32 m0, s{sQW}, {g*4096}" if g else f"s_mov_b32 m0, s{sQW}",
         f"s_add_u32 s{sT0}, s{sQoffn}, {g*16*ROWB}"]
    if g >= 2 and dyn:
        r += [f"s_cmp_gt_u32 s{sTn}, {g}", f"s_cselect_b32 s{sT0}, s{sT0}, s{sBig}"]
    r += [f"buffer_load_dwordx4 v{vQd+i}, s[{sQ}:{sQ+3}], s{sT0} offen offset:{i*1024}{LDQ} lds" for i in range(4)]
    return r

def step(T, t, prod=False):
    p = t % 4
    b = t % 2
    h = 8 * T
    ZERO[0] = prod
    mf = qk_mfmas(T, b ^ 1) + pv_mfmas(T, b ^ 1)
    ZERO[0] = False
    kr = k_reads((t + 2) % 4)
    d = dma((t + 1) % 4)
    sm = SM(T, b)
    n = len(mf)
    vrd = v_reads((t + 1) % 4)
    vm = 8
    end = [CNT] if prod else [CNT, "s_cselect_b64 vcc, -1, vcc"]
    if T >= 3:
        kd = [kr[0], kr[1], d[3], kr[2], kr[3], d[4], kr[4], kr[5], d[5], kr[6], kr[7], d[6]]
        fixed = merge(place(vrd, range(0, h - 5)),
                      {h - 1: [f"s_waitcnt vmcnt({vm}) lgkmcnt(0)", "s_barrier"]},
                      {h - 4: [d[0]], h - 3: [d[1]], h - 2: [d[2]]},
                      place(kd, range(h, n - 3)),
                      {n - 2: [end[0]], n - 1: end[1:]})
    else:
        kd = [kr[0], kr[1], d[3], kr[2], kr[3], kr[4], d[4], kr[5], kr[6], kr[7], d[5]]
        fixed = merge(place(vrd, range(0, 12)),
                      {h - 1: [f"s_waitcnt vmcnt({vm}) lgkmcnt(0)", "s_barrier"]},
                      {h - 4: [d[0]], h - 3: [d[1]], h - 2: [d[2]]},
                      place(kd, range(h, n - 5)),
                      {n - 2: [end[0], d[6]], n - 1: end[1:]})
    e("s_waitcnt lgkmcnt(0)")
    body = pack(mf, fixed, sm, (h - 1, n - 1))
    if opts["e64"]:
        body = [x.replace("v_exp_f32 ", "v_exp_f32_e64 ").replace("v_add_f32 ", "v_add_f32_e64 ").replace("v_max_f32 ", "v_max_f32_e64 ") for x in body]
    emit(body)
    assert sm.left() == 0
    if prod:
        check_rare(b, f"t{T}p{p}")
    else:
        e(f"s_cbranch_vccnz Lx{T}_{p}")
        lab(f"Lxb{T}_{p}")

def exit_stub(T, p):
    lab(f"Lx{T}_{p}")
    e(CHK)
    check_rare(p % 2, f"x{T}_{p}")
    np_ = (p + 1) % 4
    nx = sorted(TAILS.get((T, np_), ()))
    if not nx:
        e(f"s_branch Lxb{T}_{p}")
        return
    e(f"s_cbranch_scc0 Lxb{T}_{p}")
    for tn in nx[1:]:
        e(f"s_cmp_lg_u32 s{sD1n}, 0")
        e(f"s_cbranch_scc1 Ltail{T}_{np_}_{tn}")
    for tn in nx:
        tail(T, np_, tn)

def ktile(u):
    return [m0set(u * 16384), f"s_add_u32 s{sT0}, s{sD0}, {(u-1)*TILEB}", ldk(0, sT0), ldk(1, sT0)]
def vtile(u):
    so = sLast if u == 0 else sD0
    return [m0set(((u + 2) % 4) * 16384), "s_nop 0", ldv(0, so), ldv(1, so)]
def next_k0():
    return [m0set(0), f"s_add_u32 s{sK+2}, s{sNRn}, 4096", ldk(0, sLastn), ldk(1, sLastn)]
def next_k1():
    return [m0set(16384), "s_nop 0", ldk(0, sD0n), ldk(1, sD0n)]

def tail(T, p, tn):
    b = p % 2
    lab(f"Ltail{T}_{p}_{tn}")
    stamp(3)
    if opts["stamp"]: e("s_waitcnt lgkmcnt(0)")
    vrd = v_reads((p + 1) % 4)
    vrd2 = v_reads((p + 2) % 4, aKf)
    sm = SM(T, b)
    mf = pv_mfmas(T, b ^ 1)
    if RS: mf = mf[-T:] + mf[:-T]
    o = T if RS else 0
    if opts.get("tl", 1):
        pre = 6
        emit(vrd[:pre])
        emit(sm.take(6))
        g1 = o + 3 * T
        fixed = place(vrd[pre:], range(0, g1))
        issued = {g: pre + sum(len(fixed.get(k, [])) for k in range(g + 1)) for g in range(-1, len(mf))}
        for dt in range(0, 4):
            g = o + dt * T - 1
            w = f"s_waitcnt lgkmcnt({max(0, issued[g] - 2 * dt - 2)})"
            if g < 0: e(w)
            else: fixed.setdefault(g, []).append(w)
        gb = o + 4 * T - 1
        fixed.setdefault(gb, []).extend(["s_waitcnt vmcnt(8) lgkmcnt(0)", "s_barrier"])
        rest = range(gb + 1, len(mf))
        fixed = merge(fixed, place(vrd2, rest))
        if tn: fixed = merge(fixed, place(next_loads(tn)[0], rest))
    else:
        emit(vrd)
        emit(sm.take(12))
        e("s_waitcnt vmcnt(8) lgkmcnt(0)")
        e("s_barrier")
        fixed = place(vrd2, range(len(mf) - 2))
        if tn:
            fixed = merge(fixed, place(next_loads(tn)[0], range(len(mf))))
    emit(pack(mf, fixed, sm))
    assert sm.left() == 0
    check_rare(b, f"t{T}t{p}_{tn}")
    fin(T, b, tn)

def next_loads(tn):
    return next_k0() + qgroup(0, False), qgroup(1, False) + next_k1()

def xlane(op, regs, tmp):
    r = []
    for sw in ("v_permlane32_swap_b32", "v_permlane16_swap_b32"):
        r += [f"v_mov_b32 v{tmp+i}, v{x}" for i, x in enumerate(regs)]
        r += ["s_nop 1"]
        r += [f"{sw} v{x}, v{tmp+i}" for i, x in enumerate(regs)]
        r += ["s_nop 1"]
        r += [f"{op} v{x}, v{x}, v{tmp+i}" for i, x in enumerate(regs)]
    return r

vOA = vNM
vLI = vNM + 8
def epi_acc(t):
    return [f"v_accvgpr_read_b32 v{vQ+i}, a{aO+32*t+i}" for i in range(32)]
def epi_cvt(t):
    r = [f"v_pk_mul_f32 {vr(vQ+2*i,2)}, {vr(vQ+2*i,2)}, {vr(vLI+2*(t//2),2)} " +
         ("op_sel:[0,1] op_sel_hi:[1,1]" if t & 1 else "op_sel_hi:[1,0]") for i in range(16)]
    r += [f"v_cvt_pk_bf16_f32 v{vQ+32+16*(t&1)+i}, v{vQ+2*i}, v{vQ+2*i+1}" for i in range(16)]
    return r
def epi_writes(t):
    return [f"ds_write_b64 v{vOA+dt}, {vr(vQ+32+16*(t&1)+2*dt,2)}" for dt in range(8)]
def epi_reads(t):
    return [f"ds_read_b128 {vr(vS+16*t+4*i,4)}, v{vOr} offset:{i*1024}" for i in range(4)]
def epi_stores(t):
    return [f"s_add_u32 s{sT0}, s{sOoff}, {t*16*ROWB}"] + \
           [f"buffer_store_dwordx4 {vr(vS+16*t+4*i,4)}, v{vQd+i}, s[{sOut}:{sOut+3}], s{sT0} offen offset:{i*1024}{ST}" for i in range(4)]

def fin(T, b, tn):
    if not RS: e("s_waitcnt lgkmcnt(0)")
    mf = [pv1(b, t, dt, aKf) for t in range(T) for dt in range(8)]
    regs = [vL + t for t in range(T)]
    xo = [f"v_xor_b32 v{vOA+dt}, {dt*32}, v{vOw}" for dt in range(8)] if not opts["epi"] else ["s_nop 0"]
    if RS:
        mf = [rs1(b, t) for t in range(T)] + mf
        ls = [f"v_accvgpr_read_b32 v{vX+t}, a{aL+4*t}" if t < 4 else f"v_mov_b32 v{vX+t}, v{vL4}" for t in range(T)] + \
             [f"v_rcp_f32 v{vLI+t}, v{vX+t}" for t in range(T)] + epi_acc(0)
        fixed = merge({T - 1: ["s_waitcnt lgkmcnt(6)"], T + 4: ["s_waitcnt lgkmcnt(0)"]},
                      spread(xo, range(T + 8)), spread(ls, range(T + 8, len(mf))))
    else:
        ls = [f"v_add_f32 v{vL+t}, v{vL+t}, v{vT+t}" for t in range(T)] + xlane("v_add_f32", regs, vX) + \
             [f"v_rcp_f32 v{vLI+t}, v{vL+t}" for t in range(T)] + xo + epi_acc(0)
        fixed = spread(ls, range(len(mf)))
    if tn: fixed = merge(place(next_loads(tn)[1], range(len(mf))), fixed)
    emit(pack(mf, fixed))
    e(f"s_branch Lepi{T}")

def first_max(t):
    s0 = sreg(0, t)
    m = vX + 2
    r = [f"v_max3_f32 v{m}, v{s0}, v{s0+1}, v{s0+2}", f"v_max3_f32 v{m}, v{m}, v{s0+3}, v{s0+4}",
         f"v_max3_f32 v{m}, v{m}, v{s0+5}, v{s0+6}", f"v_max_f32 v{m}, v{m}, v{s0+7}"]
    r += xlane("v_max_f32", [m], vX + 3)
    if RS: r += [f"v_add_f32 v{m}, s{sThr}, v{m}"]
    r += [f"v_sub_f32 v{vNM+4*t+i}, 0, v{m}" for i in range(4)]
    r += [f"v_sub_f32 v{s0+i}, v{s0+i}, v{m}" for i in range(8)]
    return r

def qraw(t, k=0):
    return vQ + 16 * t + k if t < 4 else sreg(k // 8, 4) + k % 8
def prescale(t):
    r = []
    for k in range(0, 16, 2):
        q = qraw(t, k)
        for i in range(2):
            r += [f"v_lshlrev_b32 v{vX+2*i}, 16, v{q+i}", f"v_and_b32 v{vX+2*i+1}, 0xffff0000, v{q+i}"]
        for i in range(2):
            r += [f"v_pk_mul_f32 {vr(vX+2*i,2)}, {vr(vX+2*i,2)}, s[{sThr}:{sC}] op_sel:[0,1] op_sel_hi:[1,1]"]
        for i in range(2):
            r += [f"v_cvt_pk_bf16_f32 v{q+i}, v{vX+2*i}, v{vX+2*i+1}"]
        if t == 4: r += [f"v_accvgpr_write_b32 a{aQ+k+i}, v{q+i}" for i in range(2)]
    return r

def first_only(lines):
    i = len(L)
    e(f"s_cmp_eq_u32 s{sFirst}, 0")
    e(f"s_cbranch_scc1 Lw{i}")
    emit(lines)
    lab(f"Lw{i}")

def nvm(l): return sum(x.startswith("buffer") for x in l)

vMK = vP + 20
def weave(mfs, valu, mem):
    d = place(mem, range(len(mfs))) if mem else {}
    out = []
    j = 0
    nops = [i for i, x in enumerate(valu) if x == "s_nop 1"]
    if nops and len(mfs) > len(nops):
        extra = len(mfs) - len(nops)
        free = [i for i in range(len(valu)) if i not in nops and i - 1 not in nops]
        head = [0, 2][:min(2, extra)]
        tailp = [i for i in free if i > nops[-1] + 1]
        more = [tailp[k * len(tailp) // (extra - len(head))] for k in range(extra - len(head))]
        cuts = sorted(set(nops + head + more))
        assert len(cuts) == len(mfs)
        k = 0
        for i, x in enumerate(valu):
            if i in cuts:
                out.append(mfs[k])
                m = d.get(k, []); k += 1
                if x == "s_nop 1":
                    out += m if m else ["s_nop 0"]
                    continue
                out += m
            out.append(x)
        return out
    for i, x in enumerate(mfs):
        out.append(x)
        out += d.get(i, [])
        nj = (i + 1) * len(valu) // len(mfs)
        out += valu[j:nj]; j = nj
    return out

def prologue(T):
    lab(f"Lpro{T}")
    def qcur(g):
        return [x.replace(f"s{sQoffn}", f"s{sOoff}").replace(f"s[{sQ}:{sQ+3}]", f"s[{sQc}:{sQc+3}]") for x in qgroup(g, False)]
    q = ["K0"] * 2 + ["Q0"] * 4 + ["Q1"] * 4 + ["K1"] * 2
    def younger(tag): return len(q) - 1 - max(i for i, x in enumerate(q) if x == tag)
    for s in range(4):
        e(f"v_xor_b32 v{vX+8+s}, {s*64}, v{vQa}")
    pre = [f"v_sub_u32 v{vX}, s{sRem}, v{vG4}", f"v_mov_b32 v{vX+1}, s{sNeg}"]
    for a in range(2):
        pre += [f"v_cmp_lt_i32 s[{sM+2*i}:{sM+2*i+1}], {16*a+i}, v{vX}" for i in range(4)] + ["s_nop 0"]
        pre += [f"v_cndmask_b32 v{vMK+4*a+i}, v{vX+1}, 0, s[{sM+2*i}:{sM+2*i+1}]" for i in range(4)]
    if not RS: pre += [f"v_mov_b32 v{vL+t}, 0" for t in range(T)]
    def qreads(t):
        return [f"ds_read_b128 {vr(qraw(t,4*s),4)}, v{vX+8+s} offset:{t*4096}" for s in range(4)]
    A = lambda t: [qk1(0, t, a, s, vMK + 4 * a) for a in range(2) for s in range(4)]
    C = lambda t: [qk1(1, t, a, s, vNM + 4 * t, aVf) for a in range(2) for s in range(4)]
    def sparse(mem, valu):
        d = place(mem, range(max(1, nvm(mem))))
        out = []; j = 0
        for i in range(len(d)):
            out += d[i]
            nj = (i + 1) * len(valu) // len(d)
            out += valu[j:nj]; j = nj
        return out
    if T > 2:
        emit(sparse(qcur(2), pre)); q += ["Q2"] * 4
        pre = []
    first_only([f"s_waitcnt vmcnt({younger('Q0')})"])
    pstamp(1)
    emit(qreads(0))
    emit(pre)
    e("s_waitcnt lgkmcnt(0)")
    if T > 3:
        emit(sparse(qcur(3), prescale(0))); q += ["Q3"] * 4
    else:
        emit(prescale(0))
    first_only([f"s_waitcnt vmcnt({younger('K1')})"])
    pstamp(2)
    emit(qreads(1))
    e("s_barrier")
    emit(k_reads(0))
    e("s_waitcnt lgkmcnt(8)")
    ps = prescale(1)
    if T > 4:
        emit(sparse(qcur(4), ps[:32])); q += ["Q4"] * 4
    else:
        emit(ps[:32])
    emit(k_reads(1, aVf))
    e("s_waitcnt lgkmcnt(8)")
    bulk = [("K2", ktile(2)), ("V0", vtile(0)), ("K3", ktile(3)), ("V1", vtile(1)), ("G", dma(0)[:5]), ("G", dma(0)[5:]),
            ("H", dma(1)[:5]), ("H", dma(1)[5:])]
    def takeb(n):
        nonlocal bulk
        r = []
        for tag, l in bulk[:n]:
            r += l; q.extend([tag] * nvm(l))
        bulk = bulk[n:]
        return r
    emit(weave(A(0), [], takeb(1) if T == 2 else []))
    emit(sparse(takeb(1), ps[32:]) if T <= 3 else ps[32:])
    D = lambda t: SM(1, 0, False, t, 2).rest()
    def getq(k):
        e(f"s_waitcnt vmcnt({younger(f'Q{k}')})")
        if k <= 3: pstamp(k + 1)
        emit(qreads(k))
    def bar2():
        e("s_waitcnt lgkmcnt(0)")
        e("s_barrier")
    per = {2: [2, 2, 2], 3: [1, 1, 1, 2, 2], 4: [1, 1, 1, 1, 1, 1, 2], 5: [0, 1, 1, 1, 1, 1, 1, 1, 1]}[T]
    tk = lambda: takeb(per.pop(0))
    for k in range(2, T):
        emit(weave(A(k - 1), first_max(k - 2), tk()))
        if k == 2: bar2()
        if k < T - 1:
            getq(k)
            emit(weave(C(k - 2), D(k - 2), tk()))
        else:
            emit(weave(C(k - 2), first_max(k - 1), tk()))
            emit(D(k - 2))
            getq(k)
            emit(weave(C(k - 1), D(k - 1)[:8], tk()))
        e("s_waitcnt lgkmcnt(0)")
        emit(prescale(k))
    stamp(1)
    if opts["stamp"]: e("s_waitcnt lgkmcnt(0)")
    if T == 2:
        emit(weave(A(1), first_max(0), tk()))
        bar2()
        emit(weave(C(0), D(0), tk()))
    else:
        emit(weave(A(T - 1), D(T - 2)[8:], tk()))
    e(f"s_waitcnt vmcnt({younger('V0')})")
    e("s_barrier")
    emit(k_reads(2))
    emit(first_max(T - 1))
    emit(weave(C(T - 1), D(T - 1), tk()))
    assert not bulk and not per
    e(CNT)
    step(T, 1, True)
    stamp(2)
    e(f".p2align {opts['al']}")
    for _ in range(opts.get("pad", 0)): e("s_nop 0")
    lab(f"Lloop{T}")
    for t in (2, 3, 4, 5):
        step(T, t)
    e(f"s_branch Lloop{T}")
    for p in range(4):
        exit_stub(T, p)

def stamp_store(final=False):
    if not opts["stamp"]: return
    B = vP + 20
    if opts["stamp"] == 2:
        if not final: return
        e("s_waitcnt lgkmcnt(0)")
        e("s_mov_b32 s92, s90"); e("s_mov_b32 s93, s91"); e("s_mov_b32 s94, 256"); e("s_mov_b32 s95, 0x20000")
        e("s_mov_b64 exec, 1")
        e(f"v_mov_b32 v{B+8}, 0")
        e("s_not_b32 s96, s100"); e(f"v_mov_b32 v{B}, s96")
        e(f"buffer_atomic_umax v{B}, v{B+8}, s[92:95], 0 offen offset:32")
        e(f"v_mov_b32 v{B+1}, s{sST+12}")
        e(f"buffer_atomic_umax v{B+1}, v{B+8}, s[92:95], 0 offen offset:36")
        e(f"v_mov_b32 v{B+2}, s100")
        e(f"buffer_atomic_umax v{B+2}, v{B+8}, s[92:95], 0 offen offset:40")
        e(f"s_lshl_b32 s96, s2, 2"); e(f"s_add_u32 s96, s96, s{sW}")
        e("s_cmp_lg_u32 s96, 32"); e("s_cbranch_scc1 Lnodbg")
        e(f"s_sub_u32 s96, s99, s100"); e(f"v_mov_b32 v{B}, s96")
        e(f"s_sub_u32 s96, s{sST+2}, s97"); e(f"v_mov_b32 v{B+1}, s96")
        for i in range(1, 4):
            e(f"s_sub_u32 s96, s{sST+2*i+2}, s{sST+2*i}"); e(f"v_mov_b32 v{B+1+i}, s96")
        e(f"s_sub_u32 s96, s{sST}, s{sST+8}"); e(f"v_mov_b32 v{B+5}, s96")
        e(f"s_sub_u32 s96, s{sST+12}, s100"); e(f"v_mov_b32 v{B+6}, s96")
        e(f"v_mov_b32 v{B+7}, s100")
        e(f"buffer_store_dwordx4 {vr(B,4)}, v{B+8}, s[92:95], 0 offen")
        e(f"buffer_store_dwordx4 {vr(B+4,4)}, v{B+8}, s[92:95], 0 offen offset:16")
        lab("Lnodbg")
        return
    e("s_waitcnt lgkmcnt(0)")
    e("s_mov_b32 s92, s90"); e("s_mov_b32 s93, s91"); e("s_mov_b32 s94, 0x100000"); e("s_mov_b32 s95, 0x20000")
    e(f"s_lshl_b32 s96, s2, 2"); e(f"s_add_u32 s96, s96, s{sW}"); e("s_lshl_b32 s96, s96, 2")
    if final: e("s_add_u32 s96, s96, 3")
    else: e("s_add_u32 s96, s96, s97"); e("s_add_u32 s97, s97, 1")
    e("s_lshl_b32 s96, s96, 5")
    for i in range(5): e(f"v_mov_b32 v{B+i}, s{sST+2*i}")
    e(f"v_mov_b32 v{B+5}, s{sST+10}"); e(f"v_mov_b32 v{B+6}, s{sST+12}"); e(f"v_mov_b32 v{B+7}, s98")
    e(f"v_mov_b32 v{B+8}, 0")
    e("s_mov_b64 exec, 1")
    e(f"buffer_store_dwordx4 {vr(B,4)}, v{B+8}, s[92:95], s96 offen")
    e(f"buffer_store_dwordx4 {vr(B+4,4)}, v{B+8}, s[92:95], s96 offen offset:16")
    e("s_mov_b64 exec, -1")
    e("s_nop 2")

def epilogue(T):
    lab(f"Lepi{T}")
    stamp(4)
    if opts["stamp"]: e(f"s_memrealtime s[{sST+12}:{sST+13}]")
    stamp_store()
    if opts["epi"]:
        def swaps(t):
            pk = vQ + 32 + 16 * (t & 1)
            return [f"v_permlane16_swap_b32 v{pk+4*j+i}, v{pk+4*j+2+i}" for j in range(4) for i in range(2)]
        def dstores(t):
            pk = vQ + 32 + 16 * (t & 1)
            return [f"buffer_store_dwordx4 {vr(pk+4*j,4)}, v{vOw}, s[{sOut}:{sOut+3}], s{sT0} offen offset:{j*64}{ST}" for j in range(4)]
        emit(epi_cvt(0) + swaps(0))
        for t in range(1, T + 1):
            va = epi_acc(t) + epi_cvt(t) + swaps(t) if t < T else []
            st = dstores(t - 1)
            e(f"s_add_u32 s{sT0}, s{sOoff}, {(t-1)*16*ROWB}")
            if opts["epi"] == 2:
                emit(st[:2] + va[:24] + st[2:] + va[24:])
            else:
                for j in range(4):
                    e(st[j]); emit(va[14 * j:14 * (j + 1)])
                emit(va[56:])
    else:
        epilogue_lds(T)
    epilogue_end(T)

def epilogue_lds(T):
    emit(epi_cvt(0))
    for t in range(1, T + 1):
        va = epi_acc(t) + epi_cvt(t) if t < T else []
        w, r, st = epi_writes(t - 1), epi_reads(t - 1), epi_stores(t - 1)
        if t < T:
            g = [w[0:3], w[3:6], w[6:8] + r[0:2], r[2:4], [], [st[0], "s_waitcnt lgkmcnt(0)", st[1]], [st[2]], [st[3]], [st[4]]]
            cut = [0, 5, 10, 15, 20, 28, 38, 48, 58, 64]
            for i in range(9):
                emit(g[i]); emit(va[cut[i]:cut[i + 1]])
        else:
            emit(w + r)
            n = 4
            for x in st:
                if x.startswith("buffer"):
                    n -= 1
                    e(f"s_waitcnt lgkmcnt({n})")
                e(x)

def epilogue_end(T):
    if T in PROD:
        e(f"s_cmp_eq_u32 s{sD1n}, 0")
        e("s_cbranch_scc1 Ldone")
        e(f"s_mov_b32 s{sFirst}, 0")
        e(f"s_waitcnt vmcnt({4*T})")
        e("s_branch Lstart")
    else:
        e("s_branch Ldone")

def gen():
    L.append(open(os.path.join(os.path.dirname(os.path.abspath(__file__)), "header.txt")).read().rstrip())
    L.append(f"; @launch grid=({NWG},1,1) block=(256,1,1) lds={LDSZ}")
    L.append('.amdgcn_target "amdgcn-amd-amdhsa--gfx950"')
    L.append(".text")
    L.append(f".globl {NAME}_kernel")
    L.append(".p2align 8")
    L.append(f".type {NAME}_kernel,@function")
    lab(f"{NAME}_kernel")
    e(f"s_cmp_ge_u32 s2, {NWG}")
    e("s_cbranch_scc1 Lend")
    e(f"s_getpc_b64 s[{sPC}:{sPC+1}]")
    lab("Lpc")
    e("s_load_dwordx4 s[4:7], s[0:1], 0")
    e("s_load_dwordx2 s[8:9], s[0:1], 16")
    e("s_load_dwordx2 s[10:11], s[0:1], 32")
    if opts["pf"]:
        e(f"v_lshlrev_b32 v1, 7, v0")
        for i in range(opts["pf"] * 2):
            e(f"global_load_dword v{2+i}, v1, s[{sPC}:{sPC+1}]")
            e(f"v_add_u32 v1, 32768, v1")
    e(f"s_add_u32 s{sPC}, s{sPC}, Ltab-Lpc")
    e(f"s_addc_u32 s{sPC+1}, s{sPC+1}, 0")
    e("s_lshl_b32 s3, s2, 5")
    e(f"s_load_dwordx8 s[{sJ}:{sJ+7}], s[{sPC}:{sPC+1}], s3")
    if opts["stamp"]:
        e(f"s_load_dwordx2 s[90:91], s[0:1], {40 if opts['stamp'] == 2 else 48}")
        e("s_memrealtime s[100:101]")
        e("s_mov_b32 s97, 0")
    if LIGHT:
        e("s_load_dwordx2 s[90:91], s[0:1], 48")
        e("s_memrealtime s[100:101]")
    w, ln, i16, g, x4, x5, x6 = range(vX, vX + 7)
    e(f"v_lshrrev_b32 v{w}, 6, v0")
    e(f"v_and_b32 v{ln}, 63, v0")
    e(f"v_readfirstlane_b32 s{sW}, v{w}")
    e(f"v_and_b32 v{i16}, 15, v{ln}")
    e(f"v_lshrrev_b32 v{g}, 4, v{ln}")
    e(f"v_xor_b32 v{x6}, v{i16}, v{g}")
    e(f"v_lshlrev_b32 v{x6}, 4, v{x6}")
    e(f"v_bfe_u32 v{x4}, v{ln}, 3, 1")
    e(f"v_lshlrev_b32 v{x4}, 12, v{x4}")
    e(f"v_and_b32 v{x5}, 7, v{ln}")
    e(f"v_lshl_add_u32 v{x4}, v{x5}, 8, v{x4}")
    e(f"v_add3_u32 v{vKa}, v{x4}, v{x6}, 0")
    e(f"v_add_u32 v{vKa}, 2048, v{vKa}")
    for s in range(1, 4):
        e(f"v_xor_b32 v{vKa+s}, {s*64}, v{vKa}")
    e(f"v_mul_u32_u24 v{x4}, {QW}, v{w}")
    e(f"v_lshl_add_u32 v{x4}, v{i16}, 8, v{x4}")
    e(f"v_add3_u32 v{x4}, v{x4}, v{x6}, 0")
    e(f"v_add_u32 v{vQa}, {QS}, v{x4}")
    e(f"v_lshlrev_b32 v{x4}, 12, v{w}")
    e(f"v_add_u32 v{x4}, {OS}, v{x4}")
    e(f"v_lshl_add_u32 v{vOr}, v{ln}, 4, v{x4}")
    e(f"v_lshl_add_u32 v{x4}, v{i16}, 8, v{x4}")
    e(f"v_lshrrev_b32 v{x5}, 1, v{g}")
    e(f"v_xor_b32 v{x5}, v{x5}, v{i16}")
    e(f"v_lshl_add_u32 v{x4}, v{x5}, 4, v{x4}")
    e(f"v_and_b32 v{x5}, 1, v{g}")
    e(f"v_lshl_add_u32 v{vOw}, v{x5}, 3, v{x4}")
    if opts["epi"]:
        e(f"v_lshlrev_b32 v{x4}, 12, v{i16}")
        e(f"v_lshl_add_u32 v{x4}, v{x5}, 5, v{x4}")
        e(f"v_lshrrev_b32 v{vOw}, 1, v{g}")
        e(f"v_lshl_add_u32 v{vOw}, v{vOw}, 4, v{x4}")
    e(f"v_lshrrev_b32 v{x4}, 1, v{g}")
    e(f"v_lshlrev_b32 v{x4}, 12, v{x4}")
    e(f"v_mul_u32_u24 v{x5}, {4*256+32}, v{x5}")
    e(f"v_add_u32 v{x4}, v{x4}, v{x5}")
    e(f"v_lshrrev_b32 v{x5}, 2, v{i16}")
    e(f"v_mul_u32_u24 v{x5}, {256+64}, v{x5}")
    e(f"v_add_u32 v{x4}, v{x4}, v{x5}")
    e(f"v_and_b32 v{x5}, 3, v{ln}")
    e(f"v_lshl_add_u32 v{vVa}, v{x5}, 3, v{x4}")
    for dt in range(1, 8):
        e(f"v_xor_b32 v{vVa+dt}, {dt*32}, v{vVa}")
    e(f"v_lshlrev_b32 v{vG4}, 2, v{g}")
    e(f"v_lshl_add_u32 v{vQd}, v{g}, 12, v{x6}")
    for i in range(1, 4):
        e(f"v_xor_b32 v{vQd+i}, {i*64}, v{vQd}")
        e(f"v_add_u32 v{vQd+i}, {i*(4*ROWB-1024)}, v{vQd+i}")
    e(f"v_lshl_add_u32 v{x5}, v{w}, 3, v{g}")
    e(f"v_xor_b32 v{x4}, v{vG4}, v{i16}")
    e(f"v_lshlrev_b32 v{x4}, 4, v{x4}")
    e(f"v_lshl_add_u32 v{vDV}, v{x5}, 12, v{x4}")
    e(f"v_xor_b32 v{vDV+1}, 32, v{vDV}")
    e(f"v_add_u32 v{vDV+1}, {4*ROWB-1024}, v{vDV+1}")
    e(f"v_and_b32 v{x4}, 15, v{x5}")
    e(f"v_xor_b32 v{x4}, v{x4}, v{i16}")
    e(f"v_lshlrev_b32 v{x4}, 4, v{x4}")
    e(f"v_lshl_add_u32 v{vDK}, v{x5}, 12, v{x4}")
    e(f"v_xor_b32 v{vDK+1}, 64, v{vDK}")
    e(f"v_add_u32 v{vDK}, {4096-2048}, v{vDK}")
    e(f"v_add_u32 v{vDK+1}, {4*ROWB+4096-3072}, v{vDK+1}")
    e(f"s_lshl_b32 s{sWB}, s{sW}, 12")
    e(f"s_mov_b32 s{sThr}, {hex(f32bits(BIAS if RS else 4096.0))}")
    if RS:
        for i in range(4): e(f"v_mov_b32 v{vOne+i}, 0x3f803f80")
    e(f"s_mov_b32 s{sC}, {hex(f32bits(128 ** -0.5 * math.log2(math.e)))}")
    e(f"s_mov_b32 s{sNeg}, {hex(f32bits(-1e30))}")
    e(f"s_mov_b32 s{sBig}, 0x40000000")
    e(f"s_mov_b32 s{sFirst}, 1")
    e(f"s_mul_i32 s{sQW}, s{sW}, {QW}")
    e(f"s_add_u32 s{sQW}, s{sQW}, {QS}")
    e("s_waitcnt lgkmcnt(0)")
    for srd, ptr in ((sQ, 4), (sK, 6), (sV, 8), (sOut, 10)):
        e(f"s_mov_b32 s{srd}, s{ptr}")
        e(f"s_mov_b32 s{srd+1}, s{ptr+1}")
        e(f"s_mov_b32 s{srd+2}, 0")
        e(f"s_mov_b32 s{srd+3}, 0x20000")
    e(f"s_mov_b32 s{sQc}, s4")
    e(f"s_mov_b32 s{sQc+1}, s5")
    e(f"s_mov_b32 s{sQc+2}, 0")
    e(f"s_mov_b32 s{sQc+3}, 0x20000")
    e(f"s_sub_u32 s{sK}, s{sK}, 4096")
    e(f"s_subb_u32 s{sK+1}, s{sK+1}, 0")
    def decode():
        e(f"s_mov_b32 s{sD0n}, s{sJ}")
        e(f"s_mov_b32 s{sD1n}, s{sJ+1}")
        e(f"s_mov_b64 s[{sJ}:{sJ+1}], s[{sJ+2}:{sJ+3}]")
        e(f"s_mov_b64 s[{sJ+2}:{sJ+3}], s[{sJ+4}:{sJ+5}]")
        e(f"s_mov_b64 s[{sJ+4}:{sJ+5}], s[{sJ+6}:{sJ+7}]")
        e(f"s_and_b32 s{sT0}, s{sD1n}, 0xfff")
        e(f"s_lshl_b32 s{sNRn}, s{sT0}, 12")
        e(f"s_add_u32 s{sNRn}, s{sNRn}, s{sD0n}")
        e(f"s_sub_u32 s{sNRn}, s{sNRn}, {ROWB-256}")
        e(f"s_sub_u32 s{sT0}, s{sT0}, 1")
        e(f"s_and_b32 s{sT0}, s{sT0}, 0xfe0")
        e(f"s_lshl_b32 s{sT0}, s{sT0}, 12")
        e(f"s_add_u32 s{sLastn}, s{sT0}, s{sD0n}")
        e(f"s_cmp_lg_u32 s{sD1n}, 0")
        e(f"s_cselect_b32 s{sNRn}, s{sNRn}, 0")
        e(f"s_mov_b32 s{sQ+2}, s{sNRn}")
        e(f"s_bfe_u32 s{sTn}, s{sD1n}, 0x30018")
        e(f"s_mul_i32 s{sT0}, s{sTn}, s{sW}")
        e(f"s_lshl_b32 s{sT0}, s{sT0}, 16")
        e(f"s_and_b32 s{sQoffn}, s{sD1n}, 0xfff000")
        e(f"s_add_u32 s{sQoffn}, s{sQoffn}, s{sD0n}")
        e(f"s_add_u32 s{sQoffn}, s{sQoffn}, s{sT0}")
    decode()
    emit(next_loads(1)[0])
    e(f"s_bitcmp1_b32 s{sD1n}, 28")
    e("s_cbranch_scc0 Leager")
    e("s_waitcnt vmcnt(0)")
    lab("Leager")
    emit(next_loads(1)[1])
    lab("Lstart")
    e(f"s_mov_b32 s{sD0}, s{sD0n}")
    e(f"s_mov_b32 s{sD1}, s{sD1n}")
    e(f"s_mov_b32 s{sLast}, s{sLastn}")
    e(f"s_mov_b32 s{sOut+2}, s{sNRn}")
    e(f"s_mov_b32 s{sV+2}, s{sNRn}")
    e(f"s_mov_b32 s{sQc+2}, s{sNRn}")
    e(f"s_mov_b32 s{sOoff}, s{sQoffn}")
    decode()
    e(f"s_and_b32 s{sL}, s{sD1}, 0xfff")
    e(f"s_add_u32 s{sN}, s{sL}, 31")
    e(f"s_lshr_b32 s{sN}, s{sN}, 5")
    e(f"s_sub_u32 s{sCnt}, s{sN}, 2")
    e(f"s_sub_u32 s{sT0}, s{sN}, 1")
    e(f"s_lshl_b32 s{sT0}, s{sT0}, 5")
    e(f"s_sub_u32 s{sRem}, s{sL}, s{sT0}")
    e(f"s_mov_b32 s{sOff}, s{sD0}")
    e(f"s_add_u32 s{sOffK}, s{sD0}, {2*TILEB}")
    stamp(0)
    e(f"s_bfe_u32 s{sT0}, s{sD1}, 0x30018")
    if opts["stamp"]:
        e(f"s_memrealtime s[{sST+10}:{sST+11}]")
        e(f"s_lshl_b32 s98, s{sT0}, 8"); e(f"s_add_u32 s98, s98, s{sN}")
        e("s_waitcnt lgkmcnt(0)")
        if opts["stamp"] == 2:
            e(f"s_mov_b32 s97, s{sST}"); e(f"s_mov_b32 s99, s{sST+10}")
    order = sorted(TS, key=lambda t: (t != 4, -t))
    for T in order[1:]:
        e(f"s_cmp_eq_u32 s{sT0}, {T}")
        e(f"s_cbranch_scc1 Lpro{T}")
    for T in order:
        prologue(T)
        epilogue(T)
    lab("Ldone")
    if LIGHT:
        e("s_waitcnt vmcnt(0)")
        e("s_memrealtime s[88:89]")
        e("s_mov_b32 s92, s90"); e("s_mov_b32 s93, s91"); e("s_mov_b32 s94, 0x100000"); e("s_mov_b32 s95, 0x20000")
        e(f"s_lshl_b32 s96, s2, 2"); e(f"s_add_u32 s96, s96, s{sW}"); e("s_lshl_b32 s96, s96, 3")
        e("s_waitcnt lgkmcnt(0)")
        e("v_mov_b32 v0, s100"); e("v_mov_b32 v1, s88"); e("v_mov_b32 v2, 0")
        e("s_mov_b64 exec, 1")
        e("buffer_store_dwordx2 v[0:1], v2, s[92:95], s96 offen")
    if opts["stamp"]:
        e("s_waitcnt vmcnt(0)")
        stamp(0)
        e(f"s_memrealtime s[{sST+12}:{sST+13}]")
        e(f"s_mov_b32 s{sST+10}, s100")
        e("s_getreg_b32 s98, hwreg(HW_REG_HW_ID)")
        stamp_store(True)
    lab("Lend")
    e("s_endpgm")

    for tag, buf in STUBS:
        lab(f"Lrare_{tag}")
        e(f"s_call_b64 s[{sRet}:{sRet+1}], Lresc_{buf}")
        e(f"s_branch Lback_{tag}")
    for b in range(2):
        lab(f"Lresc_{b}")
        e("s_nop 15")
        for t in range(TM):
            s, s2 = sreg(b, t), sreg(b ^ 1, t)
            dl, al = vX, (vX + 8 + t if t < 4 else vX + 2)
            e(f"v_max3_f32 v{dl}, v{s}, v{s+1}, v{s+2}")
            e(f"v_max3_f32 v{dl}, v{dl}, v{s+3}, v{s+4}")
            e(f"v_max3_f32 v{dl}, v{dl}, v{s+5}, v{s+6}")
            if RS:
                e(f"v_max_f32 v{dl}, v{dl}, v{s+7}")
                e(f"v_add_f32 v{dl}, s{sThr}, v{dl}")
                e(f"v_max_f32 v{dl}, 0, v{dl}")
            else:
                e(f"v_max3_f32 v{dl}, v{dl}, v{s+7}, 0")
            emit(xlane("v_max_f32", [dl], vX + 1))
            e(f"v_sub_f32 v{al}, 0, v{dl}")
            e(f"v_exp_f32 v{al}, v{al}")
            for i in range(8):
                e(f"v_sub_f32 v{s+i}, v{s+i}, v{dl}")
                e(f"v_sub_f32 v{s2+i}, v{s2+i}, v{dl}")
            for i in range(4):
                e(f"v_sub_f32 v{vNM+4*t+i}, v{vNM+4*t+i}, v{dl}")
            if not RS:
                e(f"v_mul_f32 v{vL+t}, v{vL+t}, v{al}")
            elif t == 4:
                for i in range(4): e(f"v_mul_f32 v{vL4+i}, v{vL4+i}, v{al}")
            else:
                for i in range(4):
                    e(f"v_accvgpr_read_b32 v{vX+1}, a{aL+4*t+i}")
                    e(f"v_mul_f32 v{vX+1}, v{vX+1}, v{al}")
                    e(f"v_accvgpr_write_b32 a{aL+4*t+i}, v{vX+1}")
        emit(SM(TM, b, False).rest())
        if b == 0: e("s_branch LrescO")
    lab("LrescO")
    for t in range(TM):
        for i in range(0, 32, 4):
            al = vX + 8 + t if t < 4 else vX + 2
            for k in range(4): e(f"v_accvgpr_read_b32 v{vX+4+k}, a{aO+32*t+i+k}")
            for k in range(4): e(f"v_mul_f32 v{vX+4+k}, v{vX+4+k}, v{al}")
            for k in range(4): e(f"v_accvgpr_write_b32 a{aO+32*t+i+k}, v{vX+4+k}")
    e("s_nop 1")
    e(f"s_setpc_b64 s[{sRet}:{sRet+1}]")

    e(".p2align 5")
    L.append(".type Ltab,@object")
    lab("Ltab")
    for ent in TAB:
        e(".long " + ", ".join(str(x) for x in ent))
    L.append('.section .rodata,"a"')
    L.append(".p2align 6")
    L.append(f".amdhsa_kernel {NAME}_kernel")
    L.append("  .amdhsa_next_free_vgpr 512")
    L.append("  .amdhsa_next_free_sgpr 102")
    L.append("  .amdhsa_accum_offset 256")
    L.append("  .amdhsa_group_segment_fixed_size 0")
    L.append("  .amdhsa_kernarg_size 56")
    L.append("  .amdhsa_user_sgpr_count 2")
    L.append("  .amdhsa_user_sgpr_kernarg_segment_ptr 1")
    L.append("  .amdhsa_system_sgpr_workgroup_id_x 1")
    L.append(".end_amdhsa_kernel")

gen()
open(sys.argv[1], "w").write("\n".join(L) + "\n")
```

```python
import sys, struct, math, os

NAME = "standalone__varlen_attn_packed__ragged"
CU = [0, 534, 1426, 1714, 2675, 3469, 4036, 4628, 4845]
ROWB = 4096
TILEB = 32 * ROWB
QS = 65536
QW = 20480
OS = QS + 4 * QW
LDSZ = 163840
TM = 5

opts = dict(stamp=0, st="sc0+sc1", ld="", ldq="nt", al=3, e64=0, rs=1, epi=0, late=1, plan="b", rev=0, lc=4, pf=0, lazy=0)
for a in sys.argv[2:]:
    k, v = a.split("=")
    opts[k] = int(v) if v.lstrip("-").isdigit() else v
LD = (" " + opts["ld"].replace("+", " ")) if opts["ld"] else ""
LDQ = (" " + opts["ldq"].replace("+", " ")) if opts.get("ldq", opts["ld"]) and "ldq" in opts else ("" if "ldq" in opts else LD)
ST = (" " + opts["st"].replace("+", " ")) if opts["st"] else ""
DG = str(opts.get("diag", ""))

def f32bits(x):
    return struct.unpack("<I", struct.pack("<f", x))[0]

vQ = 0
vS = 64
vP = 144
vNM = 184
vKa = 204
vVa = 208
vDK = 216
vDV = 218
vQd = 220
vE = 224
vT = 228
vL = 233
vU = 238
vQa = 239
vOw = 240
vOr = 241
vG4 = 242
vU2 = 243
vX = 244
aO = 0
aKf = 160
aVf = 192
aQ = 224
aL = 240
vOne = 228
vL4 = 232
vAc = 236
BIAS = 20.0
RS = opts['rs']

sQ, sK, sV, sOut = 12, 16, 20, 24
sJ = 28
sD0, sD1 = 36, 37
sL, sN, sOff, sWB, sCnt, sLast, sThr, sC, sNeg, sW = 38, 39, 40, 41, 42, 43, 44, 45, 46, 47
sRet, sPC = 48, 52
sTn, sLastn = 50, 51
sRem, sQoffn, sOoff, sBig, sD0n, sNRn, sD1n = 54, 55, 56, 57, 58, 59, 60
sT0 = 61
sOffK = 63
sQW = 3
sFirst = 64
sQc = 8
sM = 68
sST = 76

L = []
def e(s): L.append("    " + s)
def lab(s): L.append(s + ":")
def vr(b, n): return f"v[{b}:{b+n-1}]"
def ar(b, n): return f"a[{b}:{b+n-1}]"
def emit(lines):
    for x in lines:
        if x.endswith(":"): L.append(x)
        else: e(x)
LIGHT = opts["stamp"] == 3
if LIGHT: opts["stamp"] = 0
def pstamp(idx):
    if opts["stamp"] and opts.get("pst"):
        e(f"s_memtime s[{sST+2*idx}:{sST+1+2*idx}]")
        e("s_waitcnt lgkmcnt(0)")
def stamp(idx):
    if opts.get("pst") and 1 <= idx <= 4: return
    if opts["stamp"]:
        e(f"s_memtime s[{sST+2*idx}:{sST+1+2*idx}]")

SEQ = []
for si in range(8):
    ln = CU[si + 1] - CU[si]
    SEQ.append((CU[si], ln, (ln + 63) // 64, (ln + 31) // 32))

PLANS = {
    "b": [[(31, 4)]] * 4 + [[(25, 5)]] * 2 + [[(25, 3), (7, 4)], [(18, 3), (17, 3)], [(18, 3), (17, 3)], [(18, 3), (17, 3)],
          [(19, 4), (9, 3)], [(28, 2), (19, 2)], [(19, 4), (9, 2)]] + [[(28, 4)]] * 3,
    "a": [[(31, 4)]] * 4 + [[(25, 5)]] * 2 + [[(17, 4), (18, 2)], [(19, 5), (7, 2)], [(25, 3), (9, 3)], [(28, 2), (18, 2)],
          [(17, 5), (9, 2)], [(18, 5), (7, 2)]] + [[(28, 4)]] * 3 + [[(19, 5)]],
}

def plan_head():
    n2s = {SEQ[i][3]: i for i in range(8)}
    nxt = {i: 0 for i in range(8)}
    spec = PLANS[opts["plan"]]
    res = [[None] * len(s) for s in spec]
    for want in (2, 3, 4, 5):
        for i, s in enumerate(spec):
            for k, (n, t) in enumerate(s):
                if t == want:
                    si = n2s[n]
                    res[i][k] = (si, nxt[si], t); nxt[si] += 64 * t
    for i in range(8):
        assert nxt[i] == SEQ[i][2] * 64, (i, nxt[i])
    if opts["rev"]:
        res = [list(reversed(r)) for r in res]
    return res

def make_table():
    ph = plan_head()
    tab = []
    for wg in range(256):
        x, j = wg & 7, wg >> 3
        head = 2 * x + (j & 1)
        ent = []
        for (si, q0, t) in ph[j >> 1]:
            st, ln, nb, n = SEQ[si]
            lazy = (opts["lazy"] >> (j >> 1)) & 1
            ent += [st * ROWB + head * 256, ln | (q0 << 12) | (t << 24) | (lazy << 28)]
        ent += [0] * (8 - len(ent))
        tab.append(ent)
    return tab

TAB = make_table()
PH = plan_head()
TS = sorted({t for jl in PH for _, _, t in jl}, reverse=True)
TAILS = {}
for jl in PH:
    for k, (si, q0, t) in enumerate(jl):
        TAILS.setdefault((t, (SEQ[si][3] - 1) % 4), set()).add(1 if k + 1 < len(jl) else 0)
PROD = {t for (t, p), v in TAILS.items() if v - {0}}
NWG = 256

MF = "v_mfma_f32_16x16x32_bf16"
def qreg(t, s):
    return vr(vQ + 16 * t + 4 * s, 4) if t < 4 else ar(aQ + 4 * s, 4)
def sreg(buf, t, a=0): return vS + 40 * buf + 8 * t + 4 * a
def preg(buf, t): return vP + 20 * buf + 4 * t

def qk1(buf, t, a, s, cinit, kf=None):
    d = sreg(buf, t, a)
    kf = aKf if kf is None else kf
    return f"{MF} {vr(d,4)}, {ar(kf+4*(a*4+s),4)}, {qreg(t,s)}, {vr(cinit if s == 0 else d,4)}"

def qk_mfmas(T, buf):
    return [qk1(buf, t, a, s, vNM + 4 * t) for a in range(2) for s in range(4) for t in range(T)]

ZERO = [False]
def pv1(buf, t, dt, vf):
    o = aO + 32 * t + 4 * dt
    return f"{MF} {ar(o,4)}, {ar(vf+4*dt,4)}, {vr(preg(buf,t),4)}, {'0' if ZERO[0] else ar(o,4)}"

def rs1(buf, t):
    l = ar(aL + 4 * t, 4) if t < 4 else vr(vL4, 4)
    return f"{MF} {l}, {vr(vOne,4)}, {vr(preg(buf,t),4)}, {'0' if ZERO[0] else l}"

def pv_mfmas(T, buf, vf=aVf):
    return [pv1(buf, t, dt, vf) for dt in range(8) for t in range(T)] + ([rs1(buf, t) for t in range(T)] if RS else [])

def zero_mfmas(T):
    return [f"v_mfma_f32_32x32x16_bf16 {ar(aO+16*i,16)}, {vr(vP+28,4)}, {vr(vP+28,4)}, 0" for i in range(2 * T)]

def k_reads(slot, kf=None):
    kf = aKf if kf is None else kf
    return [f"ds_read_b128 {ar(kf+4*(a*4+s),4)}, v{vKa+s} offset:{slot*16384+a*8192}" for a in range(2) for s in range(4)]

def v_reads(slot, vf=aVf):
    return [f"ds_read_b64_tr_b16 {ar(vf+4*dt+2*a,2)}, v{vVa+dt} offset:{slot*16384+a*8192}" for dt in range(8) for a in range(2)]

def m0set(off):
    return f"s_add_u32 m0, s{sWB}, {off}" if off else f"s_mov_b32 m0, s{sWB}"
def ldv(j, so):
    return f"buffer_load_dwordx4 v{vDV+j}, s[{sV}:{sV+3}], s{so} offen" + (f" offset:{j*1024}" if j else "") + f"{LD} lds"
def ldk(j, so):
    return f"buffer_load_dwordx4 v{vDK+j}, s[{sK}:{sK+3}], s{so} offen offset:{2048+j*1024}{LD} lds"

def dma(slot):
    return [m0set(slot * 16384),
            f"s_add_u32 s{sOff}, s{sOff}, {TILEB}",
            f"s_add_u32 s{sOffK}, s{sOffK}, {TILEB}",
            ldv(0, sOff), ldv(1, sOff), ldk(0, sOffK), ldk(1, sOffK)]

CHK = f"v_cmp_ne_u32 vcc, 0, v{vX}" if RS else f"v_cmp_lt_f32 vcc, s{sThr}, v{vX}"
ERING = [vE, vE + 2, vX + 4, vX + 6]
def softmax_ops(T, buf, full=True, R=4, t0=0):
    exps, sims = [], []
    done_after = []
    n = 4 * T
    for k in range(n):
        t, kk = divmod(k, 4)
        t += t0
        a = ERING[k % R]; b = a + 1
        need = done_after[k - R] if k >= R else 0
        exps += [(f"v_exp_f32 v{a}, v{sreg(buf,t)+2*kk}", need), (f"v_exp_f32 v{b}, v{sreg(buf,t)+2*kk+1}", need)]
        p = preg(buf, t) + kk
        u = vU if k & 1 else vU2
        ne = 2 * k + 2
        if RS:
            sims.append((f"v_cvt_pk_bf16_f32 v{p}, v{a}, v{b}", ne))
            done_after.append(len(sims))
            if full and (k & 1):
                sims.append((f"v_or_b32 v{vAc}, v{p-1}, v{p}" if k == 1 else f"v_or3_b32 v{vAc}, v{vAc}, v{p-1}, v{p}", ne))
        elif kk == 0:
            if full: sims.append((f"v_add_f32 v{vL+t}, v{vL+t}, v{vT+t}", 0))
            sims += [(f"v_cvt_pk_bf16_f32 v{p}, v{a}, v{b}", ne), (f"v_add_f32 v{vT+t}, v{a}, v{b}", ne)]
            done_after.append(len(sims))
        else:
            sims += [(f"v_add_f32 v{u}, v{a}, v{b}", ne), (f"v_cvt_pk_bf16_f32 v{p}, v{a}, v{b}", ne)]
            done_after.append(len(sims))
            sims.append((f"v_add_f32 v{vT+t}, v{vT+t}, v{u}", ne))
    if full and RS:
        sims += [(f"v_and_b32 v{vX}, 0x40004000, v{vAc}", 2 * n), (CHK, 2 * n)]
    elif full:
        m = [vT + t for t in range(T)]
        cur = m.pop(0)
        while m:
            if len(m) >= 2:
                sims.append((f"v_max3_f32 v{vX}, v{cur}, v{m[0]}, v{m[1]}", 2 * n)); m = m[2:]
            else:
                sims.append((f"v_max_f32 v{vX}, v{cur}, v{m[0]}", 2 * n)); m = []
            cur = vX
        sims.append((f"v_cmp_lt_f32 vcc, s{sThr}, v{cur}", 2 * n))
    return exps, sims

class SM:
    def __init__(s, T, buf, full=True, t0=0, R=4):
        s.ex, s.si = softmax_ops(T, buf, full, R, t0)
        s.i = s.j = 0
        s.last_exp = False
    def left(s): return 8 * (len(s.ex) - s.i) + 4 * (len(s.si) - s.j)
    def can_exp(s): return s.i < len(s.ex) and s.ex[s.i][1] <= s.j
    def can_sim(s):
        if s.j >= len(s.si): return False
        need = s.si[s.j][1]
        return need < s.i or (need == s.i and not s.last_exp)
    def exp(s): s.i += 1; s.last_exp = True; return s.ex[s.i - 1][0]
    def sim(s): s.j += 1; s.last_exp = False; return s.si[s.j - 1][0]
    def other(s): s.last_exp = False
    def any(s):
        if s.can_sim() and (s.si[s.j][1] <= s.i - 2 or not s.can_exp()): return s.sim()
        if s.can_exp(): return s.exp()
        if s.can_sim(): return s.sim()
        s.last_exp = False
        return "s_nop 0"
    def take(s, n): return [s.any() for _ in range(n) if s.left()]
    def rest(s):
        r = []
        while s.left(): r.append(s.any())
        return r

def is_mem(x): return x.startswith("ds_") or x.startswith("buffer_")

def pack(mf, fixed, sm=None, novalu=(), keep=0, cap=8):
    n = len(mf)
    def fcost(l):
        c = 0; ns = 0; nm = 0
        for x in l:
            if is_mem(x): c += 8 if nm else 4; nm += 1
            elif x.startswith("s_"): c += 4 if (ns or nm) else 0; ns += 1
            else: c += 4
        return c
    fc = [fcost(fixed.get(g, [])) for g in range(n)]
    out = []
    for g in range(n):
        out.append(mf[g])
        out += fixed.get(g, [])
        if sm is None: continue
        sm.other()
        if g in novalu: continue
        rem = [k for k in range(g, n) if k not in novalu]
        last = g == rem[-1]
        used = fc[g]
        while sm.left() > keep:
            later = sum(max(0, cap - fc[k]) for k in rem[1:])
            over = sm.left() - keep - later
            room = cap - used
            if room <= 0:
                if not last and over * 1.0 < 4 * 1.0 + 0 : break
                if not last and (used - cap + 4) * len(rem) > over + (used - cap) + 2 * len(rem): break
            nexp = len(sm.ex) - sm.i
            full_later = sum(1 for k in rem[1:] if cap - fc[k] >= 8)
            if room >= 8 and sm.can_exp() and (not sm.can_sim() or nexp > full_later * opts.get("eb", 70) // 100 or sm.si[sm.j][1] > sm.i - 4):
                out.append(sm.exp()); used += 8
            elif sm.can_sim():
                out.append(sm.sim()); used += 4
            elif sm.can_exp() and (room >= 8 or last or nexp + opts.get("slk", 2) > full_later or over > 0):
                out.append(sm.exp()); used += 8
            else:
                if last: out.append(sm.any()); used += 4
                else: break
    return out

STUBS = []
def check_rare(buf, tag):
    e(f"s_cbranch_vccnz Lrare_{tag}")
    lab(f"Lback_{tag}")
    STUBS.append((tag, buf))

def spread(items, gaps):
    d = {}
    gaps = list(gaps)
    for i, x in enumerate(items):
        d.setdefault(gaps[i * len(gaps) // len(items)], []).append(x)
    return d

def merge(*ds):
    r = {}
    for d in ds:
        for k, v in d.items():
            r.setdefault(k, []).extend(v)
    return r

def interleave(a, b):
    out = []
    if not a: return list(b)
    j = 0
    for i, x in enumerate(a):
        out.append(x)
        nj = (i + 1) * len(b) // len(a)
        out += b[j:nj]; j = nj
    return out

CNT = f"s_sub_u32 s{sCnt}, s{sCnt}, 1"

def place(items, gaps):
    groups = []
    cur = []
    for x in items:
        cur.append(x)
        if is_mem(x): groups.append(cur); cur = []
    if cur: groups.append(cur)
    gaps = list(gaps)
    d = {}
    for i, gr in enumerate(groups):
        d.setdefault(gaps[i * len(gaps) // len(groups)], []).extend(gr)
    return d

def qgroup(g, dyn=True):
    r = [f"s_add_u32 m0, s{sQW}, {g*4096}" if g else f"s_mov_b32 m0, s{sQW}",
         f"s_add_u32 s{sT0}, s{sQoffn}, {g*16*ROWB}"]
    if g >= 2 and dyn:
        r += [f"s_cmp_gt_u32 s{sTn}, {g}", f"s_cselect_b32 s{sT0}, s{sT0}, s{sBig}"]
    r += [f"buffer_load_dwordx4 v{vQd+i}, s[{sQ}:{sQ+3}], s{sT0} offen offset:{i*1024}{LDQ} lds" for i in range(4)]
    return r

def step(T, t, prod=False):
    p = t % 4
    b = t % 2
    h = 8 * T
    ZERO[0] = prod
    mf = qk_mfmas(T, b ^ 1) + pv_mfmas(T, b ^ 1)
    ZERO[0] = False
    kr = k_reads((t + 2) % 4)
    d = dma((t + 1) % 4)
    sm = SM(T, b)
    n = len(mf)
    vrd = v_reads((t + 1) % 4)
    vm = 8
    end = [CNT] if prod else [CNT, "s_cselect_b64 vcc, -1, vcc"]
    if T >= 3:
        kd = [kr[0], kr[1], d[3], kr[2], kr[3], d[4], kr[4], kr[5], d[5], kr[6], kr[7], d[6]]
        fixed = merge(place(vrd, range(0, h - 5)),
                      {h - 1: [f"s_waitcnt vmcnt({vm}) lgkmcnt(0)", "s_barrier"]},
                      {h - 4: [d[0]], h - 3: [d[1]], h - 2: [d[2]]},
                      place(kd, range(h, n - 3)),
                      {n - 2: [end[0]], n - 1: end[1:]})
    else:
        kd = [kr[0], kr[1], d[3], kr[2], kr[3], kr[4], d[4], kr[5], kr[6], kr[7], d[5]]
        fixed = merge(place(vrd, range(0, 12)),
                      {h - 1: [f"s_waitcnt vmcnt({vm}) lgkmcnt(0)", "s_barrier"]},
                      {h - 4: [d[0]], h - 3: [d[1]], h - 2: [d[2]]},
                      place(kd, range(h, n - 5)),
                      {n - 2: [end[0], d[6]], n - 1: end[1:]})
    e("s_waitcnt lgkmcnt(0)")
    body = pack(mf, fixed, sm, (h - 1, n - 1))
    if opts["e64"]:
        body = [x.replace("v_exp_f32 ", "v_exp_f32_e64 ").replace("v_add_f32 ", "v_add_f32_e64 ").replace("v_max_f32 ", "v_max_f32_e64 ") for x in body]
    emit(body)
    assert sm.left() == 0
    if prod:
        check_rare(b, f"t{T}p{p}")
    else:
        e(f"s_cbranch_vccnz Lx{T}_{p}")
        lab(f"Lxb{T}_{p}")

def exit_stub(T, p):
    lab(f"Lx{T}_{p}")
    e(CHK)
    check_rare(p % 2, f"x{T}_{p}")
    np_ = (p + 1) % 4
    nx = sorted(TAILS.get((T, np_), ()))
    if not nx:
        e(f"s_branch Lxb{T}_{p}")
        return
    e(f"s_cbranch_scc0 Lxb{T}_{p}")
    for tn in nx[1:]:
        e(f"s_cmp_lg_u32 s{sD1n}, 0")
        e(f"s_cbranch_scc1 Ltail{T}_{np_}_{tn}")
    for tn in nx:
        tail(T, np_, tn)

def ktile(u):
    return [m0set(u * 16384), f"s_add_u32 s{sT0}, s{sD0}, {(u-1)*TILEB}", ldk(0, sT0), ldk(1, sT0)]
def vtile(u):
    so = sLast if u == 0 else sD0
    return [m0set(((u + 2) % 4) * 16384), "s_nop 0", ldv(0, so), ldv(1, so)]
def next_k0():
    return [m0set(0), f"s_add_u32 s{sK+2}, s{sNRn}, 4096", ldk(0, sLastn), ldk(1, sLastn)]
def next_k1():
    return [m0set(16384), "s_nop 0", ldk(0, sD0n), ldk(1, sD0n)]

def tail(T, p, tn):
    b = p % 2
    lab(f"Ltail{T}_{p}_{tn}")
    stamp(3)
    if opts["stamp"]: e("s_waitcnt lgkmcnt(0)")
    vrd = v_reads((p + 1) % 4)
    vrd2 = v_reads((p + 2) % 4, aKf)
    sm = SM(T, b)
    mf = pv_mfmas(T, b ^ 1)
    if RS: mf = mf[-T:] + mf[:-T]
    o = T if RS else 0
    if opts.get("tl", 0):
        pre = 6
        emit(vrd[:pre])
        emit(sm.take(6))
        g1 = o + 3 * T
        fixed = place(vrd[pre:], range(0, g1))
        issued = {g: pre + sum(len(fixed.get(k, [])) for k in range(g + 1)) for g in range(-1, len(mf))}
        for dt in range(0, 4):
            g = o + dt * T - 1
            w = f"s_waitcnt lgkmcnt({max(0, issued[g] - 2 * dt - 2)})"
            if g < 0: e(w)
            else: fixed.setdefault(g, []).append(w)
        gb = o + 4 * T - 1
        fixed.setdefault(gb, []).extend(["s_waitcnt vmcnt(8) lgkmcnt(0)", "s_barrier"])
        rest = range(gb + 1, len(mf))
        fixed = merge(fixed, place(vrd2, rest))
        if tn: fixed = merge(fixed, place(next_loads(tn)[0], rest))
    else:
        emit(vrd)
        emit(sm.take(12))
        e("s_waitcnt vmcnt(8) lgkmcnt(0)")
        e("s_barrier")
        fixed = place(vrd2, range(len(mf) - 2))
        if tn:
            fixed = merge(fixed, place(next_loads(tn)[0], range(len(mf))))
    emit(pack(mf, fixed, sm))
    assert sm.left() == 0
    check_rare(b, f"t{T}t{p}_{tn}")
    fin(T, b, tn)

def next_loads(tn):
    return next_k0() + qgroup(0, False), qgroup(1, False) + next_k1()

def xlane(op, regs, tmp):
    r = []
    for sw in ("v_permlane32_swap_b32", "v_permlane16_swap_b32"):
        r += [f"v_mov_b32 v{tmp+i}, v{x}" for i, x in enumerate(regs)]
        r += ["s_nop 1"]
        r += [f"{sw} v{x}, v{tmp+i}" for i, x in enumerate(regs)]
        r += ["s_nop 1"]
        r += [f"{op} v{x}, v{x}, v{tmp+i}" for i, x in enumerate(regs)]
    return r

vOA = vNM
vLI = vNM + 8
def epi_acc(t):
    return [f"v_accvgpr_read_b32 v{vQ+i}, a{aO+32*t+i}" for i in range(32)]
def epi_cvt(t):
    r = [f"v_pk_mul_f32 {vr(vQ+2*i,2)}, {vr(vQ+2*i,2)}, {vr(vLI+2*(t//2),2)} " +
         ("op_sel:[0,1] op_sel_hi:[1,1]" if t & 1 else "op_sel_hi:[1,0]") for i in range(16)]
    r += [f"v_cvt_pk_bf16_f32 v{vQ+32+16*(t&1)+i}, v{vQ+2*i}, v{vQ+2*i+1}" for i in range(16)]
    return r
def epi_writes(t):
    return [f"ds_write_b64 v{vOA+dt}, {vr(vQ+32+16*(t&1)+2*dt,2)}" for dt in range(8)]
def epi_reads(t):
    return [f"ds_read_b128 {vr(vS+16*t+4*i,4)}, v{vOr} offset:{i*1024}" for i in range(4)]
def epi_stores(t):
    return [f"s_add_u32 s{sT0}, s{sOoff}, {t*16*ROWB}"] + \
           [f"buffer_store_dwordx4 {vr(vS+16*t+4*i,4)}, v{vQd+i}, s[{sOut}:{sOut+3}], s{sT0} offen offset:{i*1024}{ST}" for i in range(4)]

def fin(T, b, tn):
    if not RS: e("s_waitcnt lgkmcnt(0)")
    mf = [pv1(b, t, dt, aKf) for t in range(T) for dt in range(8)]
    regs = [vL + t for t in range(T)]
    xo = [f"v_xor_b32 v{vOA+dt}, {dt*32}, v{vOw}" for dt in range(8)] if not opts["epi"] else ["s_nop 0"]
    if RS:
        mf = [rs1(b, t) for t in range(T)] + mf
        ls = [f"v_accvgpr_read_b32 v{vX+t}, a{aL+4*t}" if t < 4 else f"v_mov_b32 v{vX+t}, v{vL4}" for t in range(T)] + \
             [f"v_rcp_f32 v{vLI+t}, v{vX+t}" for t in range(T)] + epi_acc(0)
        fixed = merge({T - 1: ["s_waitcnt lgkmcnt(6)"], T + 4: ["s_waitcnt lgkmcnt(0)"]},
                      spread(xo, range(T + 8)), spread(ls, range(T + 8, len(mf))))
    else:
        ls = [f"v_add_f32 v{vL+t}, v{vL+t}, v{vT+t}" for t in range(T)] + xlane("v_add_f32", regs, vX) + \
             [f"v_rcp_f32 v{vLI+t}, v{vL+t}" for t in range(T)] + xo + epi_acc(0)
        fixed = spread(ls, range(len(mf)))
    if tn: fixed = merge(place(next_loads(tn)[1], range(len(mf))), fixed)
    emit(pack(mf, fixed))
    e(f"s_branch Lepi{T}")

def first_max(t):
    s0 = sreg(0, t)
    m = vX + 2
    r = [f"v_max3_f32 v{m}, v{s0}, v{s0+1}, v{s0+2}", f"v_max3_f32 v{m}, v{m}, v{s0+3}, v{s0+4}",
         f"v_max3_f32 v{m}, v{m}, v{s0+5}, v{s0+6}", f"v_max_f32 v{m}, v{m}, v{s0+7}"]
    r += xlane("v_max_f32", [m], vX + 3)
    if RS: r += [f"v_add_f32 v{m}, s{sThr}, v{m}"]
    r += [f"v_sub_f32 v{vNM+4*t+i}, 0, v{m}" for i in range(4)]
    r += [f"v_sub_f32 v{s0+i}, v{s0+i}, v{m}" for i in range(8)]
    return r

def qraw(t, k=0):
    return vQ + 16 * t + k if t < 4 else sreg(k // 8, 4) + k % 8
def prescale(t):
    r = []
    for k in range(0, 16, 2):
        q = qraw(t, k)
        for i in range(2):
            r += [f"v_lshlrev_b32 v{vX+2*i}, 16, v{q+i}", f"v_and_b32 v{vX+2*i+1}, 0xffff0000, v{q+i}"]
        for i in range(2):
            r += [f"v_pk_mul_f32 {vr(vX+2*i,2)}, {vr(vX+2*i,2)}, s[{sThr}:{sC}] op_sel:[0,1] op_sel_hi:[1,1]"]
        for i in range(2):
            r += [f"v_cvt_pk_bf16_f32 v{q+i}, v{vX+2*i}, v{vX+2*i+1}"]
        if t == 4: r += [f"v_accvgpr_write_b32 a{aQ+k+i}, v{q+i}" for i in range(2)]
    return r

def first_only(lines):
    i = len(L)
    e(f"s_cmp_eq_u32 s{sFirst}, 0")
    e(f"s_cbranch_scc1 Lw{i}")
    emit(lines)
    lab(f"Lw{i}")

def nvm(l): return sum(x.startswith("buffer") for x in l)

vMK = vP + 20
def weave(mfs, valu, mem):
    d = place(mem, range(len(mfs))) if mem else {}
    out = []
    j = 0
    nops = [i for i, x in enumerate(valu) if x == "s_nop 1"]
    if nops and len(mfs) > len(nops):
        extra = len(mfs) - len(nops)
        free = [i for i in range(len(valu)) if i not in nops and i - 1 not in nops]
        head = [0, 2][:min(2, extra)]
        tailp = [i for i in free if i > nops[-1] + 1]
        more = [tailp[k * len(tailp) // (extra - len(head))] for k in range(extra - len(head))]
        cuts = sorted(set(nops + head + more))
        assert len(cuts) == len(mfs)
        k = 0
        for i, x in enumerate(valu):
            if i in cuts:
                out.append(mfs[k])
                m = d.get(k, []); k += 1
                if x == "s_nop 1":
                    out += m if m else ["s_nop 0"]
                    continue
                out += m
            out.append(x)
        return out
    for i, x in enumerate(mfs):
        out.append(x)
        out += d.get(i, [])
        nj = (i + 1) * len(valu) // len(mfs)
        out += valu[j:nj]; j = nj
    return out

def prologue(T):
    lab(f"Lpro{T}")
    def qcur(g):
        return [x.replace(f"s{sQoffn}", f"s{sOoff}").replace(f"s[{sQ}:{sQ+3}]", f"s[{sQc}:{sQc+3}]") for x in qgroup(g, False)]
    q = ["K0"] * 2 + ["Q0"] * 4 + ["Q1"] * 4 + ["K1"] * 2
    def younger(tag): return len(q) - 1 - max(i for i, x in enumerate(q) if x == tag)
    for s in range(4):
        e(f"v_xor_b32 v{vX+8+s}, {s*64}, v{vQa}")
    pre = [f"v_sub_u32 v{vX}, s{sRem}, v{vG4}", f"v_mov_b32 v{vX+1}, s{sNeg}"]
    for a in range(2):
        pre += [f"v_cmp_lt_i32 s[{sM+2*i}:{sM+2*i+1}], {16*a+i}, v{vX}" for i in range(4)] + ["s_nop 0"]
        pre += [f"v_cndmask_b32 v{vMK+4*a+i}, v{vX+1}, 0, s[{sM+2*i}:{sM+2*i+1}]" for i in range(4)]
    if not RS: pre += [f"v_mov_b32 v{vL+t}, 0" for t in range(T)]
    def qreads(t):
        return [f"ds_read_b128 {vr(qraw(t,4*s),4)}, v{vX+8+s} offset:{t*4096}" for s in range(4)]
    A = lambda t: [qk1(0, t, a, s, vMK + 4 * a) for a in range(2) for s in range(4)]
    C = lambda t: [qk1(1, t, a, s, vNM + 4 * t, aVf) for a in range(2) for s in range(4)]
    def sparse(mem, valu):
        d = place(mem, range(max(1, nvm(mem))))
        out = []; j = 0
        for i in range(len(d)):
            out += d[i]
            nj = (i + 1) * len(valu) // len(d)
            out += valu[j:nj]; j = nj
        return out
    if T > 2:
        emit(sparse(qcur(2), pre)); q += ["Q2"] * 4
        pre = []
    first_only([f"s_waitcnt vmcnt({younger('Q0')})"])
    pstamp(1)
    emit(qreads(0))
    emit(pre)
    e("s_waitcnt lgkmcnt(0)")
    if T > 3:
        emit(sparse(qcur(3), prescale(0))); q += ["Q3"] * 4
    else:
        emit(prescale(0))
    first_only([f"s_waitcnt vmcnt({younger('K1')})"])
    pstamp(2)
    emit(qreads(1))
    e("s_barrier")
    emit(k_reads(0))
    e("s_waitcnt lgkmcnt(8)")
    ps = prescale(1)
    if T > 4:
        emit(sparse(qcur(4), ps[:32])); q += ["Q4"] * 4
    else:
        emit(ps[:32])
    emit(k_reads(1, aVf))
    e("s_waitcnt lgkmcnt(8)")
    bulk = [("K2", ktile(2)), ("V0", vtile(0)), ("K3", ktile(3)), ("V1", vtile(1)), ("G", dma(0)[:5]), ("G", dma(0)[5:]),
            ("H", dma(1)[:5]), ("H", dma(1)[5:])]
    def takeb(n):
        nonlocal bulk
        r = []
        for tag, l in bulk[:n]:
            r += l; q.extend([tag] * nvm(l))
        bulk = bulk[n:]
        return r
    emit(weave(A(0), [], takeb(1) if T == 2 else []))
    emit(sparse(takeb(1), ps[32:]) if T <= 3 else ps[32:])
    D = lambda t: SM(1, 0, False, t, 2).rest()
    def getq(k):
        e(f"s_waitcnt vmcnt({younger(f'Q{k}')})")
        if k <= 3: pstamp(k + 1)
        emit(qreads(k))
    def bar2():
        e("s_waitcnt lgkmcnt(0)")
        e("s_barrier")
    per = {2: [2, 2, 2], 3: [1, 1, 1, 2, 2], 4: [1, 1, 1, 1, 1, 1, 2], 5: [0, 1, 1, 1, 1, 1, 1, 1, 1]}[T]
    tk = lambda: takeb(per.pop(0))
    for k in range(2, T):
        emit(weave(A(k - 1), first_max(k - 2), tk()))
        if k == 2: bar2()
        if k < T - 1:
            getq(k)
            emit(weave(C(k - 2), D(k - 2), tk()))
        else:
            emit(weave(C(k - 2), first_max(k - 1), tk()))
            emit(D(k - 2))
            getq(k)
            emit(weave(C(k - 1), D(k - 1)[:8], tk()))
        e("s_waitcnt lgkmcnt(0)")
        emit(prescale(k))
    stamp(1)
    if opts["stamp"]: e("s_waitcnt lgkmcnt(0)")
    if T == 2:
        emit(weave(A(1), first_max(0), tk()))
        bar2()
        emit(weave(C(0), D(0), tk()))
    else:
        emit(weave(A(T - 1), D(T - 2)[8:], tk()))
    e(f"s_waitcnt vmcnt({younger('V0')})")
    e("s_barrier")
    emit(k_reads(2))
    emit(first_max(T - 1))
    emit(weave(C(T - 1), D(T - 1), tk()))
    assert not bulk and not per
    e(CNT)
    step(T, 1, True)
    stamp(2)
    e(f".p2align {opts['al']}")
    for _ in range(opts.get("pad", 0)): e("s_nop 0")
    lab(f"Lloop{T}")
    for t in (2, 3, 4, 5):
        step(T, t)
    e(f"s_branch Lloop{T}")
    for p in range(4):
        exit_stub(T, p)

def stamp_store(final=False):
    if not opts["stamp"]: return
    B = vP + 20
    if opts["stamp"] == 2:
        if not final: return
        e("s_waitcnt lgkmcnt(0)")
        e("s_mov_b32 s92, s90"); e("s_mov_b32 s93, s91"); e("s_mov_b32 s94, 256"); e("s_mov_b32 s95, 0x20000")
        e("s_mov_b64 exec, 1")
        e(f"v_mov_b32 v{B+8}, 0")
        e("s_not_b32 s96, s100"); e(f"v_mov_b32 v{B}, s96")
        e(f"buffer_atomic_umax v{B}, v{B+8}, s[92:95], 0 offen offset:32")
        e(f"v_mov_b32 v{B+1}, s{sST+12}")
        e(f"buffer_atomic_umax v{B+1}, v{B+8}, s[92:95], 0 offen offset:36")
        e(f"v_mov_b32 v{B+2}, s100")
        e(f"buffer_atomic_umax v{B+2}, v{B+8}, s[92:95], 0 offen offset:40")
        e(f"s_lshl_b32 s96, s2, 2"); e(f"s_add_u32 s96, s96, s{sW}")
        e("s_cmp_lg_u32 s96, 32"); e("s_cbranch_scc1 Lnodbg")
        e(f"s_sub_u32 s96, s99, s100"); e(f"v_mov_b32 v{B}, s96")
        e(f"s_sub_u32 s96, s{sST+2}, s97"); e(f"v_mov_b32 v{B+1}, s96")
        for i in range(1, 4):
            e(f"s_sub_u32 s96, s{sST+2*i+2}, s{sST+2*i}"); e(f"v_mov_b32 v{B+1+i}, s96")
        e(f"s_sub_u32 s96, s{sST}, s{sST+8}"); e(f"v_mov_b32 v{B+5}, s96")
        e(f"s_sub_u32 s96, s{sST+12}, s100"); e(f"v_mov_b32 v{B+6}, s96")
        e(f"v_mov_b32 v{B+7}, s100")
        e(f"buffer_store_dwordx4 {vr(B,4)}, v{B+8}, s[92:95], 0 offen")
        e(f"buffer_store_dwordx4 {vr(B+4,4)}, v{B+8}, s[92:95], 0 offen offset:16")
        lab("Lnodbg")
        return
    e("s_waitcnt lgkmcnt(0)")
    e("s_mov_b32 s92, s90"); e("s_mov_b32 s93, s91"); e("s_mov_b32 s94, 0x100000"); e("s_mov_b32 s95, 0x20000")
    e(f"s_lshl_b32 s96, s2, 2"); e(f"s_add_u32 s96, s96, s{sW}"); e("s_lshl_b32 s96, s96, 2")
    if final: e("s_add_u32 s96, s96, 3")
    else: e("s_add_u32 s96, s96, s97"); e("s_add_u32 s97, s97, 1")
    e("s_lshl_b32 s96, s96, 5")
    for i in range(5): e(f"v_mov_b32 v{B+i}, s{sST+2*i}")
    e(f"v_mov_b32 v{B+5}, s{sST+10}"); e(f"v_mov_b32 v{B+6}, s{sST+12}"); e(f"v_mov_b32 v{B+7}, s98")
    e(f"v_mov_b32 v{B+8}, 0")
    e("s_mov_b64 exec, 1")
    e(f"buffer_store_dwordx4 {vr(B,4)}, v{B+8}, s[92:95], s96 offen")
    e(f"buffer_store_dwordx4 {vr(B+4,4)}, v{B+8}, s[92:95], s96 offen offset:16")
    e("s_mov_b64 exec, -1")
    e("s_nop 2")

def epilogue(T):
    lab(f"Lepi{T}")
    stamp(4)
    if opts["stamp"]: e(f"s_memrealtime s[{sST+12}:{sST+13}]")
    stamp_store()
    if opts["epi"]:
        def swaps(t):
            pk = vQ + 32 + 16 * (t & 1)
            return [f"v_permlane16_swap_b32 v{pk+4*j+i}, v{pk+4*j+2+i}" for j in range(4) for i in range(2)]
        def dstores(t):
            pk = vQ + 32 + 16 * (t & 1)
            return [f"buffer_store_dwordx4 {vr(pk+4*j,4)}, v{vOw}, s[{sOut}:{sOut+3}], s{sT0} offen offset:{j*64}{ST}" for j in range(4)]
        emit(epi_cvt(0) + swaps(0))
        for t in range(1, T + 1):
            va = epi_acc(t) + epi_cvt(t) + swaps(t) if t < T else []
            st = dstores(t - 1)
            e(f"s_add_u32 s{sT0}, s{sOoff}, {(t-1)*16*ROWB}")
            if opts["epi"] == 2:
                emit(st[:2] + va[:24] + st[2:] + va[24:])
            else:
                for j in range(4):
                    e(st[j]); emit(va[14 * j:14 * (j + 1)])
                emit(va[56:])
    else:
        epilogue_lds(T)
    epilogue_end(T)

def epilogue_lds(T):
    emit(epi_cvt(0))
    for t in range(1, T + 1):
        va = epi_acc(t) + epi_cvt(t) if t < T else []
        w, r, st = epi_writes(t - 1), epi_reads(t - 1), epi_stores(t - 1)
        if t < T:
            g = [w[0:3], w[3:6], w[6:8] + r[0:2], r[2:4], [], [st[0], "s_waitcnt lgkmcnt(0)", st[1]], [st[2]], [st[3]], [st[4]]]
            cut = [0, 5, 10, 15, 20, 28, 38, 48, 58, 64]
            for i in range(9):
                emit(g[i]); emit(va[cut[i]:cut[i + 1]])
        else:
            emit(w + r)
            n = 4
            for x in st:
                if x.startswith("buffer"):
                    n -= 1
                    e(f"s_waitcnt lgkmcnt({n})")
                e(x)

def epilogue_end(T):
    if T in PROD:
        e(f"s_cmp_eq_u32 s{sD1n}, 0")
        e("s_cbranch_scc1 Ldone")
        e(f"s_mov_b32 s{sFirst}, 0")
        e(f"s_waitcnt vmcnt({4*T})")
        e("s_branch Lstart")
    else:
        e("s_branch Ldone")

def gen():
    L.append(open(os.path.join(os.path.dirname(os.path.abspath(__file__)), "header.txt")).read().rstrip())
    L.append(f"; @launch grid=({NWG},1,1) block=(256,1,1) lds={LDSZ}")
    L.append('.amdgcn_target "amdgcn-amd-amdhsa--gfx950"')
    L.append(".text")
    L.append(f".globl {NAME}_kernel")
    L.append(".p2align 8")
    L.append(f".type {NAME}_kernel,@function")
    lab(f"{NAME}_kernel")
    e(f"s_cmp_ge_u32 s2, {NWG}")
    e("s_cbranch_scc1 Lend")
    e(f"s_getpc_b64 s[{sPC}:{sPC+1}]")
    lab("Lpc")
    e("s_load_dwordx4 s[4:7], s[0:1], 0")
    e("s_load_dwordx2 s[8:9], s[0:1], 16")
    e("s_load_dwordx2 s[10:11], s[0:1], 32")
    if opts["pf"]:
        e(f"v_lshlrev_b32 v1, 7, v0")
        for i in range(opts["pf"] * 2):
            e(f"global_load_dword v{2+i}, v1, s[{sPC}:{sPC+1}]")
            e(f"v_add_u32 v1, 32768, v1")
    e(f"s_add_u32 s{sPC}, s{sPC}, Ltab-Lpc")
    e(f"s_addc_u32 s{sPC+1}, s{sPC+1}, 0")
    e("s_lshl_b32 s3, s2, 5")
    e(f"s_load_dwordx8 s[{sJ}:{sJ+7}], s[{sPC}:{sPC+1}], s3")
    if opts["stamp"]:
        e(f"s_load_dwordx2 s[90:91], s[0:1], {40 if opts['stamp'] == 2 else 48}")
        e("s_memrealtime s[100:101]")
        e("s_mov_b32 s97, 0")
    if opts.get("spin"):
        e("s_memrealtime s[100:101]")
    if LIGHT:
        e("s_load_dwordx2 s[90:91], s[0:1], 48")
        e("s_memrealtime s[100:101]")
    w, ln, i16, g, x4, x5, x6 = range(vX, vX + 7)
    e(f"v_lshrrev_b32 v{w}, 6, v0")
    e(f"v_and_b32 v{ln}, 63, v0")
    e(f"v_readfirstlane_b32 s{sW}, v{w}")
    e(f"v_and_b32 v{i16}, 15, v{ln}")
    e(f"v_lshrrev_b32 v{g}, 4, v{ln}")
    e(f"v_xor_b32 v{x6}, v{i16}, v{g}")
    e(f"v_lshlrev_b32 v{x6}, 4, v{x6}")
    e(f"v_bfe_u32 v{x4}, v{ln}, 3, 1")
    e(f"v_lshlrev_b32 v{x4}, 12, v{x4}")
    e(f"v_and_b32 v{x5}, 7, v{ln}")
    e(f"v_lshl_add_u32 v{x4}, v{x5}, 8, v{x4}")
    e(f"v_add3_u32 v{vKa}, v{x4}, v{x6}, 0")
    e(f"v_add_u32 v{vKa}, 2048, v{vKa}")
    for s in range(1, 4):
        e(f"v_xor_b32 v{vKa+s}, {s*64}, v{vKa}")
    e(f"v_mul_u32_u24 v{x4}, {QW}, v{w}")
    e(f"v_lshl_add_u32 v{x4}, v{i16}, 8, v{x4}")
    e(f"v_add3_u32 v{x4}, v{x4}, v{x6}, 0")
    e(f"v_add_u32 v{vQa}, {QS}, v{x4}")
    e(f"v_lshlrev_b32 v{x4}, 12, v{w}")
    e(f"v_add_u32 v{x4}, {OS}, v{x4}")
    e(f"v_lshl_add_u32 v{vOr}, v{ln}, 4, v{x4}")
    e(f"v_lshl_add_u32 v{x4}, v{i16}, 8, v{x4}")
    e(f"v_lshrrev_b32 v{x5}, 1, v{g}")
    e(f"v_xor_b32 v{x5}, v{x5}, v{i16}")
    e(f"v_lshl_add_u32 v{x4}, v{x5}, 4, v{x4}")
    e(f"v_and_b32 v{x5}, 1, v{g}")
    e(f"v_lshl_add_u32 v{vOw}, v{x5}, 3, v{x4}")
    if opts["epi"]:
        e(f"v_lshlrev_b32 v{x4}, 12, v{i16}")
        e(f"v_lshl_add_u32 v{x4}, v{x5}, 5, v{x4}")
        e(f"v_lshrrev_b32 v{vOw}, 1, v{g}")
        e(f"v_lshl_add_u32 v{vOw}, v{vOw}, 4, v{x4}")
    e(f"v_lshrrev_b32 v{x4}, 1, v{g}")
    e(f"v_lshlrev_b32 v{x4}, 12, v{x4}")
    e(f"v_mul_u32_u24 v{x5}, {4*256+32}, v{x5}")
    e(f"v_add_u32 v{x4}, v{x4}, v{x5}")
    e(f"v_lshrrev_b32 v{x5}, 2, v{i16}")
    e(f"v_mul_u32_u24 v{x5}, {256+64}, v{x5}")
    e(f"v_add_u32 v{x4}, v{x4}, v{x5}")
    e(f"v_and_b32 v{x5}, 3, v{ln}")
    e(f"v_lshl_add_u32 v{vVa}, v{x5}, 3, v{x4}")
    for dt in range(1, 8):
        e(f"v_xor_b32 v{vVa+dt}, {dt*32}, v{vVa}")
    e(f"v_lshlrev_b32 v{vG4}, 2, v{g}")
    e(f"v_lshl_add_u32 v{vQd}, v{g}, 12, v{x6}")
    for i in range(1, 4):
        e(f"v_xor_b32 v{vQd+i}, {i*64}, v{vQd}")
        e(f"v_add_u32 v{vQd+i}, {i*(4*ROWB-1024)}, v{vQd+i}")
    e(f"v_lshl_add_u32 v{x5}, v{w}, 3, v{g}")
    e(f"v_xor_b32 v{x4}, v{vG4}, v{i16}")
    e(f"v_lshlrev_b32 v{x4}, 4, v{x4}")
    e(f"v_lshl_add_u32 v{vDV}, v{x5}, 12, v{x4}")
    e(f"v_xor_b32 v{vDV+1}, 32, v{vDV}")
    e(f"v_add_u32 v{vDV+1}, {4*ROWB-1024}, v{vDV+1}")
    e(f"v_and_b32 v{x4}, 15, v{x5}")
    e(f"v_xor_b32 v{x4}, v{x4}, v{i16}")
    e(f"v_lshlrev_b32 v{x4}, 4, v{x4}")
    e(f"v_lshl_add_u32 v{vDK}, v{x5}, 12, v{x4}")
    e(f"v_xor_b32 v{vDK+1}, 64, v{vDK}")
    e(f"v_add_u32 v{vDK}, {4096-2048}, v{vDK}")
    e(f"v_add_u32 v{vDK+1}, {4*ROWB+4096-3072}, v{vDK+1}")
    e(f"s_lshl_b32 s{sWB}, s{sW}, 12")
    e(f"s_mov_b32 s{sThr}, {hex(f32bits(BIAS if RS else 4096.0))}")
    if RS:
        for i in range(4): e(f"v_mov_b32 v{vOne+i}, 0x3f803f80")
    e(f"s_mov_b32 s{sC}, {hex(f32bits(128 ** -0.5 * math.log2(math.e)))}")
    e(f"s_mov_b32 s{sNeg}, {hex(f32bits(-1e30))}")
    e(f"s_mov_b32 s{sBig}, 0x40000000")
    e(f"s_mov_b32 s{sFirst}, 1")
    e(f"s_mul_i32 s{sQW}, s{sW}, {QW}")
    e(f"s_add_u32 s{sQW}, s{sQW}, {QS}")
    e("s_waitcnt lgkmcnt(0)")
    for srd, ptr in ((sQ, 4), (sK, 6), (sV, 8), (sOut, 10)):
        e(f"s_mov_b32 s{srd}, s{ptr}")
        e(f"s_mov_b32 s{srd+1}, s{ptr+1}")
        e(f"s_mov_b32 s{srd+2}, 0")
        e(f"s_mov_b32 s{srd+3}, 0x20000")
    e(f"s_mov_b32 s{sQc}, s4")
    e(f"s_mov_b32 s{sQc+1}, s5")
    e(f"s_mov_b32 s{sQc+2}, 0")
    e(f"s_mov_b32 s{sQc+3}, 0x20000")
    e(f"s_sub_u32 s{sK}, s{sK}, 4096")
    e(f"s_subb_u32 s{sK+1}, s{sK+1}, 0")
    def decode():
        e(f"s_mov_b32 s{sD0n}, s{sJ}")
        e(f"s_mov_b32 s{sD1n}, s{sJ+1}")
        e(f"s_mov_b64 s[{sJ}:{sJ+1}], s[{sJ+2}:{sJ+3}]")
        e(f"s_mov_b64 s[{sJ+2}:{sJ+3}], s[{sJ+4}:{sJ+5}]")
        e(f"s_mov_b64 s[{sJ+4}:{sJ+5}], s[{sJ+6}:{sJ+7}]")
        e(f"s_and_b32 s{sT0}, s{sD1n}, 0xfff")
        e(f"s_lshl_b32 s{sNRn}, s{sT0}, 12")
        e(f"s_add_u32 s{sNRn}, s{sNRn}, s{sD0n}")
        e(f"s_sub_u32 s{sNRn}, s{sNRn}, {ROWB-256}")
        e(f"s_sub_u32 s{sT0}, s{sT0}, 1")
        e(f"s_and_b32 s{sT0}, s{sT0}, 0xfe0")
        e(f"s_lshl_b32 s{sT0}, s{sT0}, 12")
        e(f"s_add_u32 s{sLastn}, s{sT0}, s{sD0n}")
        e(f"s_cmp_lg_u32 s{sD1n}, 0")
        e(f"s_cselect_b32 s{sNRn}, s{sNRn}, 0")
        e(f"s_mov_b32 s{sQ+2}, s{sNRn}")
        e(f"s_bfe_u32 s{sTn}, s{sD1n}, 0x30018")
        e(f"s_mul_i32 s{sT0}, s{sTn}, s{sW}")
        e(f"s_lshl_b32 s{sT0}, s{sT0}, 16")
        e(f"s_and_b32 s{sQoffn}, s{sD1n}, 0xfff000")
        e(f"s_add_u32 s{sQoffn}, s{sQoffn}, s{sD0n}")
        e(f"s_add_u32 s{sQoffn}, s{sQoffn}, s{sT0}")
    decode()
    emit(next_loads(1)[0])
    e(f"s_bitcmp1_b32 s{sD1n}, 28")
    e("s_cbranch_scc0 Leager")
    e("s_waitcnt vmcnt(0)")
    lab("Leager")
    emit(next_loads(1)[1])
    lab("Lstart")
    e(f"s_mov_b32 s{sD0}, s{sD0n}")
    e(f"s_mov_b32 s{sD1}, s{sD1n}")
    e(f"s_mov_b32 s{sLast}, s{sLastn}")
    e(f"s_mov_b32 s{sOut+2}, s{sNRn}")
    e(f"s_mov_b32 s{sV+2}, s{sNRn}")
    e(f"s_mov_b32 s{sQc+2}, s{sNRn}")
    e(f"s_mov_b32 s{sOoff}, s{sQoffn}")
    decode()
    e(f"s_and_b32 s{sL}, s{sD1}, 0xfff")
    e(f"s_add_u32 s{sN}, s{sL}, 31")
    e(f"s_lshr_b32 s{sN}, s{sN}, 5")
    e(f"s_sub_u32 s{sCnt}, s{sN}, 2")
    e(f"s_sub_u32 s{sT0}, s{sN}, 1")
    e(f"s_lshl_b32 s{sT0}, s{sT0}, 5")
    e(f"s_sub_u32 s{sRem}, s{sL}, s{sT0}")
    e(f"s_mov_b32 s{sOff}, s{sD0}")
    e(f"s_add_u32 s{sOffK}, s{sD0}, {2*TILEB}")
    stamp(0)
    e(f"s_bfe_u32 s{sT0}, s{sD1}, 0x30018")
    if opts["stamp"]:
        e(f"s_memrealtime s[{sST+10}:{sST+11}]")
        e(f"s_lshl_b32 s98, s{sT0}, 8"); e(f"s_add_u32 s98, s98, s{sN}")
        e("s_waitcnt lgkmcnt(0)")
        if opts["stamp"] == 2:
            e(f"s_mov_b32 s97, s{sST}"); e(f"s_mov_b32 s99, s{sST+10}")
    order = sorted(TS, key=lambda t: (t != 4, -t))
    for T in order[1:]:
        e(f"s_cmp_eq_u32 s{sT0}, {T}")
        e(f"s_cbranch_scc1 Lpro{T}")
    for T in order:
        prologue(T)
        epilogue(T)
    lab("Ldone")
    if opts.get("spin"):
        lab("Lspin")
        e("s_memrealtime s[88:89]")
        e("s_waitcnt lgkmcnt(0)")
        e("s_sub_u32 s88, s88, s100")
        e(f"s_cmp_lt_u32 s88, {opts['spin']}")
        e("s_cbranch_scc1 Lspin")
    if LIGHT:
        e("s_waitcnt vmcnt(0)")
        e("s_memrealtime s[88:89]")
        e("s_mov_b32 s92, s90"); e("s_mov_b32 s93, s91"); e("s_mov_b32 s94, 0x100000"); e("s_mov_b32 s95, 0x20000")
        e(f"s_lshl_b32 s96, s2, 2"); e(f"s_add_u32 s96, s96, s{sW}"); e("s_lshl_b32 s96, s96, 3")
        e("s_waitcnt lgkmcnt(0)")
        e("v_mov_b32 v0, s100"); e("v_mov_b32 v1, s88"); e("v_mov_b32 v2, 0")
        e("s_mov_b64 exec, 1")
        e("buffer_store_dwordx2 v[0:1], v2, s[92:95], s96 offen")
    if opts["stamp"]:
        e("s_waitcnt vmcnt(0)")
        stamp(0)
        e(f"s_memrealtime s[{sST+12}:{sST+13}]")
        e(f"s_mov_b32 s{sST+10}, s100")
        e("s_getreg_b32 s98, hwreg(HW_REG_HW_ID)")
        stamp_store(True)
    lab("Lend")
    e("s_endpgm")

    for tag, buf in STUBS:
        lab(f"Lrare_{tag}")
        e(f"s_call_b64 s[{sRet}:{sRet+1}], Lresc_{buf}")
        e(f"s_branch Lback_{tag}")
    for b in range(2):
        lab(f"Lresc_{b}")
        e("s_nop 15")
        for t in range(TM):
            s, s2 = sreg(b, t), sreg(b ^ 1, t)
            dl, al = vX, (vX + 8 + t if t < 4 else vX + 2)
            e(f"v_max3_f32 v{dl}, v{s}, v{s+1}, v{s+2}")
            e(f"v_max3_f32 v{dl}, v{dl}, v{s+3}, v{s+4}")
            e(f"v_max3_f32 v{dl}, v{dl}, v{s+5}, v{s+6}")
            if RS:
                e(f"v_max_f32 v{dl}, v{dl}, v{s+7}")
                e(f"v_add_f32 v{dl}, s{sThr}, v{dl}")
                e(f"v_max_f32 v{dl}, 0, v{dl}")
            else:
                e(f"v_max3_f32 v{dl}, v{dl}, v{s+7}, 0")
            emit(xlane("v_max_f32", [dl], vX + 1))
            e(f"v_sub_f32 v{al}, 0, v{dl}")
            e(f"v_exp_f32 v{al}, v{al}")
            for i in range(8):
                e(f"v_sub_f32 v{s+i}, v{s+i}, v{dl}")
                e(f"v_sub_f32 v{s2+i}, v{s2+i}, v{dl}")
            for i in range(4):
                e(f"v_sub_f32 v{vNM+4*t+i}, v{vNM+4*t+i}, v{dl}")
            if not RS:
                e(f"v_mul_f32 v{vL+t}, v{vL+t}, v{al}")
            elif t == 4:
                for i in range(4): e(f"v_mul_f32 v{vL4+i}, v{vL4+i}, v{al}")
            else:
                for i in range(4):
                    e(f"v_accvgpr_read_b32 v{vX+1}, a{aL+4*t+i}")
                    e(f"v_mul_f32 v{vX+1}, v{vX+1}, v{al}")
                    e(f"v_accvgpr_write_b32 a{aL+4*t+i}, v{vX+1}")
        emit(SM(TM, b, False).rest())
        if b == 0: e("s_branch LrescO")
    lab("LrescO")
    for t in range(TM):
        for i in range(0, 32, 4):
            al = vX + 8 + t if t < 4 else vX + 2
            for k in range(4): e(f"v_accvgpr_read_b32 v{vX+4+k}, a{aO+32*t+i+k}")
            for k in range(4): e(f"v_mul_f32 v{vX+4+k}, v{vX+4+k}, v{al}")
            for k in range(4): e(f"v_accvgpr_write_b32 a{aO+32*t+i+k}, v{vX+4+k}")
    e("s_nop 1")
    e(f"s_setpc_b64 s[{sRet}:{sRet+1}]")

    e(".p2align 5")
    L.append(".type Ltab,@object")
    lab("Ltab")
    for ent in TAB:
        e(".long " + ", ".join(str(x) for x in ent))
    L.append('.section .rodata,"a"')
    L.append(".p2align 6")
    L.append(f".amdhsa_kernel {NAME}_kernel")
    L.append("  .amdhsa_next_free_vgpr 512")
    L.append("  .amdhsa_next_free_sgpr 102")
    L.append("  .amdhsa_accum_offset 256")
    L.append("  .amdhsa_group_segment_fixed_size 0")
    L.append("  .amdhsa_kernarg_size 56")
    L.append("  .amdhsa_user_sgpr_count 2")
    L.append("  .amdhsa_user_sgpr_kernarg_segment_ptr 1")
    L.append("  .amdhsa_system_sgpr_workgroup_id_x 1")
    L.append(".end_amdhsa_kernel")

gen()
open(sys.argv[1], "w").write("\n".join(L) + "\n")
```

```python
import sys, struct, math, os

NAME = "standalone__varlen_attn_packed__ragged"
CU = [0, 534, 1426, 1714, 2675, 3469, 4036, 4628, 4845]
ROWB = 4096
TILEB = 32 * ROWB
QS = 65536
QW = 20480
OS = QS + 4 * QW
LDSZ = 163840
TM = 5

opts = dict(stamp=0, st="sc0+sc1", ld="", ldq="nt", al=3, e64=0, rs=1, epi=0, late=1, plan="b", rev=0, lc=4, pf=0, lazy=0)
for a in sys.argv[2:]:
    k, v = a.split("=")
    opts[k] = int(v) if v.lstrip("-").isdigit() else v
LD = (" " + opts["ld"].replace("+", " ")) if opts["ld"] else ""
LDQ = (" " + opts["ldq"].replace("+", " ")) if opts.get("ldq", opts["ld"]) and "ldq" in opts else ("" if "ldq" in opts else LD)
ST = (" " + opts["st"].replace("+", " ")) if opts["st"] else ""
DG = str(opts.get("diag", ""))

def f32bits(x):
    return struct.unpack("<I", struct.pack("<f", x))[0]

vQ = 0
vS = 64
vP = 144
vNM = 184
vKa = 204
vVa = 208
vDK = 216
vDV = 218
vQd = 220
vE = 224
vT = 228
vL = 233
vU = 238
vQa = 239
vOw = 240
vOr = 241
vG4 = 242
vU2 = 243
vX = 244
aO = 0
aKf = 160
aVf = 192
aQ = 224
aL = 240
vOne = 228
vL4 = 232
vAc = 236
BIAS = 20.0
RS = opts['rs']

sQ, sK, sV, sOut = 12, 16, 20, 24
sJ = 28
sD0, sD1 = 36, 37
sL, sN, sOff, sWB, sCnt, sLast, sThr, sC, sNeg, sW = 38, 39, 40, 41, 42, 43, 44, 45, 46, 47
sRet, sPC = 48, 52
sTn, sLastn = 50, 51
sRem, sQoffn, sOoff, sBig, sD0n, sNRn, sD1n = 54, 55, 56, 57, 58, 59, 60
sT0 = 61
sOffK = 63
sQW = 3
sFirst = 64
sQc = 8
sM = 68
sST = 76

L = []
def e(s): L.append("    " + s)
def lab(s): L.append(s + ":")
def vr(b, n): return f"v[{b}:{b+n-1}]"
def ar(b, n): return f"a[{b}:{b+n-1}]"
def emit(lines):
    for x in lines:
        if x.endswith(":"): L.append(x)
        else: e(x)
LIGHT = opts["stamp"] == 3
if LIGHT: opts["stamp"] = 0
def pstamp(idx):
    if opts["stamp"] and opts.get("pst"):
        e(f"s_memtime s[{sST+2*idx}:{sST+1+2*idx}]")
        e("s_waitcnt lgkmcnt(0)")
def stamp(idx):
    if opts.get("pst") and 1 <= idx <= 4: return
    if opts["stamp"]:
        e(f"s_memtime s[{sST+2*idx}:{sST+1+2*idx}]")

SEQ = []
for si in range(8):
    ln = CU[si + 1] - CU[si]
    SEQ.append((CU[si], ln, (ln + 63) // 64, (ln + 31) // 32))

PLANS = {
    "b": [[(31, 4)]] * 4 + [[(25, 5)]] * 2 + [[(25, 3), (7, 4)], [(18, 3), (17, 3)], [(18, 3), (17, 3)], [(18, 3), (17, 3)],
          [(19, 4), (9, 3)], [(28, 2), (19, 2)], [(19, 4), (9, 2)]] + [[(28, 4)]] * 3,
    "a": [[(31, 4)]] * 4 + [[(25, 5)]] * 2 + [[(17, 4), (18, 2)], [(19, 5), (7, 2)], [(25, 3), (9, 3)], [(28, 2), (18, 2)],
          [(17, 5), (9, 2)], [(18, 5), (7, 2)]] + [[(28, 4)]] * 3 + [[(19, 5)]],
}

def plan_head():
    n2s = {SEQ[i][3]: i for i in range(8)}
    nxt = {i: 0 for i in range(8)}
    spec = PLANS[opts["plan"]]
    res = [[None] * len(s) for s in spec]
    for want in (2, 3, 4, 5):
        for i, s in enumerate(spec):
            for k, (n, t) in enumerate(s):
                if t == want:
                    si = n2s[n]
                    res[i][k] = (si, nxt[si], t); nxt[si] += 64 * t
    for i in range(8):
        assert nxt[i] == SEQ[i][2] * 64, (i, nxt[i])
    if opts["rev"]:
        res = [list(reversed(r)) for r in res]
    return res

def make_table():
    ph = plan_head()
    tab = []
    for wg in range(256):
        x, j = wg & 7, wg >> 3
        head = 2 * x + (j & 1)
        ent = []
        for (si, q0, t) in ph[j >> 1]:
            st, ln, nb, n = SEQ[si]
            lazy = (opts["lazy"] >> (j >> 1)) & 1
            ent += [st * ROWB + head * 256, ln | (q0 << 12) | (t << 24) | (lazy << 28)]
        ent += [0] * (8 - len(ent))
        tab.append(ent)
    return tab

TAB = make_table()
PH = plan_head()
TS = sorted({t for jl in PH for _, _, t in jl}, reverse=True)
TAILS = {}
for jl in PH:
    for k, (si, q0, t) in enumerate(jl):
        TAILS.setdefault((t, (SEQ[si][3] - 1) % 4), set()).add(1 if k + 1 < len(jl) else 0)
PROD = {t for (t, p), v in TAILS.items() if v - {0}}
NWG = 256

MF = "v_mfma_f32_16x16x32_bf16"
def qreg(t, s):
    return vr(vQ + 16 * t + 4 * s, 4) if t < 4 else ar(aQ + 4 * s, 4)
def sreg(buf, t, a=0): return vS + 40 * buf + 8 * t + 4 * a
def preg(buf, t): return vP + 20 * buf + 4 * t

def qk1(buf, t, a, s, cinit, kf=None):
    d = sreg(buf, t, a)
    kf = aKf if kf is None else kf
    return f"{MF} {vr(d,4)}, {ar(kf+4*(a*4+s),4)}, {qreg(t,s)}, {vr(cinit if s == 0 else d,4)}"

def qk_mfmas(T, buf):
    return [qk1(buf, t, a, s, vNM + 4 * t) for a in range(2) for s in range(4) for t in range(T)]

ZERO = [False]
def pv1(buf, t, dt, vf):
    o = aO + 32 * t + 4 * dt
    return f"{MF} {ar(o,4)}, {ar(vf+4*dt,4)}, {vr(preg(buf,t),4)}, {'0' if ZERO[0] else ar(o,4)}"

def rs1(buf, t):
    l = ar(aL + 4 * t, 4) if t < 4 else vr(vL4, 4)
    return f"{MF} {l}, {vr(vOne,4)}, {vr(preg(buf,t),4)}, {'0' if ZERO[0] else l}"

def pv_mfmas(T, buf, vf=aVf):
    return [pv1(buf, t, dt, vf) for dt in range(8) for t in range(T)] + ([rs1(buf, t) for t in range(T)] if RS else [])

def zero_mfmas(T):
    return [f"v_mfma_f32_32x32x16_bf16 {ar(aO+16*i,16)}, {vr(vP+28,4)}, {vr(vP+28,4)}, 0" for i in range(2 * T)]

def k_reads(slot, kf=None):
    kf = aKf if kf is None else kf
    return [f"ds_read_b128 {ar(kf+4*(a*4+s),4)}, v{vKa+s} offset:{slot*16384+a*8192}" for a in range(2) for s in range(4)]

def v_reads(slot, vf=aVf):
    return [f"ds_read_b64_tr_b16 {ar(vf+4*dt+2*a,2)}, v{vVa+dt} offset:{slot*16384+a*8192}" for dt in range(8) for a in range(2)]

def m0set(off):
    return f"s_add_u32 m0, s{sWB}, {off}" if off else f"s_mov_b32 m0, s{sWB}"
def ldv(j, so):
    return f"buffer_load_dwordx4 v{vDV+j}, s[{sV}:{sV+3}], s{so} offen" + (f" offset:{j*1024}" if j else "") + f"{LD} lds"
def ldk(j, so):
    return f"buffer_load_dwordx4 v{vDK+j}, s[{sK}:{sK+3}], s{so} offen offset:{2048+j*1024}{LD} lds"

def dma(slot):
    return [m0set(slot * 16384),
            f"s_add_u32 s{sOff}, s{sOff}, {TILEB}",
            f"s_add_u32 s{sOffK}, s{sOffK}, {TILEB}",
            ldv(0, sOff), ldv(1, sOff), ldk(0, sOffK), ldk(1, sOffK)]

CHK = f"v_cmp_ne_u32 vcc, 0, v{vX}" if RS else f"v_cmp_lt_f32 vcc, s{sThr}, v{vX}"
ERING = [vE, vE + 2, vX + 4, vX + 6]
def softmax_ops(T, buf, full=True, R=4, t0=0):
    exps, sims = [], []
    done_after = []
    n = 4 * T
    for k in range(n):
        t, kk = divmod(k, 4)
        t += t0
        a = ERING[k % R]; b = a + 1
        need = done_after[k - R] if k >= R else 0
        exps += [(f"v_exp_f32 v{a}, v{sreg(buf,t)+2*kk}", need), (f"v_exp_f32 v{b}, v{sreg(buf,t)+2*kk+1}", need)]
        p = preg(buf, t) + kk
        u = vU if k & 1 else vU2
        ne = 2 * k + 2
        if RS:
            sims.append((f"v_cvt_pk_bf16_f32 v{p}, v{a}, v{b}", ne))
            done_after.append(len(sims))
            if full and (k & 1):
                sims.append((f"v_or_b32 v{vAc}, v{p-1}, v{p}" if k == 1 else f"v_or3_b32 v{vAc}, v{vAc}, v{p-1}, v{p}", ne))
        elif kk == 0:
            if full: sims.append((f"v_add_f32 v{vL+t}, v{vL+t}, v{vT+t}", 0))
            sims += [(f"v_cvt_pk_bf16_f32 v{p}, v{a}, v{b}", ne), (f"v_add_f32 v{vT+t}, v{a}, v{b}", ne)]
            done_after.append(len(sims))
        else:
            sims += [(f"v_add_f32 v{u}, v{a}, v{b}", ne), (f"v_cvt_pk_bf16_f32 v{p}, v{a}, v{b}", ne)]
            done_after.append(len(sims))
            sims.append((f"v_add_f32 v{vT+t}, v{vT+t}, v{u}", ne))
    if full and RS:
        sims += [(f"v_and_b32 v{vX}, 0x40004000, v{vAc}", 2 * n), (CHK, 2 * n)]
    elif full:
        m = [vT + t for t in range(T)]
        cur = m.pop(0)
        while m:
            if len(m) >= 2:
                sims.append((f"v_max3_f32 v{vX}, v{cur}, v{m[0]}, v{m[1]}", 2 * n)); m = m[2:]
            else:
                sims.append((f"v_max_f32 v{vX}, v{cur}, v{m[0]}", 2 * n)); m = []
            cur = vX
        sims.append((f"v_cmp_lt_f32 vcc, s{sThr}, v{cur}", 2 * n))
    return exps, sims

class SM:
    def __init__(s, T, buf, full=True, t0=0, R=4):
        s.ex, s.si = softmax_ops(T, buf, full, R, t0)
        s.i = s.j = 0
        s.last_exp = False
    def left(s): return 8 * (len(s.ex) - s.i) + 4 * (len(s.si) - s.j)
    def can_exp(s): return s.i < len(s.ex) and s.ex[s.i][1] <= s.j
    def can_sim(s):
        if s.j >= len(s.si): return False
        need = s.si[s.j][1]
        return need < s.i or (need == s.i and not s.last_exp)
    def exp(s): s.i += 1; s.last_exp = True; return s.ex[s.i - 1][0]
    def sim(s): s.j += 1; s.last_exp = False; return s.si[s.j - 1][0]
    def other(s): s.last_exp = False
    def any(s):
        if s.can_sim() and (s.si[s.j][1] <= s.i - 2 or not s.can_exp()): return s.sim()
        if s.can_exp(): return s.exp()
        if s.can_sim(): return s.sim()
        s.last_exp = False
        return "s_nop 0"
    def take(s, n): return [s.any() for _ in range(n) if s.left()]
    def rest(s):
        r = []
        while s.left(): r.append(s.any())
        return r

def is_mem(x): return x.startswith("ds_") or x.startswith("buffer_")

def pack(mf, fixed, sm=None, novalu=(), keep=0, cap=8):
    n = len(mf)
    def fcost(l):
        c = 0; ns = 0; nm = 0
        for x in l:
            if is_mem(x): c += 8 if nm else 4; nm += 1
            elif x.startswith("s_"): c += 4 if (ns or nm) else 0; ns += 1
            else: c += 4
        return c
    fc = [fcost(fixed.get(g, [])) for g in range(n)]
    out = []
    for g in range(n):
        out.append(mf[g])
        out += fixed.get(g, [])
        if sm is None: continue
        sm.other()
        if g in novalu: continue
        rem = [k for k in range(g, n) if k not in novalu]
        last = g == rem[-1]
        used = fc[g]
        while sm.left() > keep:
            later = sum(max(0, cap - fc[k]) for k in rem[1:])
            over = sm.left() - keep - later
            room = cap - used
            if room <= 0:
                if not last and over * 1.0 < 4 * 1.0 + 0 : break
                if not last and (used - cap + 4) * len(rem) > over + (used - cap) + 2 * len(rem): break
            nexp = len(sm.ex) - sm.i
            full_later = sum(1 for k in rem[1:] if cap - fc[k] >= 8)
            if room >= 8 and sm.can_exp() and (not sm.can_sim() or nexp > full_later * opts.get("eb", 70) // 100 or sm.si[sm.j][1] > sm.i - 4):
                out.append(sm.exp()); used += 8
            elif sm.can_sim():
                out.append(sm.sim()); used += 4
            elif sm.can_exp() and (room >= 8 or last or nexp + opts.get("slk", 2) > full_later or over > 0):
                out.append(sm.exp()); used += 8
            else:
                if last: out.append(sm.any()); used += 4
                else: break
    return out

STUBS = []
def check_rare(buf, tag):
    e(f"s_cbranch_vccnz Lrare_{tag}")
    lab(f"Lback_{tag}")
    STUBS.append((tag, buf))

def spread(items, gaps):
    d = {}
    gaps = list(gaps)
    for i, x in enumerate(items):
        d.setdefault(gaps[i * len(gaps) // len(items)], []).append(x)
    return d

def merge(*ds):
    r = {}
    for d in ds:
        for k, v in d.items():
            r.setdefault(k, []).extend(v)
    return r

def interleave(a, b):
    out = []
    if not a: return list(b)
    j = 0
    for i, x in enumerate(a):
        out.append(x)
        nj = (i + 1) * len(b) // len(a)
        out += b[j:nj]; j = nj
    return out

CNT = f"s_sub_u32 s{sCnt}, s{sCnt}, 1"

def place(items, gaps):
    groups = []
    cur = []
    for x in items:
        cur.append(x)
        if is_mem(x): groups.append(cur); cur = []
    if cur: groups.append(cur)
    gaps = list(gaps)
    d = {}
    for i, gr in enumerate(groups):
        d.setdefault(gaps[i * len(gaps) // len(groups)], []).extend(gr)
    return d

def qgroup(g, dyn=True):
    r = [f"s_add_u32 m0, s{sQW}, {g*4096}" if g else f"s_mov_b32 m0, s{sQW}",
         f"s_add_u32 s{sT0}, s{sQoffn}, {g*16*ROWB}"]
    if g >= 2 and dyn:
        r += [f"s_cmp_gt_u32 s{sTn}, {g}", f"s_cselect_b32 s{sT0}, s{sT0}, s{sBig}"]
    r += [f"buffer_load_dwordx4 v{vQd+i}, s[{sQ}:{sQ+3}], s{sT0} offen offset:{i*1024}{LDQ} lds" for i in range(4)]
    return r

def step(T, t, prod=False):
    p = t % 4
    b = t % 2
    h = 8 * T
    ZERO[0] = prod
    mf = qk_mfmas(T, b ^ 1) + pv_mfmas(T, b ^ 1)
    ZERO[0] = False
    kr = k_reads((t + 2) % 4)
    d = dma((t + 1) % 4)
    sm = SM(T, b)
    n = len(mf)
    vrd = v_reads((t + 1) % 4)
    vm = 8
    end = [CNT] if prod else [CNT, "s_cselect_b64 vcc, -1, vcc"]
    if T >= 3:
        kd = [kr[0], kr[1], d[3], kr[2], kr[3], d[4], kr[4], kr[5], d[5], kr[6], kr[7], d[6]]
        fixed = merge(place(vrd, range(0, h - 5)),
                      {h - 1: [f"s_waitcnt vmcnt({vm}) lgkmcnt(0)", "s_barrier"]},
                      {h - 4: [d[0]], h - 3: [d[1]], h - 2: [d[2]]},
                      place(kd, range(h, n - 3)),
                      {n - 2: [end[0]], n - 1: end[1:]})
    else:
        kd = [kr[0], kr[1], d[3], kr[2], kr[3], kr[4], d[4], kr[5], kr[6], kr[7], d[5]]
        fixed = merge(place(vrd, range(0, 12)),
                      {h - 1: [f"s_waitcnt vmcnt({vm}) lgkmcnt(0)", "s_barrier"]},
                      {h - 4: [d[0]], h - 3: [d[1]], h - 2: [d[2]]},
                      place(kd, range(h, n - 5)),
                      {n - 2: [end[0], d[6]], n - 1: end[1:]})
    e("s_waitcnt lgkmcnt(0)")
    body = pack(mf, fixed, sm, (h - 1, n - 1))
    if opts["e64"]:
        body = [x.replace("v_exp_f32 ", "v_exp_f32_e64 ").replace("v_add_f32 ", "v_add_f32_e64 ").replace("v_max_f32 ", "v_max_f32_e64 ") for x in body]
    emit(body)
    assert sm.left() == 0
    if prod:
        check_rare(b, f"t{T}p{p}")
    else:
        e(f"s_cbranch_vccnz Lx{T}_{p}")
        lab(f"Lxb{T}_{p}")

def exit_stub(T, p):
    lab(f"Lx{T}_{p}")
    e(CHK)
    check_rare(p % 2, f"x{T}_{p}")
    np_ = (p + 1) % 4
    nx = sorted(TAILS.get((T, np_), ()))
    if not nx:
        e(f"s_branch Lxb{T}_{p}")
        return
    e(f"s_cbranch_scc0 Lxb{T}_{p}")
    for tn in nx[1:]:
        e(f"s_cmp_lg_u32 s{sD1n}, 0")
        e(f"s_cbranch_scc1 Ltail{T}_{np_}_{tn}")
    for tn in nx:
        tail(T, np_, tn)

def ktile(u):
    return [m0set(u * 16384), f"s_add_u32 s{sT0}, s{sD0}, {(u-1)*TILEB}", ldk(0, sT0), ldk(1, sT0)]
def vtile(u):
    so = sLast if u == 0 else sD0
    return [m0set(((u + 2) % 4) * 16384), "s_nop 0", ldv(0, so), ldv(1, so)]
def next_k0():
    return [m0set(0), f"s_add_u32 s{sK+2}, s{sNRn}, 4096", ldk(0, sLastn), ldk(1, sLastn)]
def next_k1():
    return [m0set(16384), "s_nop 0", ldk(0, sD0n), ldk(1, sD0n)]

def tail(T, p, tn):
    b = p % 2
    lab(f"Ltail{T}_{p}_{tn}")
    stamp(3)
    if opts["stamp"]: e("s_waitcnt lgkmcnt(0)")
    vrd = v_reads((p + 1) % 4)
    vrd2 = v_reads((p + 2) % 4, aKf)
    sm = SM(T, b)
    mf = pv_mfmas(T, b ^ 1)
    if RS: mf = mf[-T:] + mf[:-T]
    o = T if RS else 0
    if opts.get("tl", 0):
        pre = 6
        emit(vrd[:pre])
        emit(sm.take(6))
        g1 = o + 3 * T
        fixed = place(vrd[pre:], range(0, g1))
        issued = {g: pre + sum(len(fixed.get(k, [])) for k in range(g + 1)) for g in range(-1, len(mf))}
        for dt in range(0, 4):
            g = o + dt * T - 1
            w = f"s_waitcnt lgkmcnt({max(0, issued[g] - 2 * dt - 2)})"
            if g < 0: e(w)
            else: fixed.setdefault(g, []).append(w)
        gb = o + 4 * T - 1
        fixed.setdefault(gb, []).extend(["s_waitcnt vmcnt(8) lgkmcnt(0)", "s_barrier"])
        rest = range(gb + 1, len(mf))
        fixed = merge(fixed, place(vrd2, rest))
        if tn: fixed = merge(fixed, place(next_loads(tn)[0], rest))
    else:
        emit(vrd)
        emit(sm.take(12))
        e("s_waitcnt vmcnt(8) lgkmcnt(0)")
        e("s_barrier")
        fixed = place(vrd2, range(len(mf) - 2))
        if tn:
            fixed = merge(fixed, place(next_loads(tn)[0], range(len(mf))))
    emit(pack(mf, fixed, sm))
    assert sm.left() == 0
    check_rare(b, f"t{T}t{p}_{tn}")
    fin(T, b, tn)

def next_loads(tn):
    return next_k0() + qgroup(0, False), qgroup(1, False) + next_k1()

def xlane(op, regs, tmp):
    r = []
    for sw in ("v_permlane32_swap_b32", "v_permlane16_swap_b32"):
        r += [f"v_mov_b32 v{tmp+i}, v{x}" for i, x in enumerate(regs)]
        r += ["s_nop 1"]
        r += [f"{sw} v{x}, v{tmp+i}" for i, x in enumerate(regs)]
        r += ["s_nop 1"]
        r += [f"{op} v{x}, v{x}, v{tmp+i}" for i, x in enumerate(regs)]
    return r

vOA = vNM
vLI = vNM + 8
def epi_acc(t):
    return [f"v_accvgpr_read_b32 v{vQ+i}, a{aO+32*t+i}" for i in range(32)]
def epi_cvt(t):
    r = [f"v_pk_mul_f32 {vr(vQ+2*i,2)}, {vr(vQ+2*i,2)}, {vr(vLI+2*(t//2),2)} " +
         ("op_sel:[0,1] op_sel_hi:[1,1]" if t & 1 else "op_sel_hi:[1,0]") for i in range(16)]
    r += [f"v_cvt_pk_bf16_f32 v{vQ+32+16*(t&1)+i}, v{vQ+2*i}, v{vQ+2*i+1}" for i in range(16)]
    return r
def epi_writes(t):
    return [f"ds_write_b64 v{vOA+dt}, {vr(vQ+32+16*(t&1)+2*dt,2)}" for dt in range(8)]
def epi_reads(t):
    return [f"ds_read_b128 {vr(vS+16*t+4*i,4)}, v{vOr} offset:{i*1024}" for i in range(4)]
def epi_stores(t):
    return [f"s_add_u32 s{sT0}, s{sOoff}, {t*16*ROWB}"] + \
           [f"buffer_store_dwordx4 {vr(vS+16*t+4*i,4)}, v{vQd+i}, s[{sOut}:{sOut+3}], s{sT0} offen offset:{i*1024}{ST}" for i in range(4)]

def fin(T, b, tn):
    if not RS: e("s_waitcnt lgkmcnt(0)")
    mf = [pv1(b, t, dt, aKf) for t in range(T) for dt in range(8)]
    regs = [vL + t for t in range(T)]
    xo = [f"v_xor_b32 v{vOA+dt}, {dt*32}, v{vOw}" for dt in range(8)] if not opts["epi"] else ["s_nop 0"]
    if RS:
        mf = [rs1(b, t) for t in range(T)] + mf
        ls = [f"v_accvgpr_read_b32 v{vX+t}, a{aL+4*t}" if t < 4 else f"v_mov_b32 v{vX+t}, v{vL4}" for t in range(T)] + \
             [f"v_rcp_f32 v{vLI+t}, v{vX+t}" for t in range(T)] + epi_acc(0)
        fixed = merge({T - 1: ["s_waitcnt lgkmcnt(6)"], T + 4: ["s_waitcnt lgkmcnt(0)"]},
                      spread(xo, range(T + 8)), spread(ls, range(T + 8, len(mf))))
    else:
        ls = [f"v_add_f32 v{vL+t}, v{vL+t}, v{vT+t}" for t in range(T)] + xlane("v_add_f32", regs, vX) + \
             [f"v_rcp_f32 v{vLI+t}, v{vL+t}" for t in range(T)] + xo + epi_acc(0)
        fixed = spread(ls, range(len(mf)))
    if tn: fixed = merge(place(next_loads(tn)[1], range(len(mf))), fixed)
    emit(pack(mf, fixed))
    e(f"s_branch Lepi{T}")

def first_max(t):
    s0 = sreg(0, t)
    m = vX + 2
    r = [f"v_max3_f32 v{m}, v{s0}, v{s0+1}, v{s0+2}", f"v_max3_f32 v{m}, v{m}, v{s0+3}, v{s0+4}",
         f"v_max3_f32 v{m}, v{m}, v{s0+5}, v{s0+6}", f"v_max_f32 v{m}, v{m}, v{s0+7}"]
    r += xlane("v_max_f32", [m], vX + 3)
    if RS: r += [f"v_add_f32 v{m}, s{sThr}, v{m}"]
    r += [f"v_sub_f32 v{vNM+4*t+i}, 0, v{m}" for i in range(4)]
    r += [f"v_sub_f32 v{s0+i}, v{s0+i}, v{m}" for i in range(8)]
    return r

def qraw(t, k=0):
    return vQ + 16 * t + k if t < 4 else sreg(k // 8, 4) + k % 8
def prescale(t):
    r = []
    for k in range(0, 16, 2):
        q = qraw(t, k)
        for i in range(2):
            r += [f"v_lshlrev_b32 v{vX+2*i}, 16, v{q+i}", f"v_and_b32 v{vX+2*i+1}, 0xffff0000, v{q+i}"]
        for i in range(2):
            r += [f"v_pk_mul_f32 {vr(vX+2*i,2)}, {vr(vX+2*i,2)}, s[{sThr}:{sC}] op_sel:[0,1] op_sel_hi:[1,1]"]
        for i in range(2):
            r += [f"v_cvt_pk_bf16_f32 v{q+i}, v{vX+2*i}, v{vX+2*i+1}"]
        if t == 4: r += [f"v_accvgpr_write_b32 a{aQ+k+i}, v{q+i}" for i in range(2)]
    return r

def first_only(lines):
    i = len(L)
    e(f"s_cmp_eq_u32 s{sFirst}, 0")
    e(f"s_cbranch_scc1 Lw{i}")
    emit(lines)
    lab(f"Lw{i}")

def nvm(l): return sum(x.startswith("buffer") for x in l)

vMK = vP + 20
def weave(mfs, valu, mem):
    d = place(mem, range(len(mfs))) if mem else {}
    out = []
    j = 0
    nops = [i for i, x in enumerate(valu) if x == "s_nop 1"]
    if nops and len(mfs) > len(nops):
        extra = len(mfs) - len(nops)
        free = [i for i in range(len(valu)) if i not in nops and i - 1 not in nops]
        head = [0, 2][:min(2, extra)]
        tailp = [i for i in free if i > nops[-1] + 1]
        more = [tailp[k * len(tailp) // (extra - len(head))] for k in range(extra - len(head))]
        cuts = sorted(set(nops + head + more))
        assert len(cuts) == len(mfs)
        k = 0
        for i, x in enumerate(valu):
            if i in cuts:
                out.append(mfs[k])
                m = d.get(k, []); k += 1
                if x == "s_nop 1":
                    out += m if m else ["s_nop 0"]
                    continue
                out += m
            out.append(x)
        return out
    for i, x in enumerate(mfs):
        out.append(x)
        out += d.get(i, [])
        nj = (i + 1) * len(valu) // len(mfs)
        out += valu[j:nj]; j = nj
    return out

def prologue(T):
    lab(f"Lpro{T}")
    def qcur(g):
        return [x.replace(f"s{sQoffn}", f"s{sOoff}").replace(f"s[{sQ}:{sQ+3}]", f"s[{sQc}:{sQc+3}]") for x in qgroup(g, False)]
    q = ["K0"] * 2 + ["Q0"] * 4 + ["Q1"] * 4 + ["K1"] * 2
    def younger(tag): return len(q) - 1 - max(i for i, x in enumerate(q) if x == tag)
    for s in range(4):
        e(f"v_xor_b32 v{vX+8+s}, {s*64}, v{vQa}")
    pre = [f"v_sub_u32 v{vX}, s{sRem}, v{vG4}", f"v_mov_b32 v{vX+1}, s{sNeg}"]
    for a in range(2):
        pre += [f"v_cmp_lt_i32 s[{sM+2*i}:{sM+2*i+1}], {16*a+i}, v{vX}" for i in range(4)] + ["s_nop 0"]
        pre += [f"v_cndmask_b32 v{vMK+4*a+i}, v{vX+1}, 0, s[{sM+2*i}:{sM+2*i+1}]" for i in range(4)]
    if not RS: pre += [f"v_mov_b32 v{vL+t}, 0" for t in range(T)]
    def qreads(t):
        return [f"ds_read_b128 {vr(qraw(t,4*s),4)}, v{vX+8+s} offset:{t*4096}" for s in range(4)]
    A = lambda t: [qk1(0, t, a, s, vMK + 4 * a) for a in range(2) for s in range(4)]
    C = lambda t: [qk1(1, t, a, s, vNM + 4 * t, aVf) for a in range(2) for s in range(4)]
    def sparse(mem, valu):
        d = place(mem, range(max(1, nvm(mem))))
        out = []; j = 0
        for i in range(len(d)):
            out += d[i]
            nj = (i + 1) * len(valu) // len(d)
            out += valu[j:nj]; j = nj
        return out
    if T > 2:
        emit(sparse(qcur(2), pre)); q += ["Q2"] * 4
        pre = []
    first_only([f"s_waitcnt vmcnt({younger('Q0')})"])
    pstamp(1)
    emit(qreads(0))
    emit(pre)
    e("s_waitcnt lgkmcnt(0)")
    if T > 3:
        emit(sparse(qcur(3), prescale(0))); q += ["Q3"] * 4
    else:
        emit(prescale(0))
    first_only([f"s_waitcnt vmcnt({younger('K1')})"])
    pstamp(2)
    emit(qreads(1))
    e("s_barrier")
    emit(k_reads(0))
    e("s_waitcnt lgkmcnt(8)")
    ps = prescale(1)
    if T > 4:
        emit(sparse(qcur(4), ps[:32])); q += ["Q4"] * 4
    else:
        emit(ps[:32])
    emit(k_reads(1, aVf))
    e("s_waitcnt lgkmcnt(8)")
    bulk = [("K2", ktile(2)), ("V0", vtile(0)), ("K3", ktile(3)), ("V1", vtile(1)), ("G", dma(0)[:5]), ("G", dma(0)[5:]),
            ("H", dma(1)[:5]), ("H", dma(1)[5:])]
    def takeb(n):
        nonlocal bulk
        r = []
        for tag, l in bulk[:n]:
            r += l; q.extend([tag] * nvm(l))
        bulk = bulk[n:]
        return r
    emit(weave(A(0), [], takeb(1) if T == 2 else []))
    emit(sparse(takeb(1), ps[32:]) if T <= 3 else ps[32:])
    D = lambda t: SM(1, 0, False, t, 2).rest()
    def getq(k):
        e(f"s_waitcnt vmcnt({younger(f'Q{k}')})")
        if k <= 3: pstamp(k + 1)
        emit(qreads(k))
    def bar2():
        e("s_waitcnt lgkmcnt(0)")
        e("s_barrier")
    per = {2: [2, 2, 2], 3: [1, 1, 1, 2, 2], 4: [1, 1, 1, 1, 1, 1, 2], 5: [0, 1, 1, 1, 1, 1, 1, 1, 1]}[T]
    tk = lambda: takeb(per.pop(0))
    for k in range(2, T):
        emit(weave(A(k - 1), first_max(k - 2), tk()))
        if k == 2: bar2()
        if k < T - 1:
            getq(k)
            emit(weave(C(k - 2), D(k - 2), tk()))
        else:
            emit(weave(C(k - 2), first_max(k - 1), tk()))
            emit(D(k - 2))
            getq(k)
            emit(weave(C(k - 1), D(k - 1)[:8], tk()))
        e("s_waitcnt lgkmcnt(0)")
        emit(prescale(k))
    stamp(1)
    if opts["stamp"]: e("s_waitcnt lgkmcnt(0)")
    if T == 2:
        emit(weave(A(1), first_max(0), tk()))
        bar2()
        emit(weave(C(0), D(0), tk()))
    else:
        emit(weave(A(T - 1), D(T - 2)[8:], tk()))
    e(f"s_waitcnt vmcnt({younger('V0')})")
    e("s_barrier")
    emit(k_reads(2))
    emit(first_max(T - 1))
    emit(weave(C(T - 1), D(T - 1), tk()))
    assert not bulk and not per
    e(CNT)
    step(T, 1, True)
    stamp(2)
    e(f".p2align {opts['al']}")
    for _ in range(opts.get("pad", 0)): e("s_nop 0")
    lab(f"Lloop{T}")
    for t in (2, 3, 4, 5):
        step(T, t)
    e(f"s_branch Lloop{T}")
    for p in range(4):
        exit_stub(T, p)

def stamp_store(final=False):
    if not opts["stamp"]: return
    B = vP + 20
    if opts["stamp"] == 2:
        if not final: return
        e("s_waitcnt lgkmcnt(0)")
        e("s_mov_b32 s92, s90"); e("s_mov_b32 s93, s91"); e("s_mov_b32 s94, 256"); e("s_mov_b32 s95, 0x20000")
        e("s_mov_b64 exec, 1")
        e(f"v_mov_b32 v{B+8}, 0")
        e("s_not_b32 s96, s100"); e(f"v_mov_b32 v{B}, s96")
        e(f"buffer_atomic_umax v{B}, v{B+8}, s[92:95], 0 offen offset:32")
        e(f"v_mov_b32 v{B+1}, s{sST+12}")
        e(f"buffer_atomic_umax v{B+1}, v{B+8}, s[92:95], 0 offen offset:36")
        e(f"v_mov_b32 v{B+2}, s100")
        e(f"buffer_atomic_umax v{B+2}, v{B+8}, s[92:95], 0 offen offset:40")
        e(f"s_lshl_b32 s96, s2, 2"); e(f"s_add_u32 s96, s96, s{sW}")
        e("s_cmp_lg_u32 s96, 32"); e("s_cbranch_scc1 Lnodbg")
        e(f"s_sub_u32 s96, s99, s100"); e(f"v_mov_b32 v{B}, s96")
        e(f"s_sub_u32 s96, s{sST+2}, s97"); e(f"v_mov_b32 v{B+1}, s96")
        for i in range(1, 4):
            e(f"s_sub_u32 s96, s{sST+2*i+2}, s{sST+2*i}"); e(f"v_mov_b32 v{B+1+i}, s96")
        e(f"s_sub_u32 s96, s{sST}, s{sST+8}"); e(f"v_mov_b32 v{B+5}, s96")
        e(f"s_sub_u32 s96, s{sST+12}, s100"); e(f"v_mov_b32 v{B+6}, s96")
        e(f"v_mov_b32 v{B+7}, s100")
        e(f"buffer_store_dwordx4 {vr(B,4)}, v{B+8}, s[92:95], 0 offen")
        e(f"buffer_store_dwordx4 {vr(B+4,4)}, v{B+8}, s[92:95], 0 offen offset:16")
        lab("Lnodbg")
        return
    e("s_waitcnt lgkmcnt(0)")
    e("s_mov_b32 s92, s90"); e("s_mov_b32 s93, s91"); e("s_mov_b32 s94, 0x100000"); e("s_mov_b32 s95, 0x20000")
    e(f"s_lshl_b32 s96, s2, 2"); e(f"s_add_u32 s96, s96, s{sW}"); e("s_lshl_b32 s96, s96, 2")
    if final: e("s_add_u32 s96, s96, 3")
    else: e("s_add_u32 s96, s96, s97"); e("s_add_u32 s97, s97, 1")
    e("s_lshl_b32 s96, s96, 5")
    for i in range(5): e(f"v_mov_b32 v{B+i}, s{sST+2*i}")
    e(f"v_mov_b32 v{B+5}, s{sST+10}"); e(f"v_mov_b32 v{B+6}, s{sST+12}"); e(f"v_mov_b32 v{B+7}, s98")
    e(f"v_mov_b32 v{B+8}, 0")
    e("s_mov_b64 exec, 1")
    e(f"buffer_store_dwordx4 {vr(B,4)}, v{B+8}, s[92:95], s96 offen")
    e(f"buffer_store_dwordx4 {vr(B+4,4)}, v{B+8}, s[92:95], s96 offen offset:16")
    e("s_mov_b64 exec, -1")
    e("s_nop 2")

def epilogue(T):
    lab(f"Lepi{T}")
    stamp(4)
    if opts["stamp"]: e(f"s_memrealtime s[{sST+12}:{sST+13}]")
    stamp_store()
    if opts["epi"]:
        def swaps(t):
            pk = vQ + 32 + 16 * (t & 1)
            return [f"v_permlane16_swap_b32 v{pk+4*j+i}, v{pk+4*j+2+i}" for j in range(4) for i in range(2)]
        def dstores(t):
            pk = vQ + 32 + 16 * (t & 1)
            return [f"buffer_store_dwordx4 {vr(pk+4*j,4)}, v{vOw}, s[{sOut}:{sOut+3}], s{sT0} offen offset:{j*64}{ST}" for j in range(4)]
        emit(epi_cvt(0) + swaps(0))
        for t in range(1, T + 1):
            va = epi_acc(t) + epi_cvt(t) + swaps(t) if t < T else []
            st = dstores(t - 1)
            e(f"s_add_u32 s{sT0}, s{sOoff}, {(t-1)*16*ROWB}")
            if opts["epi"] == 2:
                emit(st[:2] + va[:24] + st[2:] + va[24:])
            else:
                for j in range(4):
                    e(st[j]); emit(va[14 * j:14 * (j + 1)])
                emit(va[56:])
    else:
        epilogue_lds(T)
    epilogue_end(T)

def epilogue_lds(T):
    emit(epi_cvt(0))
    for t in range(1, T + 1):
        va = epi_acc(t) + epi_cvt(t) if t < T else []
        w, r, st = epi_writes(t - 1), epi_reads(t - 1), epi_stores(t - 1)
        if t < T:
            g = [w[0:3], w[3:6], w[6:8] + r[0:2], r[2:4], [], [st[0], "s_waitcnt lgkmcnt(0)", st[1]], [st[2]], [st[3]], [st[4]]]
            cut = [0, 5, 10, 15, 20, 28, 38, 48, 58, 64]
            for i in range(9):
                emit(g[i]); emit(va[cut[i]:cut[i + 1]])
        else:
            emit(w + r)
            n = 4
            for x in st:
                if x.startswith("buffer"):
                    n -= 1
                    e(f"s_waitcnt lgkmcnt({n})")
                e(x)

def epilogue_end(T):
    if T in PROD:
        e(f"s_cmp_eq_u32 s{sD1n}, 0")
        e("s_cbranch_scc1 Ldone")
        e(f"s_mov_b32 s{sFirst}, 0")
        e(f"s_waitcnt vmcnt({4*T})")
        e("s_branch Lstart")
    else:
        e("s_branch Ldone")

def gen():
    L.append(open(os.path.join(os.path.dirname(os.path.abspath(__file__)), "header.txt")).read().rstrip())
    L.append(f"; @launch grid=({NWG},1,1) block=(256,1,1) lds={LDSZ}")
    L.append('.amdgcn_target "amdgcn-amd-amdhsa--gfx950"')
    L.append(".text")
    L.append(f".globl {NAME}_kernel")
    L.append(".p2align 8")
    L.append(f".type {NAME}_kernel,@function")
    lab(f"{NAME}_kernel")
    e(f"s_cmp_ge_u32 s2, {NWG}")
    e("s_cbranch_scc1 Lend")
    e(f"s_getpc_b64 s[{sPC}:{sPC+1}]")
    lab("Lpc")
    e("s_load_dwordx4 s[4:7], s[0:1], 0")
    e("s_load_dwordx2 s[8:9], s[0:1], 16")
    e("s_load_dwordx2 s[10:11], s[0:1], 32")
    if opts["pf"]:
        e(f"v_lshlrev_b32 v1, 7, v0")
        for i in range(opts["pf"] * 2):
            e(f"global_load_dword v{2+i}, v1, s[{sPC}:{sPC+1}]")
            e(f"v_add_u32 v1, 32768, v1")
    e(f"s_add_u32 s{sPC}, s{sPC}, Ltab-Lpc")
    e(f"s_addc_u32 s{sPC+1}, s{sPC+1}, 0")
    e("s_lshl_b32 s3, s2, 5")
    e(f"s_load_dwordx8 s[{sJ}:{sJ+7}], s[{sPC}:{sPC+1}], s3")
    if opts["stamp"]:
        e(f"s_load_dwordx2 s[90:91], s[0:1], {40 if opts['stamp'] == 2 else 48}")
        e("s_memrealtime s[100:101]")
        e("s_mov_b32 s97, 0")
    if opts.get("spin"):
        e("s_memrealtime s[100:101]")
        e("s_load_dwordx2 s[90:91], s[0:1], 40")
    if LIGHT:
        e("s_load_dwordx2 s[90:91], s[0:1], 48")
        e("s_memrealtime s[100:101]")
    w, ln, i16, g, x4, x5, x6 = range(vX, vX + 7)
    e(f"v_lshrrev_b32 v{w}, 6, v0")
    e(f"v_and_b32 v{ln}, 63, v0")
    e(f"v_readfirstlane_b32 s{sW}, v{w}")
    e(f"v_and_b32 v{i16}, 15, v{ln}")
    e(f"v_lshrrev_b32 v{g}, 4, v{ln}")
    e(f"v_xor_b32 v{x6}, v{i16}, v{g}")
    e(f"v_lshlrev_b32 v{x6}, 4, v{x6}")
    e(f"v_bfe_u32 v{x4}, v{ln}, 3, 1")
    e(f"v_lshlrev_b32 v{x4}, 12, v{x4}")
    e(f"v_and_b32 v{x5}, 7, v{ln}")
    e(f"v_lshl_add_u32 v{x4}, v{x5}, 8, v{x4}")
    e(f"v_add3_u32 v{vKa}, v{x4}, v{x6}, 0")
    e(f"v_add_u32 v{vKa}, 2048, v{vKa}")
    for s in range(1, 4):
        e(f"v_xor_b32 v{vKa+s}, {s*64}, v{vKa}")
    e(f"v_mul_u32_u24 v{x4}, {QW}, v{w}")
    e(f"v_lshl_add_u32 v{x4}, v{i16}, 8, v{x4}")
    e(f"v_add3_u32 v{x4}, v{x4}, v{x6}, 0")
    e(f"v_add_u32 v{vQa}, {QS}, v{x4}")
    e(f"v_lshlrev_b32 v{x4}, 12, v{w}")
    e(f"v_add_u32 v{x4}, {OS}, v{x4}")
    e(f"v_lshl_add_u32 v{vOr}, v{ln}, 4, v{x4}")
    e(f"v_lshl_add_u32 v{x4}, v{i16}, 8, v{x4}")
    e(f"v_lshrrev_b32 v{x5}, 1, v{g}")
    e(f"v_xor_b32 v{x5}, v{x5}, v{i16}")
    e(f"v_lshl_add_u32 v{x4}, v{x5}, 4, v{x4}")
    e(f"v_and_b32 v{x5}, 1, v{g}")
    e(f"v_lshl_add_u32 v{vOw}, v{x5}, 3, v{x4}")
    if opts["epi"]:
        e(f"v_lshlrev_b32 v{x4}, 12, v{i16}")
        e(f"v_lshl_add_u32 v{x4}, v{x5}, 5, v{x4}")
        e(f"v_lshrrev_b32 v{vOw}, 1, v{g}")
        e(f"v_lshl_add_u32 v{vOw}, v{vOw}, 4, v{x4}")
    e(f"v_lshrrev_b32 v{x4}, 1, v{g}")
    e(f"v_lshlrev_b32 v{x4}, 12, v{x4}")
    e(f"v_mul_u32_u24 v{x5}, {4*256+32}, v{x5}")
    e(f"v_add_u32 v{x4}, v{x4}, v{x5}")
    e(f"v_lshrrev_b32 v{x5}, 2, v{i16}")
    e(f"v_mul_u32_u24 v{x5}, {256+64}, v{x5}")
    e(f"v_add_u32 v{x4}, v{x4}, v{x5}")
    e(f"v_and_b32 v{x5}, 3, v{ln}")
    e(f"v_lshl_add_u32 v{vVa}, v{x5}, 3, v{x4}")
    for dt in range(1, 8):
        e(f"v_xor_b32 v{vVa+dt}, {dt*32}, v{vVa}")
    e(f"v_lshlrev_b32 v{vG4}, 2, v{g}")
    e(f"v_lshl_add_u32 v{vQd}, v{g}, 12, v{x6}")
    for i in range(1, 4):
        e(f"v_xor_b32 v{vQd+i}, {i*64}, v{vQd}")
        e(f"v_add_u32 v{vQd+i}, {i*(4*ROWB-1024)}, v{vQd+i}")
    e(f"v_lshl_add_u32 v{x5}, v{w}, 3, v{g}")
    e(f"v_xor_b32 v{x4}, v{vG4}, v{i16}")
    e(f"v_lshlrev_b32 v{x4}, 4, v{x4}")
    e(f"v_lshl_add_u32 v{vDV}, v{x5}, 12, v{x4}")
    e(f"v_xor_b32 v{vDV+1}, 32, v{vDV}")
    e(f"v_add_u32 v{vDV+1}, {4*ROWB-1024}, v{vDV+1}")
    e(f"v_and_b32 v{x4}, 15, v{x5}")
    e(f"v_xor_b32 v{x4}, v{x4}, v{i16}")
    e(f"v_lshlrev_b32 v{x4}, 4, v{x4}")
    e(f"v_lshl_add_u32 v{vDK}, v{x5}, 12, v{x4}")
    e(f"v_xor_b32 v{vDK+1}, 64, v{vDK}")
    e(f"v_add_u32 v{vDK}, {4096-2048}, v{vDK}")
    e(f"v_add_u32 v{vDK+1}, {4*ROWB+4096-3072}, v{vDK+1}")
    e(f"s_lshl_b32 s{sWB}, s{sW}, 12")
    e(f"s_mov_b32 s{sThr}, {hex(f32bits(BIAS if RS else 4096.0))}")
    if RS:
        for i in range(4): e(f"v_mov_b32 v{vOne+i}, 0x3f803f80")
    e(f"s_mov_b32 s{sC}, {hex(f32bits(128 ** -0.5 * math.log2(math.e)))}")
    e(f"s_mov_b32 s{sNeg}, {hex(f32bits(-1e30))}")
    e(f"s_mov_b32 s{sBig}, 0x40000000")
    e(f"s_mov_b32 s{sFirst}, 1")
    e(f"s_mul_i32 s{sQW}, s{sW}, {QW}")
    e(f"s_add_u32 s{sQW}, s{sQW}, {QS}")
    e("s_waitcnt lgkmcnt(0)")
    for srd, ptr in ((sQ, 4), (sK, 6), (sV, 8), (sOut, 10)):
        e(f"s_mov_b32 s{srd}, s{ptr}")
        e(f"s_mov_b32 s{srd+1}, s{ptr+1}")
        e(f"s_mov_b32 s{srd+2}, 0")
        e(f"s_mov_b32 s{srd+3}, 0x20000")
    e(f"s_mov_b32 s{sQc}, s4")
    e(f"s_mov_b32 s{sQc+1}, s5")
    e(f"s_mov_b32 s{sQc+2}, 0")
    e(f"s_mov_b32 s{sQc+3}, 0x20000")
    e(f"s_sub_u32 s{sK}, s{sK}, 4096")
    e(f"s_subb_u32 s{sK+1}, s{sK+1}, 0")
    def decode():
        e(f"s_mov_b32 s{sD0n}, s{sJ}")
        e(f"s_mov_b32 s{sD1n}, s{sJ+1}")
        e(f"s_mov_b64 s[{sJ}:{sJ+1}], s[{sJ+2}:{sJ+3}]")
        e(f"s_mov_b64 s[{sJ+2}:{sJ+3}], s[{sJ+4}:{sJ+5}]")
        e(f"s_mov_b64 s[{sJ+4}:{sJ+5}], s[{sJ+6}:{sJ+7}]")
        e(f"s_and_b32 s{sT0}, s{sD1n}, 0xfff")
        e(f"s_lshl_b32 s{sNRn}, s{sT0}, 12")
        e(f"s_add_u32 s{sNRn}, s{sNRn}, s{sD0n}")
        e(f"s_sub_u32 s{sNRn}, s{sNRn}, {ROWB-256}")
        e(f"s_sub_u32 s{sT0}, s{sT0}, 1")
        e(f"s_and_b32 s{sT0}, s{sT0}, 0xfe0")
        e(f"s_lshl_b32 s{sT0}, s{sT0}, 12")
        e(f"s_add_u32 s{sLastn}, s{sT0}, s{sD0n}")
        e(f"s_cmp_lg_u32 s{sD1n}, 0")
        e(f"s_cselect_b32 s{sNRn}, s{sNRn}, 0")
        e(f"s_mov_b32 s{sQ+2}, s{sNRn}")
        e(f"s_bfe_u32 s{sTn}, s{sD1n}, 0x30018")
        e(f"s_mul_i32 s{sT0}, s{sTn}, s{sW}")
        e(f"s_lshl_b32 s{sT0}, s{sT0}, 16")
        e(f"s_and_b32 s{sQoffn}, s{sD1n}, 0xfff000")
        e(f"s_add_u32 s{sQoffn}, s{sQoffn}, s{sD0n}")
        e(f"s_add_u32 s{sQoffn}, s{sQoffn}, s{sT0}")
    decode()
    emit(next_loads(1)[0])
    e(f"s_bitcmp1_b32 s{sD1n}, 28")
    e("s_cbranch_scc0 Leager")
    e("s_waitcnt vmcnt(0)")
    lab("Leager")
    emit(next_loads(1)[1])
    lab("Lstart")
    e(f"s_mov_b32 s{sD0}, s{sD0n}")
    e(f"s_mov_b32 s{sD1}, s{sD1n}")
    e(f"s_mov_b32 s{sLast}, s{sLastn}")
    e(f"s_mov_b32 s{sOut+2}, s{sNRn}")
    e(f"s_mov_b32 s{sV+2}, s{sNRn}")
    e(f"s_mov_b32 s{sQc+2}, s{sNRn}")
    e(f"s_mov_b32 s{sOoff}, s{sQoffn}")
    decode()
    e(f"s_and_b32 s{sL}, s{sD1}, 0xfff")
    e(f"s_add_u32 s{sN}, s{sL}, 31")
    e(f"s_lshr_b32 s{sN}, s{sN}, 5")
    e(f"s_sub_u32 s{sCnt}, s{sN}, 2")
    e(f"s_sub_u32 s{sT0}, s{sN}, 1")
    e(f"s_lshl_b32 s{sT0}, s{sT0}, 5")
    e(f"s_sub_u32 s{sRem}, s{sL}, s{sT0}")
    e(f"s_mov_b32 s{sOff}, s{sD0}")
    e(f"s_add_u32 s{sOffK}, s{sD0}, {2*TILEB}")
    stamp(0)
    e(f"s_bfe_u32 s{sT0}, s{sD1}, 0x30018")
    if opts["stamp"]:
        e(f"s_memrealtime s[{sST+10}:{sST+11}]")
        e(f"s_lshl_b32 s98, s{sT0}, 8"); e(f"s_add_u32 s98, s98, s{sN}")
        e("s_waitcnt lgkmcnt(0)")
        if opts["stamp"] == 2:
            e(f"s_mov_b32 s97, s{sST}"); e(f"s_mov_b32 s99, s{sST+10}")
    order = sorted(TS, key=lambda t: (t != 4, -t))
    for T in order[1:]:
        e(f"s_cmp_eq_u32 s{sT0}, {T}")
        e(f"s_cbranch_scc1 Lpro{T}")
    for T in order:
        prologue(T)
        epilogue(T)
    lab("Ldone")
    if opts.get("spin"):
        if opts.get("gref"):
            e("s_mov_b32 s92, s90"); e("s_mov_b32 s93, s91"); e("s_mov_b32 s94, 256"); e("s_mov_b32 s95, 0x20000")
            e("s_not_b32 s96, s100"); e("v_mov_b32 v0, s96"); e("v_mov_b32 v2, 0")
            e("s_mov_b64 exec, 1")
            e(f"s_cmp_lg_u32 s{sW}, 0"); e("s_cbranch_scc1 Lsp0")
            e("buffer_atomic_umax v0, v2, s[92:95], 0 offen")
            lab("Lsp0")
            e("s_memrealtime s[88:89]"); e("s_waitcnt lgkmcnt(0)"); e("s_sub_u32 s88, s88, s100")
            e(f"s_cmp_lt_u32 s88, 4500"); e("s_cbranch_scc1 Lsp0")
            e("buffer_load_dword v1, v2, s[92:95], 0 offen sc0 sc1")
            e("s_waitcnt vmcnt(0)")
            e("v_readfirstlane_b32 s96, v1"); e("s_nop 3"); e("s_not_b32 s100, s96")
        lab("Lspin")
        e("s_memrealtime s[88:89]")
        e("s_waitcnt lgkmcnt(0)")
        e("s_sub_u32 s88, s88, s100")
        e(f"s_cmp_lt_u32 s88, {opts['spin']}")
        e("s_cbranch_scc1 Lspin")
    if LIGHT:
        e("s_waitcnt vmcnt(0)")
        e("s_memrealtime s[88:89]")
        e("s_mov_b32 s92, s90"); e("s_mov_b32 s93, s91"); e("s_mov_b32 s94, 0x100000"); e("s_mov_b32 s95, 0x20000")
        e(f"s_lshl_b32 s96, s2, 2"); e(f"s_add_u32 s96, s96, s{sW}"); e("s_lshl_b32 s96, s96, 3")
        e("s_waitcnt lgkmcnt(0)")
        e("v_mov_b32 v0, s100"); e("v_mov_b32 v1, s88"); e("v_mov_b32 v2, 0")
        e("s_mov_b64 exec, 1")
        e("buffer_store_dwordx2 v[0:1], v2, s[92:95], s96 offen")
    if opts["stamp"]:
        e("s_waitcnt vmcnt(0)")
        stamp(0)
        e(f"s_memrealtime s[{sST+12}:{sST+13}]")
        e(f"s_mov_b32 s{sST+10}, s100")
        e("s_getreg_b32 s98, hwreg(HW_REG_HW_ID)")
        stamp_store(True)
    lab("Lend")
    e("s_endpgm")

    for tag, buf in STUBS:
        lab(f"Lrare_{tag}")
        e(f"s_call_b64 s[{sRet}:{sRet+1}], Lresc_{buf}")
        e(f"s_branch Lback_{tag}")
    for b in range(2):
        lab(f"Lresc_{b}")
        e("s_nop 15")
        for t in range(TM):
            s, s2 = sreg(b, t), sreg(b ^ 1, t)
            dl, al = vX, (vX + 8 + t if t < 4 else vX + 2)
            e(f"v_max3_f32 v{dl}, v{s}, v{s+1}, v{s+2}")
            e(f"v_max3_f32 v{dl}, v{dl}, v{s+3}, v{s+4}")
            e(f"v_max3_f32 v{dl}, v{dl}, v{s+5}, v{s+6}")
            if RS:
                e(f"v_max_f32 v{dl}, v{dl}, v{s+7}")
                e(f"v_add_f32 v{dl}, s{sThr}, v{dl}")
                e(f"v_max_f32 v{dl}, 0, v{dl}")
            else:
                e(f"v_max3_f32 v{dl}, v{dl}, v{s+7}, 0")
            emit(xlane("v_max_f32", [dl], vX + 1))
            e(f"v_sub_f32 v{al}, 0, v{dl}")
            e(f"v_exp_f32 v{al}, v{al}")
            for i in range(8):
                e(f"v_sub_f32 v{s+i}, v{s+i}, v{dl}")
                e(f"v_sub_f32 v{s2+i}, v{s2+i}, v{dl}")
            for i in range(4):
                e(f"v_sub_f32 v{vNM+4*t+i}, v{vNM+4*t+i}, v{dl}")
            if not RS:
                e(f"v_mul_f32 v{vL+t}, v{vL+t}, v{al}")
            elif t == 4:
                for i in range(4): e(f"v_mul_f32 v{vL4+i}, v{vL4+i}, v{al}")
            else:
                for i in range(4):
                    e(f"v_accvgpr_read_b32 v{vX+1}, a{aL+4*t+i}")
                    e(f"v_mul_f32 v{vX+1}, v{vX+1}, v{al}")
                    e(f"v_accvgpr_write_b32 a{aL+4*t+i}, v{vX+1}")
        emit(SM(TM, b, False).rest())
        if b == 0: e("s_branch LrescO")
    lab("LrescO")
    for t in range(TM):
        for i in range(0, 32, 4):
            al = vX + 8 + t if t < 4 else vX + 2
            for k in range(4): e(f"v_accvgpr_read_b32 v{vX+4+k}, a{aO+32*t+i+k}")
            for k in range(4): e(f"v_mul_f32 v{vX+4+k}, v{vX+4+k}, v{al}")
            for k in range(4): e(f"v_accvgpr_write_b32 a{aO+32*t+i+k}, v{vX+4+k}")
    e("s_nop 1")
    e(f"s_setpc_b64 s[{sRet}:{sRet+1}]")

    e(".p2align 5")
    L.append(".type Ltab,@object")
    lab("Ltab")
    for ent in TAB:
        e(".long " + ", ".join(str(x) for x in ent))
    L.append('.section .rodata,"a"')
    L.append(".p2align 6")
    L.append(f".amdhsa_kernel {NAME}_kernel")
    L.append("  .amdhsa_next_free_vgpr 512")
    L.append("  .amdhsa_next_free_sgpr 102")
    L.append("  .amdhsa_accum_offset 256")
    L.append("  .amdhsa_group_segment_fixed_size 0")
    L.append("  .amdhsa_kernarg_size 56")
    L.append("  .amdhsa_user_sgpr_count 2")
    L.append("  .amdhsa_user_sgpr_kernarg_segment_ptr 1")
    L.append("  .amdhsa_system_sgpr_workgroup_id_x 1")
    L.append(".end_amdhsa_kernel")

gen()
open(sys.argv[1], "w").write("\n".join(L) + "\n")
```

```python
import sys, struct, math, os

NAME = "standalone__varlen_attn_packed__ragged"
CU = [0, 534, 1426, 1714, 2675, 3469, 4036, 4628, 4845]
ROWB = 4096
TILEB = 32 * ROWB
QS = 65536
QW = 20480
OS = QS + 4 * QW
LDSZ = 163840
TM = 5

opts = dict(stamp=0, st="sc0+sc1", ld="", ldq="nt", al=3, e64=0, rs=1, epi=0, late=1, plan="b", rev=0, lc=4, pf=0, lazy=0)
for a in sys.argv[2:]:
    k, v = a.split("=")
    opts[k] = int(v) if v.lstrip("-").isdigit() else v
LD = (" " + opts["ld"].replace("+", " ")) if opts["ld"] else ""
LDQ = (" " + opts["ldq"].replace("+", " ")) if opts.get("ldq", opts["ld"]) and "ldq" in opts else ("" if "ldq" in opts else LD)
ST = (" " + opts["st"].replace("+", " ")) if opts["st"] else ""
DG = str(opts.get("diag", ""))

def f32bits(x):
    return struct.unpack("<I", struct.pack("<f", x))[0]

vQ = 0
vS = 64
vP = 144
vNM = 184
vKa = 204
vVa = 208
vDK = 216
vDV = 218
vQd = 220
vE = 224
vT = 228
vL = 233
vU = 238
vQa = 239
vOw = 240
vOr = 241
vG4 = 242
vU2 = 243
vX = 244
aO = 0
aKf = 160
aVf = 192
aQ = 224
aL = 240
vOne = 228
vL4 = 232
vAc = 236
BIAS = 20.0
RS = opts['rs']

sQ, sK, sV, sOut = 12, 16, 20, 24
sJ = 28
sD0, sD1 = 36, 37
sL, sN, sOff, sWB, sCnt, sLast, sThr, sC, sNeg, sW = 38, 39, 40, 41, 42, 43, 44, 45, 46, 47
sRet, sPC = 48, 52
sTn, sLastn = 50, 51
sRem, sQoffn, sOoff, sBig, sD0n, sNRn, sD1n = 54, 55, 56, 57, 58, 59, 60
sT0 = 61
sOffK = 63
sQW = 3
sFirst = 64
sQc = 8
sM = 68
sST = 76

L = []
def e(s): L.append("    " + s)
def lab(s): L.append(s + ":")
def vr(b, n): return f"v[{b}:{b+n-1}]"
def ar(b, n): return f"a[{b}:{b+n-1}]"
def emit(lines):
    for x in lines:
        if x.endswith(":"): L.append(x)
        else: e(x)
LIGHT = opts["stamp"] == 3
if LIGHT: opts["stamp"] = 0
def pstamp(idx):
    if opts["stamp"] and opts.get("pst"):
        e(f"s_memtime s[{sST+2*idx}:{sST+1+2*idx}]")
        e("s_waitcnt lgkmcnt(0)")
def stamp(idx):
    if opts.get("pst") and 1 <= idx <= 4: return
    if opts["stamp"]:
        e(f"s_memtime s[{sST+2*idx}:{sST+1+2*idx}]")

SEQ = []
for si in range(8):
    ln = CU[si + 1] - CU[si]
    SEQ.append((CU[si], ln, (ln + 63) // 64, (ln + 31) // 32))

PLANS = {
    "b": [[(31, 4)]] * 4 + [[(25, 5)]] * 2 + [[(25, 3), (7, 4)], [(18, 3), (17, 3)], [(18, 3), (17, 3)], [(18, 3), (17, 3)],
          [(19, 4), (9, 3)], [(28, 2), (19, 2)], [(19, 4), (9, 2)]] + [[(28, 4)]] * 3,
    "a": [[(31, 4)]] * 4 + [[(25, 5)]] * 2 + [[(17, 4), (18, 2)], [(19, 5), (7, 2)], [(25, 3), (9, 3)], [(28, 2), (18, 2)],
          [(17, 5), (9, 2)], [(18, 5), (7, 2)]] + [[(28, 4)]] * 3 + [[(19, 5)]],
}

def plan_head():
    n2s = {SEQ[i][3]: i for i in range(8)}
    nxt = {i: 0 for i in range(8)}
    spec = PLANS[opts["plan"]]
    res = [[None] * len(s) for s in spec]
    for want in (2, 3, 4, 5):
        for i, s in enumerate(spec):
            for k, (n, t) in enumerate(s):
                if t == want:
                    si = n2s[n]
                    res[i][k] = (si, nxt[si], t); nxt[si] += 64 * t
    for i in range(8):
        assert nxt[i] == SEQ[i][2] * 64, (i, nxt[i])
    if opts["rev"]:
        res = [list(reversed(r)) for r in res]
    return res

def make_table():
    ph = plan_head()
    tab = []
    for wg in range(256):
        x, j = wg & 7, wg >> 3
        head = 2 * x + (j & 1)
        ent = []
        for (si, q0, t) in ph[j >> 1]:
            st, ln, nb, n = SEQ[si]
            lazy = (opts["lazy"] >> (j >> 1)) & 1
            ent += [st * ROWB + head * 256, ln | (q0 << 12) | (t << 24) | (lazy << 28)]
        ent += [0] * (8 - len(ent))
        tab.append(ent)
    return tab

TAB = make_table()
PH = plan_head()
TS = sorted({t for jl in PH for _, _, t in jl}, reverse=True)
TAILS = {}
for jl in PH:
    for k, (si, q0, t) in enumerate(jl):
        TAILS.setdefault((t, (SEQ[si][3] - 1) % 4), set()).add(1 if k + 1 < len(jl) else 0)
PROD = {t for (t, p), v in TAILS.items() if v - {0}}
NWG = 256

MF = "v_mfma_f32_16x16x32_bf16"
def qreg(t, s):
    return vr(vQ + 16 * t + 4 * s, 4) if t < 4 else ar(aQ + 4 * s, 4)
def sreg(buf, t, a=0): return vS + 40 * buf + 8 * t + 4 * a
def preg(buf, t): return vP + 20 * buf + 4 * t

def qk1(buf, t, a, s, cinit, kf=None):
    d = sreg(buf, t, a)
    kf = aKf if kf is None else kf
    return f"{MF} {vr(d,4)}, {ar(kf+4*(a*4+s),4)}, {qreg(t,s)}, {vr(cinit if s == 0 else d,4)}"

def qk_mfmas(T, buf):
    return [qk1(buf, t, a, s, vNM + 4 * t) for a in range(2) for s in range(4) for t in range(T)]

ZERO = [False]
def pv1(buf, t, dt, vf):
    o = aO + 32 * t + 4 * dt
    return f"{MF} {ar(o,4)}, {ar(vf+4*dt,4)}, {vr(preg(buf,t),4)}, {'0' if ZERO[0] else ar(o,4)}"

def rs1(buf, t):
    l = ar(aL + 4 * t, 4) if t < 4 else vr(vL4, 4)
    return f"{MF} {l}, {vr(vOne,4)}, {vr(preg(buf,t),4)}, {'0' if ZERO[0] else l}"

def pv_mfmas(T, buf, vf=aVf):
    return [pv1(buf, t, dt, vf) for dt in range(8) for t in range(T)] + ([rs1(buf, t) for t in range(T)] if RS else [])

def zero_mfmas(T):
    return [f"v_mfma_f32_32x32x16_bf16 {ar(aO+16*i,16)}, {vr(vP+28,4)}, {vr(vP+28,4)}, 0" for i in range(2 * T)]

def k_reads(slot, kf=None):
    kf = aKf if kf is None else kf
    return [f"ds_read_b128 {ar(kf+4*(a*4+s),4)}, v{vKa+s} offset:{slot*16384+a*8192}" for a in range(2) for s in range(4)]

def v_reads(slot, vf=aVf):
    return [f"ds_read_b64_tr_b16 {ar(vf+4*dt+2*a,2)}, v{vVa+dt} offset:{slot*16384+a*8192}" for dt in range(8) for a in range(2)]

def m0set(off):
    return f"s_add_u32 m0, s{sWB}, {off}" if off else f"s_mov_b32 m0, s{sWB}"
def ldv(j, so):
    return f"buffer_load_dwordx4 v{vDV+j}, s[{sV}:{sV+3}], s{so} offen" + (f" offset:{j*1024}" if j else "") + f"{LD} lds"
def ldk(j, so):
    return f"buffer_load_dwordx4 v{vDK+j}, s[{sK}:{sK+3}], s{so} offen offset:{2048+j*1024}{LD} lds"

def dma(slot):
    return [m0set(slot * 16384),
            f"s_add_u32 s{sOff}, s{sOff}, {TILEB}",
            f"s_add_u32 s{sOffK}, s{sOffK}, {TILEB}",
            ldv(0, sOff), ldv(1, sOff), ldk(0, sOffK), ldk(1, sOffK)]

CHK = f"v_cmp_ne_u32 vcc, 0, v{vX}" if RS else f"v_cmp_lt_f32 vcc, s{sThr}, v{vX}"
ERING = [vE, vE + 2, vX + 4, vX + 6]
def softmax_ops(T, buf, full=True, R=4, t0=0):
    exps, sims = [], []
    done_after = []
    n = 4 * T
    for k in range(n):
        t, kk = divmod(k, 4)
        t += t0
        a = ERING[k % R]; b = a + 1
        need = done_after[k - R] if k >= R else 0
        exps += [(f"v_exp_f32 v{a}, v{sreg(buf,t)+2*kk}", need), (f"v_exp_f32 v{b}, v{sreg(buf,t)+2*kk+1}", need)]
        p = preg(buf, t) + kk
        u = vU if k & 1 else vU2
        ne = 2 * k + 2
        if RS:
            sims.append((f"v_cvt_pk_bf16_f32 v{p}, v{a}, v{b}", ne))
            done_after.append(len(sims))
            if full and (k & 1):
                sims.append((f"v_or_b32 v{vAc}, v{p-1}, v{p}" if k == 1 else f"v_or3_b32 v{vAc}, v{vAc}, v{p-1}, v{p}", ne))
        elif kk == 0:
            if full: sims.append((f"v_add_f32 v{vL+t}, v{vL+t}, v{vT+t}", 0))
            sims += [(f"v_cvt_pk_bf16_f32 v{p}, v{a}, v{b}", ne), (f"v_add_f32 v{vT+t}, v{a}, v{b}", ne)]
            done_after.append(len(sims))
        else:
            sims += [(f"v_add_f32 v{u}, v{a}, v{b}", ne), (f"v_cvt_pk_bf16_f32 v{p}, v{a}, v{b}", ne)]
            done_after.append(len(sims))
            sims.append((f"v_add_f32 v{vT+t}, v{vT+t}, v{u}", ne))
    if full and RS:
        sims += [(f"v_and_b32 v{vX}, 0x40004000, v{vAc}", 2 * n), (CHK, 2 * n)]
    elif full:
        m = [vT + t for t in range(T)]
        cur = m.pop(0)
        while m:
            if len(m) >= 2:
                sims.append((f"v_max3_f32 v{vX}, v{cur}, v{m[0]}, v{m[1]}", 2 * n)); m = m[2:]
            else:
                sims.append((f"v_max_f32 v{vX}, v{cur}, v{m[0]}", 2 * n)); m = []
            cur = vX
        sims.append((f"v_cmp_lt_f32 vcc, s{sThr}, v{cur}", 2 * n))
    return exps, sims

class SM:
    def __init__(s, T, buf, full=True, t0=0, R=4):
        s.ex, s.si = softmax_ops(T, buf, full, R, t0)
        s.i = s.j = 0
        s.last_exp = False
    def left(s): return 8 * (len(s.ex) - s.i) + 4 * (len(s.si) - s.j)
    def can_exp(s): return s.i < len(s.ex) and s.ex[s.i][1] <= s.j
    def can_sim(s):
        if s.j >= len(s.si): return False
        need = s.si[s.j][1]
        return need < s.i or (need == s.i and not s.last_exp)
    def exp(s): s.i += 1; s.last_exp = True; return s.ex[s.i - 1][0]
    def sim(s): s.j += 1; s.last_exp = False; return s.si[s.j - 1][0]
    def other(s): s.last_exp = False
    def any(s):
        if s.can_sim() and (s.si[s.j][1] <= s.i - 2 or not s.can_exp()): return s.sim()
        if s.can_exp(): return s.exp()
        if s.can_sim(): return s.sim()
        s.last_exp = False
        return "s_nop 0"
    def take(s, n): return [s.any() for _ in range(n) if s.left()]
    def rest(s):
        r = []
        while s.left(): r.append(s.any())
        return r

def is_mem(x): return x.startswith("ds_") or x.startswith("buffer_")

def pack(mf, fixed, sm=None, novalu=(), keep=0, cap=8):
    n = len(mf)
    def fcost(l):
        c = 0; ns = 0; nm = 0
        for x in l:
            if is_mem(x): c += 8 if nm else 4; nm += 1
            elif x.startswith("s_"): c += 4 if (ns or nm) else 0; ns += 1
            else: c += 4
        return c
    fc = [fcost(fixed.get(g, [])) for g in range(n)]
    out = []
    for g in range(n):
        out.append(mf[g])
        out += fixed.get(g, [])
        if sm is None: continue
        sm.other()
        if g in novalu: continue
        rem = [k for k in range(g, n) if k not in novalu]
        last = g == rem[-1]
        used = fc[g]
        while sm.left() > keep:
            later = sum(max(0, cap - fc[k]) for k in rem[1:])
            over = sm.left() - keep - later
            room = cap - used
            if room <= 0:
                if not last and over * 1.0 < 4 * 1.0 + 0 : break
                if not last and (used - cap + 4) * len(rem) > over + (used - cap) + 2 * len(rem): break
            nexp = len(sm.ex) - sm.i
            full_later = sum(1 for k in rem[1:] if cap - fc[k] >= 8)
            if room >= 8 and sm.can_exp() and (not sm.can_sim() or nexp > full_later * opts.get("eb", 70) // 100 or sm.si[sm.j][1] > sm.i - 4):
                out.append(sm.exp()); used += 8
            elif sm.can_sim():
                out.append(sm.sim()); used += 4
            elif sm.can_exp() and (room >= 8 or last or nexp + opts.get("slk", 2) > full_later or over > 0):
                out.append(sm.exp()); used += 8
            else:
                if last: out.append(sm.any()); used += 4
                else: break
    return out

STUBS = []
def check_rare(buf, tag):
    e(f"s_cbranch_vccnz Lrare_{tag}")
    lab(f"Lback_{tag}")
    STUBS.append((tag, buf))

def spread(items, gaps):
    d = {}
    gaps = list(gaps)
    for i, x in enumerate(items):
        d.setdefault(gaps[i * len(gaps) // len(items)], []).append(x)
    return d

def merge(*ds):
    r = {}
    for d in ds:
        for k, v in d.items():
            r.setdefault(k, []).extend(v)
    return r

def interleave(a, b):
    out = []
    if not a: return list(b)
    j = 0
    for i, x in enumerate(a):
        out.append(x)
        nj = (i + 1) * len(b) // len(a)
        out += b[j:nj]; j = nj
    return out

CNT = f"s_sub_u32 s{sCnt}, s{sCnt}, 1"

def place(items, gaps):
    groups = []
    cur = []
    for x in items:
        cur.append(x)
        if is_mem(x): groups.append(cur); cur = []
    if cur: groups.append(cur)
    gaps = list(gaps)
    d = {}
    for i, gr in enumerate(groups):
        d.setdefault(gaps[i * len(gaps) // len(groups)], []).extend(gr)
    return d

def qgroup(g, dyn=True):
    r = [f"s_add_u32 m0, s{sQW}, {g*4096}" if g else f"s_mov_b32 m0, s{sQW}",
         f"s_add_u32 s{sT0}, s{sQoffn}, {g*16*ROWB}"]
    if g >= 2 and dyn:
        r += [f"s_cmp_gt_u32 s{sTn}, {g}", f"s_cselect_b32 s{sT0}, s{sT0}, s{sBig}"]
    r += [f"buffer_load_dwordx4 v{vQd+i}, s[{sQ}:{sQ+3}], s{sT0} offen offset:{i*1024}{LDQ} lds" for i in range(4)]
    return r

def step(T, t, prod=False):
    p = t % 4
    b = t % 2
    h = 8 * T
    ZERO[0] = prod
    mf = qk_mfmas(T, b ^ 1) + pv_mfmas(T, b ^ 1)
    ZERO[0] = False
    kr = k_reads((t + 2) % 4)
    d = dma((t + 1) % 4)
    sm = SM(T, b)
    n = len(mf)
    vrd = v_reads((t + 1) % 4)
    vm = opts.get('vm', 8)
    end = [CNT] if prod else [CNT, "s_cselect_b64 vcc, -1, vcc"]
    if T >= 3:
        kd = [kr[0], kr[1], d[3], kr[2], kr[3], d[4], kr[4], kr[5], d[5], kr[6], kr[7], d[6]]
        fixed = merge(place(vrd, range(0, h - 5)),
                      {h - 1: [f"s_waitcnt vmcnt({vm}) lgkmcnt(0)", "s_barrier"]},
                      {h - 4: [d[0]], h - 3: [d[1]], h - 2: [d[2]]},
                      place(kd, range(h, n - 3)),
                      {n - 2: [end[0]], n - 1: end[1:]})
    else:
        kd = [kr[0], kr[1], d[3], kr[2], kr[3], kr[4], d[4], kr[5], kr[6], kr[7], d[5]]
        fixed = merge(place(vrd, range(0, 12)),
                      {h - 1: [f"s_waitcnt vmcnt({vm}) lgkmcnt(0)", "s_barrier"]},
                      {h - 4: [d[0]], h - 3: [d[1]], h - 2: [d[2]]},
                      place(kd, range(h, n - 5)),
                      {n - 2: [end[0], d[6]], n - 1: end[1:]})
    e("s_waitcnt lgkmcnt(0)")
    body = pack(mf, fixed, sm, (h - 1, n - 1))
    if DG and not prod:
        body = [x for x in body if not (("d" in DG and x.startswith("buffer_load")) or ("b" in DG and x.startswith("s_barrier"))
                or ("l" in DG and x.startswith("ds_read")) or ("w" in DG and x.startswith("s_waitcnt"))
                or ("v" in DG and x.startswith(("v_exp", "v_cvt", "v_or"))))]
    if opts["e64"]:
        body = [x.replace("v_exp_f32 ", "v_exp_f32_e64 ").replace("v_add_f32 ", "v_add_f32_e64 ").replace("v_max_f32 ", "v_max_f32_e64 ") for x in body]
    emit(body)
    assert sm.left() == 0
    if prod:
        check_rare(b, f"t{T}p{p}")
    else:
        e(f"s_cbranch_vccnz Lx{T}_{p}")
        lab(f"Lxb{T}_{p}")

def exit_stub(T, p):
    lab(f"Lx{T}_{p}")
    e(CHK)
    check_rare(p % 2, f"x{T}_{p}")
    np_ = (p + 1) % 4
    nx = sorted(TAILS.get((T, np_), ()))
    if not nx:
        e(f"s_branch Lxb{T}_{p}")
        return
    e(f"s_cbranch_scc0 Lxb{T}_{p}")
    for tn in nx[1:]:
        e(f"s_cmp_lg_u32 s{sD1n}, 0")
        e(f"s_cbranch_scc1 Ltail{T}_{np_}_{tn}")
    for tn in nx:
        tail(T, np_, tn)

def ktile(u):
    return [m0set(u * 16384), f"s_add_u32 s{sT0}, s{sD0}, {(u-1)*TILEB}", ldk(0, sT0), ldk(1, sT0)]
def vtile(u):
    so = sLast if u == 0 else sD0
    return [m0set(((u + 2) % 4) * 16384), "s_nop 0", ldv(0, so), ldv(1, so)]
def next_k0():
    return [m0set(0), f"s_add_u32 s{sK+2}, s{sNRn}, 4096", ldk(0, sLastn), ldk(1, sLastn)]
def next_k1():
    return [m0set(16384), "s_nop 0", ldk(0, sD0n), ldk(1, sD0n)]

def tail(T, p, tn):
    b = p % 2
    lab(f"Ltail{T}_{p}_{tn}")
    stamp(3)
    if opts["stamp"]: e("s_waitcnt lgkmcnt(0)")
    vrd = v_reads((p + 1) % 4)
    vrd2 = v_reads((p + 2) % 4, aKf)
    sm = SM(T, b)
    mf = pv_mfmas(T, b ^ 1)
    if RS: mf = mf[-T:] + mf[:-T]
    o = T if RS else 0
    if opts.get("tl", 0):
        pre = 6
        emit(vrd[:pre])
        emit(sm.take(6))
        g1 = o + 3 * T
        fixed = place(vrd[pre:], range(0, g1))
        issued = {g: pre + sum(len(fixed.get(k, [])) for k in range(g + 1)) for g in range(-1, len(mf))}
        for dt in range(0, 4):
            g = o + dt * T - 1
            w = f"s_waitcnt lgkmcnt({max(0, issued[g] - 2 * dt - 2)})"
            if g < 0: e(w)
            else: fixed.setdefault(g, []).append(w)
        gb = o + 4 * T - 1
        fixed.setdefault(gb, []).extend(["s_waitcnt vmcnt(8) lgkmcnt(0)", "s_barrier"])
        rest = range(gb + 1, len(mf))
        fixed = merge(fixed, place(vrd2, rest))
        if tn: fixed = merge(fixed, place(next_loads(tn)[0], rest))
    else:
        emit(vrd)
        emit(sm.take(12))
        e("s_waitcnt vmcnt(8) lgkmcnt(0)")
        e("s_barrier")
        fixed = place(vrd2, range(len(mf) - 2))
        if tn:
            fixed = merge(fixed, place(next_loads(tn)[0], range(len(mf))))
    emit(pack(mf, fixed, sm))
    assert sm.left() == 0
    check_rare(b, f"t{T}t{p}_{tn}")
    fin(T, b, tn)

def next_loads(tn):
    return next_k0() + qgroup(0, False), qgroup(1, False) + next_k1()

def xlane(op, regs, tmp):
    r = []
    for sw in ("v_permlane32_swap_b32", "v_permlane16_swap_b32"):
        r += [f"v_mov_b32 v{tmp+i}, v{x}" for i, x in enumerate(regs)]
        r += ["s_nop 1"]
        r += [f"{sw} v{x}, v{tmp+i}" for i, x in enumerate(regs)]
        r += ["s_nop 1"]
        r += [f"{op} v{x}, v{x}, v{tmp+i}" for i, x in enumerate(regs)]
    return r

vOA = vNM
vLI = vNM + 8
def epi_acc(t):
    return [f"v_accvgpr_read_b32 v{vQ+i}, a{aO+32*t+i}" for i in range(32)]
def epi_cvt(t):
    r = [f"v_pk_mul_f32 {vr(vQ+2*i,2)}, {vr(vQ+2*i,2)}, {vr(vLI+2*(t//2),2)} " +
         ("op_sel:[0,1] op_sel_hi:[1,1]" if t & 1 else "op_sel_hi:[1,0]") for i in range(16)]
    r += [f"v_cvt_pk_bf16_f32 v{vQ+32+16*(t&1)+i}, v{vQ+2*i}, v{vQ+2*i+1}" for i in range(16)]
    return r
def epi_writes(t):
    return [f"ds_write_b64 v{vOA+dt}, {vr(vQ+32+16*(t&1)+2*dt,2)}" for dt in range(8)]
def epi_reads(t):
    return [f"ds_read_b128 {vr(vS+16*t+4*i,4)}, v{vOr} offset:{i*1024}" for i in range(4)]
def epi_stores(t):
    return [f"s_add_u32 s{sT0}, s{sOoff}, {t*16*ROWB}"] + \
           [f"buffer_store_dwordx4 {vr(vS+16*t+4*i,4)}, v{vQd+i}, s[{sOut}:{sOut+3}], s{sT0} offen offset:{i*1024}{ST}" for i in range(4)]

def fin(T, b, tn):
    if not RS: e("s_waitcnt lgkmcnt(0)")
    mf = [pv1(b, t, dt, aKf) for t in range(T) for dt in range(8)]
    regs = [vL + t for t in range(T)]
    xo = [f"v_xor_b32 v{vOA+dt}, {dt*32}, v{vOw}" for dt in range(8)] if not opts["epi"] else ["s_nop 0"]
    if RS:
        mf = [rs1(b, t) for t in range(T)] + mf
        ls = [f"v_accvgpr_read_b32 v{vX+t}, a{aL+4*t}" if t < 4 else f"v_mov_b32 v{vX+t}, v{vL4}" for t in range(T)] + \
             [f"v_rcp_f32 v{vLI+t}, v{vX+t}" for t in range(T)] + epi_acc(0)
        fixed = merge({T - 1: ["s_waitcnt lgkmcnt(6)"], T + 4: ["s_waitcnt lgkmcnt(0)"]},
                      spread(xo, range(T + 8)), spread(ls, range(T + 8, len(mf))))
    else:
        ls = [f"v_add_f32 v{vL+t}, v{vL+t}, v{vT+t}" for t in range(T)] + xlane("v_add_f32", regs, vX) + \
             [f"v_rcp_f32 v{vLI+t}, v{vL+t}" for t in range(T)] + xo + epi_acc(0)
        fixed = spread(ls, range(len(mf)))
    if tn: fixed = merge(place(next_loads(tn)[1], range(len(mf))), fixed)
    emit(pack(mf, fixed))
    e(f"s_branch Lepi{T}")

def first_max(t):
    s0 = sreg(0, t)
    m = vX + 2
    r = [f"v_max3_f32 v{m}, v{s0}, v{s0+1}, v{s0+2}", f"v_max3_f32 v{m}, v{m}, v{s0+3}, v{s0+4}",
         f"v_max3_f32 v{m}, v{m}, v{s0+5}, v{s0+6}", f"v_max_f32 v{m}, v{m}, v{s0+7}"]
    r += xlane("v_max_f32", [m], vX + 3)
    if RS: r += [f"v_add_f32 v{m}, s{sThr}, v{m}"]
    r += [f"v_sub_f32 v{vNM+4*t+i}, 0, v{m}" for i in range(4)]
    r += [f"v_sub_f32 v{s0+i}, v{s0+i}, v{m}" for i in range(8)]
    return r

def qraw(t, k=0):
    return vQ + 16 * t + k if t < 4 else sreg(k // 8, 4) + k % 8
def prescale(t):
    r = []
    for k in range(0, 16, 2):
        q = qraw(t, k)
        for i in range(2):
            r += [f"v_lshlrev_b32 v{vX+2*i}, 16, v{q+i}", f"v_and_b32 v{vX+2*i+1}, 0xffff0000, v{q+i}"]
        for i in range(2):
            r += [f"v_pk_mul_f32 {vr(vX+2*i,2)}, {vr(vX+2*i,2)}, s[{sThr}:{sC}] op_sel:[0,1] op_sel_hi:[1,1]"]
        for i in range(2):
            r += [f"v_cvt_pk_bf16_f32 v{q+i}, v{vX+2*i}, v{vX+2*i+1}"]
        if t == 4: r += [f"v_accvgpr_write_b32 a{aQ+k+i}, v{q+i}" for i in range(2)]
    return r

def first_only(lines):
    i = len(L)
    e(f"s_cmp_eq_u32 s{sFirst}, 0")
    e(f"s_cbranch_scc1 Lw{i}")
    emit(lines)
    lab(f"Lw{i}")

def nvm(l): return sum(x.startswith("buffer") for x in l)

vMK = vP + 20
def weave(mfs, valu, mem):
    d = place(mem, range(len(mfs))) if mem else {}
    out = []
    j = 0
    nops = [i for i, x in enumerate(valu) if x == "s_nop 1"]
    if nops and len(mfs) > len(nops):
        extra = len(mfs) - len(nops)
        free = [i for i in range(len(valu)) if i not in nops and i - 1 not in nops]
        head = [0, 2][:min(2, extra)]
        tailp = [i for i in free if i > nops[-1] + 1]
        more = [tailp[k * len(tailp) // (extra - len(head))] for k in range(extra - len(head))]
        cuts = sorted(set(nops + head + more))
        assert len(cuts) == len(mfs)
        k = 0
        for i, x in enumerate(valu):
            if i in cuts:
                out.append(mfs[k])
                m = d.get(k, []); k += 1
                if x == "s_nop 1":
                    out += m if m else ["s_nop 0"]
                    continue
                out += m
            out.append(x)
        return out
    for i, x in enumerate(mfs):
        out.append(x)
        out += d.get(i, [])
        nj = (i + 1) * len(valu) // len(mfs)
        out += valu[j:nj]; j = nj
    return out

def prologue(T):
    lab(f"Lpro{T}")
    def qcur(g):
        return [x.replace(f"s{sQoffn}", f"s{sOoff}").replace(f"s[{sQ}:{sQ+3}]", f"s[{sQc}:{sQc+3}]") for x in qgroup(g, False)]
    q = ["K0"] * 2 + ["Q0"] * 4 + ["Q1"] * 4 + ["K1"] * 2
    def younger(tag): return len(q) - 1 - max(i for i, x in enumerate(q) if x == tag)
    for s in range(4):
        e(f"v_xor_b32 v{vX+8+s}, {s*64}, v{vQa}")
    pre = [f"v_sub_u32 v{vX}, s{sRem}, v{vG4}", f"v_mov_b32 v{vX+1}, s{sNeg}"]
    for a in range(2):
        pre += [f"v_cmp_lt_i32 s[{sM+2*i}:{sM+2*i+1}], {16*a+i}, v{vX}" for i in range(4)] + ["s_nop 0"]
        pre += [f"v_cndmask_b32 v{vMK+4*a+i}, v{vX+1}, 0, s[{sM+2*i}:{sM+2*i+1}]" for i in range(4)]
    if not RS: pre += [f"v_mov_b32 v{vL+t}, 0" for t in range(T)]
    def qreads(t):
        return [f"ds_read_b128 {vr(qraw(t,4*s),4)}, v{vX+8+s} offset:{t*4096}" for s in range(4)]
    A = lambda t: [qk1(0, t, a, s, vMK + 4 * a) for a in range(2) for s in range(4)]
    C = lambda t: [qk1(1, t, a, s, vNM + 4 * t, aVf) for a in range(2) for s in range(4)]
    def sparse(mem, valu):
        d = place(mem, range(max(1, nvm(mem))))
        out = []; j = 0
        for i in range(len(d)):
            out += d[i]
            nj = (i + 1) * len(valu) // len(d)
            out += valu[j:nj]; j = nj
        return out
    if T > 2:
        emit(sparse(qcur(2), pre)); q += ["Q2"] * 4
        pre = []
    first_only([f"s_waitcnt vmcnt({younger('Q0')})"])
    pstamp(1)
    emit(qreads(0))
    emit(pre)
    e("s_waitcnt lgkmcnt(0)")
    if T > 3:
        emit(sparse(qcur(3), prescale(0))); q += ["Q3"] * 4
    else:
        emit(prescale(0))
    first_only([f"s_waitcnt vmcnt({younger('K1')})"])
    pstamp(2)
    emit(qreads(1))
    e("s_barrier")
    emit(k_reads(0))
    e("s_waitcnt lgkmcnt(8)")
    ps = prescale(1)
    if T > 4:
        emit(sparse(qcur(4), ps[:32])); q += ["Q4"] * 4
    else:
        emit(ps[:32])
    emit(k_reads(1, aVf))
    e("s_waitcnt lgkmcnt(8)")
    bulk = [("K2", ktile(2)), ("V0", vtile(0)), ("K3", ktile(3)), ("V1", vtile(1)), ("G", dma(0)[:5]), ("G", dma(0)[5:]),
            ("H", dma(1)[:5]), ("H", dma(1)[5:])]
    def takeb(n):
        nonlocal bulk
        r = []
        for tag, l in bulk[:n]:
            r += l; q.extend([tag] * nvm(l))
        bulk = bulk[n:]
        return r
    emit(weave(A(0), [], takeb(1) if T == 2 else []))
    emit(sparse(takeb(1), ps[32:]) if T <= 3 else ps[32:])
    D = lambda t: SM(1, 0, False, t, 2).rest()
    def getq(k):
        e(f"s_waitcnt vmcnt({younger(f'Q{k}')})")
        if k <= 3: pstamp(k + 1)
        emit(qreads(k))
    def bar2():
        e("s_waitcnt lgkmcnt(0)")
        e("s_barrier")
    per = {2: [2, 2, 2], 3: [1, 1, 1, 2, 2], 4: [1, 1, 1, 1, 1, 1, 2], 5: [0, 1, 1, 1, 1, 1, 1, 1, 1]}[T]
    tk = lambda: takeb(per.pop(0))
    for k in range(2, T):
        emit(weave(A(k - 1), first_max(k - 2), tk()))
        if k == 2: bar2()
        if k < T - 1:
            getq(k)
            emit(weave(C(k - 2), D(k - 2), tk()))
        else:
            emit(weave(C(k - 2), first_max(k - 1), tk()))
            emit(D(k - 2))
            getq(k)
            emit(weave(C(k - 1), D(k - 1)[:8], tk()))
        e("s_waitcnt lgkmcnt(0)")
        emit(prescale(k))
    stamp(1)
    if opts["stamp"]: e("s_waitcnt lgkmcnt(0)")
    if T == 2:
        emit(weave(A(1), first_max(0), tk()))
        bar2()
        emit(weave(C(0), D(0), tk()))
    else:
        emit(weave(A(T - 1), D(T - 2)[8:], tk()))
    e(f"s_waitcnt vmcnt({younger('V0')})")
    e("s_barrier")
    emit(k_reads(2))
    emit(first_max(T - 1))
    emit(weave(C(T - 1), D(T - 1), tk()))
    assert not bulk and not per
    e(CNT)
    step(T, 1, True)
    stamp(2)
    e(f".p2align {opts['al']}")
    for _ in range(opts.get("pad", 0)): e("s_nop 0")
    lab(f"Lloop{T}")
    for t in (2, 3, 4, 5):
        step(T, t)
    e(f"s_branch Lloop{T}")
    for p in range(4):
        exit_stub(T, p)

def stamp_store(final=False):
    if not opts["stamp"]: return
    B = vP + 20
    if opts["stamp"] == 2:
        if not final: return
        e("s_waitcnt lgkmcnt(0)")
        e("s_mov_b32 s92, s90"); e("s_mov_b32 s93, s91"); e("s_mov_b32 s94, 256"); e("s_mov_b32 s95, 0x20000")
        e("s_mov_b64 exec, 1")
        e(f"v_mov_b32 v{B+8}, 0")
        e("s_not_b32 s96, s100"); e(f"v_mov_b32 v{B}, s96")
        e(f"buffer_atomic_umax v{B}, v{B+8}, s[92:95], 0 offen offset:32")
        e(f"v_mov_b32 v{B+1}, s{sST+12}")
        e(f"buffer_atomic_umax v{B+1}, v{B+8}, s[92:95], 0 offen offset:36")
        e(f"v_mov_b32 v{B+2}, s100")
        e(f"buffer_atomic_umax v{B+2}, v{B+8}, s[92:95], 0 offen offset:40")
        e(f"s_lshl_b32 s96, s2, 2"); e(f"s_add_u32 s96, s96, s{sW}")
        e("s_cmp_lg_u32 s96, 32"); e("s_cbranch_scc1 Lnodbg")
        e(f"s_sub_u32 s96, s99, s100"); e(f"v_mov_b32 v{B}, s96")
        e(f"s_sub_u32 s96, s{sST+2}, s97"); e(f"v_mov_b32 v{B+1}, s96")
        for i in range(1, 4):
            e(f"s_sub_u32 s96, s{sST+2*i+2}, s{sST+2*i}"); e(f"v_mov_b32 v{B+1+i}, s96")
        e(f"s_sub_u32 s96, s{sST}, s{sST+8}"); e(f"v_mov_b32 v{B+5}, s96")
        e(f"s_sub_u32 s96, s{sST+12}, s100"); e(f"v_mov_b32 v{B+6}, s96")
        e(f"v_mov_b32 v{B+7}, s100")
        e(f"buffer_store_dwordx4 {vr(B,4)}, v{B+8}, s[92:95], 0 offen")
        e(f"buffer_store_dwordx4 {vr(B+4,4)}, v{B+8}, s[92:95], 0 offen offset:16")
        lab("Lnodbg")
        return
    e("s_waitcnt lgkmcnt(0)")
    e("s_mov_b32 s92, s90"); e("s_mov_b32 s93, s91"); e("s_mov_b32 s94, 0x100000"); e("s_mov_b32 s95, 0x20000")
    e(f"s_lshl_b32 s96, s2, 2"); e(f"s_add_u32 s96, s96, s{sW}"); e("s_lshl_b32 s96, s96, 2")
    if final: e("s_add_u32 s96, s96, 3")
    else: e("s_add_u32 s96, s96, s97"); e("s_add_u32 s97, s97, 1")
    e("s_lshl_b32 s96, s96, 5")
    for i in range(5): e(f"v_mov_b32 v{B+i}, s{sST+2*i}")
    e(f"v_mov_b32 v{B+5}, s{sST+10}"); e(f"v_mov_b32 v{B+6}, s{sST+12}"); e(f"v_mov_b32 v{B+7}, s98")
    e(f"v_mov_b32 v{B+8}, 0")
    e("s_mov_b64 exec, 1")
    e(f"buffer_store_dwordx4 {vr(B,4)}, v{B+8}, s[92:95], s96 offen")
    e(f"buffer_store_dwordx4 {vr(B+4,4)}, v{B+8}, s[92:95], s96 offen offset:16")
    e("s_mov_b64 exec, -1")
    e("s_nop 2")

def epilogue(T):
    lab(f"Lepi{T}")
    stamp(4)
    if opts["stamp"]: e(f"s_memrealtime s[{sST+12}:{sST+13}]")
    stamp_store()
    if opts["epi"]:
        def swaps(t):
            pk = vQ + 32 + 16 * (t & 1)
            return [f"v_permlane16_swap_b32 v{pk+4*j+i}, v{pk+4*j+2+i}" for j in range(4) for i in range(2)]
        def dstores(t):
            pk = vQ + 32 + 16 * (t & 1)
            return [f"buffer_store_dwordx4 {vr(pk+4*j,4)}, v{vOw}, s[{sOut}:{sOut+3}], s{sT0} offen offset:{j*64}{ST}" for j in range(4)]
        emit(epi_cvt(0) + swaps(0))
        for t in range(1, T + 1):
            va = epi_acc(t) + epi_cvt(t) + swaps(t) if t < T else []
            st = dstores(t - 1)
            e(f"s_add_u32 s{sT0}, s{sOoff}, {(t-1)*16*ROWB}")
            if opts["epi"] == 2:
                emit(st[:2] + va[:24] + st[2:] + va[24:])
            else:
                for j in range(4):
                    e(st[j]); emit(va[14 * j:14 * (j + 1)])
                emit(va[56:])
    else:
        epilogue_lds(T)
    epilogue_end(T)

def epilogue_lds(T):
    emit(epi_cvt(0))
    for t in range(1, T + 1):
        va = epi_acc(t) + epi_cvt(t) if t < T else []
        w, r, st = epi_writes(t - 1), epi_reads(t - 1), epi_stores(t - 1)
        if t < T:
            g = [w[0:3], w[3:6], w[6:8] + r[0:2], r[2:4], [], [st[0], "s_waitcnt lgkmcnt(0)", st[1]], [st[2]], [st[3]], [st[4]]]
            cut = [0, 5, 10, 15, 20, 28, 38, 48, 58, 64]
            for i in range(9):
                emit(g[i]); emit(va[cut[i]:cut[i + 1]])
        else:
            emit(w + r)
            n = 4
            for x in st:
                if x.startswith("buffer"):
                    n -= 1
                    e(f"s_waitcnt lgkmcnt({n})")
                e(x)

def epilogue_end(T):
    if T in PROD:
        e(f"s_cmp_eq_u32 s{sD1n}, 0")
        e("s_cbranch_scc1 Ldone")
        e(f"s_mov_b32 s{sFirst}, 0")
        e(f"s_waitcnt vmcnt({4*T})")
        e("s_branch Lstart")
    else:
        e("s_branch Ldone")

def gen():
    L.append(open(os.path.join(os.path.dirname(os.path.abspath(__file__)), "header.txt")).read().rstrip())
    L.append(f"; @launch grid=({NWG},1,1) block=(256,1,1) lds={LDSZ}")
    L.append('.amdgcn_target "amdgcn-amd-amdhsa--gfx950"')
    L.append(".text")
    L.append(f".globl {NAME}_kernel")
    L.append(".p2align 8")
    L.append(f".type {NAME}_kernel,@function")
    lab(f"{NAME}_kernel")
    e(f"s_cmp_ge_u32 s2, {NWG}")
    e("s_cbranch_scc1 Lend")
    e(f"s_getpc_b64 s[{sPC}:{sPC+1}]")
    lab("Lpc")
    e("s_load_dwordx4 s[4:7], s[0:1], 0")
    e("s_load_dwordx2 s[8:9], s[0:1], 16")
    e("s_load_dwordx2 s[10:11], s[0:1], 32")
    if opts["pf"]:
        e(f"v_lshlrev_b32 v1, 7, v0")
        for i in range(opts["pf"] * 2):
            e(f"global_load_dword v{2+i}, v1, s[{sPC}:{sPC+1}]")
            e(f"v_add_u32 v1, 32768, v1")
    e(f"s_add_u32 s{sPC}, s{sPC}, Ltab-Lpc")
    e(f"s_addc_u32 s{sPC+1}, s{sPC+1}, 0")
    e("s_lshl_b32 s3, s2, 5")
    e(f"s_load_dwordx8 s[{sJ}:{sJ+7}], s[{sPC}:{sPC+1}], s3")
    if opts["stamp"]:
        e(f"s_load_dwordx2 s[90:91], s[0:1], {40 if opts['stamp'] == 2 else 48}")
        e("s_memrealtime s[100:101]")
        e("s_mov_b32 s97, 0")
    if opts.get("spin"):
        e("s_memrealtime s[100:101]")
        e("s_load_dwordx2 s[90:91], s[0:1], 40")
    if LIGHT:
        e("s_load_dwordx2 s[90:91], s[0:1], 48")
        e("s_memrealtime s[100:101]")
    w, ln, i16, g, x4, x5, x6 = range(vX, vX + 7)
    e(f"v_lshrrev_b32 v{w}, 6, v0")
    e(f"v_and_b32 v{ln}, 63, v0")
    e(f"v_readfirstlane_b32 s{sW}, v{w}")
    e(f"v_and_b32 v{i16}, 15, v{ln}")
    e(f"v_lshrrev_b32 v{g}, 4, v{ln}")
    e(f"v_xor_b32 v{x6}, v{i16}, v{g}")
    e(f"v_lshlrev_b32 v{x6}, 4, v{x6}")
    e(f"v_bfe_u32 v{x4}, v{ln}, 3, 1")
    e(f"v_lshlrev_b32 v{x4}, 12, v{x4}")
    e(f"v_and_b32 v{x5}, 7, v{ln}")
    e(f"v_lshl_add_u32 v{x4}, v{x5}, 8, v{x4}")
    e(f"v_add3_u32 v{vKa}, v{x4}, v{x6}, 0")
    e(f"v_add_u32 v{vKa}, 2048, v{vKa}")
    for s in range(1, 4):
        e(f"v_xor_b32 v{vKa+s}, {s*64}, v{vKa}")
    e(f"v_mul_u32_u24 v{x4}, {QW}, v{w}")
    e(f"v_lshl_add_u32 v{x4}, v{i16}, 8, v{x4}")
    e(f"v_add3_u32 v{x4}, v{x4}, v{x6}, 0")
    e(f"v_add_u32 v{vQa}, {QS}, v{x4}")
    e(f"v_lshlrev_b32 v{x4}, 12, v{w}")
    e(f"v_add_u32 v{x4}, {OS}, v{x4}")
    e(f"v_lshl_add_u32 v{vOr}, v{ln}, 4, v{x4}")
    e(f"v_lshl_add_u32 v{x4}, v{i16}, 8, v{x4}")
    e(f"v_lshrrev_b32 v{x5}, 1, v{g}")
    e(f"v_xor_b32 v{x5}, v{x5}, v{i16}")
    e(f"v_lshl_add_u32 v{x4}, v{x5}, 4, v{x4}")
    e(f"v_and_b32 v{x5}, 1, v{g}")
    e(f"v_lshl_add_u32 v{vOw}, v{x5}, 3, v{x4}")
    if opts["epi"]:
        e(f"v_lshlrev_b32 v{x4}, 12, v{i16}")
        e(f"v_lshl_add_u32 v{x4}, v{x5}, 5, v{x4}")
        e(f"v_lshrrev_b32 v{vOw}, 1, v{g}")
        e(f"v_lshl_add_u32 v{vOw}, v{vOw}, 4, v{x4}")
    e(f"v_lshrrev_b32 v{x4}, 1, v{g}")
    e(f"v_lshlrev_b32 v{x4}, 12, v{x4}")
    e(f"v_mul_u32_u24 v{x5}, {4*256+32}, v{x5}")
    e(f"v_add_u32 v{x4}, v{x4}, v{x5}")
    e(f"v_lshrrev_b32 v{x5}, 2, v{i16}")
    e(f"v_mul_u32_u24 v{x5}, {256+64}, v{x5}")
    e(f"v_add_u32 v{x4}, v{x4}, v{x5}")
    e(f"v_and_b32 v{x5}, 3, v{ln}")
    e(f"v_lshl_add_u32 v{vVa}, v{x5}, 3, v{x4}")
    for dt in range(1, 8):
        e(f"v_xor_b32 v{vVa+dt}, {dt*32}, v{vVa}")
    e(f"v_lshlrev_b32 v{vG4}, 2, v{g}")
    e(f"v_lshl_add_u32 v{vQd}, v{g}, 12, v{x6}")
    for i in range(1, 4):
        e(f"v_xor_b32 v{vQd+i}, {i*64}, v{vQd}")
        e(f"v_add_u32 v{vQd+i}, {i*(4*ROWB-1024)}, v{vQd+i}")
    e(f"v_lshl_add_u32 v{x5}, v{w}, 3, v{g}")
    e(f"v_xor_b32 v{x4}, v{vG4}, v{i16}")
    e(f"v_lshlrev_b32 v{x4}, 4, v{x4}")
    e(f"v_lshl_add_u32 v{vDV}, v{x5}, 12, v{x4}")
    e(f"v_xor_b32 v{vDV+1}, 32, v{vDV}")
    e(f"v_add_u32 v{vDV+1}, {4*ROWB-1024}, v{vDV+1}")
    e(f"v_and_b32 v{x4}, 15, v{x5}")
    e(f"v_xor_b32 v{x4}, v{x4}, v{i16}")
    e(f"v_lshlrev_b32 v{x4}, 4, v{x4}")
    e(f"v_lshl_add_u32 v{vDK}, v{x5}, 12, v{x4}")
    e(f"v_xor_b32 v{vDK+1}, 64, v{vDK}")
    e(f"v_add_u32 v{vDK}, {4096-2048}, v{vDK}")
    e(f"v_add_u32 v{vDK+1}, {4*ROWB+4096-3072}, v{vDK+1}")
    e(f"s_lshl_b32 s{sWB}, s{sW}, 12")
    e(f"s_mov_b32 s{sThr}, {hex(f32bits(BIAS if RS else 4096.0))}")
    if RS:
        for i in range(4): e(f"v_mov_b32 v{vOne+i}, 0x3f803f80")
    e(f"s_mov_b32 s{sC}, {hex(f32bits(128 ** -0.5 * math.log2(math.e)))}")
    e(f"s_mov_b32 s{sNeg}, {hex(f32bits(-1e30))}")
    e(f"s_mov_b32 s{sBig}, 0x40000000")
    e(f"s_mov_b32 s{sFirst}, 1")
    e(f"s_mul_i32 s{sQW}, s{sW}, {QW}")
    e(f"s_add_u32 s{sQW}, s{sQW}, {QS}")
    e("s_waitcnt lgkmcnt(0)")
    for srd, ptr in ((sQ, 4), (sK, 6), (sV, 8), (sOut, 10)):
        e(f"s_mov_b32 s{srd}, s{ptr}")
        e(f"s_mov_b32 s{srd+1}, s{ptr+1}")
        e(f"s_mov_b32 s{srd+2}, 0")
        e(f"s_mov_b32 s{srd+3}, 0x20000")
    e(f"s_mov_b32 s{sQc}, s4")
    e(f"s_mov_b32 s{sQc+1}, s5")
    e(f"s_mov_b32 s{sQc+2}, 0")
    e(f"s_mov_b32 s{sQc+3}, 0x20000")
    e(f"s_sub_u32 s{sK}, s{sK}, 4096")
    e(f"s_subb_u32 s{sK+1}, s{sK+1}, 0")
    def decode():
        e(f"s_mov_b32 s{sD0n}, s{sJ}")
        e(f"s_mov_b32 s{sD1n}, s{sJ+1}")
        e(f"s_mov_b64 s[{sJ}:{sJ+1}], s[{sJ+2}:{sJ+3}]")
        e(f"s_mov_b64 s[{sJ+2}:{sJ+3}], s[{sJ+4}:{sJ+5}]")
        e(f"s_mov_b64 s[{sJ+4}:{sJ+5}], s[{sJ+6}:{sJ+7}]")
        e(f"s_and_b32 s{sT0}, s{sD1n}, 0xfff")
        e(f"s_lshl_b32 s{sNRn}, s{sT0}, 12")
        e(f"s_add_u32 s{sNRn}, s{sNRn}, s{sD0n}")
        e(f"s_sub_u32 s{sNRn}, s{sNRn}, {ROWB-256}")
        e(f"s_sub_u32 s{sT0}, s{sT0}, 1")
        e(f"s_and_b32 s{sT0}, s{sT0}, 0xfe0")
        e(f"s_lshl_b32 s{sT0}, s{sT0}, 12")
        e(f"s_add_u32 s{sLastn}, s{sT0}, s{sD0n}")
        e(f"s_cmp_lg_u32 s{sD1n}, 0")
        e(f"s_cselect_b32 s{sNRn}, s{sNRn}, 0")
        e(f"s_mov_b32 s{sQ+2}, s{sNRn}")
        e(f"s_bfe_u32 s{sTn}, s{sD1n}, 0x30018")
        e(f"s_mul_i32 s{sT0}, s{sTn}, s{sW}")
        e(f"s_lshl_b32 s{sT0}, s{sT0}, 16")
        e(f"s_and_b32 s{sQoffn}, s{sD1n}, 0xfff000")
        e(f"s_add_u32 s{sQoffn}, s{sQoffn}, s{sD0n}")
        e(f"s_add_u32 s{sQoffn}, s{sQoffn}, s{sT0}")
    decode()
    emit(next_loads(1)[0])
    e(f"s_bitcmp1_b32 s{sD1n}, 28")
    e("s_cbranch_scc0 Leager")
    e("s_waitcnt vmcnt(0)")
    lab("Leager")
    emit(next_loads(1)[1])
    lab("Lstart")
    e(f"s_mov_b32 s{sD0}, s{sD0n}")
    e(f"s_mov_b32 s{sD1}, s{sD1n}")
    e(f"s_mov_b32 s{sLast}, s{sLastn}")
    e(f"s_mov_b32 s{sOut+2}, s{sNRn}")
    e(f"s_mov_b32 s{sV+2}, s{sNRn}")
    e(f"s_mov_b32 s{sQc+2}, s{sNRn}")
    e(f"s_mov_b32 s{sOoff}, s{sQoffn}")
    decode()
    e(f"s_and_b32 s{sL}, s{sD1}, 0xfff")
    e(f"s_add_u32 s{sN}, s{sL}, 31")
    e(f"s_lshr_b32 s{sN}, s{sN}, 5")
    e(f"s_sub_u32 s{sCnt}, s{sN}, 2")
    e(f"s_sub_u32 s{sT0}, s{sN}, 1")
    e(f"s_lshl_b32 s{sT0}, s{sT0}, 5")
    e(f"s_sub_u32 s{sRem}, s{sL}, s{sT0}")
    e(f"s_mov_b32 s{sOff}, s{sD0}")
    e(f"s_add_u32 s{sOffK}, s{sD0}, {2*TILEB}")
    stamp(0)
    e(f"s_bfe_u32 s{sT0}, s{sD1}, 0x30018")
    if opts["stamp"]:
        e(f"s_memrealtime s[{sST+10}:{sST+11}]")
        e(f"s_lshl_b32 s98, s{sT0}, 8"); e(f"s_add_u32 s98, s98, s{sN}")
        e("s_waitcnt lgkmcnt(0)")
        if opts["stamp"] == 2:
            e(f"s_mov_b32 s97, s{sST}"); e(f"s_mov_b32 s99, s{sST+10}")
    order = sorted(TS, key=lambda t: (t != 4, -t))
    for T in order[1:]:
        e(f"s_cmp_eq_u32 s{sT0}, {T}")
        e(f"s_cbranch_scc1 Lpro{T}")
    for T in order:
        prologue(T)
        epilogue(T)
    lab("Ldone")
    if opts.get("spin"):
        if opts.get("gref"):
            e("s_mov_b32 s92, s90"); e("s_mov_b32 s93, s91"); e("s_mov_b32 s94, 256"); e("s_mov_b32 s95, 0x20000")
            e("s_not_b32 s96, s100"); e("v_mov_b32 v0, s96"); e("v_mov_b32 v2, 0")
            e("s_mov_b64 exec, 1")
            e(f"s_cmp_lg_u32 s{sW}, 0"); e("s_cbranch_scc1 Lsp0")
            e("buffer_atomic_umax v0, v2, s[92:95], 0 offen")
            lab("Lsp0")
            e("s_memrealtime s[88:89]"); e("s_waitcnt lgkmcnt(0)"); e("s_sub_u32 s88, s88, s100")
            e(f"s_cmp_lt_u32 s88, 4500"); e("s_cbranch_scc1 Lsp0")
            e("buffer_load_dword v1, v2, s[92:95], 0 offen sc0 sc1")
            e("s_waitcnt vmcnt(0)")
            e("v_readfirstlane_b32 s96, v1"); e("s_nop 3"); e("s_not_b32 s100, s96")
        lab("Lspin")
        e("s_memrealtime s[88:89]")
        e("s_waitcnt lgkmcnt(0)")
        e("s_sub_u32 s88, s88, s100")
        e(f"s_cmp_lt_u32 s88, {opts['spin']}")
        e("s_cbranch_scc1 Lspin")
    if LIGHT:
        e("s_waitcnt vmcnt(0)")
        e("s_memrealtime s[88:89]")
        e("s_mov_b32 s92, s90"); e("s_mov_b32 s93, s91"); e("s_mov_b32 s94, 0x100000"); e("s_mov_b32 s95, 0x20000")
        e(f"s_lshl_b32 s96, s2, 2"); e(f"s_add_u32 s96, s96, s{sW}"); e("s_lshl_b32 s96, s96, 3")
        e("s_waitcnt lgkmcnt(0)")
        e("v_mov_b32 v0, s100"); e("v_mov_b32 v1, s88"); e("v_mov_b32 v2, 0")
        e("s_mov_b64 exec, 1")
        e("buffer_store_dwordx2 v[0:1], v2, s[92:95], s96 offen")
    if opts["stamp"]:
        e("s_waitcnt vmcnt(0)")
        stamp(0)
        e(f"s_memrealtime s[{sST+12}:{sST+13}]")
        e(f"s_mov_b32 s{sST+10}, s100")
        e("s_getreg_b32 s98, hwreg(HW_REG_HW_ID)")
        stamp_store(True)
    lab("Lend")
    e("s_endpgm")

    for tag, buf in STUBS:
        lab(f"Lrare_{tag}")
        e(f"s_call_b64 s[{sRet}:{sRet+1}], Lresc_{buf}")
        e(f"s_branch Lback_{tag}")
    for b in range(2):
        lab(f"Lresc_{b}")
        e("s_nop 15")
        for t in range(TM):
            s, s2 = sreg(b, t), sreg(b ^ 1, t)
            dl, al = vX, (vX + 8 + t if t < 4 else vX + 2)
            e(f"v_max3_f32 v{dl}, v{s}, v{s+1}, v{s+2}")
            e(f"v_max3_f32 v{dl}, v{dl}, v{s+3}, v{s+4}")
            e(f"v_max3_f32 v{dl}, v{dl}, v{s+5}, v{s+6}")
            if RS:
                e(f"v_max_f32 v{dl}, v{dl}, v{s+7}")
                e(f"v_add_f32 v{dl}, s{sThr}, v{dl}")
                e(f"v_max_f32 v{dl}, 0, v{dl}")
            else:
                e(f"v_max3_f32 v{dl}, v{dl}, v{s+7}, 0")
            emit(xlane("v_max_f32", [dl], vX + 1))
            e(f"v_sub_f32 v{al}, 0, v{dl}")
            e(f"v_exp_f32 v{al}, v{al}")
            for i in range(8):
                e(f"v_sub_f32 v{s+i}, v{s+i}, v{dl}")
                e(f"v_sub_f32 v{s2+i}, v{s2+i}, v{dl}")
            for i in range(4):
                e(f"v_sub_f32 v{vNM+4*t+i}, v{vNM+4*t+i}, v{dl}")
            if not RS:
                e(f"v_mul_f32 v{vL+t}, v{vL+t}, v{al}")
            elif t == 4:
                for i in range(4): e(f"v_mul_f32 v{vL4+i}, v{vL4+i}, v{al}")
            else:
                for i in range(4):
                    e(f"v_accvgpr_read_b32 v{vX+1}, a{aL+4*t+i}")
                    e(f"v_mul_f32 v{vX+1}, v{vX+1}, v{al}")
                    e(f"v_accvgpr_write_b32 a{aL+4*t+i}, v{vX+1}")
        emit(SM(TM, b, False).rest())
        if b == 0: e("s_branch LrescO")
    lab("LrescO")
    for t in range(TM):
        for i in range(0, 32, 4):
            al = vX + 8 + t if t < 4 else vX + 2
            for k in range(4): e(f"v_accvgpr_read_b32 v{vX+4+k}, a{aO+32*t+i+k}")
            for k in range(4): e(f"v_mul_f32 v{vX+4+k}, v{vX+4+k}, v{al}")
            for k in range(4): e(f"v_accvgpr_write_b32 a{aO+32*t+i+k}, v{vX+4+k}")
    e("s_nop 1")
    e(f"s_setpc_b64 s[{sRet}:{sRet+1}]")

    e(".p2align 5")
    L.append(".type Ltab,@object")
    lab("Ltab")
    for ent in TAB:
        e(".long " + ", ".join(str(x) for x in ent))
    L.append('.section .rodata,"a"')
    L.append(".p2align 6")
    L.append(f".amdhsa_kernel {NAME}_kernel")
    L.append("  .amdhsa_next_free_vgpr 512")
    L.append("  .amdhsa_next_free_sgpr 102")
    L.append("  .amdhsa_accum_offset 256")
    L.append("  .amdhsa_group_segment_fixed_size 0")
    L.append("  .amdhsa_kernarg_size 56")
    L.append("  .amdhsa_user_sgpr_count 2")
    L.append("  .amdhsa_user_sgpr_kernarg_segment_ptr 1")
    L.append("  .amdhsa_system_sgpr_workgroup_id_x 1")
    L.append(".end_amdhsa_kernel")

gen()
open(sys.argv[1], "w").write("\n".join(L) + "\n")
```

```python
import sys, struct, math, os

NAME = "standalone__varlen_attn_packed__ragged"
CU = [0, 534, 1426, 1714, 2675, 3469, 4036, 4628, 4845]
ROWB = 4096
TILEB = 32 * ROWB
QS = 65536
QW = 20480
OS = QS + 4 * QW
LDSZ = 163840
TM = 5

opts = dict(stamp=0, st="sc0+sc1", ld="", ldq="nt", al=3, e64=0, rs=1, epi=0, late=1, plan="b", rev=0, lc=4, pf=2, lazy=0)
for a in sys.argv[2:]:
    k, v = a.split("=")
    opts[k] = int(v) if v.lstrip("-").isdigit() else v
LD = (" " + opts["ld"].replace("+", " ")) if opts["ld"] else ""
LDQ = (" " + opts["ldq"].replace("+", " ")) if opts.get("ldq", opts["ld"]) and "ldq" in opts else ("" if "ldq" in opts else LD)
ST = (" " + opts["st"].replace("+", " ")) if opts["st"] else ""
DG = str(opts.get("diag", ""))

def f32bits(x):
    return struct.unpack("<I", struct.pack("<f", x))[0]

vQ = 0
vS = 64
vP = 144
vNM = 184
vKa = 204
vVa = 208
vDK = 216
vDV = 218
vQd = 220
vE = 224
vT = 228
vL = 233
vU = 238
vQa = 239
vOw = 240
vOr = 241
vG4 = 242
vU2 = 243
vX = 244
aO = 0
aKf = 160
aVf = 192
aQ = 224
aL = 240
vOne = 228
vL4 = 232
vAc = 236
BIAS = 20.0
RS = opts['rs']

sQ, sK, sV, sOut = 12, 16, 20, 24
sJ = 28
sD0, sD1 = 36, 37
sL, sN, sOff, sWB, sCnt, sLast, sThr, sC, sNeg, sW = 38, 39, 40, 41, 42, 43, 44, 45, 46, 47
sRet, sPC = 48, 52
sTn = 50
sRem, sQoffn, sOoff, sBig = 54, 55, 56, 57
sD0n, sD1n, sNRn, sLastn = 28, 29, 30, 31
sT0 = 61
sOffK = 63
sQW = 3
sFirst = 64
sQc = 8
sM = 68
sST = 76

L = []
def e(s): L.append("    " + s)
def lab(s): L.append(s + ":")
def vr(b, n): return f"v[{b}:{b+n-1}]"
def ar(b, n): return f"a[{b}:{b+n-1}]"
def emit(lines):
    for x in lines:
        if x.endswith(":"): L.append(x)
        else: e(x)
LIGHT = opts["stamp"] == 3
if LIGHT: opts["stamp"] = 0
def pstamp(idx):
    if opts["stamp"] and opts.get("pst"):
        e(f"s_memtime s[{sST+2*idx}:{sST+1+2*idx}]")
        e("s_waitcnt lgkmcnt(0)")
def stamp(idx):
    if opts.get("pst") and 1 <= idx <= 4: return
    if opts["stamp"]:
        e(f"s_memtime s[{sST+2*idx}:{sST+1+2*idx}]")

SEQ = []
for si in range(8):
    ln = CU[si + 1] - CU[si]
    SEQ.append((CU[si], ln, (ln + 63) // 64, (ln + 31) // 32))

PLANS = {
    "b": [[(31, 4)]] * 4 + [[(25, 5)]] * 2 + [[(25, 3), (7, 4)], [(18, 3), (17, 3)], [(18, 3), (17, 3)], [(18, 3), (17, 3)],
          [(19, 4), (9, 3)], [(28, 2), (19, 2)], [(19, 4), (9, 2)]] + [[(28, 4)]] * 3,
    "a": [[(31, 4)]] * 4 + [[(25, 5)]] * 2 + [[(17, 4), (18, 2)], [(19, 5), (7, 2)], [(25, 3), (9, 3)], [(28, 2), (18, 2)],
          [(17, 5), (9, 2)], [(18, 5), (7, 2)]] + [[(28, 4)]] * 3 + [[(19, 5)]],
}

def plan_head():
    n2s = {SEQ[i][3]: i for i in range(8)}
    nxt = {i: 0 for i in range(8)}
    spec = PLANS[opts["plan"]]
    res = [[None] * len(s) for s in spec]
    for want in (2, 3, 4, 5):
        for i, s in enumerate(spec):
            for k, (n, t) in enumerate(s):
                if t == want:
                    si = n2s[n]
                    res[i][k] = (si, nxt[si], t); nxt[si] += 64 * t
    for i in range(8):
        assert nxt[i] == SEQ[i][2] * 64, (i, nxt[i])
    if opts["rev"]:
        res = [list(reversed(r)) for r in res]
    return res

def make_table():
    ph = plan_head()
    tab = []
    for wg in range(256):
        x, j = wg & 7, wg >> 3
        head = 2 * x + (j & 1)
        ent = []
        for (si, q0, t) in ph[j >> 1]:
            st, ln, nb, n = SEQ[si]
            d0 = st * ROWB + head * 256
            ent += [d0, (n - 2) | ((ln - 32 * (n - 1)) << 6) | (q0 << 12) | (t << 24), d0 + (ln - 1) * ROWB + 256, d0 + (n - 1) * TILEB]
        assert len(ent) <= 8
        ent += [0] * (8 - len(ent))
        tab.append(ent)
    return tab

TAB = make_table()
PH = plan_head()
TS = sorted({t for jl in PH for _, _, t in jl}, reverse=True)
TAILS = {}
for jl in PH:
    for k, (si, q0, t) in enumerate(jl):
        TAILS.setdefault((t, (SEQ[si][3] - 1) % 4), set()).add(1 if k + 1 < len(jl) else 0)
PROD = {t for (t, p), v in TAILS.items() if v - {0}}
NWG = 256

MF = "v_mfma_f32_16x16x32_bf16"
def qreg(t, s):
    return vr(vQ + 16 * t + 4 * s, 4) if t < 4 else ar(aQ + 4 * s, 4)
def sreg(buf, t, a=0): return vS + 40 * buf + 8 * t + 4 * a
def preg(buf, t): return vP + 20 * buf + 4 * t

def qk1(buf, t, a, s, cinit, kf=None):
    d = sreg(buf, t, a)
    kf = aKf if kf is None else kf
    return f"{MF} {vr(d,4)}, {ar(kf+4*(a*4+s),4)}, {qreg(t,s)}, {vr(cinit if s == 0 else d,4)}"

def qk_mfmas(T, buf):
    return [qk1(buf, t, a, s, vNM + 4 * t) for a in range(2) for s in range(4) for t in range(T)]

ZERO = [False]
def pv1(buf, t, dt, vf):
    o = aO + 32 * t + 4 * dt
    return f"{MF} {ar(o,4)}, {ar(vf+4*dt,4)}, {vr(preg(buf,t),4)}, {'0' if ZERO[0] else ar(o,4)}"

def rs1(buf, t):
    l = ar(aL + 4 * t, 4) if t < 4 else vr(vL4, 4)
    return f"{MF} {l}, {vr(vOne,4)}, {vr(preg(buf,t),4)}, {'0' if ZERO[0] else l}"

def pv_mfmas(T, buf, vf=aVf):
    return [pv1(buf, t, dt, vf) for dt in range(8) for t in range(T)] + ([rs1(buf, t) for t in range(T)] if RS else [])

def zero_mfmas(T):
    return [f"v_mfma_f32_32x32x16_bf16 {ar(aO+16*i,16)}, {vr(vP+28,4)}, {vr(vP+28,4)}, 0" for i in range(2 * T)]

def k_reads(slot, kf=None):
    kf = aKf if kf is None else kf
    return [f"ds_read_b128 {ar(kf+4*(a*4+s),4)}, v{vKa+s} offset:{slot*16384+a*8192}" for a in range(2) for s in range(4)]

def v_reads(slot, vf=aVf):
    return [f"ds_read_b64_tr_b16 {ar(vf+4*dt+2*a,2)}, v{vVa+dt} offset:{slot*16384+a*8192}" for dt in range(8) for a in range(2)]

def m0set(off):
    return f"s_add_u32 m0, s{sWB}, {off}" if off else f"s_mov_b32 m0, s{sWB}"
def ldv(j, so):
    return f"buffer_load_dwordx4 v{vDV+j}, s[{sV}:{sV+3}], s{so} offen" + (f" offset:{j*1024}" if j else "") + f"{LD} lds"
def ldk(j, so):
    return f"buffer_load_dwordx4 v{vDK+j}, s[{sK}:{sK+3}], s{so} offen offset:{2048+j*1024}{LD} lds"

def dma(slot):
    return [m0set(slot * 16384),
            f"s_add_u32 s{sOff}, s{sOff}, {TILEB}",
            f"s_add_u32 s{sOffK}, s{sOffK}, {TILEB}",
            ldv(0, sOff), ldv(1, sOff), ldk(0, sOffK), ldk(1, sOffK)]

CHK = f"v_cmp_ne_u32 vcc, 0, v{vX}" if RS else f"v_cmp_lt_f32 vcc, s{sThr}, v{vX}"
ERING = [vE, vE + 2, vX + 4, vX + 6]
def softmax_ops(T, buf, full=True, R=4, t0=0):
    exps, sims = [], []
    done_after = []
    n = 4 * T
    for k in range(n):
        t, kk = divmod(k, 4)
        t += t0
        a = ERING[k % R]; b = a + 1
        need = done_after[k - R] if k >= R else 0
        exps += [(f"v_exp_f32 v{a}, v{sreg(buf,t)+2*kk}", need), (f"v_exp_f32 v{b}, v{sreg(buf,t)+2*kk+1}", need)]
        p = preg(buf, t) + kk
        u = vU if k & 1 else vU2
        ne = 2 * k + 2
        if RS:
            sims.append((f"v_cvt_pk_bf16_f32 v{p}, v{a}, v{b}", ne))
            done_after.append(len(sims))
            if full and (k & 1):
                sims.append((f"v_or_b32 v{vAc}, v{p-1}, v{p}" if k == 1 else f"v_or3_b32 v{vAc}, v{vAc}, v{p-1}, v{p}", ne))
        elif kk == 0:
            if full: sims.append((f"v_add_f32 v{vL+t}, v{vL+t}, v{vT+t}", 0))
            sims += [(f"v_cvt_pk_bf16_f32 v{p}, v{a}, v{b}", ne), (f"v_add_f32 v{vT+t}, v{a}, v{b}", ne)]
            done_after.append(len(sims))
        else:
            sims += [(f"v_add_f32 v{u}, v{a}, v{b}", ne), (f"v_cvt_pk_bf16_f32 v{p}, v{a}, v{b}", ne)]
            done_after.append(len(sims))
            sims.append((f"v_add_f32 v{vT+t}, v{vT+t}, v{u}", ne))
    if full and RS:
        sims += [(f"v_and_b32 v{vX}, 0x40004000, v{vAc}", 2 * n), (CHK, 2 * n)]
    elif full:
        m = [vT + t for t in range(T)]
        cur = m.pop(0)
        while m:
            if len(m) >= 2:
                sims.append((f"v_max3_f32 v{vX}, v{cur}, v{m[0]}, v{m[1]}", 2 * n)); m = m[2:]
            else:
                sims.append((f"v_max_f32 v{vX}, v{cur}, v{m[0]}", 2 * n)); m = []
            cur = vX
        sims.append((f"v_cmp_lt_f32 vcc, s{sThr}, v{cur}", 2 * n))
    return exps, sims

class SM:
    def __init__(s, T, buf, full=True, t0=0, R=4):
        s.ex, s.si = softmax_ops(T, buf, full, R, t0)
        s.i = s.j = 0
        s.last_exp = False
    def left(s): return 8 * (len(s.ex) - s.i) + 4 * (len(s.si) - s.j)
    def can_exp(s): return s.i < len(s.ex) and s.ex[s.i][1] <= s.j
    def can_sim(s):
        if s.j >= len(s.si): return False
        need = s.si[s.j][1]
        return need < s.i or (need == s.i and not s.last_exp)
    def exp(s): s.i += 1; s.last_exp = True; return s.ex[s.i - 1][0]
    def sim(s): s.j += 1; s.last_exp = False; return s.si[s.j - 1][0]
    def other(s): s.last_exp = False
    def any(s):
        if s.can_sim() and (s.si[s.j][1] <= s.i - 2 or not s.can_exp()): return s.sim()
        if s.can_exp(): return s.exp()
        if s.can_sim(): return s.sim()
        s.last_exp = False
        return "s_nop 0"
    def take(s, n): return [s.any() for _ in range(n) if s.left()]
    def rest(s):
        r = []
        while s.left(): r.append(s.any())
        return r

def is_mem(x): return x.startswith("ds_") or x.startswith("buffer_")

def pack(mf, fixed, sm=None, novalu=(), keep=0, cap=8):
    n = len(mf)
    def fcost(l):
        c = 0; ns = 0; nm = 0
        for x in l:
            if is_mem(x): c += 8 if nm else 4; nm += 1
            elif x.startswith("s_"): c += 4 if (ns or nm) else 0; ns += 1
            else: c += 4
        return c
    fc = [fcost(fixed.get(g, [])) for g in range(n)]
    out = []
    for g in range(n):
        out.append(mf[g])
        out += fixed.get(g, [])
        if sm is None: continue
        sm.other()
        if g in novalu: continue
        rem = [k for k in range(g, n) if k not in novalu]
        last = g == rem[-1]
        used = fc[g]
        while sm.left() > keep:
            later = sum(max(0, cap - fc[k]) for k in rem[1:])
            over = sm.left() - keep - later
            room = cap - used
            if room <= 0:
                if not last and over * 1.0 < 4 * 1.0 + 0 : break
                if not last and (used - cap + 4) * len(rem) > over + (used - cap) + 2 * len(rem): break
            nexp = len(sm.ex) - sm.i
            full_later = sum(1 for k in rem[1:] if cap - fc[k] >= 8)
            if room >= 8 and sm.can_exp() and (not sm.can_sim() or nexp > full_later * opts.get("eb", 70) // 100 or sm.si[sm.j][1] > sm.i - 4):
                out.append(sm.exp()); used += 8
            elif sm.can_sim():
                out.append(sm.sim()); used += 4
            elif sm.can_exp() and (room >= 8 or last or nexp + opts.get("slk", 2) > full_later or over > 0):
                out.append(sm.exp()); used += 8
            else:
                if last: out.append(sm.any()); used += 4
                else: break
    return out

STUBS = []
def check_rare(buf, tag):
    e(f"s_cbranch_vccnz Lrare_{tag}")
    lab(f"Lback_{tag}")
    STUBS.append((tag, buf))

def spread(items, gaps):
    d = {}
    gaps = list(gaps)
    for i, x in enumerate(items):
        d.setdefault(gaps[i * len(gaps) // len(items)], []).append(x)
    return d

def merge(*ds):
    r = {}
    for d in ds:
        for k, v in d.items():
            r.setdefault(k, []).extend(v)
    return r

def interleave(a, b):
    out = []
    if not a: return list(b)
    j = 0
    for i, x in enumerate(a):
        out.append(x)
        nj = (i + 1) * len(b) // len(a)
        out += b[j:nj]; j = nj
    return out

CNT = f"s_sub_u32 s{sCnt}, s{sCnt}, 1"

def place(items, gaps):
    groups = []
    cur = []
    for x in items:
        cur.append(x)
        if is_mem(x): groups.append(cur); cur = []
    if cur: groups.append(cur)
    gaps = list(gaps)
    d = {}
    for i, gr in enumerate(groups):
        d.setdefault(gaps[i * len(gaps) // len(groups)], []).extend(gr)
    return d

def qgroup(g, dyn=True):
    r = [f"s_add_u32 m0, s{sQW}, {g*4096}" if g else f"s_mov_b32 m0, s{sQW}",
         f"s_add_u32 s{sT0}, s{sQoffn}, {g*16*ROWB}"]
    if g >= 2 and dyn:
        r += [f"s_cmp_gt_u32 s{sTn}, {g}", f"s_cselect_b32 s{sT0}, s{sT0}, s{sBig}"]
    r += [f"buffer_load_dwordx4 v{vQd+i}, s[{sQ}:{sQ+3}], s{sT0} offen offset:{i*1024}{LDQ} lds" for i in range(4)]
    return r

def step(T, t, prod=False):
    p = t % 4
    b = t % 2
    h = 8 * T
    ZERO[0] = prod
    mf = qk_mfmas(T, b ^ 1) + pv_mfmas(T, b ^ 1)
    ZERO[0] = False
    kr = k_reads((t + 2) % 4)
    d = dma((t + 1) % 4)
    sm = SM(T, b)
    n = len(mf)
    vrd = v_reads((t + 1) % 4)
    vm = opts.get('vm', 8)
    end = [CNT] if prod else [CNT, "s_cselect_b64 vcc, -1, vcc"]
    if T >= 3:
        kd = [kr[0], kr[1], d[3], kr[2], kr[3], d[4], kr[4], kr[5], d[5], kr[6], kr[7], d[6]]
        fixed = merge(place(vrd, range(0, h - 5)),
                      {h - 1: [f"s_waitcnt vmcnt({vm}) lgkmcnt(0)", "s_barrier"]},
                      {h - 4: [d[0]], h - 3: [d[1]], h - 2: [d[2]]},
                      place(kd, range(h, n - 3)),
                      {n - 2: [end[0]], n - 1: end[1:]})
    else:
        kd = [kr[0], kr[1], d[3], kr[2], kr[3], kr[4], d[4], kr[5], kr[6], kr[7], d[5]]
        fixed = merge(place(vrd, range(0, 12)),
                      {h - 1: [f"s_waitcnt vmcnt({vm}) lgkmcnt(0)", "s_barrier"]},
                      {h - 4: [d[0]], h - 3: [d[1]], h - 2: [d[2]]},
                      place(kd, range(h, n - 5)),
                      {n - 2: [end[0], d[6]], n - 1: end[1:]})
    e("s_waitcnt lgkmcnt(0)")
    body = pack(mf, fixed, sm, (h - 1, n - 1))
    if DG and not prod:
        body = [x for x in body if not (("d" in DG and x.startswith("buffer_load")) or ("b" in DG and x.startswith("s_barrier"))
                or ("l" in DG and x.startswith("ds_read")) or ("w" in DG and x.startswith("s_waitcnt"))
                or ("v" in DG and x.startswith(("v_exp", "v_cvt", "v_or"))))]
    if opts["e64"]:
        body = [x.replace("v_exp_f32 ", "v_exp_f32_e64 ").replace("v_add_f32 ", "v_add_f32_e64 ").replace("v_max_f32 ", "v_max_f32_e64 ") for x in body]
    emit(body)
    assert sm.left() == 0
    if prod:
        check_rare(b, f"t{T}p{p}")
    else:
        e(f"s_cbranch_vccnz Lx{T}_{p}")
        lab(f"Lxb{T}_{p}")

def exit_stub(T, p):
    lab(f"Lx{T}_{p}")
    e(CHK)
    check_rare(p % 2, f"x{T}_{p}")
    np_ = (p + 1) % 4
    nx = sorted(TAILS.get((T, np_), ()))
    if not nx:
        e(f"s_branch Lxb{T}_{p}")
        return
    e(f"s_cbranch_scc0 Lxb{T}_{p}")
    for tn in nx[1:]:
        e(f"s_cmp_lg_u32 s{sD1n}, 0")
        e(f"s_cbranch_scc1 Ltail{T}_{np_}_{tn}")
    for tn in nx:
        tail(T, np_, tn)

def ktile(u):
    return [m0set(u * 16384), f"s_add_u32 s{sT0}, s{sD0}, {(u-1)*TILEB}", ldk(0, sT0), ldk(1, sT0)]
def vtile(u):
    so = sLast if u == 0 else sD0
    return [m0set(((u + 2) % 4) * 16384), "s_nop 0", ldv(0, so), ldv(1, so)]
def next_k0():
    return [m0set(0), f"s_add_u32 s{sK+2}, s{sNRn}, 4096", ldk(0, sLastn), ldk(1, sLastn)]
def next_k1():
    return [m0set(16384), "s_nop 0", ldk(0, sD0n), ldk(1, sD0n)]

def tail(T, p, tn):
    b = p % 2
    lab(f"Ltail{T}_{p}_{tn}")
    stamp(3)
    if opts["stamp"]: e("s_waitcnt lgkmcnt(0)")
    vrd = v_reads((p + 1) % 4)
    vrd2 = v_reads((p + 2) % 4, aKf)
    sm = SM(T, b)
    mf = pv_mfmas(T, b ^ 1)
    if RS: mf = mf[-T:] + mf[:-T]
    o = T if RS else 0
    if opts.get("tl", 0):
        pre = 6
        emit(vrd[:pre])
        emit(sm.take(6))
        g1 = o + 3 * T
        fixed = place(vrd[pre:], range(0, g1))
        issued = {g: pre + sum(len(fixed.get(k, [])) for k in range(g + 1)) for g in range(-1, len(mf))}
        for dt in range(0, 4):
            g = o + dt * T - 1
            w = f"s_waitcnt lgkmcnt({max(0, issued[g] - 2 * dt - 2)})"
            if g < 0: e(w)
            else: fixed.setdefault(g, []).append(w)
        gb = o + 4 * T - 1
        fixed.setdefault(gb, []).extend(["s_waitcnt vmcnt(8) lgkmcnt(0)", "s_barrier"])
        rest = range(gb + 1, len(mf))
        fixed = merge(fixed, place(vrd2, rest))
        if tn: fixed = merge(fixed, place(next_loads(tn)[0], rest))
    else:
        emit(vrd)
        emit(sm.take(12))
        e("s_waitcnt vmcnt(8) lgkmcnt(0)")
        e("s_barrier")
        fixed = place(vrd2, range(len(mf) - 2))
        if tn:
            fixed = merge(fixed, place(next_loads(tn)[0], range(len(mf))))
    emit(pack(mf, fixed, sm))
    assert sm.left() == 0
    check_rare(b, f"t{T}t{p}_{tn}")
    fin(T, b, tn)

def next_loads(tn):
    return next_k0() + qgroup(0, False), qgroup(1, False) + next_k1()

def xlane(op, regs, tmp):
    r = []
    for sw in ("v_permlane32_swap_b32", "v_permlane16_swap_b32"):
        r += [f"v_mov_b32 v{tmp+i}, v{x}" for i, x in enumerate(regs)]
        r += ["s_nop 1"]
        r += [f"{sw} v{x}, v{tmp+i}" for i, x in enumerate(regs)]
        r += ["s_nop 1"]
        r += [f"{op} v{x}, v{x}, v{tmp+i}" for i, x in enumerate(regs)]
    return r

vOA = vNM
vLI = vNM + 8
def epi_acc(t):
    return [f"v_accvgpr_read_b32 v{vQ+i}, a{aO+32*t+i}" for i in range(32)]
def epi_cvt(t):
    r = [f"v_pk_mul_f32 {vr(vQ+2*i,2)}, {vr(vQ+2*i,2)}, {vr(vLI+2*(t//2),2)} " +
         ("op_sel:[0,1] op_sel_hi:[1,1]" if t & 1 else "op_sel_hi:[1,0]") for i in range(16)]
    r += [f"v_cvt_pk_bf16_f32 v{vQ+32+16*(t&1)+i}, v{vQ+2*i}, v{vQ+2*i+1}" for i in range(16)]
    return r
def epi_writes(t):
    return [f"ds_write_b64 v{vOA+dt}, {vr(vQ+32+16*(t&1)+2*dt,2)}" for dt in range(8)]
def epi_reads(t):
    return [f"ds_read_b128 {vr(vS+16*t+4*i,4)}, v{vOr} offset:{i*1024}" for i in range(4)]
def epi_stores(t):
    return [f"s_add_u32 s{sT0}, s{sOoff}, {t*16*ROWB}"] + \
           [f"buffer_store_dwordx4 {vr(vS+16*t+4*i,4)}, v{vQd+i}, s[{sOut}:{sOut+3}], s{sT0} offen offset:{i*1024}{ST}" for i in range(4)]

def fin(T, b, tn):
    if not RS: e("s_waitcnt lgkmcnt(0)")
    mf = [pv1(b, t, dt, aKf) for t in range(T) for dt in range(8)]
    regs = [vL + t for t in range(T)]
    xo = [f"v_xor_b32 v{vOA+dt}, {dt*32}, v{vOw}" for dt in range(8)] if not opts["epi"] else ["s_nop 0"]
    if RS:
        mf = [rs1(b, t) for t in range(T)] + mf
        ls = [f"v_accvgpr_read_b32 v{vX+t}, a{aL+4*t}" if t < 4 else f"v_mov_b32 v{vX+t}, v{vL4}" for t in range(T)] + \
             [f"v_rcp_f32 v{vLI+t}, v{vX+t}" for t in range(T)] + epi_acc(0)
        fixed = merge({T - 1: ["s_waitcnt lgkmcnt(6)"], T + 4: ["s_waitcnt lgkmcnt(0)"]},
                      spread(xo, range(T + 8)), spread(ls, range(T + 8, len(mf))))
    else:
        ls = [f"v_add_f32 v{vL+t}, v{vL+t}, v{vT+t}" for t in range(T)] + xlane("v_add_f32", regs, vX) + \
             [f"v_rcp_f32 v{vLI+t}, v{vL+t}" for t in range(T)] + xo + epi_acc(0)
        fixed = spread(ls, range(len(mf)))
    if tn: fixed = merge(place(next_loads(tn)[1], range(len(mf))), fixed)
    emit(pack(mf, fixed))
    e(f"s_branch Lepi{T}")

def first_max(t):
    s0 = sreg(0, t)
    m = vX + 2
    r = [f"v_max3_f32 v{m}, v{s0}, v{s0+1}, v{s0+2}", f"v_max3_f32 v{m}, v{m}, v{s0+3}, v{s0+4}",
         f"v_max3_f32 v{m}, v{m}, v{s0+5}, v{s0+6}", f"v_max_f32 v{m}, v{m}, v{s0+7}"]
    r += xlane("v_max_f32", [m], vX + 3)
    if RS: r += [f"v_add_f32 v{m}, s{sThr}, v{m}"]
    r += [f"v_sub_f32 v{vNM+4*t+i}, 0, v{m}" for i in range(4)]
    r += [f"v_sub_f32 v{s0+i}, v{s0+i}, v{m}" for i in range(8)]
    return r

def qraw(t, k=0):
    return vQ + 16 * t + k if t < 4 else sreg(k // 8, 4) + k % 8
def prescale(t):
    r = []
    for k in range(0, 16, 2):
        q = qraw(t, k)
        for i in range(2):
            r += [f"v_lshlrev_b32 v{vX+2*i}, 16, v{q+i}", f"v_and_b32 v{vX+2*i+1}, 0xffff0000, v{q+i}"]
        for i in range(2):
            r += [f"v_pk_mul_f32 {vr(vX+2*i,2)}, {vr(vX+2*i,2)}, s[{sThr}:{sC}] op_sel:[0,1] op_sel_hi:[1,1]"]
        for i in range(2):
            r += [f"v_cvt_pk_bf16_f32 v{q+i}, v{vX+2*i}, v{vX+2*i+1}"]
        if t == 4: r += [f"v_accvgpr_write_b32 a{aQ+k+i}, v{q+i}" for i in range(2)]
    return r

def first_only(lines):
    i = len(L)
    e(f"s_cmp_eq_u32 s{sFirst}, 0")
    e(f"s_cbranch_scc1 Lw{i}")
    emit(lines)
    lab(f"Lw{i}")

def nvm(l): return sum(x.startswith("buffer") for x in l)

vMK = vP + 20
def weave(mfs, valu, mem):
    d = place(mem, range(len(mfs))) if mem else {}
    out = []
    j = 0
    nops = [i for i, x in enumerate(valu) if x == "s_nop 1"]
    if nops and len(mfs) > len(nops):
        extra = len(mfs) - len(nops)
        free = [i for i in range(len(valu)) if i not in nops and i - 1 not in nops]
        head = [0, 2][:min(2, extra)]
        tailp = [i for i in free if i > nops[-1] + 1]
        more = [tailp[k * len(tailp) // (extra - len(head))] for k in range(extra - len(head))]
        cuts = sorted(set(nops + head + more))
        assert len(cuts) == len(mfs)
        k = 0
        for i, x in enumerate(valu):
            if i in cuts:
                out.append(mfs[k])
                m = d.get(k, []); k += 1
                if x == "s_nop 1":
                    out += m if m else ["s_nop 0"]
                    continue
                out += m
            out.append(x)
        return out
    for i, x in enumerate(mfs):
        out.append(x)
        out += d.get(i, [])
        nj = (i + 1) * len(valu) // len(mfs)
        out += valu[j:nj]; j = nj
    return out

def prologue(T):
    lab(f"Lpro{T}")
    def qcur(g):
        return [x.replace(f"s{sQoffn}", f"s{sOoff}").replace(f"s[{sQ}:{sQ+3}]", f"s[{sQc}:{sQc+3}]") for x in qgroup(g, False)]
    q = ["K0"] * 2 + ["Q0"] * 4 + ["Q1"] * 4 + ["K1"] * 2
    def younger(tag): return len(q) - 1 - max(i for i, x in enumerate(q) if x == tag)
    for s in range(4):
        e(f"v_xor_b32 v{vX+8+s}, {s*64}, v{vQa}")
    pre = [f"v_sub_u32 v{vX}, s{sRem}, v{vG4}", f"v_mov_b32 v{vX+1}, s{sNeg}"]
    for a in range(2):
        pre += [f"v_cmp_lt_i32 s[{sM+2*i}:{sM+2*i+1}], {16*a+i}, v{vX}" for i in range(4)] + ["s_nop 0"]
        pre += [f"v_cndmask_b32 v{vMK+4*a+i}, v{vX+1}, 0, s[{sM+2*i}:{sM+2*i+1}]" for i in range(4)]
    if not RS: pre += [f"v_mov_b32 v{vL+t}, 0" for t in range(T)]
    def qreads(t):
        return [f"ds_read_b128 {vr(qraw(t,4*s),4)}, v{vX+8+s} offset:{t*4096}" for s in range(4)]
    A = lambda t: [qk1(0, t, a, s, vMK + 4 * a) for a in range(2) for s in range(4)]
    C = lambda t: [qk1(1, t, a, s, vNM + 4 * t, aVf) for a in range(2) for s in range(4)]
    def sparse(mem, valu):
        d = place(mem, range(max(1, nvm(mem))))
        out = []; j = 0
        for i in range(len(d)):
            out += d[i]
            nj = (i + 1) * len(valu) // len(d)
            out += valu[j:nj]; j = nj
        return out
    if T > 2:
        emit(sparse(qcur(2), pre)); q += ["Q2"] * 4
        pre = []
    first_only([f"s_waitcnt vmcnt({younger('Q0')})"])
    pstamp(1)
    emit(qreads(0))
    emit(pre)
    e("s_waitcnt lgkmcnt(0)")
    if T > 3:
        emit(sparse(qcur(3), prescale(0))); q += ["Q3"] * 4
    else:
        emit(prescale(0))
    first_only([f"s_waitcnt vmcnt({younger('K1')})"])
    pstamp(2)
    emit(qreads(1))
    e("s_barrier")
    emit(k_reads(0))
    e("s_waitcnt lgkmcnt(8)")
    ps = prescale(1)
    if T > 4:
        emit(sparse(qcur(4), ps[:32])); q += ["Q4"] * 4
    else:
        emit(ps[:32])
    emit(k_reads(1, aVf))
    e("s_waitcnt lgkmcnt(8)")
    bulk = [("K2", ktile(2)), ("V0", vtile(0)), ("K3", ktile(3)), ("V1", vtile(1)), ("G", dma(0)[:5]), ("G", dma(0)[5:]),
            ("H", dma(1)[:5]), ("H", dma(1)[5:])]
    def takeb(n):
        nonlocal bulk
        r = []
        for tag, l in bulk[:n]:
            r += l; q.extend([tag] * nvm(l))
        bulk = bulk[n:]
        return r
    emit(weave(A(0), [], takeb(1) if T == 2 else []))
    emit(sparse(takeb(1), ps[32:]) if T <= 3 else ps[32:])
    D = lambda t: SM(1, 0, False, t, 2).rest()
    def getq(k):
        e(f"s_waitcnt vmcnt({younger(f'Q{k}')})")
        if k <= 3: pstamp(k + 1)
        emit(qreads(k))
    def bar2():
        e("s_waitcnt lgkmcnt(0)")
        e("s_barrier")
    per = {2: [2, 2, 2], 3: [1, 1, 1, 2, 2], 4: [1, 1, 1, 1, 1, 1, 2], 5: [0, 1, 1, 1, 1, 1, 1, 1, 1]}[T]
    tk = lambda: takeb(per.pop(0))
    for k in range(2, T):
        emit(weave(A(k - 1), first_max(k - 2), tk()))
        if k == 2: bar2()
        if k < T - 1:
            getq(k)
            emit(weave(C(k - 2), D(k - 2), tk()))
        else:
            emit(weave(C(k - 2), first_max(k - 1), tk()))
            emit(D(k - 2))
            getq(k)
            emit(weave(C(k - 1), D(k - 1)[:8], tk()))
        e("s_waitcnt lgkmcnt(0)")
        emit(prescale(k))
    stamp(1)
    if opts["stamp"]: e("s_waitcnt lgkmcnt(0)")
    if T == 2:
        emit(weave(A(1), first_max(0), tk()))
        bar2()
        emit(weave(C(0), D(0), tk()))
    else:
        emit(weave(A(T - 1), D(T - 2)[8:], tk()))
    e(f"s_waitcnt vmcnt({younger('V0')})")
    e("s_barrier")
    emit(k_reads(2))
    emit(first_max(T - 1))
    emit(weave(C(T - 1), D(T - 1), tk()))
    assert not bulk and not per
    e(CNT)
    step(T, 1, True)
    stamp(2)
    e(f".p2align {opts['al']}")
    for _ in range(opts.get("pad", 0)): e("s_nop 0")
    lab(f"Lloop{T}")
    for t in (2, 3, 4, 5):
        step(T, t)
    e(f"s_branch Lloop{T}")
    for p in range(4):
        exit_stub(T, p)

def stamp_store(final=False):
    if not opts["stamp"]: return
    B = vP + 20
    if opts["stamp"] == 2:
        if not final: return
        e("s_waitcnt lgkmcnt(0)")
        e("s_mov_b32 s92, s90"); e("s_mov_b32 s93, s91"); e("s_mov_b32 s94, 256"); e("s_mov_b32 s95, 0x20000")
        e("s_mov_b64 exec, 1")
        e(f"v_mov_b32 v{B+8}, 0")
        e("s_not_b32 s96, s100"); e(f"v_mov_b32 v{B}, s96")
        e(f"buffer_atomic_umax v{B}, v{B+8}, s[92:95], 0 offen offset:32")
        e(f"v_mov_b32 v{B+1}, s{sST+12}")
        e(f"buffer_atomic_umax v{B+1}, v{B+8}, s[92:95], 0 offen offset:36")
        e(f"v_mov_b32 v{B+2}, s100")
        e(f"buffer_atomic_umax v{B+2}, v{B+8}, s[92:95], 0 offen offset:40")
        e(f"s_lshl_b32 s96, s2, 2"); e(f"s_add_u32 s96, s96, s{sW}")
        e("s_cmp_lg_u32 s96, 32"); e("s_cbranch_scc1 Lnodbg")
        e(f"s_sub_u32 s96, s99, s100"); e(f"v_mov_b32 v{B}, s96")
        e(f"s_sub_u32 s96, s{sST+2}, s97"); e(f"v_mov_b32 v{B+1}, s96")
        for i in range(1, 4):
            e(f"s_sub_u32 s96, s{sST+2*i+2}, s{sST+2*i}"); e(f"v_mov_b32 v{B+1+i}, s96")
        e(f"s_sub_u32 s96, s{sST}, s{sST+8}"); e(f"v_mov_b32 v{B+5}, s96")
        e(f"s_sub_u32 s96, s{sST+12}, s100"); e(f"v_mov_b32 v{B+6}, s96")
        e(f"v_mov_b32 v{B+7}, s100")
        e(f"buffer_store_dwordx4 {vr(B,4)}, v{B+8}, s[92:95], 0 offen")
        e(f"buffer_store_dwordx4 {vr(B+4,4)}, v{B+8}, s[92:95], 0 offen offset:16")
        lab("Lnodbg")
        return
    e("s_waitcnt lgkmcnt(0)")
    e("s_mov_b32 s92, s90"); e("s_mov_b32 s93, s91"); e("s_mov_b32 s94, 0x100000"); e("s_mov_b32 s95, 0x20000")
    e(f"s_lshl_b32 s96, s2, 2"); e(f"s_add_u32 s96, s96, s{sW}"); e("s_lshl_b32 s96, s96, 2")
    if final: e("s_add_u32 s96, s96, 3")
    else: e("s_add_u32 s96, s96, s97"); e("s_add_u32 s97, s97, 1")
    e("s_lshl_b32 s96, s96, 5")
    for i in range(5): e(f"v_mov_b32 v{B+i}, s{sST+2*i}")
    e(f"v_mov_b32 v{B+5}, s{sST+10}"); e(f"v_mov_b32 v{B+6}, s{sST+12}"); e(f"v_mov_b32 v{B+7}, s98")
    e(f"v_mov_b32 v{B+8}, 0")
    e("s_mov_b64 exec, 1")
    e(f"buffer_store_dwordx4 {vr(B,4)}, v{B+8}, s[92:95], s96 offen")
    e(f"buffer_store_dwordx4 {vr(B+4,4)}, v{B+8}, s[92:95], s96 offen offset:16")
    e("s_mov_b64 exec, -1")
    e("s_nop 2")

def epilogue(T):
    lab(f"Lepi{T}")
    stamp(4)
    if opts["stamp"]: e(f"s_memrealtime s[{sST+12}:{sST+13}]")
    stamp_store()
    if opts["epi"]:
        def swaps(t):
            pk = vQ + 32 + 16 * (t & 1)
            return [f"v_permlane16_swap_b32 v{pk+4*j+i}, v{pk+4*j+2+i}" for j in range(4) for i in range(2)]
        def dstores(t):
            pk = vQ + 32 + 16 * (t & 1)
            return [f"buffer_store_dwordx4 {vr(pk+4*j,4)}, v{vOw}, s[{sOut}:{sOut+3}], s{sT0} offen offset:{j*64}{ST}" for j in range(4)]
        emit(epi_cvt(0) + swaps(0))
        for t in range(1, T + 1):
            va = epi_acc(t) + epi_cvt(t) + swaps(t) if t < T else []
            st = dstores(t - 1)
            e(f"s_add_u32 s{sT0}, s{sOoff}, {(t-1)*16*ROWB}")
            if opts["epi"] == 2:
                emit(st[:2] + va[:24] + st[2:] + va[24:])
            else:
                for j in range(4):
                    e(st[j]); emit(va[14 * j:14 * (j + 1)])
                emit(va[56:])
    else:
        epilogue_lds(T)
    epilogue_end(T)

def epilogue_lds(T):
    emit(epi_cvt(0))
    for t in range(1, T + 1):
        va = epi_acc(t) + epi_cvt(t) if t < T else []
        w, r, st = epi_writes(t - 1), epi_reads(t - 1), epi_stores(t - 1)
        if t < T:
            g = [w[0:3], w[3:6], w[6:8] + r[0:2], r[2:4], [], [st[0], "s_waitcnt lgkmcnt(0)", st[1]], [st[2]], [st[3]], [st[4]]]
            cut = [0, 5, 10, 15, 20, 28, 38, 48, 58, 64]
            for i in range(9):
                emit(g[i]); emit(va[cut[i]:cut[i + 1]])
        else:
            emit(w + r)
            n = 4
            for x in st:
                if x.startswith("buffer"):
                    n -= 1
                    e(f"s_waitcnt lgkmcnt({n})")
                e(x)

def epilogue_end(T):
    if T in PROD:
        e(f"s_cmp_eq_u32 s{sD1n}, 0")
        e("s_cbranch_scc1 Ldone")
        e(f"s_mov_b32 s{sFirst}, 0")
        e(f"s_waitcnt vmcnt({4*T})")
        e("s_branch Lstart")
    else:
        e("s_branch Ldone")

def gen():
    L.append(open(os.path.join(os.path.dirname(os.path.abspath(__file__)), "header.txt")).read().rstrip())
    L.append(f"; @launch grid=({NWG},1,1) block=(256,1,1) lds={LDSZ}")
    L.append('.amdgcn_target "amdgcn-amd-amdhsa--gfx950"')
    L.append(".text")
    L.append(f".globl {NAME}_kernel")
    L.append(".p2align 8")
    L.append(f".type {NAME}_kernel,@function")
    lab(f"{NAME}_kernel")
    e(f"s_cmp_ge_u32 s2, {NWG}")
    e("s_cbranch_scc1 Lend")
    e(f"s_getpc_b64 s[{sPC}:{sPC+1}]")
    lab("Lpc")
    e(f"s_add_u32 s4, s{sPC}, Ltab-Lpc")
    e(f"s_addc_u32 s5, s{sPC+1}, 0")
    e("s_lshl_b32 s3, s2, 5")
    e(f"s_load_dwordx8 s[{sJ}:{sJ+7}], s[4:5], s3")
    for srd, off in ((sK, 8), (sQ, 0), (sV, 16), (sOut, 32), (sQc, 0)):
        e(f"s_load_dwordx2 s[{srd}:{srd+1}], s[0:1], {off}")
    if opts["pf"] == 1:
        e(f"v_lshlrev_b32 v1, 7, v0")
        for i in range(2):
            e(f"global_load_dword v{2+i}, v1, s[{sPC}:{sPC+1}]")
            e(f"v_add_u32 v1, 32768, v1")
    elif opts["pf"] == 2:
        e("s_lshr_b32 s3, s2, 3")
        e("s_mul_i32 s3, s3, 2560")
        e("v_lshrrev_b32 v1, 6, v0")
        e("v_mul_u32_u24 v1, 640, v1")
        e("v_and_b32 v2, 7, v0")
        e("v_min_u32 v2, 4, v2")
        e("v_lshl_add_u32 v1, v2, 7, v1")
        e("v_add_u32 v1, s3, v1")
        e("v_min_u32 v1, Ltab-Lpc, v1")
        e(f"global_load_dword v2, v1, s[{sPC}:{sPC+1}]")
    if opts["stamp"]:
        e(f"s_load_dwordx2 s[90:91], s[0:1], {40 if opts['stamp'] == 2 else 48}")
        e("s_memrealtime s[100:101]")
        e("s_mov_b32 s97, 0")
    if opts.get("spin"):
        e("s_memrealtime s[100:101]")
        e("s_load_dwordx2 s[90:91], s[0:1], 40")
    if LIGHT:
        e("s_load_dwordx2 s[90:91], s[0:1], 48")
        e("s_memrealtime s[100:101]")
    w, ln, i16, g, x4, x5, x6 = range(vX, vX + 7)
    e(f"v_lshrrev_b32 v{w}, 6, v0")
    e(f"v_and_b32 v{ln}, 63, v0")
    e(f"v_readfirstlane_b32 s{sW}, v{w}")
    e(f"v_and_b32 v{i16}, 15, v{ln}")
    e(f"v_lshrrev_b32 v{g}, 4, v{ln}")
    e(f"v_xor_b32 v{x6}, v{i16}, v{g}")
    e(f"v_lshlrev_b32 v{x6}, 4, v{x6}")
    mark = len(L)
    e(f"v_bfe_u32 v{x4}, v{ln}, 3, 1")
    e(f"v_lshlrev_b32 v{x4}, 12, v{x4}")
    e(f"v_and_b32 v{x5}, 7, v{ln}")
    e(f"v_lshl_add_u32 v{x4}, v{x5}, 8, v{x4}")
    e(f"v_add3_u32 v{vKa}, v{x4}, v{x6}, 0")
    e(f"v_add_u32 v{vKa}, 2048, v{vKa}")
    for s in range(1, 4):
        e(f"v_xor_b32 v{vKa+s}, {s*64}, v{vKa}")
    e(f"v_mul_u32_u24 v{x4}, {QW}, v{w}")
    e(f"v_lshl_add_u32 v{x4}, v{i16}, 8, v{x4}")
    e(f"v_add3_u32 v{x4}, v{x4}, v{x6}, 0")
    e(f"v_add_u32 v{vQa}, {QS}, v{x4}")
    e(f"v_lshlrev_b32 v{x4}, 12, v{w}")
    e(f"v_add_u32 v{x4}, {OS}, v{x4}")
    e(f"v_lshl_add_u32 v{vOr}, v{ln}, 4, v{x4}")
    e(f"v_lshl_add_u32 v{x4}, v{i16}, 8, v{x4}")
    e(f"v_lshrrev_b32 v{x5}, 1, v{g}")
    e(f"v_xor_b32 v{x5}, v{x5}, v{i16}")
    e(f"v_lshl_add_u32 v{x4}, v{x5}, 4, v{x4}")
    e(f"v_and_b32 v{x5}, 1, v{g}")
    e(f"v_lshl_add_u32 v{vOw}, v{x5}, 3, v{x4}")
    if opts["epi"]:
        e(f"v_lshlrev_b32 v{x4}, 12, v{i16}")
        e(f"v_lshl_add_u32 v{x4}, v{x5}, 5, v{x4}")
        e(f"v_lshrrev_b32 v{vOw}, 1, v{g}")
        e(f"v_lshl_add_u32 v{vOw}, v{vOw}, 4, v{x4}")
    e(f"v_lshrrev_b32 v{x4}, 1, v{g}")
    e(f"v_lshlrev_b32 v{x4}, 12, v{x4}")
    e(f"v_mul_u32_u24 v{x5}, {4*256+32}, v{x5}")
    e(f"v_add_u32 v{x4}, v{x4}, v{x5}")
    e(f"v_lshrrev_b32 v{x5}, 2, v{i16}")
    e(f"v_mul_u32_u24 v{x5}, {256+64}, v{x5}")
    e(f"v_add_u32 v{x4}, v{x4}, v{x5}")
    e(f"v_and_b32 v{x5}, 3, v{ln}")
    e(f"v_lshl_add_u32 v{vVa}, v{x5}, 3, v{x4}")
    for dt in range(1, 8):
        e(f"v_xor_b32 v{vVa+dt}, {dt*32}, v{vVa}")
    if RS:
        for i in range(4): e(f"v_mov_b32 v{vOne+i}, 0x3f803f80")
    late = [x.strip() for x in L[mark:]]
    del L[mark:]
    e(f"v_lshlrev_b32 v{vG4}, 2, v{g}")
    e(f"v_lshl_add_u32 v{vQd}, v{g}, 12, v{x6}")
    for i in range(1, 4):
        e(f"v_xor_b32 v{vQd+i}, {i*64}, v{vQd}")
        e(f"v_add_u32 v{vQd+i}, {i*(4*ROWB-1024)}, v{vQd+i}")
    e(f"v_lshl_add_u32 v{x5}, v{w}, 3, v{g}")
    e(f"v_xor_b32 v{x4}, v{vG4}, v{i16}")
    e(f"v_lshlrev_b32 v{x4}, 4, v{x4}")
    e(f"v_lshl_add_u32 v{vDV}, v{x5}, 12, v{x4}")
    e(f"v_xor_b32 v{vDV+1}, 32, v{vDV}")
    e(f"v_add_u32 v{vDV+1}, {4*ROWB-1024}, v{vDV+1}")
    e(f"v_and_b32 v{x4}, 15, v{x5}")
    e(f"v_xor_b32 v{x4}, v{x4}, v{i16}")
    e(f"v_lshlrev_b32 v{x4}, 4, v{x4}")
    e(f"v_lshl_add_u32 v{vDK}, v{x5}, 12, v{x4}")
    e(f"v_xor_b32 v{vDK+1}, 64, v{vDK}")
    e(f"v_add_u32 v{vDK}, {4096-2048}, v{vDK}")
    e(f"v_add_u32 v{vDK+1}, {4*ROWB+4096-3072}, v{vDK+1}")
    e(f"s_lshl_b32 s{sWB}, s{sW}, 12")
    e(f"s_mov_b32 s{sThr}, {hex(f32bits(BIAS if RS else 4096.0))}")
    e(f"s_mov_b32 s{sC}, {hex(f32bits(128 ** -0.5 * math.log2(math.e)))}")
    e(f"s_mov_b32 s{sNeg}, {hex(f32bits(-1e30))}")
    e(f"s_mov_b32 s{sBig}, 0x40000000")
    e(f"s_mov_b32 s{sFirst}, 1")
    e(f"s_mul_i32 s{sQW}, s{sW}, {QW}")
    e(f"s_add_u32 s{sQW}, s{sQW}, {QS}")
    for srd in (sQ, sK, sV, sOut, sQc):
        e(f"s_mov_b32 s{srd+2}, 0")
        e(f"s_mov_b32 s{srd+3}, 0x20000")
    e(m0set(0))
    e("s_waitcnt lgkmcnt(0)")
    e(f"s_sub_u32 s{sK}, s{sK}, 4096")
    e(f"s_subb_u32 s{sK+1}, s{sK+1}, 0")
    def decode():
        e(f"s_mov_b32 s{sQ+2}, s{sNRn}")
        e(f"s_lshr_b32 s{sTn}, s{sD1n}, 24")
        e(f"s_mul_i32 s{sT0}, s{sTn}, s{sW}")
        e(f"s_lshl_b32 s{sT0}, s{sT0}, 16")
        e(f"s_and_b32 s{sQoffn}, s{sD1n}, 0xfff000")
        e(f"s_add_u32 s{sQoffn}, s{sQoffn}, s{sD0n}")
        e(f"s_add_u32 s{sQoffn}, s{sQoffn}, s{sT0}")
    emit(next_k0()[1:])
    decode()
    j = 0
    for x in qgroup(0) + next_loads(1)[1]:
        e(x)
        if x.startswith("buffer"):
            emit(late[j:j + 5]); j += 5
    emit(late[j:])
    lab("Lstart")
    e(f"s_mov_b64 s[{sD0}:{sD1}], s[{sD0n}:{sD1n}]")
    e(f"s_mov_b32 s{sLast}, s{sLastn}")
    e(f"s_mov_b32 s{sOut+2}, s{sNRn}")
    e(f"s_mov_b32 s{sV+2}, s{sNRn}")
    e(f"s_mov_b32 s{sQc+2}, s{sNRn}")
    e(f"s_mov_b32 s{sOoff}, s{sQoffn}")
    e(f"s_mov_b64 s[{sJ}:{sJ+1}], s[{sJ+4}:{sJ+5}]")
    e(f"s_mov_b64 s[{sJ+2}:{sJ+3}], s[{sJ+6}:{sJ+7}]")
    e(f"s_mov_b64 s[{sJ+4}:{sJ+5}], 0")
    e(f"s_mov_b64 s[{sJ+6}:{sJ+7}], 0")
    decode()
    e(f"s_and_b32 s{sCnt}, s{sD1}, 63")
    e(f"s_bfe_u32 s{sRem}, s{sD1}, 0x60006")
    e(f"s_mov_b32 s{sOff}, s{sD0}")
    e(f"s_add_u32 s{sOffK}, s{sD0}, {2*TILEB}")
    if opts["stamp"]: e(f"s_add_u32 s{sN}, s{sCnt}, 2")
    stamp(0)
    e(f"s_bfe_u32 s{sT0}, s{sD1}, 0x30018")
    if opts["stamp"]:
        e(f"s_memrealtime s[{sST+10}:{sST+11}]")
        e(f"s_lshl_b32 s98, s{sT0}, 8"); e(f"s_add_u32 s98, s98, s{sN}")
        e("s_waitcnt lgkmcnt(0)")
        if opts["stamp"] == 2:
            e(f"s_mov_b32 s97, s{sST}"); e(f"s_mov_b32 s99, s{sST+10}")
    order = sorted(TS, key=lambda t: (t != 4, -t))
    for T in order[1:]:
        e(f"s_cmp_eq_u32 s{sT0}, {T}")
        e(f"s_cbranch_scc1 Lpro{T}")
    for T in order:
        prologue(T)
        epilogue(T)
    lab("Ldone")
    if opts.get("spin"):
        if opts.get("gref"):
            e("s_mov_b32 s92, s90"); e("s_mov_b32 s93, s91"); e("s_mov_b32 s94, 256"); e("s_mov_b32 s95, 0x20000")
            e("s_not_b32 s96, s100"); e("v_mov_b32 v0, s96"); e("v_mov_b32 v2, 0")
            e("s_mov_b64 exec, 1")
            e(f"s_cmp_lg_u32 s{sW}, 0"); e("s_cbranch_scc1 Lsp0")
            e("buffer_atomic_umax v0, v2, s[92:95], 0 offen")
            lab("Lsp0")
            e("s_memrealtime s[88:89]"); e("s_waitcnt lgkmcnt(0)"); e("s_sub_u32 s88, s88, s100")
            e(f"s_cmp_lt_u32 s88, 4500"); e("s_cbranch_scc1 Lsp0")
            e("buffer_load_dword v1, v2, s[92:95], 0 offen sc0 sc1")
            e("s_waitcnt vmcnt(0)")
            e("v_readfirstlane_b32 s96, v1"); e("s_nop 3"); e("s_not_b32 s100, s96")
        lab("Lspin")
        e("s_memrealtime s[88:89]")
        e("s_waitcnt lgkmcnt(0)")
        e("s_sub_u32 s88, s88, s100")
        e(f"s_cmp_lt_u32 s88, {opts['spin']}")
        e("s_cbranch_scc1 Lspin")
    if LIGHT:
        e("s_waitcnt vmcnt(0)")
        e("s_memrealtime s[88:89]")
        e("s_mov_b32 s92, s90"); e("s_mov_b32 s93, s91"); e("s_mov_b32 s94, 0x100000"); e("s_mov_b32 s95, 0x20000")
        e(f"s_lshl_b32 s96, s2, 2"); e(f"s_add_u32 s96, s96, s{sW}"); e("s_lshl_b32 s96, s96, 3")
        e("s_waitcnt lgkmcnt(0)")
        e("v_mov_b32 v0, s100"); e("v_mov_b32 v1, s88"); e("v_mov_b32 v2, 0")
        e("s_mov_b64 exec, 1")
        e("buffer_store_dwordx2 v[0:1], v2, s[92:95], s96 offen")
    if opts["stamp"]:
        e("s_waitcnt vmcnt(0)")
        stamp(0)
        e(f"s_memrealtime s[{sST+12}:{sST+13}]")
        e(f"s_mov_b32 s{sST+10}, s100")
        e("s_getreg_b32 s98, hwreg(HW_REG_HW_ID)")
        stamp_store(True)
    lab("Lend")
    e("s_endpgm")

    for tag, buf in STUBS:
        lab(f"Lrare_{tag}")
        e(f"s_call_b64 s[{sRet}:{sRet+1}], Lresc_{buf}")
        e(f"s_branch Lback_{tag}")
    for b in range(2):
        lab(f"Lresc_{b}")
        e("s_nop 15")
        for t in range(TM):
            s, s2 = sreg(b, t), sreg(b ^ 1, t)
            dl, al = vX, (vX + 8 + t if t < 4 else vX + 2)
            e(f"v_max3_f32 v{dl}, v{s}, v{s+1}, v{s+2}")
            e(f"v_max3_f32 v{dl}, v{dl}, v{s+3}, v{s+4}")
            e(f"v_max3_f32 v{dl}, v{dl}, v{s+5}, v{s+6}")
            if RS:
                e(f"v_max_f32 v{dl}, v{dl}, v{s+7}")
                e(f"v_add_f32 v{dl}, s{sThr}, v{dl}")
                e(f"v_max_f32 v{dl}, 0, v{dl}")
            else:
                e(f"v_max3_f32 v{dl}, v{dl}, v{s+7}, 0")
            emit(xlane("v_max_f32", [dl], vX + 1))
            e(f"v_sub_f32 v{al}, 0, v{dl}")
            e(f"v_exp_f32 v{al}, v{al}")
            for i in range(8):
                e(f"v_sub_f32 v{s+i}, v{s+i}, v{dl}")
                e(f"v_sub_f32 v{s2+i}, v{s2+i}, v{dl}")
            for i in range(4):
                e(f"v_sub_f32 v{vNM+4*t+i}, v{vNM+4*t+i}, v{dl}")
            if not RS:
                e(f"v_mul_f32 v{vL+t}, v{vL+t}, v{al}")
            elif t == 4:
                for i in range(4): e(f"v_mul_f32 v{vL4+i}, v{vL4+i}, v{al}")
            else:
                for i in range(4):
                    e(f"v_accvgpr_read_b32 v{vX+1}, a{aL+4*t+i}")
                    e(f"v_mul_f32 v{vX+1}, v{vX+1}, v{al}")
                    e(f"v_accvgpr_write_b32 a{aL+4*t+i}, v{vX+1}")
        emit(SM(TM, b, False).rest())
        if b == 0: e("s_branch LrescO")
    lab("LrescO")
    for t in range(TM):
        for i in range(0, 32, 4):
            al = vX + 8 + t if t < 4 else vX + 2
            for k in range(4): e(f"v_accvgpr_read_b32 v{vX+4+k}, a{aO+32*t+i+k}")
            for k in range(4): e(f"v_mul_f32 v{vX+4+k}, v{vX+4+k}, v{al}")
            for k in range(4): e(f"v_accvgpr_write_b32 a{aO+32*t+i+k}, v{vX+4+k}")
    e("s_nop 1")
    e(f"s_setpc_b64 s[{sRet}:{sRet+1}]")

    e(".p2align 5")
    L.append(".type Ltab,@object")
    lab("Ltab")
    for ent in TAB:
        e(".long " + ", ".join(str(x) for x in ent))
    L.append('.section .rodata,"a"')
    L.append(".p2align 6")
    L.append(f".amdhsa_kernel {NAME}_kernel")
    L.append("  .amdhsa_next_free_vgpr 512")
    L.append("  .amdhsa_next_free_sgpr 102")
    L.append("  .amdhsa_accum_offset 256")
    L.append("  .amdhsa_group_segment_fixed_size 0")
    L.append("  .amdhsa_kernarg_size 56")
    L.append("  .amdhsa_user_sgpr_count 2")
    L.append("  .amdhsa_user_sgpr_kernarg_segment_ptr 1")
    L.append("  .amdhsa_system_sgpr_workgroup_id_x 1")
    L.append(".end_amdhsa_kernel")

gen()
open(sys.argv[1], "w").write("\n".join(L) + "\n")
```

```python
import sys, struct, math, os

NAME = "standalone__varlen_attn_packed__ragged"
CU = [0, 534, 1426, 1714, 2675, 3469, 4036, 4628, 4845]
ROWB = 4096
TILEB = 32 * ROWB
QS = 65536
QW = 20480
OS = QS + 4 * QW
LDSZ = 163840
TM = 5

opts = dict(stamp=0, st="sc0+sc1", ld="", ldq="nt", al=3, e64=0, rs=1, epi=0, late=1, plan="b", rev=0, lc=4, pf=2, lazy=0)
for a in sys.argv[2:]:
    k, v = a.split("=")
    opts[k] = int(v) if v.lstrip("-").isdigit() else v
LD = (" " + opts["ld"].replace("+", " ")) if opts["ld"] else ""
LDQ = (" " + opts["ldq"].replace("+", " ")) if opts.get("ldq", opts["ld"]) and "ldq" in opts else ("" if "ldq" in opts else LD)
ST = (" " + opts["st"].replace("+", " ")) if opts["st"] else ""
DG = str(opts.get("diag", ""))

def f32bits(x):
    return struct.unpack("<I", struct.pack("<f", x))[0]

vQ = 0
vS = 64
vP = 144
vNM = 184
vKa = 204
vVa = 208
vDK = 216
vDV = 218
vQd = 220
vE = 224
vT = 228
vL = 233
vU = 238
vQa = 239
vOw = 240
vOr = 241
vG4 = 242
vU2 = 243
vX = 244
aO = 0
aKf = 160
aVf = 192
aQ = 224
aL = 240
vOne = 228
vL4 = 232
vAc = 236
BIAS = 20.0
RS = opts['rs']
NRS = opts.get('nrs', 3)
assert NRS in (3, 4, 5)

sQ, sK, sV, sOut = 12, 16, 20, 24
sJ = 28
sD0, sD1 = 36, 37
sL, sN, sOff, sWB, sCnt, sLast, sThr, sC, sNeg, sW = 38, 39, 40, 41, 42, 43, 44, 45, 46, 47
sRet, sPC = 48, 52
sTn = 50
sRem, sQoffn, sOoff, sBig = 54, 55, 56, 57
sD0n, sD1n, sNRn, sLastn = 28, 29, 30, 31
sT0 = 61
sOffK = 63
sQW = 3
sFirst = 64
sQc = 8
sM = 68
sST = 76

L = []
def e(s): L.append("    " + s)
def lab(s): L.append(s + ":")
def vr(b, n): return f"v[{b}:{b+n-1}]"
def ar(b, n): return f"a[{b}:{b+n-1}]"
def emit(lines):
    for x in lines:
        if x.endswith(":"): L.append(x)
        else: e(x)
LIGHT = opts["stamp"] == 3
if LIGHT: opts["stamp"] = 0
def estamp(idx):
    if opts["stamp"] and opts.get("pst") == 2:
        e(f"s_memtime s[{sST+2*idx}:{sST+1+2*idx}]")
def pstamp(idx):
    if opts["stamp"] and opts.get("pst") == 1:
        e(f"s_memtime s[{sST+2*idx}:{sST+1+2*idx}]")
        e("s_waitcnt lgkmcnt(0)")
def stamp(idx):
    if opts.get("pst") and 1 <= idx <= 4: return
    if opts["stamp"]:
        e(f"s_memtime s[{sST+2*idx}:{sST+1+2*idx}]")

SEQ = []
for si in range(8):
    ln = CU[si + 1] - CU[si]
    SEQ.append((CU[si], ln, (ln + 63) // 64, (ln + 31) // 32))

PLANS = {
    "b": [[(31, 4)]] * 4 + [[(25, 5)]] * 2 + [[(25, 3), (7, 4)], [(18, 3), (17, 3)], [(18, 3), (17, 3)], [(18, 3), (17, 3)],
          [(19, 4), (9, 3)], [(28, 2), (19, 2)], [(19, 4), (9, 2)]] + [[(28, 4)]] * 3,
    "a": [[(31, 4)]] * 4 + [[(25, 5)]] * 2 + [[(17, 4), (18, 2)], [(19, 5), (7, 2)], [(25, 3), (9, 3)], [(28, 2), (18, 2)],
          [(17, 5), (9, 2)], [(18, 5), (7, 2)]] + [[(28, 4)]] * 3 + [[(19, 5)]],
}

def plan_head():
    n2s = {SEQ[i][3]: i for i in range(8)}
    nxt = {i: 0 for i in range(8)}
    spec = PLANS[opts["plan"]]
    res = [[None] * len(s) for s in spec]
    for want in (2, 3, 4, 5):
        for i, s in enumerate(spec):
            for k, (n, t) in enumerate(s):
                if t == want:
                    si = n2s[n]
                    res[i][k] = (si, nxt[si], t); nxt[si] += 64 * t
    for i in range(8):
        assert nxt[i] == SEQ[i][2] * 64, (i, nxt[i])
    if opts["rev"]:
        res = [list(reversed(r)) for r in res]
    return res

def make_table():
    ph = plan_head()
    tab = []
    for wg in range(256):
        x, j = wg & 7, wg >> 3
        head = 2 * x + (j & 1)
        ent = []
        for (si, q0, t) in ph[j >> 1]:
            st, ln, nb, n = SEQ[si]
            d0 = st * ROWB + head * 256
            ent += [d0, (n - 2) | ((ln - 32 * (n - 1)) << 6) | (q0 << 12) | (t << 24), d0 + (ln - 1) * ROWB + 256, d0 + (n - 1) * TILEB]
        assert len(ent) <= 8
        ent += [0] * (8 - len(ent))
        tab.append(ent)
    return tab

TAB = make_table()
PH = plan_head()
TS = sorted({t for jl in PH for _, _, t in jl}, reverse=True)
TAILS = {}
for jl in PH:
    for k, (si, q0, t) in enumerate(jl):
        TAILS.setdefault((t, (SEQ[si][3] - 1) % 4), set()).add(1 if k + 1 < len(jl) else 0)
PROD = {t for (t, p), v in TAILS.items() if v - {0}}
NWG = 256

MF = "v_mfma_f32_16x16x32_bf16"
def qreg(t, s):
    return vr(vQ + 16 * t + 4 * s, 4) if t < 4 else ar(aQ + 4 * s, 4)
def sreg(buf, t, a=0): return vS + 40 * buf + 8 * t + 4 * a
def preg(buf, t): return vP + 20 * buf + 4 * t

def qk1(buf, t, a, s, cinit, kf=None):
    d = sreg(buf, t, a)
    kf = aKf if kf is None else kf
    return f"{MF} {vr(d,4)}, {ar(kf+4*(a*4+s),4)}, {qreg(t,s)}, {vr(cinit if s == 0 else d,4)}"

def qk_mfmas(T, buf):
    return [qk1(buf, t, a, s, vNM + 4 * t) for a in range(2) for s in range(4) for t in range(T)]

ZERO = [False]
def pv1(buf, t, dt, vf):
    o = aO + 32 * t + 4 * dt
    return f"{MF} {ar(o,4)}, {ar(vf+4*dt,4)}, {vr(preg(buf,t),4)}, {'0' if ZERO[0] else ar(o,4)}"

def rs1(buf, t):
    l = ar(aL + 4 * t, 4) if t < 4 else vr(vL4, 4)
    return f"{MF} {l}, {vr(vOne,4)}, {vr(preg(buf,t),4)}, {'0' if ZERO[0] else l}"

def pv_mfmas(T, buf, vf=aVf):
    return [pv1(buf, t, dt, vf) for dt in range(8) for t in range(T)] + ([rs1(buf, t) for t in range(min(T, NRS))] if RS else [])

def zero_mfmas(T):
    return [f"v_mfma_f32_32x32x16_bf16 {ar(aO+16*i,16)}, {vr(vP+28,4)}, {vr(vP+28,4)}, 0" for i in range(2 * T)]

def k_reads(slot, kf=None):
    kf = aKf if kf is None else kf
    return [f"ds_read_b128 {ar(kf+4*(a*4+s),4)}, v{vKa+s} offset:{slot*16384+a*8192}" for a in range(2) for s in range(4)]

def v_reads(slot, vf=aVf):
    return [f"ds_read_b64_tr_b16 {ar(vf+4*dt+2*a,2)}, v{vVa+dt} offset:{slot*16384+a*8192}" for dt in range(8) for a in range(2)]

def m0set(off):
    return f"s_add_u32 m0, s{sWB}, {off}" if off else f"s_mov_b32 m0, s{sWB}"
def ldv(j, so):
    return f"buffer_load_dwordx4 v{vDV+j}, s[{sV}:{sV+3}], s{so} offen" + (f" offset:{j*1024}" if j else "") + f"{LD} lds"
def ldk(j, so):
    return f"buffer_load_dwordx4 v{vDK+j}, s[{sK}:{sK+3}], s{so} offen offset:{2048+j*1024}{LD} lds"

def dma(slot):
    return [m0set(slot * 16384),
            f"s_add_u32 s{sOff}, s{sOff}, {TILEB}",
            f"s_add_u32 s{sOffK}, s{sOffK}, {TILEB}",
            ldv(0, sOff), ldv(1, sOff), ldk(0, sOffK), ldk(1, sOffK)]

CHK = f"v_cmp_ne_u32 vcc, 0, v{vX}" if RS else f"v_cmp_lt_f32 vcc, s{sThr}, v{vX}"
ERING = [vE, vE + 2, vX + 4, vX + 6]
def softmax_ops(T, buf, full=True, R=4, t0=0):
    exps, sims = [], []
    done_after = []
    n = 4 * T
    for k in range(n):
        t, kk = divmod(k, 4)
        t = T - 1 - t + t0
        a = ERING[k % R]; b = a + 1
        need = done_after[k - R] if k >= R else 0
        exps += [(f"v_exp_f32 v{a}, v{sreg(buf,t)+2*kk}", need), (f"v_exp_f32 v{b}, v{sreg(buf,t)+2*kk+1}", need)]
        p = preg(buf, t) + kk
        u = vU if k & 1 else vU2
        ne = 2 * k + 2
        if RS:
            sims.append((f"v_cvt_pk_bf16_f32 v{p}, v{a}, v{b}", ne))
            if t >= NRS:
                pt, lt = vL4 + 2 * (t - NRS), vL4 + 2 * (t - NRS) + 1
                if kk == 0:
                    if full: sims.append((f"v_add_f32 v{lt}, v{lt}, v{pt}", 0))
                    sims.append((f"v_add_f32 v{pt}, v{a}, v{b}", ne))
                else:
                    sims.append((f"v_add_f32 v{u}, v{a}, v{b}", ne))
            done_after.append(len(sims))
            if t >= NRS and kk: sims.append((f"v_add_f32 v{pt}, v{pt}, v{u}", ne))
            if full and (k & 1):
                sims.append((f"v_or_b32 v{vAc}, v{p-1}, v{p}" if k == 1 else f"v_or3_b32 v{vAc}, v{vAc}, v{p-1}, v{p}", ne))
        elif kk == 0:
            if full: sims.append((f"v_add_f32 v{vL+t}, v{vL+t}, v{vT+t}", 0))
            sims += [(f"v_cvt_pk_bf16_f32 v{p}, v{a}, v{b}", ne), (f"v_add_f32 v{vT+t}, v{a}, v{b}", ne)]
            done_after.append(len(sims))
        else:
            sims += [(f"v_add_f32 v{u}, v{a}, v{b}", ne), (f"v_cvt_pk_bf16_f32 v{p}, v{a}, v{b}", ne)]
            done_after.append(len(sims))
            sims.append((f"v_add_f32 v{vT+t}, v{vT+t}, v{u}", ne))
    if full and RS:
        sims += [(f"v_and_b32 v{vX}, 0x40004000, v{vAc}", 2 * n), (CHK, 2 * n)]
    elif full:
        m = [vT + t for t in range(T)]
        cur = m.pop(0)
        while m:
            if len(m) >= 2:
                sims.append((f"v_max3_f32 v{vX}, v{cur}, v{m[0]}, v{m[1]}", 2 * n)); m = m[2:]
            else:
                sims.append((f"v_max_f32 v{vX}, v{cur}, v{m[0]}", 2 * n)); m = []
            cur = vX
        sims.append((f"v_cmp_lt_f32 vcc, s{sThr}, v{cur}", 2 * n))
    return exps, sims

class SM:
    def __init__(s, T, buf, full=True, t0=0, R=4):
        s.ex, s.si = softmax_ops(T, buf, full, R, t0)
        s.i = s.j = 0
        s.last_exp = False
    def left(s): return 8 * (len(s.ex) - s.i) + 4 * (len(s.si) - s.j)
    def can_exp(s): return s.i < len(s.ex) and s.ex[s.i][1] <= s.j
    def can_sim(s):
        if s.j >= len(s.si): return False
        need = s.si[s.j][1]
        return need < s.i or (need == s.i and not s.last_exp)
    def exp(s): s.i += 1; s.last_exp = True; return s.ex[s.i - 1][0]
    def sim(s): s.j += 1; s.last_exp = False; return s.si[s.j - 1][0]
    def other(s): s.last_exp = False
    def any(s):
        if s.can_sim() and (s.si[s.j][1] <= s.i - 2 or not s.can_exp()): return s.sim()
        if s.can_exp(): return s.exp()
        if s.can_sim(): return s.sim()
        s.last_exp = False
        return "s_nop 0"
    def take(s, n): return [s.any() for _ in range(n) if s.left()]
    def rest(s):
        r = []
        while s.left(): r.append(s.any())
        return r

def is_mem(x): return x.startswith("ds_") or x.startswith("buffer_")

def pack(mf, fixed, sm=None, novalu=(), keep=0, cap=8):
    n = len(mf)
    def fcost(l):
        c = 0; ns = 0; nm = 0
        for x in l:
            if is_mem(x): c += 8 if nm else 4; nm += 1
            elif x.startswith("s_"): c += 4 if (ns or nm) else 0; ns += 1
            else: c += 4
        return c
    fc = [fcost(fixed.get(g, [])) for g in range(n)]
    out = []
    for g in range(n):
        out.append(mf[g])
        out += fixed.get(g, [])
        if sm is None: continue
        sm.other()
        if g in novalu: continue
        rem = [k for k in range(g, n) if k not in novalu]
        last = g == rem[-1]
        used = fc[g]
        while sm.left() > keep:
            later = sum(max(0, cap - fc[k]) for k in rem[1:])
            over = sm.left() - keep - later
            room = cap - used
            if room <= 0:
                if not last and over * 1.0 < 4 * 1.0 + 0 : break
                if not last and (used - cap + 4) * len(rem) > over + (used - cap) + 2 * len(rem): break
            nexp = len(sm.ex) - sm.i
            full_later = sum(1 for k in rem[1:] if cap - fc[k] >= 8)
            if room >= 8 and sm.can_exp() and (not sm.can_sim() or nexp > full_later * opts.get("eb", 70) // 100 or sm.si[sm.j][1] > sm.i - 4):
                out.append(sm.exp()); used += 8
            elif sm.can_sim():
                out.append(sm.sim()); used += 4
            elif sm.can_exp() and (room >= 8 or last or nexp + opts.get("slk", 2) > full_later or over > 0):
                out.append(sm.exp()); used += 8
            else:
                if last: out.append(sm.any()); used += 4
                else: break
    return out

STUBS = []
def check_rare(buf, tag):
    e(f"s_cbranch_vccnz Lrare_{tag}")
    lab(f"Lback_{tag}")
    STUBS.append((tag, buf))

def spread(items, gaps):
    d = {}
    gaps = list(gaps)
    for i, x in enumerate(items):
        d.setdefault(gaps[i * len(gaps) // len(items)], []).append(x)
    return d

def merge(*ds):
    r = {}
    for d in ds:
        for k, v in d.items():
            r.setdefault(k, []).extend(v)
    return r

def interleave(a, b):
    out = []
    if not a: return list(b)
    j = 0
    for i, x in enumerate(a):
        out.append(x)
        nj = (i + 1) * len(b) // len(a)
        out += b[j:nj]; j = nj
    return out

CNT = f"s_sub_u32 s{sCnt}, s{sCnt}, 1"

def place(items, gaps):
    groups = []
    cur = []
    for x in items:
        cur.append(x)
        if is_mem(x): groups.append(cur); cur = []
    if cur: groups.append(cur)
    gaps = list(gaps)
    d = {}
    for i, gr in enumerate(groups):
        d.setdefault(gaps[i * len(gaps) // len(groups)], []).extend(gr)
    return d

def qgroup(g, dyn=True):
    r = [f"s_add_u32 m0, s{sQW}, {g*4096}" if g else f"s_mov_b32 m0, s{sQW}",
         f"s_add_u32 s{sT0}, s{sQoffn}, {g*16*ROWB}"]
    if g >= 2 and dyn:
        r += [f"s_cmp_gt_u32 s{sTn}, {g}", f"s_cselect_b32 s{sT0}, s{sT0}, s{sBig}"]
    r += [f"buffer_load_dwordx4 v{vQd+i}, s[{sQ}:{sQ+3}], s{sT0} offen offset:{i*1024}{LDQ} lds" for i in range(4)]
    return r

def step(T, t, prod=False):
    p = t % 4
    b = t % 2
    h = 8 * T
    ZERO[0] = prod
    mf = qk_mfmas(T, b ^ 1) + pv_mfmas(T, b ^ 1)
    ZERO[0] = False
    kr = k_reads((t + 2) % 4)
    d = dma((t + 1) % 4)
    sm = SM(T, b)
    n = len(mf)
    vrd = v_reads((t + 1) % 4)
    vm = opts.get('vm', 8)
    end = [CNT] if prod else [CNT, "s_cselect_b64 vcc, -1, vcc"]
    bw = f"s_waitcnt vmcnt({vm}) lgkmcnt(0)"
    tight = T >= opts.get("tt", 3)
    if tight:
        kd = [kr[0], kr[1], d[3], kr[2], kr[3], d[4], kr[4], kr[5], kr[6], d[5], kr[7]]
        fixed = merge(place(vrd, range(0, h - 6)),
                      {h - 5: [d[0]], h - 4: [d[1]], h - 3: [d[2]], h - 2: [bw], h - 1: ["s_barrier"]},
                      place(kd, range(h, n - 7)),
                      {n - 5: [d[6]], n - 4: [end[0]], n - 3: ["s_waitcnt lgkmcnt(0)"], n - 2: end[1:]})
        nov = (h - 1, n - 2, n - 1)
    elif T >= 3:
        kd = [kr[0], kr[1], d[3], kr[2], kr[3], d[4], kr[4], kr[5], d[5], kr[6], kr[7], d[6]]
        fixed = merge(place(vrd, range(0, h - 5)),
                      {h - 1: [bw, "s_barrier"]},
                      {h - 4: [d[0]], h - 3: [d[1]], h - 2: [d[2]]},
                      place(kd, range(h, n - 3)),
                      {n - 2: [end[0]], n - 1: end[1:]})
        nov = (h - 1, n - 1)
    else:
        kd = [kr[0], kr[1], d[3], kr[2], kr[3], kr[4], d[4], kr[5], kr[6], kr[7], d[5]]
        fixed = merge(place(vrd, range(0, 12)),
                      {h - 1: [bw, "s_barrier"]},
                      {h - 4: [d[0]], h - 3: [d[1]], h - 2: [d[2]]},
                      place(kd, range(h, n - 5)),
                      {n - 2: [end[0], d[6]], n - 1: end[1:]})
        nov = (h - 1, n - 1)
    if prod or not tight: e("s_waitcnt lgkmcnt(0)")
    body = pack(mf, fixed, sm, nov)
    if DG and not prod:
        body = [x for x in body if not (("d" in DG and x.startswith("buffer_load")) or ("b" in DG and x.startswith("s_barrier"))
                or ("l" in DG and x.startswith("ds_read")) or ("w" in DG and x.startswith("s_waitcnt"))
                or ("v" in DG and x.startswith(("v_exp", "v_cvt", "v_or"))))]
    if opts["e64"]:
        body = [x.replace("v_exp_f32 ", "v_exp_f32_e64 ").replace("v_add_f32 ", "v_add_f32_e64 ").replace("v_max_f32 ", "v_max_f32_e64 ") for x in body]
    emit(body)
    assert sm.left() == 0
    if prod:
        check_rare(b, f"t{T}p{p}")
    else:
        e(f"s_cbranch_vccnz Lx{T}_{p}")
        lab(f"Lxb{T}_{p}")

def exit_stub(T, p):
    lab(f"Lx{T}_{p}")
    e(CHK)
    check_rare(p % 2, f"x{T}_{p}")
    np_ = (p + 1) % 4
    nx = sorted(TAILS.get((T, np_), ()))
    if not nx:
        e(f"s_branch Lxb{T}_{p}")
        return
    e(f"s_cbranch_scc0 Lxb{T}_{p}")
    for tn in nx[1:]:
        e(f"s_cmp_lg_u32 s{sD1n}, 0")
        e(f"s_cbranch_scc1 Ltail{T}_{np_}_{tn}")
    for tn in nx:
        tail(T, np_, tn)

def ktile(u):
    return [m0set(u * 16384), f"s_add_u32 s{sT0}, s{sD0}, {(u-1)*TILEB}", ldk(0, sT0), ldk(1, sT0)]
def vtile(u):
    so = sLast if u == 0 else sD0
    return [m0set(((u + 2) % 4) * 16384), "s_nop 0", ldv(0, so), ldv(1, so)]
def next_k0():
    return [m0set(0), f"s_add_u32 s{sK+2}, s{sNRn}, 4096", ldk(0, sLastn), ldk(1, sLastn)]
def next_k1():
    return [m0set(16384), "s_nop 0", ldk(0, sD0n), ldk(1, sD0n)]

def tail(T, p, tn):
    b = p % 2
    lab(f"Ltail{T}_{p}_{tn}")
    stamp(3)
    if opts["stamp"]: e("s_waitcnt lgkmcnt(0)")
    vrd = v_reads((p + 1) % 4)
    vrd2 = v_reads((p + 2) % 4, aKf)
    sm = SM(T, b)
    mf = pv_mfmas(T, b ^ 1)
    o = min(T, NRS) if RS else 0
    if RS: mf = mf[-o:] + mf[:-o]
    if opts.get("tl", 0):
        pre = 6
        emit(vrd[:pre])
        emit(sm.take(6))
        g1 = o + 3 * T
        fixed = place(vrd[pre:], range(0, g1))
        issued = {g: pre + sum(len(fixed.get(k, [])) for k in range(g + 1)) for g in range(-1, len(mf))}
        for dt in range(0, 4):
            g = o + dt * T - 1
            w = f"s_waitcnt lgkmcnt({max(0, issued[g] - 2 * dt - 2)})"
            if g < 0: e(w)
            else: fixed.setdefault(g, []).append(w)
        gb = o + 4 * T - 1
        fixed.setdefault(gb, []).extend(["s_waitcnt vmcnt(8) lgkmcnt(0)", "s_barrier"])
        rest = range(gb + 1, len(mf))
        fixed = merge(fixed, place(vrd2, rest))
        if tn: fixed = merge(fixed, place(next_loads(tn)[0], rest))
    else:
        emit(vrd)
        emit(sm.take(12))
        e("s_waitcnt vmcnt(8) lgkmcnt(0)")
        e("s_barrier")
        fixed = place(vrd2, range(len(mf) - 2))
        if tn:
            fixed = merge(fixed, place(next_loads(tn)[0], range(len(mf))))
    emit(pack(mf, fixed, sm))
    assert sm.left() == 0
    check_rare(b, f"t{T}t{p}_{tn}")
    fin(T, b, tn)

def next_loads(tn):
    return next_k0() + qgroup(0, False), qgroup(1, False) + next_k1()

def xlane(op, regs, tmp):
    r = []
    for sw in ("v_permlane32_swap_b32", "v_permlane16_swap_b32"):
        r += [f"v_mov_b32 v{tmp+i}, v{x}" for i, x in enumerate(regs)]
        r += ["s_nop 1"]
        r += [f"{sw} v{x}, v{tmp+i}" for i, x in enumerate(regs)]
        r += ["s_nop 1"]
        r += [f"{op} v{x}, v{x}, v{tmp+i}" for i, x in enumerate(regs)]
    return r

vOA = vNM
vLI = vNM + 8
def epi_acc(t):
    return [f"v_accvgpr_read_b32 v{vQ+i}, a{aO+32*t+i}" for i in range(32)]
def epi_cvt(t):
    r = [f"v_pk_mul_f32 {vr(vQ+2*i,2)}, {vr(vQ+2*i,2)}, {vr(vLI+2*(t//2),2)} " +
         ("op_sel:[0,1] op_sel_hi:[1,1]" if t & 1 else "op_sel_hi:[1,0]") for i in range(16)]
    r += [f"v_cvt_pk_bf16_f32 v{vQ+32+16*(t&1)+i}, v{vQ+2*i}, v{vQ+2*i+1}" for i in range(16)]
    return r
def epi_writes(t):
    return [f"ds_write_b64 v{vOA+dt}, {vr(vQ+32+16*(t&1)+2*dt,2)}" for dt in range(8)]
def epi_reads(t):
    return [f"ds_read_b128 {vr(vS+16*t+4*i,4)}, v{vOr} offset:{i*1024}" for i in range(4)]
def epi_stores(t):
    return [f"s_add_u32 s{sT0}, s{sOoff}, {t*16*ROWB}"] + \
           [f"buffer_store_dwordx4 {vr(vS+16*t+4*i,4)}, v{vQd+i}, s[{sOut}:{sOut+3}], s{sT0} offen offset:{i*1024}{ST}" for i in range(4)]

def fin(T, b, tn):
    if not RS: e("s_waitcnt lgkmcnt(0)")
    mf = [pv1(b, t, dt, aKf) for t in range(T) for dt in range(8)]
    regs = [vL + t for t in range(T)]
    xo = [f"v_xor_b32 v{vOA+dt}, {dt*32}, v{vOw}" for dt in range(8)] if not opts["epi"] else ["s_nop 0"]
    if RS:
        nr = min(T, NRS)
        mf = [rs1(b, t) for t in range(nr)] + mf
        src = lambda t: (vX + t if t < NRS else vL4 + 2 * (t - NRS) + 1)
        ad = [src(t) for t in range(nr, T)]
        if ad: xo = [f"v_add_f32 v{x}, v{x}, v{x-1}" for x in ad] + xlane("v_add_f32", ad, vX + 6) + xo
        ls = [f"v_accvgpr_read_b32 v{vX+t}, a{aL+4*t}" if t < 4 else f"v_mov_b32 v{vX+t}, v{vL4}" for t in range(nr)] + \
             [f"v_rcp_f32 v{vLI+t}, v{src(t)}" for t in range(T)] + epi_acc(0)
        fixed = merge({nr - 1: ["s_waitcnt lgkmcnt(6)"], nr + 4: ["s_waitcnt lgkmcnt(0)"]},
                      spread(xo, range(nr + 8)), spread(ls, range(nr + 8, len(mf))))
    else:
        ls = [f"v_add_f32 v{vL+t}, v{vL+t}, v{vT+t}" for t in range(T)] + xlane("v_add_f32", regs, vX) + \
             [f"v_rcp_f32 v{vLI+t}, v{vL+t}" for t in range(T)] + xo + epi_acc(0)
        fixed = spread(ls, range(len(mf)))
    if tn: fixed = merge(place(next_loads(tn)[1], range(len(mf))), fixed)
    emit(pack(mf, fixed))
    e(f"s_branch Lepi{T}")

def first_max(t):
    s0 = sreg(0, t)
    m = vX + 2
    r = [f"v_max3_f32 v{m}, v{s0}, v{s0+1}, v{s0+2}", f"v_max3_f32 v{m}, v{m}, v{s0+3}, v{s0+4}",
         f"v_max3_f32 v{m}, v{m}, v{s0+5}, v{s0+6}", f"v_max_f32 v{m}, v{m}, v{s0+7}"]
    r += xlane("v_max_f32", [m], vX + 3)
    if RS: r += [f"v_add_f32 v{m}, s{sThr}, v{m}"]
    r += [f"v_sub_f32 v{vNM+4*t+i}, 0, v{m}" for i in range(4)]
    r += [f"v_sub_f32 v{s0+i}, v{s0+i}, v{m}" for i in range(8)]
    return r

def qraw(t, k=0):
    return vQ + 16 * t + k if t < 4 else sreg(k // 8, 4) + k % 8
def prescale(t):
    r = []
    for k in range(0, 16, 2):
        q = qraw(t, k)
        for i in range(2):
            r += [f"v_lshlrev_b32 v{vX+2*i}, 16, v{q+i}", f"v_and_b32 v{vX+2*i+1}, 0xffff0000, v{q+i}"]
        for i in range(2):
            r += [f"v_pk_mul_f32 {vr(vX+2*i,2)}, {vr(vX+2*i,2)}, s[{sThr}:{sC}] op_sel:[0,1] op_sel_hi:[1,1]"]
        for i in range(2):
            r += [f"v_cvt_pk_bf16_f32 v{q+i}, v{vX+2*i}, v{vX+2*i+1}"]
        if t == 4: r += [f"v_accvgpr_write_b32 a{aQ+k+i}, v{q+i}" for i in range(2)]
    return r

def first_only(lines):
    i = len(L)
    e(f"s_cmp_eq_u32 s{sFirst}, 0")
    e(f"s_cbranch_scc1 Lw{i}")
    emit(lines)
    lab(f"Lw{i}")

def nvm(l): return sum(x.startswith("buffer") for x in l)

vMK = vP + 20
def weave(mfs, valu, mem):
    d = place(mem, range(len(mfs))) if mem else {}
    out = []
    j = 0
    nops = [i for i, x in enumerate(valu) if x == "s_nop 1"]
    if nops and len(mfs) > len(nops):
        extra = len(mfs) - len(nops)
        free = [i for i in range(len(valu)) if i not in nops and i - 1 not in nops]
        head = [0, 2][:min(2, extra)]
        tailp = [i for i in free if i > nops[-1] + 1]
        more = [tailp[k * len(tailp) // (extra - len(head))] for k in range(extra - len(head))]
        cuts = sorted(set(nops + head + more))
        assert len(cuts) == len(mfs)
        k = 0
        for i, x in enumerate(valu):
            if i in cuts:
                out.append(mfs[k])
                m = d.get(k, []); k += 1
                if x == "s_nop 1":
                    out += m if m else ["s_nop 0"]
                    continue
                out += m
            out.append(x)
        return out
    for i, x in enumerate(mfs):
        out.append(x)
        out += d.get(i, [])
        nj = (i + 1) * len(valu) // len(mfs)
        out += valu[j:nj]; j = nj
    return out

def prologue(T):
    lab(f"Lpro{T}")
    def qcur(g):
        return [x.replace(f"s{sQoffn}", f"s{sOoff}").replace(f"s[{sQ}:{sQ+3}]", f"s[{sQc}:{sQc+3}]") for x in qgroup(g, False)]
    q = ["K0"] * 2 + ["Q0"] * 4 + ["Q1"] * 4 + ["K1"] * 2
    def younger(tag): return len(q) - 1 - max(i for i, x in enumerate(q) if x == tag)
    for s in range(4):
        e(f"v_xor_b32 v{vX+8+s}, {s*64}, v{vQa}")
    pre = [f"v_sub_u32 v{vX}, s{sRem}, v{vG4}", f"v_mov_b32 v{vX+1}, s{sNeg}"]
    for a in range(2):
        pre += [f"v_cmp_lt_i32 s[{sM+2*i}:{sM+2*i+1}], {16*a+i}, v{vX}" for i in range(4)] + ["s_nop 0"]
        pre += [f"v_cndmask_b32 v{vMK+4*a+i}, v{vX+1}, 0, s[{sM+2*i}:{sM+2*i+1}]" for i in range(4)]
    if not RS: pre += [f"v_mov_b32 v{vL+t}, 0" for t in range(T)]
    else: pre += [f"v_mov_b32 v{vL4+2*(t-NRS)+1}, 0" for t in range(NRS, T)]
    def qreads(t):
        return [f"ds_read_b128 {vr(qraw(t,4*s),4)}, v{vX+8+s} offset:{t*4096}" for s in range(4)]
    A = lambda t: [qk1(0, t, a, s, vMK + 4 * a) for a in range(2) for s in range(4)]
    C = lambda t: [qk1(1, t, a, s, vNM + 4 * t, aVf) for a in range(2) for s in range(4)]
    def sparse(mem, valu):
        d = place(mem, range(max(1, nvm(mem))))
        out = []; j = 0
        for i in range(len(d)):
            out += d[i]
            nj = (i + 1) * len(valu) // len(d)
            out += valu[j:nj]; j = nj
        return out
    if T > 2:
        emit(sparse(qcur(2), pre)); q += ["Q2"] * 4
        pre = []
    first_only([f"s_waitcnt vmcnt({younger('Q0')})"])
    pstamp(1)
    emit(qreads(0))
    emit(pre)
    e("s_waitcnt lgkmcnt(0)")
    if T > 3:
        emit(sparse(qcur(3), prescale(0))); q += ["Q3"] * 4
    else:
        emit(prescale(0))
    first_only([f"s_waitcnt vmcnt({younger('K1')})"])
    pstamp(2)
    emit(qreads(1))
    e("s_barrier")
    emit(k_reads(0))
    e("s_waitcnt lgkmcnt(8)")
    ps = prescale(1)
    if T > 4:
        emit(sparse(qcur(4), ps[:32])); q += ["Q4"] * 4
    else:
        emit(ps[:32])
    emit(k_reads(1, aVf))
    e("s_waitcnt lgkmcnt(8)")
    bulk = [("K2", ktile(2)), ("V0", vtile(0)), ("K3", ktile(3)), ("V1", vtile(1)), ("G", dma(0)[:5]), ("G", dma(0)[5:]),
            ("H", dma(1)[:5]), ("H", dma(1)[5:])]
    def takeb(n):
        nonlocal bulk
        r = []
        for tag, l in bulk[:n]:
            r += l; q.extend([tag] * nvm(l))
        bulk = bulk[n:]
        return r
    emit(weave(A(0), [], takeb(1) if T == 2 else []))
    emit(sparse(takeb(1), ps[32:]) if T <= 3 else ps[32:])
    D = lambda t: SM(1, 0, False, t, 2).rest()
    def getq(k):
        e(f"s_waitcnt vmcnt({younger(f'Q{k}')})")
        if k <= 3: pstamp(k + 1)
        emit(qreads(k))
    def bar2():
        e("s_waitcnt lgkmcnt(0)")
        e("s_barrier")
    per = {2: [2, 2, 2], 3: [1, 1, 1, 2, 2], 4: [1, 1, 1, 1, 1, 1, 2], 5: [0, 1, 1, 1, 1, 1, 1, 1, 1]}[T]
    tk = lambda: takeb(per.pop(0))
    for k in range(2, T):
        emit(weave(A(k - 1), first_max(k - 2), tk()))
        if k == 2: bar2()
        if k < T - 1:
            getq(k)
            emit(weave(C(k - 2), D(k - 2), tk()))
        else:
            emit(weave(C(k - 2), first_max(k - 1), tk()))
            emit(D(k - 2))
            getq(k)
            emit(weave(C(k - 1), D(k - 1)[:8], tk()))
        e("s_waitcnt lgkmcnt(0)")
        emit(prescale(k))
    stamp(1)
    if opts["stamp"]: e("s_waitcnt lgkmcnt(0)")
    if T == 2:
        emit(weave(A(1), first_max(0), tk()))
        bar2()
        emit(weave(C(0), D(0), tk()))
    else:
        emit(weave(A(T - 1), D(T - 2)[8:], tk()))
    e(f"s_waitcnt vmcnt({younger('V0')})")
    e("s_barrier")
    emit(k_reads(2))
    emit(first_max(T - 1))
    emit(weave(C(T - 1), D(T - 1), tk()))
    assert not bulk and not per
    e(CNT)
    step(T, 1, True)
    stamp(2)
    e(f".p2align {opts['al']}")
    for _ in range(opts.get("pad", 0)): e("s_nop 0")
    lab(f"Lloop{T}")
    for t in (2, 3, 4, 5):
        step(T, t)
    e(f"s_branch Lloop{T}")
    for p in range(4):
        exit_stub(T, p)

def stamp_store(final=False):
    if not opts["stamp"]: return
    B = vP + 20
    if opts["stamp"] == 2:
        if not final: return
        e("s_waitcnt lgkmcnt(0)")
        e("s_mov_b32 s92, s90"); e("s_mov_b32 s93, s91"); e("s_mov_b32 s94, 256"); e("s_mov_b32 s95, 0x20000")
        e("s_mov_b64 exec, 1")
        e(f"v_mov_b32 v{B+8}, 0")
        e("s_not_b32 s96, s100"); e(f"v_mov_b32 v{B}, s96")
        e(f"buffer_atomic_umax v{B}, v{B+8}, s[92:95], 0 offen offset:32")
        e(f"v_mov_b32 v{B+1}, s{sST+12}")
        e(f"buffer_atomic_umax v{B+1}, v{B+8}, s[92:95], 0 offen offset:36")
        e(f"v_mov_b32 v{B+2}, s100")
        e(f"buffer_atomic_umax v{B+2}, v{B+8}, s[92:95], 0 offen offset:40")
        e(f"s_lshl_b32 s96, s2, 2"); e(f"s_add_u32 s96, s96, s{sW}")
        e("s_cmp_lg_u32 s96, 32"); e("s_cbranch_scc1 Lnodbg")
        e(f"s_sub_u32 s96, s99, s100"); e(f"v_mov_b32 v{B}, s96")
        e(f"s_sub_u32 s96, s{sST+2}, s97"); e(f"v_mov_b32 v{B+1}, s96")
        for i in range(1, 4):
            e(f"s_sub_u32 s96, s{sST+2*i+2}, s{sST+2*i}"); e(f"v_mov_b32 v{B+1+i}, s96")
        e(f"s_sub_u32 s96, s{sST}, s{sST+8}"); e(f"v_mov_b32 v{B+5}, s96")
        e(f"s_sub_u32 s96, s{sST+12}, s100"); e(f"v_mov_b32 v{B+6}, s96")
        e(f"v_mov_b32 v{B+7}, s100")
        e(f"buffer_store_dwordx4 {vr(B,4)}, v{B+8}, s[92:95], 0 offen")
        e(f"buffer_store_dwordx4 {vr(B+4,4)}, v{B+8}, s[92:95], 0 offen offset:16")
        lab("Lnodbg")
        return
    e("s_waitcnt lgkmcnt(0)")
    e("s_mov_b32 s92, s90"); e("s_mov_b32 s93, s91"); e("s_mov_b32 s94, 0x100000"); e("s_mov_b32 s95, 0x20000")
    e(f"s_lshl_b32 s96, s2, 2"); e(f"s_add_u32 s96, s96, s{sW}"); e("s_lshl_b32 s96, s96, 2")
    if final: e("s_add_u32 s96, s96, 3")
    else: e("s_add_u32 s96, s96, s97"); e("s_add_u32 s97, s97, 1")
    e("s_lshl_b32 s96, s96, 5")
    for i in range(5): e(f"v_mov_b32 v{B+i}, s{sST+2*i}")
    e(f"v_mov_b32 v{B+5}, s{sST+10}"); e(f"v_mov_b32 v{B+6}, s{sST+12}"); e(f"v_mov_b32 v{B+7}, s98")
    e(f"v_mov_b32 v{B+8}, 0")
    e("s_mov_b64 exec, 1")
    e(f"buffer_store_dwordx4 {vr(B,4)}, v{B+8}, s[92:95], s96 offen")
    e(f"buffer_store_dwordx4 {vr(B+4,4)}, v{B+8}, s[92:95], s96 offen offset:16")
    e("s_mov_b64 exec, -1")
    e("s_nop 2")

def epilogue(T):
    lab(f"Lepi{T}")
    stamp(4)
    if opts["stamp"]: e(f"s_memrealtime s[{sST+12}:{sST+13}]")
    if opts.get("pst") != 2: stamp_store()
    estamp(1)
    if opts["epi"]:
        def swaps(t):
            pk = vQ + 32 + 16 * (t & 1)
            return [f"v_permlane16_swap_b32 v{pk+4*j+i}, v{pk+4*j+2+i}" for j in range(4) for i in range(2)]
        def dstores(t):
            pk = vQ + 32 + 16 * (t & 1)
            return [f"buffer_store_dwordx4 {vr(pk+4*j,4)}, v{vOw}, s[{sOut}:{sOut+3}], s{sT0} offen offset:{j*64}{ST}" for j in range(4)]
        emit(epi_cvt(0) + swaps(0))
        for t in range(1, T + 1):
            va = epi_acc(t) + epi_cvt(t) + swaps(t) if t < T else []
            st = dstores(t - 1)
            e(f"s_add_u32 s{sT0}, s{sOoff}, {(t-1)*16*ROWB}")
            if opts["epi"] == 2:
                emit(st[:2] + va[:24] + st[2:] + va[24:])
            else:
                for j in range(4):
                    e(st[j]); emit(va[14 * j:14 * (j + 1)])
                emit(va[56:])
    else:
        epilogue_lds(T)
    epilogue_end(T)

def epilogue_lds(T):
    held = []
    for t in range(T):
        ac, cv, w = epi_acc(t), epi_cvt(t), epi_writes(t)
        if t == T - 1:
            estamp(3)
            if opts.get("pst") == 2: e("s_waitcnt lgkmcnt(0)")
        for qd in range(4):
            if t: emit(ac[8 * qd:8 * qd + 8])
            if qd == 1 and t:
                emit([held.pop(0), "s_waitcnt lgkmcnt(2)"])
            if held and (t > 1 or qd): e(held.pop(0))
            emit(cv[4 * qd:4 * qd + 4] + cv[16 + 4 * qd:16 + 4 * qd + 4] + w[2 * qd:2 * qd + 2])
        emit(epi_reads(t))
        so = sT0 + (t & 1)
        held += [x.replace(f"s{sT0}", f"s{so}") for x in epi_stores(t)]
        if t == 1: estamp(2)
    n = 4
    for i, x in enumerate(held):
        if x.startswith("buffer") and i >= len(held) - 4:
            n -= 1
            e(f"s_waitcnt lgkmcnt({n})")
        e(x)

def epilogue_end(T):
    estamp(4)
    if T in PROD:
        e(f"s_cmp_eq_u32 s{sD1n}, 0")
        e("s_cbranch_scc1 Ldone")
        e(f"s_mov_b32 s{sFirst}, 0")
        e(f"s_waitcnt vmcnt({4*T})")
        e("s_branch Lstart")
    else:
        e("s_branch Ldone")

def gen():
    L.append(open(os.path.join(os.path.dirname(os.path.abspath(__file__)), "header.txt")).read().rstrip())
    L.append(f"; @launch grid=({NWG},1,1) block=(256,1,1) lds={LDSZ}")
    L.append('.amdgcn_target "amdgcn-amd-amdhsa--gfx950"')
    L.append(".text")
    L.append(f".globl {NAME}_kernel")
    L.append(".p2align 8")
    L.append(f".type {NAME}_kernel,@function")
    lab(f"{NAME}_kernel")
    e(f"s_cmp_ge_u32 s2, {NWG}")
    e("s_cbranch_scc1 Lend")
    e(f"s_getpc_b64 s[{sPC}:{sPC+1}]")
    lab("Lpc")
    e(f"s_add_u32 s4, s{sPC}, Ltab-Lpc")
    e(f"s_addc_u32 s5, s{sPC+1}, 0")
    e("s_lshl_b32 s3, s2, 5")
    e(f"s_load_dwordx8 s[{sJ}:{sJ+7}], s[4:5], s3")
    for srd, off in ((sK, 8), (sQ, 0), (sV, 16), (sOut, 32), (sQc, 0)):
        e(f"s_load_dwordx2 s[{srd}:{srd+1}], s[0:1], {off}")
    if opts["pf"] == 1:
        e(f"v_lshlrev_b32 v1, 7, v0")
        for i in range(2):
            e(f"global_load_dword v{2+i}, v1, s[{sPC}:{sPC+1}]")
            e(f"v_add_u32 v1, 32768, v1")
    elif opts["pf"] == 2:
        e("s_lshr_b32 s3, s2, 3")
        e("s_mul_i32 s3, s3, 2560")
        e("v_lshrrev_b32 v1, 6, v0")
        e("v_mul_u32_u24 v1, 640, v1")
        e("v_and_b32 v2, 7, v0")
        e("v_min_u32 v2, 4, v2")
        e("v_lshl_add_u32 v1, v2, 7, v1")
        e("v_add_u32 v1, s3, v1")
        e("v_min_u32 v1, Ltab-Lpc, v1")
        e(f"global_load_dword v2, v1, s[{sPC}:{sPC+1}]")
    if opts["stamp"]:
        e(f"s_load_dwordx2 s[90:91], s[0:1], {40 if opts['stamp'] == 2 else 48}")
        e("s_memrealtime s[100:101]")
        e("s_mov_b32 s97, 0")
    if opts.get("spin"):
        e("s_memrealtime s[100:101]")
        e("s_load_dwordx2 s[90:91], s[0:1], 40")
    if LIGHT:
        e("s_load_dwordx2 s[90:91], s[0:1], 48")
        e("s_memrealtime s[100:101]")
    w, ln, i16, g, x4, x5, x6 = range(vX, vX + 7)
    e(f"v_lshrrev_b32 v{w}, 6, v0")
    e(f"v_and_b32 v{ln}, 63, v0")
    e(f"v_readfirstlane_b32 s{sW}, v{w}")
    e(f"v_and_b32 v{i16}, 15, v{ln}")
    e(f"v_lshrrev_b32 v{g}, 4, v{ln}")
    e(f"v_xor_b32 v{x6}, v{i16}, v{g}")
    e(f"v_lshlrev_b32 v{x6}, 4, v{x6}")
    mark = len(L)
    e(f"v_bfe_u32 v{x4}, v{ln}, 3, 1")
    e(f"v_lshlrev_b32 v{x4}, 12, v{x4}")
    e(f"v_and_b32 v{x5}, 7, v{ln}")
    e(f"v_lshl_add_u32 v{x4}, v{x5}, 8, v{x4}")
    e(f"v_add3_u32 v{vKa}, v{x4}, v{x6}, 0")
    e(f"v_add_u32 v{vKa}, 2048, v{vKa}")
    for s in range(1, 4):
        e(f"v_xor_b32 v{vKa+s}, {s*64}, v{vKa}")
    e(f"v_mul_u32_u24 v{x4}, {QW}, v{w}")
    e(f"v_lshl_add_u32 v{x4}, v{i16}, 8, v{x4}")
    e(f"v_add3_u32 v{x4}, v{x4}, v{x6}, 0")
    e(f"v_add_u32 v{vQa}, {QS}, v{x4}")
    e(f"v_lshlrev_b32 v{x4}, 12, v{w}")
    e(f"v_add_u32 v{x4}, {OS}, v{x4}")
    e(f"v_lshl_add_u32 v{vOr}, v{ln}, 4, v{x4}")
    e(f"v_lshl_add_u32 v{x4}, v{i16}, 8, v{x4}")
    e(f"v_lshrrev_b32 v{x5}, 1, v{g}")
    e(f"v_xor_b32 v{x5}, v{x5}, v{i16}")
    e(f"v_lshl_add_u32 v{x4}, v{x5}, 4, v{x4}")
    e(f"v_and_b32 v{x5}, 1, v{g}")
    e(f"v_lshl_add_u32 v{vOw}, v{x5}, 3, v{x4}")
    if opts["epi"]:
        e(f"v_lshlrev_b32 v{x4}, 12, v{i16}")
        e(f"v_lshl_add_u32 v{x4}, v{x5}, 5, v{x4}")
        e(f"v_lshrrev_b32 v{vOw}, 1, v{g}")
        e(f"v_lshl_add_u32 v{vOw}, v{vOw}, 4, v{x4}")
    e(f"v_lshrrev_b32 v{x4}, 1, v{g}")
    e(f"v_lshlrev_b32 v{x4}, 12, v{x4}")
    e(f"v_mul_u32_u24 v{x5}, {4*256+32}, v{x5}")
    e(f"v_add_u32 v{x4}, v{x4}, v{x5}")
    e(f"v_lshrrev_b32 v{x5}, 2, v{i16}")
    e(f"v_mul_u32_u24 v{x5}, {256+64}, v{x5}")
    e(f"v_add_u32 v{x4}, v{x4}, v{x5}")
    e(f"v_and_b32 v{x5}, 3, v{ln}")
    e(f"v_lshl_add_u32 v{vVa}, v{x5}, 3, v{x4}")
    for dt in range(1, 8):
        e(f"v_xor_b32 v{vVa+dt}, {dt*32}, v{vVa}")
    if RS:
        for i in range(4): e(f"v_mov_b32 v{vOne+i}, 0x3f803f80")
    late = [x.strip() for x in L[mark:]]
    del L[mark:]
    e(f"v_lshlrev_b32 v{vG4}, 2, v{g}")
    e(f"v_lshl_add_u32 v{vQd}, v{g}, 12, v{x6}")
    for i in range(1, 4):
        e(f"v_xor_b32 v{vQd+i}, {i*64}, v{vQd}")
        e(f"v_add_u32 v{vQd+i}, {i*(4*ROWB-1024)}, v{vQd+i}")
    e(f"v_lshl_add_u32 v{x5}, v{w}, 3, v{g}")
    e(f"v_xor_b32 v{x4}, v{vG4}, v{i16}")
    e(f"v_lshlrev_b32 v{x4}, 4, v{x4}")
    e(f"v_lshl_add_u32 v{vDV}, v{x5}, 12, v{x4}")
    e(f"v_xor_b32 v{vDV+1}, 32, v{vDV}")
    e(f"v_add_u32 v{vDV+1}, {4*ROWB-1024}, v{vDV+1}")
    e(f"v_and_b32 v{x4}, 15, v{x5}")
    e(f"v_xor_b32 v{x4}, v{x4}, v{i16}")
    e(f"v_lshlrev_b32 v{x4}, 4, v{x4}")
    e(f"v_lshl_add_u32 v{vDK}, v{x5}, 12, v{x4}")
    e(f"v_xor_b32 v{vDK+1}, 64, v{vDK}")
    e(f"v_add_u32 v{vDK}, {4096-2048}, v{vDK}")
    e(f"v_add_u32 v{vDK+1}, {4*ROWB+4096-3072}, v{vDK+1}")
    e(f"s_lshl_b32 s{sWB}, s{sW}, 12")
    e(f"s_mov_b32 s{sThr}, {hex(f32bits(BIAS if RS else 4096.0))}")
    e(f"s_mov_b32 s{sC}, {hex(f32bits(128 ** -0.5 * math.log2(math.e)))}")
    e(f"s_mov_b32 s{sNeg}, {hex(f32bits(-1e30))}")
    e(f"s_mov_b32 s{sBig}, 0x40000000")
    e(f"s_mov_b32 s{sFirst}, 1")
    e(f"s_mul_i32 s{sQW}, s{sW}, {QW}")
    e(f"s_add_u32 s{sQW}, s{sQW}, {QS}")
    for srd in (sQ, sK, sV, sOut, sQc):
        e(f"s_mov_b32 s{srd+2}, 0")
        e(f"s_mov_b32 s{srd+3}, 0x20000")
    e(m0set(0))
    e("s_waitcnt lgkmcnt(0)")
    e(f"s_sub_u32 s{sK}, s{sK}, 4096")
    e(f"s_subb_u32 s{sK+1}, s{sK+1}, 0")
    def decode():
        e(f"s_mov_b32 s{sQ+2}, s{sNRn}")
        e(f"s_lshr_b32 s{sTn}, s{sD1n}, 24")
        e(f"s_mul_i32 s{sT0}, s{sTn}, s{sW}")
        e(f"s_lshl_b32 s{sT0}, s{sT0}, 16")
        e(f"s_and_b32 s{sQoffn}, s{sD1n}, 0xfff000")
        e(f"s_add_u32 s{sQoffn}, s{sQoffn}, s{sD0n}")
        e(f"s_add_u32 s{sQoffn}, s{sQoffn}, s{sT0}")
    emit(next_k0()[1:])
    decode()
    j = 0
    for x in qgroup(0) + next_loads(1)[1]:
        e(x)
        if x.startswith("buffer"):
            emit(late[j:j + 5]); j += 5
    emit(late[j:])
    lab("Lstart")
    e(f"s_mov_b64 s[{sD0}:{sD1}], s[{sD0n}:{sD1n}]")
    e(f"s_mov_b32 s{sLast}, s{sLastn}")
    e(f"s_mov_b32 s{sOut+2}, s{sNRn}")
    e(f"s_mov_b32 s{sV+2}, s{sNRn}")
    e(f"s_mov_b32 s{sQc+2}, s{sNRn}")
    e(f"s_mov_b32 s{sOoff}, s{sQoffn}")
    e(f"s_mov_b64 s[{sJ}:{sJ+1}], s[{sJ+4}:{sJ+5}]")
    e(f"s_mov_b64 s[{sJ+2}:{sJ+3}], s[{sJ+6}:{sJ+7}]")
    e(f"s_mov_b64 s[{sJ+4}:{sJ+5}], 0")
    e(f"s_mov_b64 s[{sJ+6}:{sJ+7}], 0")
    decode()
    e(f"s_and_b32 s{sCnt}, s{sD1}, 63")
    e(f"s_bfe_u32 s{sRem}, s{sD1}, 0x60006")
    e(f"s_mov_b32 s{sOff}, s{sD0}")
    e(f"s_add_u32 s{sOffK}, s{sD0}, {2*TILEB}")
    if opts["stamp"]: e(f"s_add_u32 s{sN}, s{sCnt}, 2")
    stamp(0)
    e(f"s_bfe_u32 s{sT0}, s{sD1}, 0x30018")
    if opts["stamp"]:
        e(f"s_memrealtime s[{sST+10}:{sST+11}]")
        e(f"s_lshl_b32 s98, s{sT0}, 8"); e(f"s_add_u32 s98, s98, s{sN}")
        e("s_waitcnt lgkmcnt(0)")
        if opts["stamp"] == 2:
            e(f"s_mov_b32 s97, s{sST}"); e(f"s_mov_b32 s99, s{sST+10}")
    order = sorted(TS, key=lambda t: (t != 4, -t))
    for T in order[1:]:
        e(f"s_cmp_eq_u32 s{sT0}, {T}")
        e(f"s_cbranch_scc1 Lpro{T}")
    global NRS
    for T in order:
        NRS = 3 if T == 5 else opts.get("nrs4", 3)
        prologue(T)
        epilogue(T)
    NRS = 3
    lab("Ldone")
    if opts.get("spin"):
        if opts.get("gref"):
            e("s_mov_b32 s92, s90"); e("s_mov_b32 s93, s91"); e("s_mov_b32 s94, 256"); e("s_mov_b32 s95, 0x20000")
            e("s_not_b32 s96, s100"); e("v_mov_b32 v0, s96"); e("v_mov_b32 v2, 0")
            e("s_mov_b64 exec, 1")
            e(f"s_cmp_lg_u32 s{sW}, 0"); e("s_cbranch_scc1 Lsp0")
            e("buffer_atomic_umax v0, v2, s[92:95], 0 offen")
            lab("Lsp0")
            e("s_memrealtime s[88:89]"); e("s_waitcnt lgkmcnt(0)"); e("s_sub_u32 s88, s88, s100")
            e(f"s_cmp_lt_u32 s88, 4500"); e("s_cbranch_scc1 Lsp0")
            e("buffer_load_dword v1, v2, s[92:95], 0 offen sc0 sc1")
            e("s_waitcnt vmcnt(0)")
            e("v_readfirstlane_b32 s96, v1"); e("s_nop 3"); e("s_not_b32 s100, s96")
        lab("Lspin")
        e("s_memrealtime s[88:89]")
        e("s_waitcnt lgkmcnt(0)")
        e("s_sub_u32 s88, s88, s100")
        e(f"s_cmp_lt_u32 s88, {opts['spin']}")
        e("s_cbranch_scc1 Lspin")
    if LIGHT:
        e("s_waitcnt vmcnt(0)")
        e("s_memrealtime s[88:89]")
        e("s_mov_b32 s92, s90"); e("s_mov_b32 s93, s91"); e("s_mov_b32 s94, 0x100000"); e("s_mov_b32 s95, 0x20000")
        e(f"s_lshl_b32 s96, s2, 2"); e(f"s_add_u32 s96, s96, s{sW}"); e("s_lshl_b32 s96, s96, 3")
        e("s_waitcnt lgkmcnt(0)")
        e("v_mov_b32 v0, s100"); e("v_mov_b32 v1, s88"); e("v_mov_b32 v2, 0")
        e("s_mov_b64 exec, 1")
        e("buffer_store_dwordx2 v[0:1], v2, s[92:95], s96 offen")
    if opts["stamp"]:
        e("s_waitcnt vmcnt(0)")
        stamp(0)
        e(f"s_memrealtime s[{sST+12}:{sST+13}]")
        e(f"s_mov_b32 s{sST+10}, s100")
        e("s_getreg_b32 s98, hwreg(HW_REG_HW_ID)")
        stamp_store(True)
    lab("Lend")
    e("s_endpgm")

    for tag, buf in STUBS:
        lab(f"Lrare_{tag}")
        e(f"s_call_b64 s[{sRet}:{sRet+1}], Lresc_{buf}")
        e(f"s_branch Lback_{tag}")
    for b in range(2):
        lab(f"Lresc_{b}")
        e("s_nop 15")
        for t in range(TM):
            s, s2 = sreg(b, t), sreg(b ^ 1, t)
            dl, al = vX, (vX + 8 + t if t < 4 else vX + 2)
            e(f"v_max3_f32 v{dl}, v{s}, v{s+1}, v{s+2}")
            e(f"v_max3_f32 v{dl}, v{dl}, v{s+3}, v{s+4}")
            e(f"v_max3_f32 v{dl}, v{dl}, v{s+5}, v{s+6}")
            if RS:
                e(f"v_max_f32 v{dl}, v{dl}, v{s+7}")
                e(f"v_add_f32 v{dl}, s{sThr}, v{dl}")
                e(f"v_max_f32 v{dl}, 0, v{dl}")
            else:
                e(f"v_max3_f32 v{dl}, v{dl}, v{s+7}, 0")
            emit(xlane("v_max_f32", [dl], vX + 1))
            e(f"v_sub_f32 v{al}, 0, v{dl}")
            e(f"v_exp_f32 v{al}, v{al}")
            for i in range(8):
                e(f"v_sub_f32 v{s+i}, v{s+i}, v{dl}")
                e(f"v_sub_f32 v{s2+i}, v{s2+i}, v{dl}")
            for i in range(4):
                e(f"v_sub_f32 v{vNM+4*t+i}, v{vNM+4*t+i}, v{dl}")
            if not RS:
                e(f"v_mul_f32 v{vL+t}, v{vL+t}, v{al}")
            if RS and t >= NRS:
                e(f"v_mul_f32 v{vL4+2*(t-NRS)+1}, v{vL4+2*(t-NRS)+1}, v{al}")
            if RS and t < 4:
                for i in range(4):
                    e(f"v_accvgpr_read_b32 v{vX+1}, a{aL+4*t+i}")
                    e(f"v_mul_f32 v{vX+1}, v{vX+1}, v{al}")
                    e(f"v_accvgpr_write_b32 a{aL+4*t+i}, v{vX+1}")
        emit(SM(TM, b, False).rest())
        if b == 0: e("s_branch LrescO")
    lab("LrescO")
    for t in range(TM):
        for i in range(0, 32, 4):
            al = vX + 8 + t if t < 4 else vX + 2
            for k in range(4): e(f"v_accvgpr_read_b32 v{vX+4+k}, a{aO+32*t+i+k}")
            for k in range(4): e(f"v_mul_f32 v{vX+4+k}, v{vX+4+k}, v{al}")
            for k in range(4): e(f"v_accvgpr_write_b32 a{aO+32*t+i+k}, v{vX+4+k}")
    e("s_nop 1")
    e(f"s_setpc_b64 s[{sRet}:{sRet+1}]")

    e(".p2align 5")
    L.append(".type Ltab,@object")
    lab("Ltab")
    for ent in TAB:
        e(".long " + ", ".join(str(x) for x in ent))
    L.append('.section .rodata,"a"')
    L.append(".p2align 6")
    L.append(f".amdhsa_kernel {NAME}_kernel")
    L.append("  .amdhsa_next_free_vgpr 512")
    L.append("  .amdhsa_next_free_sgpr 102")
    L.append("  .amdhsa_accum_offset 256")
    L.append("  .amdhsa_group_segment_fixed_size 0")
    L.append("  .amdhsa_kernarg_size 56")
    L.append("  .amdhsa_user_sgpr_count 2")
    L.append("  .amdhsa_user_sgpr_kernarg_segment_ptr 1")
    L.append("  .amdhsa_system_sgpr_workgroup_id_x 1")
    L.append(".end_amdhsa_kernel")

gen()
open(sys.argv[1], "w").write("\n".join(L) + "\n")
```

```python
import sys, struct, math, os

NAME = "standalone__varlen_attn_packed__ragged"
CU = [0, 534, 1426, 1714, 2675, 3469, 4036, 4628, 4845]
ROWB = 4096
TILEB = 32 * ROWB
QS = 65536
QW = 20480
OS = QS + 4 * QW
LDSZ = 163840
TM = 5

opts = dict(stamp=0, st="sc0+sc1", ld="", ldq="nt", al=3, e64=0, rs=1, epi=0, late=1, plan="b", rev=0, lc=4, pf=2, lazy=0)
for a in sys.argv[2:]:
    k, v = a.split("=")
    opts[k] = int(v) if v.lstrip("-").isdigit() else v
LD = (" " + opts["ld"].replace("+", " ")) if opts["ld"] else ""
LDQ = (" " + opts["ldq"].replace("+", " ")) if opts.get("ldq", opts["ld"]) and "ldq" in opts else ("" if "ldq" in opts else LD)
ST = (" " + opts["st"].replace("+", " ")) if opts["st"] else ""
DG = str(opts.get("diag", ""))

def f32bits(x):
    return struct.unpack("<I", struct.pack("<f", x))[0]

vQ = 0
vS = 64
vP = 144
vNM = 184
vKa = 204
vVa = 208
vDK = 216
vDV = 218
vQd = 220
vE = 224
vT = 228
vL = 233
vU = 238
vQa = 239
vOw = 240
vOr = 241
vG4 = 242
vU2 = 243
vX = 244
aO = 0
aKf = 160
aVf = 192
aQ = 224
aL = 240
vOne = 228
vL4 = 232
vAc = vX + 1
vFr = 236
vFl = 237
vSeq = 238
vSr = 243
BIAS = 20.0
RS = opts['rs']
NRS = opts.get('nrs', 3)
NOCHK = [False]

sQ, sK, sV, sOut = 12, 16, 20, 24
sJ = 28
sD0, sD1 = 36, 37
sL, sN, sOff, sWB, sCnt, sLast, sThr, sC, sNeg, sW = 38, 39, 40, 41, 42, 43, 44, 45, 46, 47
sRet, sPC = 48, 52
sTn = 50
sRem, sQoffn, sOoff, sBig = 54, 55, 56, 57
sD0n, sD1n, sNRn, sLastn = 28, 29, 30, 31
sT0 = 61
sOffK = 63
sQW = 3
sFirst = 64
sSafe = 65
sLim = 66
sQc = 8
sM = 68
sST = 76

L = []
def e(s): L.append("    " + s)
def lab(s): L.append(s + ":")
def vr(b, n): return f"v[{b}:{b+n-1}]"
def ar(b, n): return f"a[{b}:{b+n-1}]"
def emit(lines):
    for x in lines:
        if x.endswith(":"): L.append(x)
        else: e(x)
LIGHT = opts["stamp"] == 3
if LIGHT: opts["stamp"] = 0
def estamp(idx):
    if opts["stamp"] and opts.get("pst") == 2:
        e(f"s_memtime s[{sST+2*idx}:{sST+1+2*idx}]")
def pstamp(idx):
    if opts["stamp"] and opts.get("pst") == 1:
        e(f"s_memtime s[{sST+2*idx}:{sST+1+2*idx}]")
        e("s_waitcnt lgkmcnt(0)")
def stamp(idx):
    if opts.get("pst") and 1 <= idx <= 4: return
    if opts["stamp"]:
        e(f"s_memtime s[{sST+2*idx}:{sST+1+2*idx}]")

SEQ = []
for si in range(8):
    ln = CU[si + 1] - CU[si]
    SEQ.append((CU[si], ln, (ln + 63) // 64, (ln + 31) // 32))

PLANS = {
    "b": [[(31, 4)]] * 4 + [[(25, 5)]] * 2 + [[(25, 3), (7, 4)], [(18, 3), (17, 3)], [(18, 3), (17, 3)], [(18, 3), (17, 3)],
          [(19, 4), (9, 3)], [(28, 2), (19, 2)], [(19, 4), (9, 2)]] + [[(28, 4)]] * 3,
    "a": [[(31, 4)]] * 4 + [[(25, 5)]] * 2 + [[(17, 4), (18, 2)], [(19, 5), (7, 2)], [(25, 3), (9, 3)], [(28, 2), (18, 2)],
          [(17, 5), (9, 2)], [(18, 5), (7, 2)]] + [[(28, 4)]] * 3 + [[(19, 5)]],
}

def plan_head():
    n2s = {SEQ[i][3]: i for i in range(8)}
    nxt = {i: 0 for i in range(8)}
    spec = PLANS[opts["plan"]]
    res = [[None] * len(s) for s in spec]
    for want in (2, 3, 4, 5):
        for i, s in enumerate(spec):
            for k, (n, t) in enumerate(s):
                if t == want:
                    si = n2s[n]
                    res[i][k] = (si, nxt[si], t); nxt[si] += 64 * t
    for i in range(8):
        assert nxt[i] == SEQ[i][2] * 64, (i, nxt[i])
    if opts["rev"]:
        res = [list(reversed(r)) for r in res]
    return res

def make_table():
    ph = plan_head()
    tab = []
    for wg in range(256):
        x, j = wg & 7, wg >> 3
        head = 2 * x + (j & 1)
        ent = []
        for (si, q0, t) in ph[j >> 1]:
            st, ln, nb, n = SEQ[si]
            d0 = st * ROWB + head * 256
            ent += [d0, (n - 2) | ((ln - 32 * (n - 1)) << 6) | (q0 << 12) | (t << 24), d0 + (ln - 1) * ROWB + 256, d0 + (n - 1) * TILEB]
        assert len(ent) <= 8
        ent += [0] * (8 - len(ent))
        tab.append(ent)
    return tab

TAB = make_table()
PH = plan_head()
TS = sorted({t for jl in PH for _, _, t in jl}, reverse=True)
TAILS = {}
for jl in PH:
    for k, (si, q0, t) in enumerate(jl):
        TAILS.setdefault((t, (SEQ[si][3] - 1) % 4), set()).add(1 if k + 1 < len(jl) else 0)
PROD = {t for (t, p), v in TAILS.items() if v - {0}}
NWG = 256

MF = "v_mfma_f32_16x16x32_bf16"
def qreg(t, s):
    return vr(vQ + 16 * t + 4 * s, 4) if t < 4 else ar(aQ + 4 * s, 4)
def sreg(buf, t, a=0): return vS + 40 * buf + 8 * t + 4 * a
def preg(buf, t): return vP + 20 * buf + 4 * t

def qk1(buf, t, a, s, cinit, kf=None):
    d = sreg(buf, t, a)
    kf = aKf if kf is None else kf
    return f"{MF} {vr(d,4)}, {ar(kf+4*(a*4+s),4)}, {qreg(t,s)}, {vr(cinit if s == 0 else d,4)}"

def qk_mfmas(T, buf):
    return [qk1(buf, t, a, s, vNM + 4 * t) for a in range(2) for s in range(4) for t in range(T)]

ZERO = [False]
def pv1(buf, t, dt, vf):
    o = aO + 32 * t + 4 * dt
    return f"{MF} {ar(o,4)}, {ar(vf+4*dt,4)}, {vr(preg(buf,t),4)}, {'0' if ZERO[0] else ar(o,4)}"

def rs1(buf, t):
    l = ar(aL + 4 * t, 4) if t < 4 else vr(vL4, 4)
    return f"{MF} {l}, {vr(vOne,4)}, {vr(preg(buf,t),4)}, {'0' if ZERO[0] else l}"

def pv_mfmas(T, buf, vf=aVf):
    return [pv1(buf, t, dt, vf) for dt in range(8) for t in range(T)] + ([rs1(buf, t) for t in range(min(T, NRS))] if RS else [])

def zero_mfmas(T):
    return [f"v_mfma_f32_32x32x16_bf16 {ar(aO+16*i,16)}, {vr(vP+28,4)}, {vr(vP+28,4)}, 0" for i in range(2 * T)]

def k_reads(slot, kf=None):
    kf = aKf if kf is None else kf
    return [f"ds_read_b128 {ar(kf+4*(a*4+s),4)}, v{vKa+s} offset:{slot*16384+a*8192}" for a in range(2) for s in range(4)]

def v_reads(slot, vf=aVf):
    return [f"ds_read_b64_tr_b16 {ar(vf+4*dt+2*a,2)}, v{vVa+dt} offset:{slot*16384+a*8192}" for dt in range(8) for a in range(2)]

def m0set(off):
    return f"s_add_u32 m0, s{sWB}, {off}" if off else f"s_mov_b32 m0, s{sWB}"
def ldv(j, so):
    return f"buffer_load_dwordx4 v{vDV+j}, s[{sV}:{sV+3}], s{so} offen" + (f" offset:{j*1024}" if j else "") + f"{LD} lds"
def ldk(j, so):
    return f"buffer_load_dwordx4 v{vDK+j}, s[{sK}:{sK+3}], s{so} offen offset:{2048+j*1024}{LD} lds"

def dma(slot):
    return [m0set(slot * 16384),
            f"s_add_u32 s{sOff}, s{sOff}, {TILEB}",
            f"s_add_u32 s{sOffK}, s{sOffK}, {TILEB}",
            ldv(0, sOff), ldv(1, sOff), ldk(0, sOffK), ldk(1, sOffK)]

CHK = f"v_cmp_ne_u32 vcc, 0, v{vX}" if RS else f"v_cmp_lt_f32 vcc, s{sThr}, v{vX}"
ERING = [vE, vE + 2, vX + 4, vX + 6]
def softmax_ops(T, buf, full=True, R=4, t0=0):
    exps, sims = [], []
    done_after = []
    n = 4 * T
    for k in range(n):
        t, kk = divmod(k, 4)
        t = T - 1 - t + t0
        a = ERING[k % R]; b = a + 1
        need = done_after[k - R] if k >= R else 0
        exps += [(f"v_exp_f32 v{a}, v{sreg(buf,t)+2*kk}", need), (f"v_exp_f32 v{b}, v{sreg(buf,t)+2*kk+1}", need)]
        p = preg(buf, t) + kk
        u = vU if k & 1 else vU2
        ne = 2 * k + 2
        if RS:
            sims.append((f"v_perm_b32 v{p}, v{b}, v{a}, s{sN}" if opts.get("perm") else f"v_cvt_pk_bf16_f32 v{p}, v{a}, v{b}", ne))
            if t >= NRS:
                pt, lt = vL4 + 2 * (t - 3), vL4 + 2 * (t - 3) + 1
                if kk == 0:
                    if full: sims.append((f"v_add_f32 v{lt}, v{lt}, v{pt}", 0))
                    sims.append((f"v_add_f32 v{pt}, v{a}, v{b}", ne))
                else:
                    sims.append((f"v_add_f32 v{u}, v{a}, v{b}", ne))
            done_after.append(len(sims))
            if t >= NRS and kk: sims.append((f"v_add_f32 v{pt}, v{pt}, v{u}", ne))
            if full and (k & 1) and not NOCHK[0]:
                sims.append((f"v_or_b32 v{vAc}, v{p-1}, v{p}" if k == 1 else f"v_or3_b32 v{vAc}, v{vAc}, v{p-1}, v{p}", ne))
        elif kk == 0:
            if full: sims.append((f"v_add_f32 v{vL+t}, v{vL+t}, v{vT+t}", 0))
            sims += [(f"v_cvt_pk_bf16_f32 v{p}, v{a}, v{b}", ne), (f"v_add_f32 v{vT+t}, v{a}, v{b}", ne)]
            done_after.append(len(sims))
        else:
            sims += [(f"v_add_f32 v{u}, v{a}, v{b}", ne), (f"v_cvt_pk_bf16_f32 v{p}, v{a}, v{b}", ne)]
            done_after.append(len(sims))
            sims.append((f"v_add_f32 v{vT+t}, v{vT+t}, v{u}", ne))
    if full and RS and NOCHK[0]:
        pass
    elif full and RS:
        sims += [(f"v_and_b32 v{vX}, 0x40004000, v{vAc}", 2 * n), (CHK, 2 * n)]
    elif full:
        m = [vT + t for t in range(T)]
        cur = m.pop(0)
        while m:
            if len(m) >= 2:
                sims.append((f"v_max3_f32 v{vX}, v{cur}, v{m[0]}, v{m[1]}", 2 * n)); m = m[2:]
            else:
                sims.append((f"v_max_f32 v{vX}, v{cur}, v{m[0]}", 2 * n)); m = []
            cur = vX
        sims.append((f"v_cmp_lt_f32 vcc, s{sThr}, v{cur}", 2 * n))
    return exps, sims

class SM:
    def __init__(s, T, buf, full=True, t0=0, R=4):
        s.ex, s.si = softmax_ops(T, buf, full, R, t0)
        s.i = s.j = 0
        s.last_exp = False
    def left(s): return 8 * (len(s.ex) - s.i) + 4 * (len(s.si) - s.j)
    def can_exp(s): return s.i < len(s.ex) and s.ex[s.i][1] <= s.j
    def can_sim(s):
        if s.j >= len(s.si): return False
        need = s.si[s.j][1]
        return need < s.i or (need == s.i and not s.last_exp)
    def exp(s): s.i += 1; s.last_exp = True; return s.ex[s.i - 1][0]
    def sim(s): s.j += 1; s.last_exp = False; return s.si[s.j - 1][0]
    def other(s): s.last_exp = False
    def any(s):
        if s.can_sim() and (s.si[s.j][1] <= s.i - 2 or not s.can_exp()): return s.sim()
        if s.can_exp(): return s.exp()
        if s.can_sim(): return s.sim()
        s.last_exp = False
        return "s_nop 0"
    def take(s, n): return [s.any() for _ in range(n) if s.left()]
    def rest(s):
        r = []
        while s.left(): r.append(s.any())
        return r

def is_mem(x): return x.startswith("ds_") or x.startswith("buffer_")

def pack(mf, fixed, sm=None, novalu=(), keep=0, cap=8):
    n = len(mf)
    def fcost(l):
        c = 0; ns = 0; nm = 0
        for x in l:
            if x.endswith(":"): continue
            if is_mem(x): c += 8 if nm else 4; nm += 1
            elif x.startswith("s_"): c += 4 if (ns or nm) else 0; ns += 1
            else: c += 4
        return c
    fc = [fcost(fixed.get(g, [])) for g in range(n)]
    out = []
    for g in range(n):
        out.append(mf[g])
        out += fixed.get(g, [])
        if sm is None: continue
        sm.other()
        if g in novalu: continue
        rem = [k for k in range(g, n) if k not in novalu]
        last = g == rem[-1]
        used = fc[g]
        while sm.left() > keep:
            later = sum(max(0, cap - fc[k]) for k in rem[1:])
            over = sm.left() - keep - later
            room = cap - used
            if room <= 0:
                if not last and over * 1.0 < 4 * 1.0 + 0 : break
                if not last and (used - cap + 4) * len(rem) > over + (used - cap) + 2 * len(rem): break
            nexp = len(sm.ex) - sm.i
            full_later = sum(1 for k in rem[1:] if cap - fc[k] >= 8)
            if room >= 8 and sm.can_exp() and (not sm.can_sim() or nexp > full_later * opts.get("eb", 70) // 100 or sm.si[sm.j][1] > sm.i - 4):
                out.append(sm.exp()); used += 8
            elif sm.can_sim():
                out.append(sm.sim()); used += 4
            elif sm.can_exp() and (room >= 8 or last or nexp + opts.get("slk", 1) > full_later or over > 0):
                out.append(sm.exp()); used += 8
            else:
                if last: out.append(sm.any()); used += 4
                else: break
    return out

STUBS = []
SPINS = []
def check_rare(buf, tag):
    e(f"s_cbranch_vccnz Lrare_{tag}")
    lab(f"Lback_{tag}")
    STUBS.append((tag, buf))

def spread(items, gaps):
    d = {}
    gaps = list(gaps)
    for i, x in enumerate(items):
        d.setdefault(gaps[i * len(gaps) // len(items)], []).append(x)
    return d

def merge(*ds):
    r = {}
    for d in ds:
        for k, v in d.items():
            r.setdefault(k, []).extend(v)
    return r

def interleave(a, b):
    out = []
    if not a: return list(b)
    j = 0
    for i, x in enumerate(a):
        out.append(x)
        nj = (i + 1) * len(b) // len(a)
        out += b[j:nj]; j = nj
    return out

CNT = f"s_sub_u32 s{sCnt}, s{sCnt}, 1"

def place(items, gaps):
    groups = []
    cur = []
    for x in items:
        cur.append(x)
        if is_mem(x): groups.append(cur); cur = []
    if cur: groups.append(cur)
    gaps = list(gaps)
    d = {}
    for i, gr in enumerate(groups):
        d.setdefault(gaps[i * len(gaps) // len(groups)], []).extend(gr)
    return d

def qgroup(g, dyn=True):
    r = [f"s_add_u32 m0, s{sQW}, {g*4096}" if g else f"s_mov_b32 m0, s{sQW}",
         f"s_add_u32 s{sT0}, s{sQoffn}, {g*16*ROWB}"]
    if g >= 2 and dyn:
        r += [f"s_cmp_gt_u32 s{sTn}, {g}", f"s_cselect_b32 s{sT0}, s{sT0}, s{sBig}"]
    r += [f"buffer_load_dwordx4 v{vQd+i}, s[{sQ}:{sQ+3}], s{sT0} offen offset:{i*1024}{LDQ} lds" for i in range(4)]
    return r

def step(T, t, prod=False, fast=False):
    p = t % 4
    b = t % 2
    h = 8 * T
    ZERO[0] = prod
    mf = qk_mfmas(T, b ^ 1) + pv_mfmas(T, b ^ 1)
    ZERO[0] = False
    kr = k_reads((t + 2) % 4)
    d = dma((t + 1) % 4)
    NOCHK[0] = bool(fast)
    sm = SM(T, b)
    NOCHK[0] = False
    n = len(mf)
    vrd = v_reads((t + 1) % 4)
    vm = opts.get('vm', 8)
    end = [CNT] if (prod or fast) else [CNT, "s_cselect_b64 vcc, -1, vcc"]
    bw = f"s_waitcnt vmcnt({vm}) lgkmcnt(0)"
    tight = T >= opts.get("tt", 3)
    SPIN = None
    if fast and T >= opts.get("sb", 9):
        ve, gx, gr, gy = {5: (24, 29, 44, 50), 4: (20, 25, 37, 43), 3: (16, 20, 26, 31)}[T]
        gr += opts.get("sbo", 0); gy += opts.get("sbo", 0)
        SPIN = f"{T}_{p}{'z' if prod else ''}"
        kd = [kr[0], kr[1], d[3], kr[2], kr[3], kr[4], d[4], kr[5], kr[6], kr[7], d[5]]
        fixed = merge(place(vrd, range(0, ve)),
                      {gx - 3: [d[0], f"v_add_u32 v{vSeq}, 1, v{vSeq}"], gx - 2: [d[1]], gx - 1: [d[2]],
                       gx: [bw, f"ds_write_b32 v{vOr}, v{vSeq}"], gr: [f"ds_read_b32 v{vFl}, v{vSr}"],
                       gy - 1: ["s_waitcnt lgkmcnt(0)", f"v_cmp_lt_u32 vcc, v{vFl}, v{vSeq}"],
                       gy: [f"s_cbranch_vccnz Lsp{SPIN}", f"Lspb{SPIN}:"]},
                      place(kd, range(gy + 1, n - 6)),
                      {n - 4: [end[0], d[6]], n - 2: ["s_waitcnt lgkmcnt(0)"]})
        nov = (gx, gy, n - 1)
        SPINS.append(SPIN)
    elif tight:
        kd = [kr[0], kr[1], d[3], kr[2], kr[3], d[4], kr[4], kr[5], kr[6], d[5], kr[7]]
        fixed = merge(place(vrd, range(0, h - 6)),
                      {h - 5: [d[0]], h - 4: [d[1]], h - 3: [d[2]], h - 2: [bw], h - 1: ["s_barrier"]},
                      place(kd, range(h, n - 7)),
                      {n - 5: [d[6]], n - 4: [end[0]], n - 3: ["s_waitcnt lgkmcnt(0)"], n - 2: end[1:]})
        nov = (h - 1, n - 1) if fast else (h - 1, n - 2, n - 1)
    elif T >= 3:
        kd = [kr[0], kr[1], d[3], kr[2], kr[3], d[4], kr[4], kr[5], d[5], kr[6], kr[7], d[6]]
        fixed = merge(place(vrd, range(0, h - 5)),
                      {h - 1: [bw, "s_barrier"]},
                      {h - 4: [d[0]], h - 3: [d[1]], h - 2: [d[2]]},
                      place(kd, range(h, n - 3)),
                      {n - 2: [end[0]], n - 1: end[1:]})
        nov = (h - 1, n - 1)
    else:
        kd = [kr[0], kr[1], d[3], kr[2], kr[3], kr[4], d[4], kr[5], kr[6], kr[7], d[5]]
        fixed = merge(place(vrd, range(0, 12)),
                      {h - 1: [bw, "s_barrier"]},
                      {h - 4: [d[0]], h - 3: [d[1]], h - 2: [d[2]]},
                      place(kd, range(h, n - 5)),
                      {n - 2: [end[0], d[6]], n - 1: end[1:]})
        nov = (h - 1, n - 1)
    if prod or not tight: e("s_waitcnt lgkmcnt(0)")
    body = pack(mf, fixed, sm, nov)
    if DG and not prod:
        body = [x for x in body if not (("d" in DG and x.startswith("buffer_load")) or ("b" in DG and x.startswith("s_barrier"))
                or ("l" in DG and x.startswith("ds_read")) or ("w" in DG and x.startswith("s_waitcnt"))
                or ("v" in DG and x.startswith(("v_exp", "v_cvt", "v_or"))))]
    if opts["e64"]:
        body = [x.replace("v_exp_f32 ", "v_exp_f32_e64 ").replace("v_add_f32 ", "v_add_f32_e64 ").replace("v_max_f32 ", "v_max_f32_e64 ") for x in body]
    emit(body)
    assert sm.left() == 0
    if fast:
        if not prod and TAILS.get((T, (p + 1) % 4)): e(f"s_cbranch_scc1 Lxt{T}_{p}")
    elif prod:
        check_rare(b, f"t{T}p{p}")
    else:
        e(f"s_cbranch_vccnz Lx{T}_{p}")
        lab(f"Lxb{T}_{p}")

def exit_stub(T, p):
    lab(f"Lx{T}_{p}")
    e(CHK)
    check_rare(p % 2, f"x{T}_{p}")
    if TAILS.get((T, (p + 1) % 4)):
        e(f"s_cbranch_scc1 Lxt{T}_{p}")
    e(f"s_branch Lxb{T}_{p}")

def tails(T, p):
    np_ = (p + 1) % 4
    nx = sorted(TAILS.get((T, np_), ()))
    if not nx: return
    lab(f"Lxt{T}_{p}")
    for tn in nx[1:]:
        e(f"s_cmp_lg_u32 s{sD1n}, 0")
        e(f"s_cbranch_scc1 Ltail{T}_{np_}_{tn}")
    for tn in nx:
        tail(T, np_, tn)

def safe_loop(T):
    lab(f"Lsafe{T}")
    step(T, 1, True)
    lab(f"Lsloop{T}")
    for t in (2, 3, 4, 5):
        step(T, t)
    e(f"s_branch Lsloop{T}")
    for p in range(4):
        exit_stub(T, p)

def ktile(u):
    return [m0set(u * 16384), f"s_add_u32 s{sT0}, s{sD0}, {(u-1)*TILEB}", ldk(0, sT0), ldk(1, sT0)]
def vtile(u):
    so = sLast if u == 0 else sD0
    return [m0set(((u + 2) % 4) * 16384), "s_nop 0", ldv(0, so), ldv(1, so)]
def next_k0():
    return [m0set(0), f"s_add_u32 s{sK+2}, s{sNRn}, 4096", ldk(0, sLastn), ldk(1, sLastn)]
def next_k1():
    return [m0set(16384), "s_nop 0", ldk(0, sD0n), ldk(1, sD0n)]

def tail(T, p, tn):
    b = p % 2
    lab(f"Ltail{T}_{p}_{tn}")
    if opts.get("enc"): e("s_memrealtime s[78:79]")
    stamp(3)
    if opts["stamp"]: e("s_waitcnt lgkmcnt(0)")
    vrd = v_reads((p + 1) % 4)
    vrd2 = v_reads((p + 2) % 4, aKf)
    sm = SM(T, b)
    mf = pv_mfmas(T, b ^ 1)
    o = min(T, NRS) if RS else 0
    if RS: mf = mf[-o:] + mf[:-o]
    rsm, mf = mf[:o], mf[o:]
    emit(interleave(rsm, vrd[:o]) + vrd[o:])
    m = []
    for t in range(T):
        x = vX + 8 + t if t < 4 else vX + 2
        if t < 4: e(f"v_accvgpr_read_b32 v{x}, a{aL+4*t}")
        m.append(x if t < 4 else vL4)
    cur = m.pop(0)
    while m:
        if len(m) >= 2:
            e(f"v_max3_f32 v{vFl}, v{cur}, v{m[0]}, v{m[1]}"); m = m[2:]
        else:
            e(f"v_max_f32 v{vFl}, v{cur}, v{m[0]}"); m = []
        cur = vFl
    e(f"v_cmp_le_f32 vcc, s{sLim}, v{vFl}")
    emit(sm.take(2))
    e("s_cmp_lg_u64 vcc, 0")
    e(f"s_cselect_b32 s{sT0}, 1, 0")
    e(f"s_andn2_b32 s{sT0}, s{sT0}, s{sSafe}")
    e(f"v_mov_b32 v{vFl}, s{sT0}")
    e(f"ds_write_b32 v{vQa}, v{vFl} offset:16384")
    emit(sm.take(opts.get("tk", 16)))
    e("s_waitcnt vmcnt(8) lgkmcnt(0)")
    e("s_barrier")
    fixed = place([f"ds_read_b32 v{vFl}, v{vFr}"] + vrd2, range(len(mf) - 2))
    if tn:
        fixed = merge(fixed, place(next_loads(tn)[0], range(len(mf))))
    emit(pack(mf, fixed, sm))
    assert sm.left() == 0
    check_rare(b, f"t{T}t{p}_{tn}")
    e("s_waitcnt lgkmcnt(8)")
    e(f"v_cmp_ne_u32 vcc, 0, v{vFl}")
    e("s_cbranch_vccnz Lrestart")
    fin(T, b, tn)

def next_loads(tn):
    return next_k0() + qgroup(0, False), qgroup(1, False) + next_k1()

def xlane(op, regs, tmp):
    r = []
    for sw in ("v_permlane32_swap_b32", "v_permlane16_swap_b32"):
        r += [f"v_mov_b32 v{tmp+i}, v{x}" for i, x in enumerate(regs)]
        r += ["s_nop 1"]
        r += [f"{sw} v{x}, v{tmp+i}" for i, x in enumerate(regs)]
        r += ["s_nop 1"]
        r += [f"{op} v{x}, v{x}, v{tmp+i}" for i, x in enumerate(regs)]
    return r

vOA = vNM
vLI = vNM + 8
def epi_acc(t):
    return [f"v_accvgpr_read_b32 v{vQ+i}, a{aO+32*t+i}" for i in range(32)]
def epi_cvt(t):
    r = [f"v_pk_mul_f32 {vr(vQ+2*i,2)}, {vr(vQ+2*i,2)}, {vr(vLI+2*(t//2),2)} " +
         ("op_sel:[0,1] op_sel_hi:[1,1]" if t & 1 else "op_sel_hi:[1,0]") for i in range(16)]
    r += [f"v_cvt_pk_bf16_f32 v{vQ+32+16*(t&1)+i}, v{vQ+2*i}, v{vQ+2*i+1}" for i in range(16)]
    return r
def epi_writes(t):
    return [f"ds_write_b64 v{vOA+dt}, {vr(vQ+32+16*(t&1)+2*dt,2)}" for dt in range(8)]
def epi_reads(t):
    return [f"ds_read_b128 {vr(vS+16*t+4*i,4)}, v{vOr} offset:{i*1024}" for i in range(4)]
def epi_stores(t):
    return [f"s_add_u32 s{sT0}, s{sOoff}, {t*16*ROWB}"] + \
           [f"buffer_store_dwordx4 {vr(vS+16*t+4*i,4)}, v{vQd+i}, s[{sOut}:{sOut+3}], s{sT0} offen offset:{i*1024}{ST}" for i in range(4)]

def fin(T, b, tn):
    if not RS: e("s_waitcnt lgkmcnt(0)")
    mf = [pv1(b, t, dt, aKf) for t in range(T) for dt in range(8)]
    regs = [vL + t for t in range(T)]
    xo = [f"v_xor_b32 v{vOA+dt}, {dt*32}, v{vOw}" for dt in range(8)] if not opts["epi"] else ["s_nop 0"]
    if RS:
        nr = min(T, NRS)
        mf = [rs1(b, t) for t in range(nr)] + mf
        src = lambda t: (vX + t if t < NRS else vL4 + 2 * (t - 3) + 1)
        ad = [src(t) for t in range(nr, T)]
        if ad: xo = [f"v_add_f32 v{x}, v{x}, v{x-1}" for x in ad] + xlane("v_add_f32", ad, vX + 6) + xo
        ls = [f"v_accvgpr_read_b32 v{vX+t}, a{aL+4*t}" if t < 4 else f"v_mov_b32 v{vX+t}, v{vL4}" for t in range(nr)] + \
             [f"v_rcp_f32 v{vLI+t}, v{src(t)}" for t in range(T)] + epi_acc(0)
        fixed = merge({nr - 1: ["s_waitcnt lgkmcnt(6)"], nr + 4: ["s_waitcnt lgkmcnt(0)"]},
                      spread(xo, range(nr + 8)), spread(ls, range(nr + 8, len(mf))))
    else:
        ls = [f"v_add_f32 v{vL+t}, v{vL+t}, v{vT+t}" for t in range(T)] + xlane("v_add_f32", regs, vX) + \
             [f"v_rcp_f32 v{vLI+t}, v{vL+t}" for t in range(T)] + xo + epi_acc(0)
        fixed = spread(ls, range(len(mf)))
    if tn: fixed = merge(place(next_loads(tn)[1], range(len(mf))), fixed)
    emit(pack(mf, fixed))
    e(f"s_branch Lepi{T}")

def first_max(t):
    s0 = sreg(0, t)
    m = vX + 2
    r = [f"v_max3_f32 v{m}, v{s0}, v{s0+1}, v{s0+2}", f"v_max3_f32 v{m}, v{m}, v{s0+3}, v{s0+4}",
         f"v_max3_f32 v{m}, v{m}, v{s0+5}, v{s0+6}", f"v_max_f32 v{m}, v{m}, v{s0+7}"]
    r += xlane("v_max_f32", [m], vX + 3)
    if RS: r += [f"v_add_f32 v{m}, s{sThr}, v{m}"]
    r += [f"v_sub_f32 v{vNM+4*t+i}, 0, v{m}" for i in range(4)]
    r += [f"v_sub_f32 v{s0+i}, v{s0+i}, v{m}" for i in range(8)]
    return r

def qraw(t, k=0):
    return vQ + 16 * t + k if t < 4 else sreg(k // 8, 4) + k % 8
def prescale(t):
    r = []
    for k in range(0, 16, 2):
        q = qraw(t, k)
        for i in range(2):
            r += [f"v_lshlrev_b32 v{vX+2*i}, 16, v{q+i}", f"v_and_b32 v{vX+2*i+1}, 0xffff0000, v{q+i}"]
        for i in range(2):
            r += [f"v_pk_mul_f32 {vr(vX+2*i,2)}, {vr(vX+2*i,2)}, s[{sThr}:{sC}] op_sel:[0,1] op_sel_hi:[1,1]"]
        for i in range(2):
            r += [f"v_cvt_pk_bf16_f32 v{q+i}, v{vX+2*i}, v{vX+2*i+1}"]
        if t == 4: r += [f"v_accvgpr_write_b32 a{aQ+k+i}, v{q+i}" for i in range(2)]
    return r

def first_only(lines):
    i = len(L)
    e(f"s_cmp_eq_u32 s{sFirst}, 0")
    e(f"s_cbranch_scc1 Lw{i}")
    emit(lines)
    lab(f"Lw{i}")

def nvm(l): return sum(x.startswith("buffer") for x in l)

vMK = vP + 20
def weave(mfs, valu, mem):
    d = place(mem, range(len(mfs))) if mem else {}
    out = []
    j = 0
    nops = [i for i, x in enumerate(valu) if x == "s_nop 1"]
    if nops and len(mfs) > len(nops):
        extra = len(mfs) - len(nops)
        free = [i for i in range(len(valu)) if i not in nops and i - 1 not in nops]
        head = [0, 2][:min(2, extra)]
        tailp = [i for i in free if i > nops[-1] + 1]
        more = [tailp[k * len(tailp) // (extra - len(head))] for k in range(extra - len(head))]
        cuts = sorted(set(nops + head + more))
        assert len(cuts) == len(mfs)
        k = 0
        for i, x in enumerate(valu):
            if i in cuts:
                out.append(mfs[k])
                m = d.get(k, []); k += 1
                if x == "s_nop 1":
                    out += m if m else ["s_nop 0"]
                    continue
                out += m
            out.append(x)
        return out
    for i, x in enumerate(mfs):
        out.append(x)
        out += d.get(i, [])
        nj = (i + 1) * len(valu) // len(mfs)
        out += valu[j:nj]; j = nj
    return out

def prologue(T):
    lab(f"Lpro{T}")
    def qcur(g):
        return [x.replace(f"s{sQoffn}", f"s{sOoff}").replace(f"s[{sQ}:{sQ+3}]", f"s[{sQc}:{sQc+3}]") for x in qgroup(g, False)]
    q = ["K0"] * 2 + ["Q0"] * 4 + ["Q1"] * 4 + ["K1"] * 2
    def younger(tag): return len(q) - 1 - max(i for i, x in enumerate(q) if x == tag)
    for s in range(4):
        e(f"v_xor_b32 v{vX+8+s}, {s*64}, v{vQa}")
    pre = [f"v_sub_u32 v{vX}, s{sRem}, v{vG4}", f"v_mov_b32 v{vX+1}, s{sNeg}"]
    for a in range(2):
        pre += [f"v_cmp_lt_i32 s[{sM+2*i}:{sM+2*i+1}], {16*a+i}, v{vX}" for i in range(4)] + ["s_nop 0"]
        pre += [f"v_cndmask_b32 v{vMK+4*a+i}, v{vX+1}, 0, s[{sM+2*i}:{sM+2*i+1}]" for i in range(4)]
    if not RS: pre += [f"v_mov_b32 v{vL+t}, 0" for t in range(T)]
    else: pre += [f"v_mov_b32 v{vL4+2*(t-3)+1}, 0" for t in range(NRS, T)]
    def qreads(t):
        return [f"ds_read_b128 {vr(qraw(t,4*s),4)}, v{vX+8+s} offset:{t*4096}" for s in range(4)]
    A = lambda t: [qk1(0, t, a, s, vMK + 4 * a) for a in range(2) for s in range(4)]
    C = lambda t: [qk1(1, t, a, s, vNM + 4 * t, aVf) for a in range(2) for s in range(4)]
    def sparse(mem, valu):
        d = place(mem, range(max(1, nvm(mem))))
        out = []; j = 0
        for i in range(len(d)):
            out += d[i]
            nj = (i + 1) * len(valu) // len(d)
            out += valu[j:nj]; j = nj
        return out
    if T > 2:
        emit(sparse(qcur(2), pre)); q += ["Q2"] * 4
        pre = []
    first_only([f"s_waitcnt vmcnt({younger('Q0')})"])
    pstamp(1)
    emit(qreads(0))
    emit(pre)
    e("s_waitcnt lgkmcnt(0)")
    if T > 3:
        emit(sparse(qcur(3), prescale(0))); q += ["Q3"] * 4
    else:
        emit(prescale(0))
    first_only([f"s_waitcnt vmcnt({younger('K1')})"])
    pstamp(2)
    if opts.get("sb", 9) <= 5: e(f"ds_write_b32 v{vOr}, v{vSeq}")
    emit(qreads(1))
    e("s_barrier")
    emit(k_reads(0))
    e("s_waitcnt lgkmcnt(8)")
    ps = prescale(1)
    if T > 4:
        emit(sparse(qcur(4), ps[:32])); q += ["Q4"] * 4
    else:
        emit(ps[:32])
    emit(k_reads(1, aVf))
    e("s_waitcnt lgkmcnt(8)")
    bulk = [("K2", ktile(2)), ("V0", vtile(0)), ("K3", ktile(3)), ("V1", vtile(1)), ("G", dma(0)[:5]), ("G", dma(0)[5:]),
            ("H", dma(1)[:5]), ("H", dma(1)[5:])]
    def takeb(n):
        nonlocal bulk
        r = []
        for tag, l in bulk[:n]:
            r += l; q.extend([tag] * nvm(l))
        bulk = bulk[n:]
        return r
    emit(weave(A(0), [], takeb(1) if T == 2 else []))
    emit(sparse(takeb(1), ps[32:]) if T <= 3 else ps[32:])
    D = lambda t: SM(1, 0, False, t, 2).rest()
    def getq(k):
        e(f"s_waitcnt vmcnt({younger(f'Q{k}')})")
        if k <= 3: pstamp(k + 1)
        emit(qreads(k))
    def bar2():
        e("s_waitcnt lgkmcnt(0)")
        e("s_barrier")
    per = {2: [2, 2, 2], 3: [1, 1, 1, 2, 2], 4: [1, 1, 1, 1, 1, 1, 2], 5: [0, 1, 1, 1, 1, 1, 1, 1, 1]}[T]
    tk = lambda: takeb(per.pop(0))
    for k in range(2, T):
        emit(weave(A(k - 1), first_max(k - 2), tk()))
        if k == 2: bar2()
        if k < T - 1:
            getq(k)
            emit(weave(C(k - 2), D(k - 2), tk()))
        else:
            emit(weave(C(k - 2), first_max(k - 1), tk()))
            emit(D(k - 2))
            getq(k)
            emit(weave(C(k - 1), D(k - 1)[:8], tk()))
        e("s_waitcnt lgkmcnt(0)")
        emit(prescale(k))
    stamp(1)
    if opts["stamp"]: e("s_waitcnt lgkmcnt(0)")
    if T == 2:
        emit(weave(A(1), first_max(0), tk()))
        bar2()
        emit(weave(C(0), D(0), tk()))
    else:
        emit(weave(A(T - 1), D(T - 2)[8:], tk()))
    e(f"s_waitcnt vmcnt({younger('V0')})")
    e("s_barrier")
    emit(k_reads(2))
    emit(first_max(T - 1))
    emit(weave(C(T - 1), D(T - 1), tk()))
    assert not bulk and not per
    e(CNT)
    e(f"s_cmp_lg_u32 s{sSafe}, 0")
    e(f"s_cbranch_scc1 Lsafe{T}")
    if opts.get("enc"):
        i = len(L)
        e(f"s_cmp_eq_u32 s{sFirst}, 0"); e(f"s_cbranch_scc1 Le{i}"); e("s_memrealtime s[76:77]"); lab(f"Le{i}")
    step(T, 1, True, True)
    stamp(2)
    e(f".p2align {opts['al']}")
    lab(f"Lloop{T}")
    for t in (2, 3, 4, 5):
        step(T, t, False, True)
    e(f"s_branch Lloop{T}")
    for sp in SPINS:
        lab(f"Lsp{sp}")
        e(f"ds_read_b32 v{vFl}, v{vSr}")
        e("s_waitcnt lgkmcnt(0)")
        e(f"v_cmp_lt_u32 vcc, v{vFl}, v{vSeq}")
        e(f"s_cbranch_vccnz Lsp{sp}")
        e(f"s_branch Lspb{sp}")
    SPINS.clear()
    for p in range(4):
        tails(T, p)

def stamp_store(final=False):
    if not opts["stamp"]: return
    B = vP + 20
    if opts["stamp"] == 2:
        if not final: return
        e("s_waitcnt lgkmcnt(0)")
        e("s_mov_b32 s92, s90"); e("s_mov_b32 s93, s91"); e("s_mov_b32 s94, 256"); e("s_mov_b32 s95, 0x20000")
        e("s_mov_b64 exec, 1")
        e(f"v_mov_b32 v{B+8}, 0")
        e("s_not_b32 s96, s100"); e(f"v_mov_b32 v{B}, s96")
        e(f"buffer_atomic_umax v{B}, v{B+8}, s[92:95], 0 offen offset:32")
        e(f"v_mov_b32 v{B+1}, s{sST+12}")
        e(f"buffer_atomic_umax v{B+1}, v{B+8}, s[92:95], 0 offen offset:36")
        e(f"v_mov_b32 v{B+2}, s100")
        e(f"buffer_atomic_umax v{B+2}, v{B+8}, s[92:95], 0 offen offset:40")
        e(f"s_lshl_b32 s96, s2, 2"); e(f"s_add_u32 s96, s96, s{sW}")
        e("s_cmp_lg_u32 s96, 32"); e("s_cbranch_scc1 Lnodbg")
        e(f"s_sub_u32 s96, s99, s100"); e(f"v_mov_b32 v{B}, s96")
        e(f"s_sub_u32 s96, s{sST+2}, s97"); e(f"v_mov_b32 v{B+1}, s96")
        for i in range(1, 4):
            e(f"s_sub_u32 s96, s{sST+2*i+2}, s{sST+2*i}"); e(f"v_mov_b32 v{B+1+i}, s96")
        e(f"s_sub_u32 s96, s{sST}, s{sST+8}"); e(f"v_mov_b32 v{B+5}, s96")
        e(f"s_sub_u32 s96, s{sST+12}, s100"); e(f"v_mov_b32 v{B+6}, s96")
        e(f"v_mov_b32 v{B+7}, s100")
        e(f"buffer_store_dwordx4 {vr(B,4)}, v{B+8}, s[92:95], 0 offen")
        e(f"buffer_store_dwordx4 {vr(B+4,4)}, v{B+8}, s[92:95], 0 offen offset:16")
        lab("Lnodbg")
        return
    e("s_waitcnt lgkmcnt(0)")
    e("s_mov_b32 s92, s90"); e("s_mov_b32 s93, s91"); e("s_mov_b32 s94, 0x100000"); e("s_mov_b32 s95, 0x20000")
    e(f"s_lshl_b32 s96, s2, 2"); e(f"s_add_u32 s96, s96, s{sW}"); e("s_lshl_b32 s96, s96, 2")
    if final: e("s_add_u32 s96, s96, 3")
    else: e("s_add_u32 s96, s96, s97"); e("s_add_u32 s97, s97, 1")
    e("s_lshl_b32 s96, s96, 5")
    for i in range(5): e(f"v_mov_b32 v{B+i}, s{sST+2*i}")
    e(f"v_mov_b32 v{B+5}, s{sST+10}"); e(f"v_mov_b32 v{B+6}, s{sST+12}"); e(f"v_mov_b32 v{B+7}, s98")
    e(f"v_mov_b32 v{B+8}, 0")
    e("s_mov_b64 exec, 1")
    e(f"buffer_store_dwordx4 {vr(B,4)}, v{B+8}, s[92:95], s96 offen")
    e(f"buffer_store_dwordx4 {vr(B+4,4)}, v{B+8}, s[92:95], s96 offen offset:16")
    e("s_mov_b64 exec, -1")
    e("s_nop 2")

def epilogue(T):
    lab(f"Lepi{T}")
    stamp(4)
    if opts["stamp"]: e(f"s_memrealtime s[{sST+12}:{sST+13}]")
    if opts.get("pst") != 2: stamp_store()
    estamp(1)
    if opts["epi"]:
        def swaps(t):
            pk = vQ + 32 + 16 * (t & 1)
            return [f"v_permlane16_swap_b32 v{pk+4*j+i}, v{pk+4*j+2+i}" for j in range(4) for i in range(2)]
        def dstores(t):
            pk = vQ + 32 + 16 * (t & 1)
            return [f"buffer_store_dwordx4 {vr(pk+4*j,4)}, v{vOw}, s[{sOut}:{sOut+3}], s{sT0} offen offset:{j*64}{ST}" for j in range(4)]
        emit(epi_cvt(0) + swaps(0))
        for t in range(1, T + 1):
            va = epi_acc(t) + epi_cvt(t) + swaps(t) if t < T else []
            st = dstores(t - 1)
            e(f"s_add_u32 s{sT0}, s{sOoff}, {(t-1)*16*ROWB}")
            if opts["epi"] == 2:
                emit(st[:2] + va[:24] + st[2:] + va[24:])
            else:
                for j in range(4):
                    e(st[j]); emit(va[14 * j:14 * (j + 1)])
                emit(va[56:])
    else:
        epilogue_lds(T)
    epilogue_end(T)

def epilogue_lds(T):
    held = []
    for t in range(T):
        ac, cv, w = epi_acc(t), epi_cvt(t), epi_writes(t)
        if t == T - 1:
            estamp(3)
            if opts.get("pst") == 2: e("s_waitcnt lgkmcnt(0)")
        for qd in range(4):
            if t: emit(ac[8 * qd:8 * qd + 8])
            if qd == 1 and t:
                emit([held.pop(0), "s_waitcnt lgkmcnt(2)"])
            if held and (t > 1 or qd): e(held.pop(0))
            emit(cv[4 * qd:4 * qd + 4] + cv[16 + 4 * qd:16 + 4 * qd + 4] + w[2 * qd:2 * qd + 2])
        emit(epi_reads(t))
        so = sT0 + (t & 1)
        held += [x.replace(f"s{sT0}", f"s{so}") for x in epi_stores(t)]
        if t == 1: estamp(2)
    n = 4
    for i, x in enumerate(held):
        if x.startswith("buffer") and i >= len(held) - 4:
            n -= 1
            e(f"s_waitcnt lgkmcnt({n})")
        e(x)

def epilogue_end(T):
    estamp(4)
    if T in PROD:
        e(f"s_cmp_eq_u32 s{sD1n}, 0")
        e("s_cbranch_scc1 Ldone")
        e(f"s_mov_b32 s{sFirst}, 0")
        e(f"s_mov_b32 s{sSafe}, {opts.get('safe', 0)}")
        e(f"s_waitcnt vmcnt({4*T})")
        e("s_branch Lstart")
    else:
        e("s_branch Ldone")

def gen():
    L.append(open(os.path.join(os.path.dirname(os.path.abspath(__file__)), "header.txt")).read().rstrip())
    L.append(f"; @launch grid=({NWG},1,1) block=(256,1,1) lds={LDSZ}")
    L.append('.amdgcn_target "amdgcn-amd-amdhsa--gfx950"')
    L.append(".text")
    L.append(f".globl {NAME}_kernel")
    L.append(".p2align 8")
    L.append(f".type {NAME}_kernel,@function")
    lab(f"{NAME}_kernel")
    e(f"s_cmp_ge_u32 s2, {NWG}")
    e("s_cbranch_scc1 Lend")
    e(f"s_getpc_b64 s[{sPC}:{sPC+1}]")
    lab("Lpc")
    e(f"s_add_u32 s4, s{sPC}, Ltab-Lpc")
    e(f"s_addc_u32 s5, s{sPC+1}, 0")
    e("s_lshl_b32 s3, s2, 5")
    e(f"s_load_dwordx8 s[{sJ}:{sJ+7}], s[4:5], s3")
    for srd, off in ((sK, 8), (sQ, 0), (sV, 16), (sOut, 32), (sQc, 0)):
        e(f"s_load_dwordx2 s[{srd}:{srd+1}], s[0:1], {off}")
    if opts["pf"] == 1:
        e(f"v_lshlrev_b32 v1, 7, v0")
        for i in range(2):
            e(f"global_load_dword v{2+i}, v1, s[{sPC}:{sPC+1}]")
            e(f"v_add_u32 v1, 32768, v1")
    elif opts["pf"] == 2:
        e("s_lshr_b32 s3, s2, 3")
        e("s_mul_i32 s3, s3, 2560")
        e("v_lshrrev_b32 v1, 6, v0")
        e("v_mul_u32_u24 v1, 640, v1")
        e("v_and_b32 v2, 7, v0")
        e("v_min_u32 v2, 4, v2")
        e("v_lshl_add_u32 v1, v2, 7, v1")
        e("v_add_u32 v1, s3, v1")
        e("v_min_u32 v1, Lcold-Lpc, v1")
        e(f"global_load_dword v2, v1, s[{sPC}:{sPC+1}]")
    if opts["stamp"]:
        e(f"s_load_dwordx2 s[90:91], s[0:1], {40 if opts['stamp'] == 2 else 48}")
        e("s_memrealtime s[100:101]")
        e("s_mov_b32 s97, 0")
    if opts.get("spin"):
        e("s_memrealtime s[100:101]")
        e("s_load_dwordx2 s[90:91], s[0:1], 40")
    if LIGHT:
        e("s_load_dwordx2 s[90:91], s[0:1], 48")
        e("s_memrealtime s[100:101]")
    w, ln, i16, g, x4, x5, x6 = range(vX, vX + 7)
    e(f"v_lshrrev_b32 v{w}, 6, v0")
    e(f"v_and_b32 v{ln}, 63, v0")
    e(f"v_readfirstlane_b32 s{sW}, v{w}")
    e(f"v_and_b32 v{i16}, 15, v{ln}")
    e(f"v_lshrrev_b32 v{g}, 4, v{ln}")
    e(f"v_xor_b32 v{x6}, v{i16}, v{g}")
    e(f"v_lshlrev_b32 v{x6}, 4, v{x6}")
    mark = len(L)
    e(f"v_bfe_u32 v{x4}, v{ln}, 3, 1")
    e(f"v_lshlrev_b32 v{x4}, 12, v{x4}")
    e(f"v_and_b32 v{x5}, 7, v{ln}")
    e(f"v_lshl_add_u32 v{x4}, v{x5}, 8, v{x4}")
    e(f"v_add3_u32 v{vKa}, v{x4}, v{x6}, 0")
    e(f"v_add_u32 v{vKa}, 2048, v{vKa}")
    for s in range(1, 4):
        e(f"v_xor_b32 v{vKa+s}, {s*64}, v{vKa}")
    e(f"v_mul_u32_u24 v{x4}, {QW}, v{w}")
    e(f"v_lshl_add_u32 v{x4}, v{i16}, 8, v{x4}")
    e(f"v_add3_u32 v{x4}, v{x4}, v{x6}, 0")
    e(f"v_add_u32 v{vQa}, {QS}, v{x4}")
    e(f"v_lshlrev_b32 v{x4}, 12, v{w}")
    e(f"v_add_u32 v{x4}, {OS}, v{x4}")
    e(f"v_lshl_add_u32 v{vOr}, v{ln}, 4, v{x4}")
    e(f"v_lshl_add_u32 v{x4}, v{i16}, 8, v{x4}")
    e(f"v_lshrrev_b32 v{x5}, 1, v{g}")
    e(f"v_xor_b32 v{x5}, v{x5}, v{i16}")
    e(f"v_lshl_add_u32 v{x4}, v{x5}, 4, v{x4}")
    e(f"v_and_b32 v{x5}, 1, v{g}")
    e(f"v_lshl_add_u32 v{vOw}, v{x5}, 3, v{x4}")
    if opts["epi"]:
        e(f"v_lshlrev_b32 v{x4}, 12, v{i16}")
        e(f"v_lshl_add_u32 v{x4}, v{x5}, 5, v{x4}")
        e(f"v_lshrrev_b32 v{vOw}, 1, v{g}")
        e(f"v_lshl_add_u32 v{vOw}, v{vOw}, 4, v{x4}")
    e(f"v_lshrrev_b32 v{x4}, 1, v{g}")
    e(f"v_lshlrev_b32 v{x4}, 12, v{x4}")
    e(f"v_mul_u32_u24 v{x5}, {4*256+32}, v{x5}")
    e(f"v_add_u32 v{x4}, v{x4}, v{x5}")
    e(f"v_lshrrev_b32 v{x5}, 2, v{i16}")
    e(f"v_mul_u32_u24 v{x5}, {256+64}, v{x5}")
    e(f"v_add_u32 v{x4}, v{x4}, v{x5}")
    e(f"v_and_b32 v{x5}, 3, v{ln}")
    e(f"v_lshl_add_u32 v{vVa}, v{x5}, 3, v{x4}")
    for dt in range(1, 8):
        e(f"v_xor_b32 v{vVa+dt}, {dt*32}, v{vVa}")
    if RS:
        for i in range(4): e(f"v_mov_b32 v{vOne+i}, 0x3f803f80")
    e(f"v_and_b32 v{vFr}, 3, v{ln}")
    if opts.get("sb", 9) <= 5:
        e(f"v_lshlrev_b32 v{vSr}, 12, v{vFr}")
        e(f"v_add_u32 v{vSr}, {OS}, v{vSr}")
        e(f"v_mov_b32 v{vSeq}, 0")
    e(f"v_mul_u32_u24 v{vFr}, {QW}, v{vFr}")
    e(f"v_add_u32 v{vFr}, {QS+16384}, v{vFr}")
    late = [x.strip() for x in L[mark:]]
    del L[mark:]
    e(f"v_lshlrev_b32 v{vG4}, 2, v{g}")
    e(f"v_lshl_add_u32 v{vQd}, v{g}, 12, v{x6}")
    for i in range(1, 4):
        e(f"v_xor_b32 v{vQd+i}, {i*64}, v{vQd}")
        e(f"v_add_u32 v{vQd+i}, {i*(4*ROWB-1024)}, v{vQd+i}")
    e(f"v_lshl_add_u32 v{x5}, v{w}, 3, v{g}")
    e(f"v_xor_b32 v{x4}, v{vG4}, v{i16}")
    e(f"v_lshlrev_b32 v{x4}, 4, v{x4}")
    e(f"v_lshl_add_u32 v{vDV}, v{x5}, 12, v{x4}")
    e(f"v_xor_b32 v{vDV+1}, 32, v{vDV}")
    e(f"v_add_u32 v{vDV+1}, {4*ROWB-1024}, v{vDV+1}")
    e(f"v_and_b32 v{x4}, 15, v{x5}")
    e(f"v_xor_b32 v{x4}, v{x4}, v{i16}")
    e(f"v_lshlrev_b32 v{x4}, 4, v{x4}")
    e(f"v_lshl_add_u32 v{vDK}, v{x5}, 12, v{x4}")
    e(f"v_xor_b32 v{vDK+1}, 64, v{vDK}")
    e(f"v_add_u32 v{vDK}, {4096-2048}, v{vDK}")
    e(f"v_add_u32 v{vDK+1}, {4*ROWB+4096-3072}, v{vDK+1}")
    e(f"s_lshl_b32 s{sWB}, s{sW}, 12")
    e(f"s_mov_b32 s{sThr}, {hex(f32bits(BIAS if RS else 4096.0))}")
    e(f"s_mov_b32 s{sC}, {hex(f32bits(128 ** -0.5 * math.log2(math.e)))}")
    e(f"s_mov_b32 s{sNeg}, {hex(f32bits(-1e30))}")
    e(f"s_mov_b32 s{sBig}, 0x40000000")
    if opts.get("perm"): e(f"s_mov_b32 s{sN}, 0x07060302")
    e(f"s_mov_b32 s{sFirst}, 1")
    e(f"s_mov_b32 s{sSafe}, {opts.get('safe', 0)}")
    e(f"s_mov_b32 s{sLim}, {hex(f32bits(2.0 ** 40))}")
    e(f"s_mul_i32 s{sQW}, s{sW}, {QW}")
    e(f"s_add_u32 s{sQW}, s{sQW}, {QS}")
    for srd in (sQ, sK, sV, sOut, sQc):
        e(f"s_mov_b32 s{srd+2}, 0")
        e(f"s_mov_b32 s{srd+3}, 0x20000")
    e(m0set(0))
    e("s_waitcnt lgkmcnt(0)")
    e(f"s_sub_u32 s{sK}, s{sK}, 4096")
    e(f"s_subb_u32 s{sK+1}, s{sK+1}, 0")
    def decode():
        e(f"s_mov_b32 s{sQ+2}, s{sNRn}")
        e(f"s_lshr_b32 s{sTn}, s{sD1n}, 24")
        e(f"s_mul_i32 s{sT0}, s{sTn}, s{sW}")
        e(f"s_lshl_b32 s{sT0}, s{sT0}, 16")
        e(f"s_and_b32 s{sQoffn}, s{sD1n}, 0xfff000")
        e(f"s_add_u32 s{sQoffn}, s{sQoffn}, s{sD0n}")
        e(f"s_add_u32 s{sQoffn}, s{sQoffn}, s{sT0}")
    emit(next_k0()[1:])
    decode()
    j = 0
    for x in qgroup(0) + next_loads(1)[1]:
        e(x)
        if x.startswith("buffer"):
            emit(late[j:j + 5]); j += 5
    emit(late[j:])
    lab("Lstart")
    e(f"s_mov_b64 s[{sD0}:{sD1}], s[{sD0n}:{sD1n}]")
    e(f"s_mov_b32 s{sLast}, s{sLastn}")
    e(f"s_mov_b32 s{sOut+2}, s{sNRn}")
    e(f"s_mov_b32 s{sV+2}, s{sNRn}")
    e(f"s_mov_b32 s{sQc+2}, s{sNRn}")
    e(f"s_mov_b32 s{sOoff}, s{sQoffn}")
    e(f"s_mov_b64 s[{sJ}:{sJ+1}], s[{sJ+4}:{sJ+5}]")
    e(f"s_mov_b64 s[{sJ+2}:{sJ+3}], s[{sJ+6}:{sJ+7}]")
    e(f"s_mov_b64 s[{sJ+4}:{sJ+5}], 0")
    e(f"s_mov_b64 s[{sJ+6}:{sJ+7}], 0")
    decode()
    e(f"s_and_b32 s{sCnt}, s{sD1}, 63")
    e(f"s_bfe_u32 s{sRem}, s{sD1}, 0x60006")
    e(f"s_mov_b32 s{sOff}, s{sD0}")
    e(f"s_add_u32 s{sOffK}, s{sD0}, {2*TILEB}")
    if opts["stamp"]: e(f"s_add_u32 s{sN}, s{sCnt}, 2")
    stamp(0)
    e(f"s_bfe_u32 s{sT0}, s{sD1}, 0x30018")
    if opts["stamp"]:
        e(f"s_memrealtime s[{sST+10}:{sST+11}]")
        e(f"s_lshl_b32 s98, s{sT0}, 8"); e(f"s_add_u32 s98, s98, s{sN}")
        e("s_waitcnt lgkmcnt(0)")
        if opts["stamp"] == 2:
            e(f"s_mov_b32 s97, s{sST}"); e(f"s_mov_b32 s99, s{sST+10}")
    order = sorted(TS, key=lambda t: (t != 4, -t))
    for T in order[1:]:
        e(f"s_cmp_eq_u32 s{sT0}, {T}")
        e(f"s_cbranch_scc1 Lpro{T}")
    global NRS
    for T in order:
        NRS = 5
        prologue(T)
        epilogue(T)
    lab("Ldone")
    if opts.get("spin"):
        if opts.get("gref"):
            e("s_mov_b32 s92, s90"); e("s_mov_b32 s93, s91"); e("s_mov_b32 s94, 256"); e("s_mov_b32 s95, 0x20000")
            e("s_not_b32 s96, s100"); e("v_mov_b32 v0, s96"); e("v_mov_b32 v2, 0")
            e("s_mov_b64 exec, 1")
            e(f"s_cmp_lg_u32 s{sW}, 0"); e("s_cbranch_scc1 Lsp0")
            e("buffer_atomic_umax v0, v2, s[92:95], 0 offen")
            lab("Lsp0")
            e("s_memrealtime s[88:89]"); e("s_waitcnt lgkmcnt(0)"); e("s_sub_u32 s88, s88, s100")
            e(f"s_cmp_lt_u32 s88, 4500"); e("s_cbranch_scc1 Lsp0")
            e("buffer_load_dword v1, v2, s[92:95], 0 offen sc0 sc1")
            e("s_waitcnt vmcnt(0)")
            e("v_readfirstlane_b32 s96, v1"); e("s_nop 3"); e("s_not_b32 s100, s96")
        if opts.get("enc"):
            e("s_waitcnt vmcnt(0)"); e("s_memrealtime s[80:81]"); e("s_waitcnt lgkmcnt(0)")
            a, b = {1: (100, 76), 2: (76, 78), 3: (78, 80), 4: (100, 80)}[opts["enc"]]
            e(f"s_sub_u32 s82, s{b}, s{a}")
            e(f"s_mul_i32 s82, s82, {opts.get('mul', 4)}")
            e("s_lshr_b32 s83, s2, 4"); e(f"s_lshr_b32 s83, {opts.get('encs', 0xffff)}, s83"); e("s_bitcmp1_b32 s83, 0")
            e("s_cselect_b32 s82, s82, 0")
            e(f"s_add_u32 s82, s82, {opts['spin']}")
        lab("Lspin")
        e("s_memrealtime s[88:89]")
        e("s_waitcnt lgkmcnt(0)")
        e("s_sub_u32 s88, s88, s100")
        e("s_cmp_lt_u32 s88, s82" if opts.get("enc") else f"s_cmp_lt_u32 s88, {opts['spin']}")
        e("s_cbranch_scc1 Lspin")
    if LIGHT:
        e("s_waitcnt vmcnt(0)")
        e("s_memrealtime s[88:89]")
        e("s_mov_b32 s92, s90"); e("s_mov_b32 s93, s91"); e("s_mov_b32 s94, 0x100000"); e("s_mov_b32 s95, 0x20000")
        e(f"s_lshl_b32 s96, s2, 2"); e(f"s_add_u32 s96, s96, s{sW}"); e("s_lshl_b32 s96, s96, 3")
        e("s_waitcnt lgkmcnt(0)")
        e("v_mov_b32 v0, s100"); e("v_mov_b32 v1, s88"); e("v_mov_b32 v2, 0")
        e("s_mov_b64 exec, 1")
        e("buffer_store_dwordx2 v[0:1], v2, s[92:95], s96 offen")
    if opts["stamp"]:
        e("s_waitcnt vmcnt(0)")
        stamp(0)
        e(f"s_memrealtime s[{sST+12}:{sST+13}]")
        e(f"s_mov_b32 s{sST+10}, s100")
        e("s_getreg_b32 s98, hwreg(HW_REG_HW_ID)")
        stamp_store(True)
    lab("Lend")
    e("s_endpgm")

    lab("Lcold")
    lab("Lrestart")
    e("s_waitcnt vmcnt(0) lgkmcnt(0)")
    e("s_barrier")
    e(f"s_mov_b64 s[{sJ+4}:{sJ+5}], s[{sJ}:{sJ+1}]")
    e(f"s_mov_b64 s[{sJ+6}:{sJ+7}], s[{sJ+2}:{sJ+3}]")
    e(f"s_mov_b64 s[{sD0n}:{sD1n}], s[{sD0}:{sD1}]")
    e(f"s_mov_b32 s{sNRn}, s{sOut+2}")
    e(f"s_mov_b32 s{sLastn}, s{sLast}")
    e(f"s_mov_b32 s{sSafe}, 1")
    e(f"s_mov_b32 s{sFirst}, 1")
    decode()
    emit(next_loads(1)[0] + next_loads(1)[1])
    e("s_branch Lstart")
    for T in order:
        safe_loop(T)
    for tag, buf in STUBS:
        lab(f"Lrare_{tag}")
        e(f"s_call_b64 s[{sRet}:{sRet+1}], Lresc_{buf}")
        e(f"s_branch Lback_{tag}")
    for b in range(2):
        lab(f"Lresc_{b}")
        e("s_nop 15")
        for t in range(TM):
            s, s2 = sreg(b, t), sreg(b ^ 1, t)
            dl, al = vX, (vX + 8 + t if t < 4 else vX + 2)
            e(f"v_max3_f32 v{dl}, v{s}, v{s+1}, v{s+2}")
            e(f"v_max3_f32 v{dl}, v{dl}, v{s+3}, v{s+4}")
            e(f"v_max3_f32 v{dl}, v{dl}, v{s+5}, v{s+6}")
            if RS:
                e(f"v_max_f32 v{dl}, v{dl}, v{s+7}")
                e(f"v_add_f32 v{dl}, s{sThr}, v{dl}")
                e(f"v_max_f32 v{dl}, 0, v{dl}")
            else:
                e(f"v_max3_f32 v{dl}, v{dl}, v{s+7}, 0")
            emit(xlane("v_max_f32", [dl], vX + 1))
            e(f"v_sub_f32 v{al}, 0, v{dl}")
            e(f"v_exp_f32 v{al}, v{al}")
            for i in range(8):
                e(f"v_sub_f32 v{s+i}, v{s+i}, v{dl}")
                e(f"v_sub_f32 v{s2+i}, v{s2+i}, v{dl}")
            for i in range(4):
                e(f"v_sub_f32 v{vNM+4*t+i}, v{vNM+4*t+i}, v{dl}")
            if not RS:
                e(f"v_mul_f32 v{vL+t}, v{vL+t}, v{al}")
            if RS and t == 4:
                for i in range(4): e(f"v_mul_f32 v{vL4+i}, v{vL4+i}, v{al}")
            if RS and t < 4:
                for i in range(4):
                    e(f"v_accvgpr_read_b32 v{vX+1}, a{aL+4*t+i}")
                    e(f"v_mul_f32 v{vX+1}, v{vX+1}, v{al}")
                    e(f"v_accvgpr_write_b32 a{aL+4*t+i}, v{vX+1}")
        emit(SM(TM, b, False).rest())
        if b == 0: e("s_branch LrescO")
    lab("LrescO")
    for t in range(TM):
        for i in range(0, 32, 4):
            al = vX + 8 + t if t < 4 else vX + 2
            for k in range(4): e(f"v_accvgpr_read_b32 v{vX+4+k}, a{aO+32*t+i+k}")
            for k in range(4): e(f"v_mul_f32 v{vX+4+k}, v{vX+4+k}, v{al}")
            for k in range(4): e(f"v_accvgpr_write_b32 a{aO+32*t+i+k}, v{vX+4+k}")
    e("s_nop 1")
    e(f"s_setpc_b64 s[{sRet}:{sRet+1}]")

    e(".p2align 5")
    L.append(".type Ltab,@object")
    lab("Ltab")
    for ent in TAB:
        e(".long " + ", ".join(str(x) for x in ent))
    L.append('.section .rodata,"a"')
    L.append(".p2align 6")
    L.append(f".amdhsa_kernel {NAME}_kernel")
    L.append("  .amdhsa_next_free_vgpr 512")
    L.append("  .amdhsa_next_free_sgpr 102")
    L.append("  .amdhsa_accum_offset 256")
    L.append("  .amdhsa_group_segment_fixed_size 0")
    L.append("  .amdhsa_kernarg_size 56")
    L.append("  .amdhsa_user_sgpr_count 2")
    L.append("  .amdhsa_user_sgpr_kernarg_segment_ptr 1")
    L.append("  .amdhsa_system_sgpr_workgroup_id_x 1")
    L.append(".end_amdhsa_kernel")

gen()
open(sys.argv[1], "w").write("\n".join(L) + "\n")
```

```python
import re

def regs(tok):
    tok = tok.strip()
    m = re.fullmatch(r"([vas])\[(\d+):(\d+)\]", tok)
    if m: return {(m.group(1), i) for i in range(int(m.group(2)), int(m.group(3)) + 1)}
    m = re.fullmatch(r"([vas])(\d+)", tok)
    if m: return {(m.group(1), int(m.group(2)))}
    if tok == "vcc": return {("s", 106)}
    if tok == "m0": return {("s", 124)}
    return set()

SCC = ("s", 200)
def parse(l):
    op, _, rest = l.partition(" ")
    ops = [x.strip().split(" ")[0] for x in rest.split(",")] if rest else []
    R = [regs(x) for x in ops]
    U = lambda xs: set().union(*xs) if xs else set()
    w, r = set(), set()
    if op.startswith("v_permlane"): w = R[0] | R[1]; r = set(w)
    elif op.startswith("v_"): w = R[0]; r = U(R[1:])
    elif op.startswith("ds_read"): w = R[0]; r = R[1]
    elif op.startswith("ds_write"): r = R[0] | R[1]
    elif op.startswith("buffer_load") and l.endswith("lds"): r = U(R) | {("s", 124)}
    elif op.startswith("buffer_"): r = U(R)
    elif op.startswith("s_cmp"): r = U(R); w = {SCC}
    elif op.startswith("s_cselect"): w = R[0]; r = U(R[1:]) | {SCC}
    elif op.startswith("s_mov"): w = R[0]; r = U(R[1:])
    elif op.startswith("s_") and R: w = R[0] | {SCC}; r = U(R[1:])
    return op, w, r, R

TR = ("v_exp_f32", "v_rcp_f32")
class Op:
    def __init__(s, text, tag=None, after=(), tmin=0, reads=(), kind=None, lines=None, vmwait=None, bonus=0):
        s.bonus = bonus
        s.text, s.tag, s.after, s.tmin, s.lines, s.vmwait = text, tag, list(after), tmin, lines, vmwait
        s.op, s.w, s.r, s.R = parse(text)
        s.r = s.r | set(reads)
        o = s.op
        s.kind = kind or ("M" if o.startswith("v_mfma") else "V" if o.startswith("v_") else "L" if o.startswith("ds_")
                          else "G" if o.startswith("buffer_") else "B" if o == "s_barrier" else "S")
        s.cost = {"M": 8, "L": 6, "G": 6, "B": 40, "S": 4}.get(s.kind, 8 if (o in TR or o.startswith("v_permlane")) else 4)

def need_states(a, b):
    n = 0
    if a.kind == "M":
        p8 = "32x32" in a.op
        if b.kind in "VLG" and a.w & (b.r | b.w): n = 12 if p8 else 8
        if b.kind == "M":
            if a.w & (b.R[1] | b.R[2]): n = 12 if p8 else 8
            elif a.w & b.R[3] and not (b.R[3] == a.w and a.op == b.op): n = 10 if p8 else 6
        if b.kind == "V" and len(a.R) > 3 and a.R[3] & b.w: n = max(n, 7 if p8 else 3)
    elif a.kind == "V":
        vw = {x for x in a.w if x[0] != "s"}; sw = a.w - vw
        if b.kind == "M" and vw & b.r: n = 2
        if b.op.startswith("v_permlane") and vw & b.r: n = 2
        if a.op in TR and b.kind == "V" and b.op not in TR and vw & b.r: n = max(n, 1)
        if sw and b.kind == "V" and sw & b.r: n = max(n, 2)
        if sw and b.kind in "LG" and sw & b.r: n = max(n, 5)
    elif a.kind == "S":
        if b.kind == "G" and ("s", 124) in a.w and ("s", 124) in b.r: n = 1
    elif a.kind == "G" and a.op.startswith("buffer_store"):
        if b.kind == "V" and a.R[0] & b.w: n = 2
    return n

LDSLAT = 120
def schedule(ops, vmq, store_gap=64, verbose=False):
    n = len(ops)
    pred = [dict() for _ in range(n)]
    lastw, readers = {}, {}
    lastG = None
    lastLw = None
    for j, b in enumerate(ops):
        for x in b.r:
            if x in lastw: pred[j][lastw[x]] = 0
        for x in b.w:
            if x == SCC and not any(SCC in o.r for o in ops): continue
            if x in lastw: pred[j][lastw[x]] = 0
            for i in readers.get(x, ()):
                if i != j: pred[j][i] = 0
        for a in b.after: pred[j][ops.index(a)] = 0
        if b.kind == "G":
            if lastG is not None: pred[j][lastG] = 0
            lastG = j
        for x in b.r: readers.setdefault(x, []).append(j)
        for x in b.w: lastw[x] = j; readers[x] = []
        for i in pred[j]: pred[j][i] = need_states(ops[i], b)
    succ = [[] for _ in range(n)]
    for j in range(n):
        for i in pred[j]: succ[i].append(j)
    prio = [0] * n
    for i in range(n - 1, -1, -1):
        lat = lambda j: (LDSLAT if (ops[i].kind == "L" and ops[i].w & ops[j].r) else 4 * pred[j][i] + (16 if ops[i].kind == "M" and ops[j].kind == "M" else 0) + (58 if ops[i].kind == "G" and ops[j].kind == "G" else 0))
        prio[i] = ops[i].cost + max([prio[j] + lat(j) for j in succ[i]] + [ops[i].bonus])
    done = [None] * n
    out = []
    t = 0; pipe = 0; lastv = -100; lastg = -1000; prev = "S"; states = 0
    lds = []
    left = set(range(n))
    while left:
        best = None
        for j in left:
            b = ops[j]
            if any(done[i] is None for i in pred[j]): continue
            short = max([pred[j][i] - (states - done[i][1] - 1) for i in pred[j]] + [0])
            st = max(t + 4 * short, b.tmin)
            for i in pred[j]:
                if ops[i].kind == "L" and ops[i].w & (b.r | b.w) and i in lds: st = max(st, done[i][0] + LDSLAT)
            pen = 0
            if b.kind == "M": st = max(st, pipe)
            elif b.op.startswith("v_pk") and pipe + 12 > st: st = pipe + 12
            elif b.kind in "LG":
                if prev not in ("M", "Ms"): st = max(st, lastv + 8)
                if prev == "L": pen = 4
                if b.kind == "G": st = max(st, lastg + store_gap)
                if prev in ("M", "Ms"): pen = -6
            elif b.kind == "S" and prev == "M" and b.lines is None and b.vmwait is None: pen = -7
            key = (st - t + pen, -prio[j], j)
            if b.kind == "M" and st <= t: key = (-5, -prio[j], j)
            if best is None or key < best[0]: best = (key, j, st, short)
        key, j, st, short = best
        b = ops[j]
        k = -1
        for idx, i in enumerate(lds):
            if ops[i].w & (b.r | b.w) and i in pred[j]: k = idx
        if k >= 0:
            while k + 1 < len(lds) and done[lds[k + 1]][0] + LDSLAT <= st + 8: k += 1
            out.append(f"s_waitcnt lgkmcnt({min(15, len(lds) - 1 - k)})"); states += 1; short = max(0, short - 1)
            lds = lds[k + 1:]
            if prev != "M": st += 4
        if short > 0:
            out.append(f"s_nop {short-1}"); states += short
        t = st
        if b.vmwait is not None:
            y = len(vmq) - 1 - max(i for i, x in enumerate(vmq) if x == b.vmwait)
            txt = f"s_waitcnt vmcnt({y})"
            out += [x.replace("@W", txt) for x in (b.lines or ["@W"])]
            states += 1
            t += 44 if b.lines else 4
        else:
            out.append(b.text); states += 1
            if b.kind == "M": pipe = t + (32 if "32x32" in b.op else 16); t += 8
            elif b.kind == "V": t += b.cost; lastv = t
            elif b.kind in "LG":
                t += (8 if prev == "L" else 4) + (8 if b.op.startswith("ds_write") else 0)
                if b.kind == "G": lastg = st; vmq.append(b.tag)
                else: lds.append(j)
            elif b.kind == "B": t += 40
            else: t += 0 if prev == "M" else 4
        done[j] = (t, states - 1)
        prev = "Ms" if (b.kind == "S" and prev == "M") else ("L" if b.kind in "LG" else b.kind)
        left.discard(j)
    if verbose: print("scheduled", n, "ops, est", t)
    return out, t
```

```python
import sys, struct, math, os
sys.path.insert(0, os.path.dirname(os.path.abspath(__file__)))
from sched import Op, schedule

NAME = "standalone__varlen_attn_packed__ragged"
CU = [0, 534, 1426, 1714, 2675, 3469, 4036, 4628, 4845]
ROWB = 4096
TILEB = 32 * ROWB
QS = 65536
QW = 20480
OS = QS + 4 * QW
LDSZ = 163840
TM = 5

opts = dict(stamp=0, st="sc0+sc1", ld="", ldq="nt", al=3, e64=0, rs=1, epi=0, late=1, plan="b", rev=0, lc=4, pf=2, lazy=0)
for a in sys.argv[2:]:
    k, v = a.split("=")
    opts[k] = int(v) if v.lstrip("-").isdigit() else v
LD = (" " + opts["ld"].replace("+", " ")) if opts["ld"] else ""
LDQ = (" " + opts["ldq"].replace("+", " ")) if opts.get("ldq", opts["ld"]) and "ldq" in opts else ("" if "ldq" in opts else LD)
ST = (" " + opts["st"].replace("+", " ")) if opts["st"] else ""
DG = str(opts.get("diag", ""))

def f32bits(x):
    return struct.unpack("<I", struct.pack("<f", x))[0]

vQ = 0
vS = 64
vP = 144
vNM = 184
vKa = 204
vVa = 208
vDK = 216
vDV = 218
vQd = 220
vE = 224
vT = 228
vL = 233
vU = 238
vQa = 239
vOw = 240
vOr = 241
vG4 = 242
vU2 = 243
vX = 244
aO = 0
aKf = 160
aVf = 192
aQ = 224
aL = 240
vOne = 228
vL4 = 232
vAc = vX + 1
vFr = 236
vFl = 237
vM01, vM23 = 238, 243
vSeq = 238
vSr = 243
BIAS = 20.0
RS = opts['rs']
NRS = opts.get('nrs', 3)
NOCHK = [False]

sQ, sK, sV, sOut = 12, 16, 20, 24
sJ = 28
sD0, sD1 = 36, 37
sL, sN, sOff, sWB, sCnt, sLast, sThr, sC, sNeg, sW = 38, 39, 40, 41, 42, 43, 44, 45, 46, 47
sRet, sPC = 48, 52
sTn = 50
sRem, sQoffn, sOoff, sBig = 54, 55, 56, 57
sD0n, sD1n, sNRn, sLastn = 28, 29, 30, 31
sT0 = 61
sOffK = 63
sQW = 3
sFirst = 64
sSafe = 65
sLim = 66
sQc = 8
sM = 68
sST = 76

L = []
def e(s): L.append("    " + s)
def lab(s): L.append(s + ":")
def vr(b, n): return f"v[{b}:{b+n-1}]"
def ar(b, n): return f"a[{b}:{b+n-1}]"
def emit(lines):
    for x in lines:
        if x.endswith(":"): L.append(x)
        else: e(x)
LIGHT = opts["stamp"] == 3
if LIGHT: opts["stamp"] = 0
def estamp(idx):
    if opts["stamp"] and opts.get("pst") == 2:
        e(f"s_memtime s[{sST+2*idx}:{sST+1+2*idx}]")
def pstamp(idx):
    if opts["stamp"] and opts.get("pst") == 1:
        e(f"s_memtime s[{sST+2*idx}:{sST+1+2*idx}]")
        e("s_waitcnt lgkmcnt(0)")
def stamp(idx):
    if opts.get("pst") and 1 <= idx <= 4: return
    if opts["stamp"]:
        e(f"s_memtime s[{sST+2*idx}:{sST+1+2*idx}]")

SEQ = []
for si in range(8):
    ln = CU[si + 1] - CU[si]
    SEQ.append((CU[si], ln, (ln + 63) // 64, (ln + 31) // 32))

PLANS = {
    "b": [[(31, 4)]] * 4 + [[(25, 5)]] * 2 + [[(25, 3), (7, 4)], [(18, 3), (17, 3)], [(18, 3), (17, 3)], [(18, 3), (17, 3)],
          [(19, 4), (9, 3)], [(28, 2), (19, 2)], [(19, 4), (9, 2)]] + [[(28, 4)]] * 3,
    "a": [[(31, 4)]] * 4 + [[(25, 5)]] * 2 + [[(17, 4), (18, 2)], [(19, 5), (7, 2)], [(25, 3), (9, 3)], [(28, 2), (18, 2)],
          [(17, 5), (9, 2)], [(18, 5), (7, 2)]] + [[(28, 4)]] * 3 + [[(19, 5)]],
}

def plan_head():
    n2s = {SEQ[i][3]: i for i in range(8)}
    nxt = {i: 0 for i in range(8)}
    spec = PLANS[opts["plan"]]
    res = [[None] * len(s) for s in spec]
    for want in (2, 3, 4, 5):
        for i, s in enumerate(spec):
            for k, (n, t) in enumerate(s):
                if t == want:
                    si = n2s[n]
                    res[i][k] = (si, nxt[si], t); nxt[si] += 64 * t
    for i in range(8):
        assert nxt[i] == SEQ[i][2] * 64, (i, nxt[i])
    if opts["rev"]:
        res = [list(reversed(r)) for r in res]
    return res

def make_table():
    ph = plan_head()
    tab = []
    for wg in range(256):
        x, j = wg & 7, wg >> 3
        head = 2 * x + (j & 1)
        ent = []
        for (si, q0, t) in ph[j >> 1]:
            st, ln, nb, n = SEQ[si]
            d0 = st * ROWB + head * 256
            ent += [d0, (n - 2) | ((ln - 32 * (n - 1)) << 6) | (q0 << 12) | (t << 24) | (((opts["lazy"] >> (j >> 1)) & 1) << 28), d0 + (ln - 1) * ROWB + 256, d0 + (n - 1) * TILEB]
        assert len(ent) <= 8
        ent += [0] * (8 - len(ent))
        tab.append(ent)
    return tab

TAB = make_table()
PH = plan_head()
TS = sorted({t for jl in PH for _, _, t in jl}, reverse=True)
TAILS = {}
for jl in PH:
    for k, (si, q0, t) in enumerate(jl):
        TAILS.setdefault((t, (SEQ[si][3] - 1) % 4), set()).add(1 if k + 1 < len(jl) else 0)
PROD = {t for (t, p), v in TAILS.items() if v - {0}}
NWG = 256

MF = "v_mfma_f32_16x16x32_bf16"
def qreg(t, s):
    return vr(vQ + 16 * t + 4 * s, 4) if t < 4 else ar(aQ + 4 * s, 4)
def sreg(buf, t, a=0): return vS + 40 * buf + 8 * t + 4 * a
def preg(buf, t): return vP + 20 * buf + 4 * t

def qk1(buf, t, a, s, cinit, kf=None):
    d = sreg(buf, t, a)
    kf = aKf if kf is None else kf
    return f"{MF} {vr(d,4)}, {ar(kf+4*(a*4+s),4)}, {qreg(t,s)}, {vr(cinit if s == 0 else d,4)}"

def qk_mfmas(T, buf):
    return [qk1(buf, t, a, s, vNM + 4 * t) for a in range(2) for s in range(4) for t in range(T)]

ZERO = [False]
def pv1(buf, t, dt, vf):
    o = aO + 32 * t + 4 * dt
    return f"{MF} {ar(o,4)}, {ar(vf+4*dt,4)}, {vr(preg(buf,t),4)}, {'0' if ZERO[0] else ar(o,4)}"

def rs1(buf, t):
    l = ar(aL + 4 * t, 4) if t < 4 else vr(vL4, 4)
    return f"{MF} {l}, {vr(vOne,4)}, {vr(preg(buf,t),4)}, {'0' if ZERO[0] else l}"

def pv_mfmas(T, buf, vf=aVf):
    return [pv1(buf, t, dt, vf) for dt in range(8) for t in range(T)] + ([rs1(buf, t) for t in range(min(T, NRS))] if RS else [])

def zero_mfmas(T):
    return [f"v_mfma_f32_32x32x16_bf16 {ar(aO+16*i,16)}, {vr(vP+28,4)}, {vr(vP+28,4)}, 0" for i in range(2 * T)]

def k_reads(slot, kf=None):
    kf = aKf if kf is None else kf
    return [f"ds_read_b128 {ar(kf+4*(a*4+s),4)}, v{vKa+s} offset:{slot*16384+a*8192}" for a in range(2) for s in range(4)]

def v_reads(slot, vf=aVf):
    return [f"ds_read_b64_tr_b16 {ar(vf+4*dt+2*a,2)}, v{vVa+dt} offset:{slot*16384+a*8192}" for dt in range(8) for a in range(2)]

def m0set(off):
    return f"s_add_u32 m0, s{sWB}, {off}" if off else f"s_mov_b32 m0, s{sWB}"
def ldv(j, so):
    return f"buffer_load_dwordx4 v{vDV+j}, s[{sV}:{sV+3}], s{so} offen" + (f" offset:{j*1024}" if j else "") + f"{LD} lds"
def ldk(j, so):
    return f"buffer_load_dwordx4 v{vDK+j}, s[{sK}:{sK+3}], s{so} offen offset:{2048+j*1024}{LD} lds"

def dma(slot):
    return [m0set(slot * 16384),
            f"s_add_u32 s{sOff}, s{sOff}, {TILEB}",
            f"s_add_u32 s{sOffK}, s{sOffK}, {TILEB}",
            ldv(0, sOff), ldv(1, sOff), ldk(0, sOffK), ldk(1, sOffK)]

CHK = f"v_cmp_ne_u32 vcc, 0, v{vX}" if RS else f"v_cmp_lt_f32 vcc, s{sThr}, v{vX}"
ERING = [vE, vE + 2, vX + 4, vX + 6]
def softmax_ops(T, buf, full=True, R=4, t0=0):
    exps, sims = [], []
    done_after = []
    n = 4 * T
    for k in range(n):
        t, kk = divmod(k, 4)
        t = T - 1 - t + t0
        a = ERING[k % R]; b = a + 1
        need = done_after[k - R] if k >= R else 0
        exps += [(f"v_exp_f32 v{a}, v{sreg(buf,t)+2*kk}", need), (f"v_exp_f32 v{b}, v{sreg(buf,t)+2*kk+1}", need)]
        p = preg(buf, t) + kk
        u = vU if k & 1 else vU2
        ne = 2 * k + 2
        if RS:
            sims.append((f"v_perm_b32 v{p}, v{b}, v{a}, s{sN}" if opts.get("perm") else f"v_cvt_pk_bf16_f32 v{p}, v{a}, v{b}", ne))
            if t >= NRS:
                pt, lt = vL4 + 2 * (t - 3), vL4 + 2 * (t - 3) + 1
                if kk == 0:
                    if full: sims.append((f"v_add_f32 v{lt}, v{lt}, v{pt}", 0))
                    sims.append((f"v_add_f32 v{pt}, v{a}, v{b}", ne))
                else:
                    sims.append((f"v_add_f32 v{u}, v{a}, v{b}", ne))
            done_after.append(len(sims))
            if t >= NRS and kk: sims.append((f"v_add_f32 v{pt}, v{pt}, v{u}", ne))
            if full and (k & 1) and not NOCHK[0]:
                sims.append((f"v_or_b32 v{vAc}, v{p-1}, v{p}" if k == 1 else f"v_or3_b32 v{vAc}, v{vAc}, v{p-1}, v{p}", ne))
        elif kk == 0:
            if full: sims.append((f"v_add_f32 v{vL+t}, v{vL+t}, v{vT+t}", 0))
            sims += [(f"v_cvt_pk_bf16_f32 v{p}, v{a}, v{b}", ne), (f"v_add_f32 v{vT+t}, v{a}, v{b}", ne)]
            done_after.append(len(sims))
        else:
            sims += [(f"v_add_f32 v{u}, v{a}, v{b}", ne), (f"v_cvt_pk_bf16_f32 v{p}, v{a}, v{b}", ne)]
            done_after.append(len(sims))
            sims.append((f"v_add_f32 v{vT+t}, v{vT+t}, v{u}", ne))
    if full and RS and NOCHK[0]:
        pass
    elif full and RS:
        sims += [(f"v_and_b32 v{vX}, 0x40004000, v{vAc}", 2 * n), (CHK, 2 * n)]
    elif full:
        m = [vT + t for t in range(T)]
        cur = m.pop(0)
        while m:
            if len(m) >= 2:
                sims.append((f"v_max3_f32 v{vX}, v{cur}, v{m[0]}, v{m[1]}", 2 * n)); m = m[2:]
            else:
                sims.append((f"v_max_f32 v{vX}, v{cur}, v{m[0]}", 2 * n)); m = []
            cur = vX
        sims.append((f"v_cmp_lt_f32 vcc, s{sThr}, v{cur}", 2 * n))
    return exps, sims

class SM:
    def __init__(s, T, buf, full=True, t0=0, R=4):
        s.ex, s.si = softmax_ops(T, buf, full, R, t0)
        s.i = s.j = 0
        s.last_exp = False
    def left(s): return 8 * (len(s.ex) - s.i) + 4 * (len(s.si) - s.j)
    def can_exp(s): return s.i < len(s.ex) and s.ex[s.i][1] <= s.j
    def can_sim(s):
        if s.j >= len(s.si): return False
        need = s.si[s.j][1]
        return need < s.i or (need == s.i and not s.last_exp)
    def exp(s): s.i += 1; s.last_exp = True; return s.ex[s.i - 1][0]
    def sim(s): s.j += 1; s.last_exp = False; return s.si[s.j - 1][0]
    def other(s): s.last_exp = False
    def any(s):
        if s.can_sim() and (s.si[s.j][1] <= s.i - 2 or not s.can_exp()): return s.sim()
        if s.can_exp(): return s.exp()
        if s.can_sim(): return s.sim()
        s.last_exp = False
        return "s_nop 0"
    def take(s, n): return [s.any() for _ in range(n) if s.left()]
    def rest(s):
        r = []
        while s.left(): r.append(s.any())
        return r

def is_mem(x): return x.startswith("ds_") or x.startswith("buffer_")

def pack(mf, fixed, sm=None, novalu=(), keep=0, cap=8):
    n = len(mf)
    def fcost(l):
        c = 0; ns = 0; nm = 0
        for x in l:
            if x.endswith(":"): continue
            if is_mem(x): c += 8 if nm else 4; nm += 1
            elif x.startswith("s_"): c += 4 if (ns or nm) else 0; ns += 1
            else: c += 4
        return c
    fc = [fcost(fixed.get(g, [])) for g in range(n)]
    out = []
    for g in range(n):
        out.append(mf[g])
        out += fixed.get(g, [])
        if sm is None: continue
        sm.other()
        if g in novalu: continue
        rem = [k for k in range(g, n) if k not in novalu]
        last = g == rem[-1]
        used = fc[g]
        while sm.left() > keep:
            later = sum(max(0, cap - fc[k]) for k in rem[1:])
            over = sm.left() - keep - later
            room = cap - used
            if room <= 0:
                if not last and over * 1.0 < 4 * 1.0 + 0 : break
                if not last and (used - cap + 4) * len(rem) > over + (used - cap) + 2 * len(rem): break
            nexp = len(sm.ex) - sm.i
            full_later = sum(1 for k in rem[1:] if cap - fc[k] >= 8)
            if room >= 8 and sm.can_exp() and (not sm.can_sim() or nexp > full_later * opts.get("eb", 70) // 100 or sm.si[sm.j][1] > sm.i - 4):
                out.append(sm.exp()); used += 8
            elif sm.can_sim():
                out.append(sm.sim()); used += 4
            elif sm.can_exp() and (room >= 8 or last or nexp + opts.get("slk", 1) > full_later or over > 0):
                out.append(sm.exp()); used += 8
            else:
                if last: out.append(sm.any()); used += 4
                else: break
    return out

STUBS = []
SPINS = []
def check_rare(buf, tag):
    e(f"s_cbranch_vccnz Lrare_{tag}")
    lab(f"Lback_{tag}")
    STUBS.append((tag, buf))

def spread(items, gaps):
    d = {}
    gaps = list(gaps)
    for i, x in enumerate(items):
        d.setdefault(gaps[i * len(gaps) // len(items)], []).append(x)
    return d

def merge(*ds):
    r = {}
    for d in ds:
        for k, v in d.items():
            r.setdefault(k, []).extend(v)
    return r

def interleave(a, b):
    out = []
    if not a: return list(b)
    j = 0
    for i, x in enumerate(a):
        out.append(x)
        nj = (i + 1) * len(b) // len(a)
        out += b[j:nj]; j = nj
    return out

CNT = f"s_sub_u32 s{sCnt}, s{sCnt}, 1"

def place(items, gaps):
    groups = []
    cur = []
    for x in items:
        cur.append(x)
        if is_mem(x): groups.append(cur); cur = []
    if cur: groups.append(cur)
    gaps = list(gaps)
    d = {}
    for i, gr in enumerate(groups):
        d.setdefault(gaps[i * len(gaps) // len(groups)], []).extend(gr)
    return d

def qgroup(g, dyn=True):
    r = [f"s_add_u32 m0, s{sQW}, {g*4096}" if g else f"s_mov_b32 m0, s{sQW}",
         f"s_add_u32 s{sT0}, s{sQoffn}, {g*16*ROWB}"]
    if g >= 2 and dyn:
        r += [f"s_cmp_gt_u32 s{sTn}, {g}", f"s_cselect_b32 s{sT0}, s{sT0}, s{sBig}"]
    r += [f"buffer_load_dwordx4 v{vQd+i}, s[{sQ}:{sQ+3}], s{sT0} offen offset:{i*1024}{LDQ} lds" for i in range(4)]
    return r

def step(T, t, prod=False, fast=False):
    p = t % 4
    b = t % 2
    h = 8 * T
    ZERO[0] = prod
    mf = qk_mfmas(T, b ^ 1) + pv_mfmas(T, b ^ 1)
    ZERO[0] = False
    kr = k_reads((t + 2) % 4)
    d = dma((t + 1) % 4)
    NOCHK[0] = bool(fast)
    sm = SM(T, b)
    NOCHK[0] = False
    n = len(mf)
    vrd = v_reads((t + 1) % 4)
    vm = opts.get('vm', 8)
    end = [CNT] if (prod or fast) else [CNT, "s_cselect_b64 vcc, -1, vcc"]
    bw = f"s_waitcnt vmcnt({vm}) lgkmcnt(0)"
    tight = T >= opts.get("tt", 3)
    SPIN = None
    if fast and T >= opts.get("sb", 9):
        ve, gx, gr, gy = {5: (24, 29, 44, 50), 4: (20, 25, 37, 43), 3: (16, 20, 26, 31)}[T]
        gr += opts.get("sbo", 0); gy += opts.get("sbo", 0)
        SPIN = f"{T}_{p}{'z' if prod else ''}"
        kd = [kr[0], kr[1], d[3], kr[2], kr[3], kr[4], d[4], kr[5], kr[6], kr[7], d[5]]
        fixed = merge(place(vrd, range(0, ve)),
                      {gx - 3: [d[0], f"v_add_u32 v{vSeq}, 1, v{vSeq}"], gx - 2: [d[1]], gx - 1: [d[2]],
                       gx: [bw, f"ds_write_b32 v{vOr}, v{vSeq}"], gr: [f"ds_read_b32 v{vFl}, v{vSr}"],
                       gy - 1: ["s_waitcnt lgkmcnt(0)", f"v_cmp_lt_u32 vcc, v{vFl}, v{vSeq}"],
                       gy: [f"s_cbranch_vccnz Lsp{SPIN}", f"Lspb{SPIN}:"]},
                      place(kd, range(gy + 1, n - 6)),
                      {n - 4: [end[0], d[6]], n - 2: ["s_waitcnt lgkmcnt(0)"]})
        nov = (gx, gy, n - 1)
        SPINS.append(SPIN)
    elif tight:
        kd = [kr[0], kr[1], d[3], kr[2], kr[3], d[4], kr[4], kr[5], kr[6], d[5], kr[7]]
        fixed = merge(place(vrd, range(0, h - 6)),
                      {h - 5: [d[0]], h - 4: [d[1]], h - 3: [d[2]], h - 2: [bw], h - 1: ["s_barrier"]},
                      place(kd, range(h, n - 7)),
                      {n - 5: [d[6]], n - 4: [end[0]], n - 3: ["s_waitcnt lgkmcnt(0)"], n - 2: end[1:]})
        nov = (h - 1, n - 1) if fast else (h - 1, n - 2, n - 1)
    elif T >= 3:
        kd = [kr[0], kr[1], d[3], kr[2], kr[3], d[4], kr[4], kr[5], d[5], kr[6], kr[7], d[6]]
        fixed = merge(place(vrd, range(0, h - 5)),
                      {h - 1: [bw, "s_barrier"]},
                      {h - 4: [d[0]], h - 3: [d[1]], h - 2: [d[2]]},
                      place(kd, range(h, n - 3)),
                      {n - 2: [end[0]], n - 1: end[1:]})
        nov = (h - 1, n - 1)
    else:
        kd = [kr[0], kr[1], d[3], kr[2], kr[3], kr[4], d[4], kr[5], kr[6], kr[7], d[5]]
        fixed = merge(place(vrd, range(0, 12)),
                      {h - 1: [bw, "s_barrier"]},
                      {h - 4: [d[0]], h - 3: [d[1]], h - 2: [d[2]]},
                      place(kd, range(h, n - 5)),
                      {n - 2: [end[0], d[6]], n - 1: end[1:]})
        nov = (h - 1, n - 1)
    if prod or not tight: e("s_waitcnt lgkmcnt(0)")
    body = pack(mf, fixed, sm, nov)
    if DG and not prod:
        body = [x for x in body if not (("d" in DG and x.startswith("buffer_load")) or ("b" in DG and x.startswith("s_barrier"))
                or ("l" in DG and x.startswith("ds_read")) or ("w" in DG and x.startswith("s_waitcnt"))
                or ("v" in DG and x.startswith(("v_exp", "v_cvt", "v_or"))))]
    if opts["e64"]:
        body = [x.replace("v_exp_f32 ", "v_exp_f32_e64 ").replace("v_add_f32 ", "v_add_f32_e64 ").replace("v_max_f32 ", "v_max_f32_e64 ") for x in body]
    emit(body)
    assert sm.left() == 0
    if fast:
        if not prod and TAILS.get((T, (p + 1) % 4)): e(f"s_cbranch_scc1 Lxt{T}_{p}")
    elif prod:
        check_rare(b, f"t{T}p{p}")
    else:
        e(f"s_cbranch_vccnz Lx{T}_{p}")
        lab(f"Lxb{T}_{p}")

def exit_stub(T, p):
    lab(f"Lx{T}_{p}")
    e(CHK)
    check_rare(p % 2, f"x{T}_{p}")
    if TAILS.get((T, (p + 1) % 4)):
        e(f"s_cbranch_scc1 Lxt{T}_{p}")
    e(f"s_branch Lxb{T}_{p}")

def tails(T, p):
    np_ = (p + 1) % 4
    nx = sorted(TAILS.get((T, np_), ()))
    if not nx: return
    lab(f"Lxt{T}_{p}")
    for tn in nx[1:]:
        e(f"s_cmp_lg_u32 s{sD1n}, 0")
        e(f"s_cbranch_scc1 Ltail{T}_{np_}_{tn}")
    for tn in nx:
        tail(T, np_, tn)

def safe_loop(T):
    lab(f"Lsafe{T}")
    step(T, 1, True)
    lab(f"Lsloop{T}")
    for t in (2, 3, 4, 5):
        step(T, t)
    e(f"s_branch Lsloop{T}")
    for p in range(4):
        exit_stub(T, p)

def ktile(u):
    return [m0set(u * 16384), f"s_add_u32 s{sT0}, s{sD0}, {(u-1)*TILEB}", ldk(0, sT0), ldk(1, sT0)]
def vtile(u):
    so = sLast if u == 0 else sD0
    return [m0set(((u + 2) % 4) * 16384), "s_nop 0", ldv(0, so), ldv(1, so)]
def next_k0():
    return [m0set(0), f"s_add_u32 s{sK+2}, s{sNRn}, 4096", ldk(0, sLastn), ldk(1, sLastn)]
def next_k1():
    return [m0set(16384), "s_nop 0", ldk(0, sD0n), ldk(1, sD0n)]

def tail(T, p, tn):
    b = p % 2
    lab(f"Ltail{T}_{p}_{tn}")
    if opts.get("enc"): e("s_memrealtime s[78:79]")
    stamp(3)
    if opts["stamp"]: e("s_waitcnt lgkmcnt(0)")
    vrd = v_reads((p + 1) % 4)
    vrd2 = v_reads((p + 2) % 4, aKf)
    sm = SM(T, b)
    mf = pv_mfmas(T, b ^ 1)
    o = min(T, NRS) if RS else 0
    if RS: mf = mf[-o:] + mf[:-o]
    rsm, mf = mf[:o], mf[o:]
    emit(interleave(rsm, vrd[:o]) + vrd[o:])
    m = []
    for t in range(T):
        x = vX + 8 + t if t < 4 else vX + 2
        if t < 4: e(f"v_accvgpr_read_b32 v{x}, a{aL+4*t}")
        m.append(x if t < 4 else vL4)
    cur = m.pop(0)
    while m:
        if len(m) >= 2:
            e(f"v_max3_f32 v{vFl}, v{cur}, v{m[0]}, v{m[1]}"); m = m[2:]
        else:
            e(f"v_max_f32 v{vFl}, v{cur}, v{m[0]}"); m = []
        cur = vFl
    e(f"v_cmp_le_f32 vcc, s{sLim}, v{vFl}")
    emit(sm.take(2))
    e("s_cmp_lg_u64 vcc, 0")
    e(f"s_cselect_b32 s{sT0}, 1, 0")
    e(f"s_andn2_b32 s{sT0}, s{sT0}, s{sSafe}")
    e(f"v_mov_b32 v{vFl}, s{sT0}")
    e(f"ds_write_b32 v{vQa}, v{vFl} offset:16384")
    emit(sm.take(opts.get("tk", 16)))
    e("s_waitcnt vmcnt(8) lgkmcnt(0)")
    e("s_barrier")
    fixed = place([f"ds_read_b32 v{vFl}, v{vFr}"] + vrd2, range(len(mf) - 2))
    if tn:
        fixed = merge(fixed, place(sum(next_loads(tn), []) if WARM else next_loads(tn)[0], range(len(mf))))
    emit(pack(mf, fixed, sm))
    assert sm.left() == 0
    check_rare(b, f"t{T}t{p}_{tn}")
    e("s_waitcnt lgkmcnt(8)")
    e(f"v_cmp_ne_u32 vcc, 0, v{vFl}")
    e("s_cbranch_vccnz Lrestart")
    fin(T, b, tn)

WARM = opts.get("warm", 0)
def warm_loads():
    r = [m0set(2 * 16384), f"s_add_u32 s{sT0}, s{sD0n}, {TILEB}", ldk(0, sT0), ldk(1, sT0),
         f"s_add_u32 m0, s{sQW}, {3*4096}", f"s_mov_b32 s{sV+2}, s{sNRn}", ldv(0, sLastn), ldv(1, sLastn)]
    if WARM >= 2: r += [x.replace(LDQ + " lds", " lds") for x in qgroup(2)]
    return r

def next_loads(tn):
    return next_k0() + qgroup(0, False), qgroup(1, False) + next_k1()

def xlane(op, regs, tmp):
    r = []
    for sw in ("v_permlane32_swap_b32", "v_permlane16_swap_b32"):
        r += [f"v_mov_b32 v{tmp+i}, v{x}" for i, x in enumerate(regs)]
        r += ["s_nop 1"]
        r += [f"{sw} v{x}, v{tmp+i}" for i, x in enumerate(regs)]
        r += ["s_nop 1"]
        r += [f"{op} v{x}, v{x}, v{tmp+i}" for i, x in enumerate(regs)]
    return r

vOA = vNM
vLI = vNM + 8
def epi_acc(t):
    return [f"v_accvgpr_read_b32 v{vQ+i}, a{aO+32*t+i}" for i in range(32)]
def epi_cvt(t):
    r = [f"v_pk_mul_f32 {vr(vQ+2*i,2)}, {vr(vQ+2*i,2)}, {vr(vLI+2*(t//2),2)} " +
         ("op_sel:[0,1] op_sel_hi:[1,1]" if t & 1 else "op_sel_hi:[1,0]") for i in range(16)]
    r += [f"v_cvt_pk_bf16_f32 v{vQ+32+16*(t&1)+i}, v{vQ+2*i}, v{vQ+2*i+1}" for i in range(16)]
    return r
def epi_writes(t):
    return [f"ds_write_b64 v{vOA+dt}, {vr(vQ+32+16*(t&1)+2*dt,2)}" for dt in range(8)]
def epi_reads(t):
    return [f"ds_read_b128 {vr(vS+16*t+4*i,4)}, v{vOr} offset:{i*1024}" for i in range(4)]
def epi_stores(t):
    return [f"s_add_u32 s{sT0}, s{sOoff}, {t*16*ROWB}"] + \
           [f"buffer_store_dwordx4 {vr(vS+16*t+4*i,4)}, v{vQd+i}, s[{sOut}:{sOut+3}], s{sT0} offen offset:{i*1024}{ST}" for i in range(4)]

def fin(T, b, tn):
    if not RS: e("s_waitcnt lgkmcnt(0)")
    mf = [pv1(b, t, dt, aKf) for t in range(T) for dt in range(8)]
    regs = [vL + t for t in range(T)]
    xo = [f"v_xor_b32 v{vOA+dt}, {dt*32}, v{vOw}" for dt in range(8)] if not opts["epi"] else ["s_nop 0"]
    if RS:
        nr = min(T, NRS)
        mf = [rs1(b, t) for t in range(nr)] + mf
        src = lambda t: (vX + t if t < NRS else vL4 + 2 * (t - 3) + 1)
        ad = [src(t) for t in range(nr, T)]
        if ad: xo = [f"v_add_f32 v{x}, v{x}, v{x-1}" for x in ad] + xlane("v_add_f32", ad, vX + 6) + xo
        ls = [f"v_accvgpr_read_b32 v{vX+t}, a{aL+4*t}" if t < 4 else f"v_mov_b32 v{vX+t}, v{vL4}" for t in range(nr)] + \
             [f"v_rcp_f32 v{vLI+t}, v{src(t)}" for t in range(T)] + epi_acc(0)
        fixed = merge({nr - 1: ["s_waitcnt lgkmcnt(6)"], nr + 4: ["s_waitcnt lgkmcnt(0)"]},
                      spread(xo, range(nr + 8)), spread(ls, range(nr + 8, len(mf))))
    else:
        ls = [f"v_add_f32 v{vL+t}, v{vL+t}, v{vT+t}" for t in range(T)] + xlane("v_add_f32", regs, vX) + \
             [f"v_rcp_f32 v{vLI+t}, v{vL+t}" for t in range(T)] + xo + epi_acc(0)
        fixed = spread(ls, range(len(mf)))
    if tn: fixed = merge(place(warm_loads() if WARM else next_loads(tn)[1], range(len(mf))), fixed)
    emit(pack(mf, fixed))
    e(f"s_branch Lepi{T}")

def first_max(t):
    s0 = sreg(0, t)
    m = vX + 2
    r = [f"v_max3_f32 v{m}, v{s0}, v{s0+1}, v{s0+2}", f"v_max3_f32 v{m}, v{m}, v{s0+3}, v{s0+4}",
         f"v_max3_f32 v{m}, v{m}, v{s0+5}, v{s0+6}", f"v_max_f32 v{m}, v{m}, v{s0+7}"]
    r += xlane("v_max_f32", [m], vX + 3)
    if RS: r += [f"v_add_f32 v{m}, s{sThr}, v{m}"]
    r += [f"v_sub_f32 v{vNM+4*t+i}, 0, v{m}" for i in range(4)]
    r += [f"v_sub_f32 v{s0+i}, v{s0+i}, v{m}" for i in range(8)]
    return r

def qraw(t, k=0):
    return vQ + 16 * t + k if t < 4 else sreg(k // 8, 4) + k % 8
def prescale(t):
    r = []
    for k in range(0, 16, 2):
        q = qraw(t, k)
        for i in range(2):
            r += [f"v_lshlrev_b32 v{vX+2*i}, 16, v{q+i}", f"v_and_b32 v{vX+2*i+1}, 0xffff0000, v{q+i}"]
        for i in range(2):
            r += [f"v_pk_mul_f32 {vr(vX+2*i,2)}, {vr(vX+2*i,2)}, s[{sThr}:{sC}] op_sel:[0,1] op_sel_hi:[1,1]"]
        for i in range(2):
            r += [f"v_cvt_pk_bf16_f32 v{q+i}, v{vX+2*i}, v{vX+2*i+1}"]
        if t == 4: r += [f"v_accvgpr_write_b32 a{aQ+k+i}, v{q+i}" for i in range(2)]
    return r

def first_only(lines):
    i = len(L)
    e(f"s_cmp_eq_u32 s{sFirst}, 0")
    e(f"s_cbranch_scc1 Lw{i}")
    emit(lines)
    lab(f"Lw{i}")

def nvm(l): return sum(x.startswith("buffer") for x in l)

vMK = vP + 20
def weave(mfs, valu, mem):
    d = place(mem, range(len(mfs))) if mem else {}
    out = []
    j = 0
    nops = [i for i, x in enumerate(valu) if x == "s_nop 1"]
    if nops and len(mfs) > len(nops):
        extra = len(mfs) - len(nops)
        free = [i for i in range(len(valu)) if i not in nops and i - 1 not in nops]
        head = [0, 2][:min(2, extra)]
        tailp = [i for i in free if i > nops[-1] + 1]
        more = [tailp[k * len(tailp) // (extra - len(head))] for k in range(extra - len(head))]
        cuts = sorted(set(nops + head + more))
        assert len(cuts) == len(mfs)
        k = 0
        for i, x in enumerate(valu):
            if i in cuts:
                out.append(mfs[k])
                m = d.get(k, []); k += 1
                if x == "s_nop 1":
                    out += m if m else ["s_nop 0"]
                    continue
                out += m
            out.append(x)
        return out
    for i, x in enumerate(mfs):
        out.append(x)
        out += d.get(i, [])
        nj = (i + 1) * len(valu) // len(mfs)
        out += valu[j:nj]; j = nj
    return out

def bf16bits(x):
    u = f32bits(x)
    return (u + 0x7FFF + ((u >> 16) & 1)) >> 16
CSC = 128 ** -0.5 * math.log2(math.e)
CHI = bf16bits(CSC)
CLO = bf16bits(CSC - struct.unpack("<f", struct.pack("<I", CHI << 16))[0])

def prologue2(T):
    lab(f"Lpro{T}")
    vCA = vP + 28
    adr = [vX + 8 + s for s in range(4)], [vP + 32 + s for s in range(4)]
    ops = []
    def add(l, **k):
        r = [Op(x, **k) for x in l if not x.startswith("s_nop")]
        ops.extend(r); return r
    def qcur(g):
        return [x.replace(f"s{sQoffn}", f"s{sOoff}").replace(f"s[{sQ}:{sQ+3}]", f"s[{sQc}:{sQc+3}]") for x in qgroup(g, False)]
    def vmw(tag, first, after, tmin):
        i = len(L) * 1000 + len(ops)
        lines = [f"s_cmp_eq_u32 s{sFirst}, 0", f"s_cbranch_scc1 Lw{i}", "@W", f"Lw{i}:"] if first else None
        o = Op("s_waitcnt vmcnt(0)", vmwait=tag, lines=lines, after=after, tmin=tmin); ops.append(o); return o
    t0, dt = opts.get("qt0", 100), opts.get("qdt", 300)
    add([f"v_xor_b32 v{adr[0][s]}, {s*64}, v{vQa}" for s in range(4)] + [f"v_add_u32 v{adr[1][s]}, 8, v{adr[0][s]}" for s in range(4)])
    add([f"v_mul_u32_u24 v{vCA}, {CHI}, v{vM01}", f"v_mul_u32_u24 v{vCA+1}, {CHI}, v{vM23}",
         f"v_mul_u32_u24 v{vCA+2}, {CLO}, v{vM01}", f"v_mul_u32_u24 v{vCA+3}, {CLO}, v{vM23}"])
    add([f"v_sub_u32 v{vX}, s{sRem}, v{vG4}", f"v_mov_b32 v{vX+1}, s{sNeg}"])
    for a in range(2):
        add([f"v_cmp_lt_i32 s[{sM+2*i}:{sM+2*i+1}], {16*a+i}, v{vX}" for i in range(4)])
        add([f"v_cndmask_b32 v{vMK+4*a+i}, v{vX+1}, 0, s[{sM+2*i}:{sM+2*i+1}]" for i in range(4)])
    qld = {}
    for g in range(2, T):
        qld[g] = add(qcur(g), tag=f"Q{g}", tmin=(g - 2) * 260)
    W = {0: vmw("Q0", True, qld.get(2, [])[-1:], t0)}
    W[1] = vmw("K1", True, [W[0]] + qld.get(3, [])[-1:], t0 + dt)
    B1 = add(["s_barrier"], after=[W[1]])[0]
    kr = add(k_reads(0) + k_reads(1, aVf), after=[B1])
    B2 = add(["s_barrier"], after=[B1], reads={("a", aKf + i) for i in range(64)})[0]
    e1, e2 = (2, 2) if T >= 4 else (1, min(T - 1, opts.get("b3", 1)))
    bulk = {e1: [("K2", ktile(2), B1), ("V0", vtile(0), B1)]}
    bulk.setdefault(e2, []).extend([("K3", ktile(3), B1), ("V1", vtile(1), B1), ("G", dma(0), B2), ("G", dma(1), B2)])
    lastA = None
    tile_all, tile_max = {}, {}
    for t in range(T):
        if t >= 2:
            aft = [W[t - 1], qld[T - 1][-1]]
            if opts.get("lag", 1): aft += tile_all[t - 2]
            if opts.get("lag", 1) and t == T - 1: aft += tile_max[t - 1] if opts.get("lag", 1) == 1 else tile_all[t - 1]
            W[t] = vmw(f"Q{t}", False, aft, t0 + t * dt)
        for tag, l, bar in bulk.get(t, []):
            r = add(l, tag=tag, after=[bar, W[t]])
            if tag == "V0": v0 = r[-1]
        raw = aO + 32 * t
        add([f"ds_read2st64_b64 {ar(raw+4*k,4)}, v{adr[k&1][k>>1]} offset0:{8*t} offset1:{8*t}" for k in range(8)], after=[W[t]])
        for k in range(8):
            d = sreg((k >> 1) & 1, t, k & 1)
            add([f"{MF} {vr(d,4)}, {vr(vCA,4)}, {ar(raw+4*k,4)}, 0"])
            for i in range(2):
                if t < 4:
                    add([f"v_cvt_pk_bf16_f32 v{vQ+16*t+2*k+i}, v{d+2*i}, v{d+2*i+1}"])
                else:
                    add([f"v_cvt_pk_bf16_f32 v{d+2*i}, v{d+2*i}, v{d+2*i+1}", f"v_accvgpr_write_b32 a{aQ+2*k+i}, v{d+2*i}"])
        lastA = add([qk1(0, t, a, s, vMK + 4 * a) for a in range(2) for s in range(4)])[-1]
        fm = first_max(t)
        if t & 1: fm = [x.replace(f"v{vX+2}", f"v{vX}").replace(f"v{vX+3}", f"v{vX+1}") for x in fm]
        tile_max[t] = add(fm)
        cc = add([qk1(1, t, a, s, vNM + 4 * t, aVf) for a in range(2) for s in range(4)])
        dd = SM(1, 0, False, t, 2).rest()
        if t & 1:
            for i in range(4): dd = [x.replace(f"v{vE+i}", f"v{vX+4+i}") for x in dd]
        tile_all[t] = tile_max[t] + cc + add(dd)
    W3 = vmw("V0", False, [v0, lastA, B2] + (tile_max[T - 1] if opts.get("w3", 1) else []), 0)
    B3 = add(["s_barrier"], after=[W3])[0]
    add(k_reads(2), after=[B3], bonus=150)
    q = ["K0"] * 2 + ["Q0"] * 4 + ["Q1"] * 4 + ["K1"] * 2
    out, est = schedule(ops, q, verbose=bool(opts.get("verb")))
    assert q[-8:] == ["G"] * 8
    emit(out)
    stamp(1)

def prologue(T):
    if opts.get("p2", 1): prologue2(T)
    else: prologue1(T)
    prologue_end(T)

def prologue1(T):
    lab(f"Lpro{T}")
    def qcur(g):
        return [x.replace(f"s{sQoffn}", f"s{sOoff}").replace(f"s[{sQ}:{sQ+3}]", f"s[{sQc}:{sQc+3}]") for x in qgroup(g, False)]
    q = ["K0"] * 2 + ["Q0"] * 4 + ["Q1"] * 4 + ["K1"] * 2
    def younger(tag): return len(q) - 1 - max(i for i, x in enumerate(q) if x == tag)
    for s in range(4):
        e(f"v_xor_b32 v{vX+8+s}, {s*64}, v{vQa}")
    pre = [f"v_sub_u32 v{vX}, s{sRem}, v{vG4}", f"v_mov_b32 v{vX+1}, s{sNeg}"]
    for a in range(2):
        pre += [f"v_cmp_lt_i32 s[{sM+2*i}:{sM+2*i+1}], {16*a+i}, v{vX}" for i in range(4)] + ["s_nop 0"]
        pre += [f"v_cndmask_b32 v{vMK+4*a+i}, v{vX+1}, 0, s[{sM+2*i}:{sM+2*i+1}]" for i in range(4)]
    if not RS: pre += [f"v_mov_b32 v{vL+t}, 0" for t in range(T)]
    else: pre += [f"v_mov_b32 v{vL4+2*(t-3)+1}, 0" for t in range(NRS, T)]
    def qreads(t):
        return [f"ds_read_b128 {vr(qraw(t,4*s),4)}, v{vX+8+s} offset:{t*4096}" for s in range(4)]
    A = lambda t: [qk1(0, t, a, s, vMK + 4 * a) for a in range(2) for s in range(4)]
    C = lambda t: [qk1(1, t, a, s, vNM + 4 * t, aVf) for a in range(2) for s in range(4)]
    def sparse(mem, valu):
        d = place(mem, range(max(1, nvm(mem))))
        out = []; j = 0
        for i in range(len(d)):
            out += d[i]
            nj = (i + 1) * len(valu) // len(d)
            out += valu[j:nj]; j = nj
        return out
    if T > 2:
        emit(sparse(qcur(2), pre)); q += ["Q2"] * 4
        pre = []
    first_only([f"s_waitcnt vmcnt({younger('Q0')})"])
    pstamp(1)
    emit(qreads(0))
    emit(pre)
    e("s_waitcnt lgkmcnt(0)")
    if T > 3:
        emit(sparse(qcur(3), prescale(0))); q += ["Q3"] * 4
    else:
        emit(prescale(0))
    first_only([f"s_waitcnt vmcnt({younger('K1')})"])
    pstamp(2)
    if opts.get("sb", 9) <= 5: e(f"ds_write_b32 v{vOr}, v{vSeq}")
    emit(qreads(1))
    e("s_barrier")
    emit(k_reads(0))
    e("s_waitcnt lgkmcnt(8)")
    ps = prescale(1)
    if T > 4:
        emit(sparse(qcur(4), ps[:32])); q += ["Q4"] * 4
    else:
        emit(ps[:32])
    emit(k_reads(1, aVf))
    e("s_waitcnt lgkmcnt(8)")
    bulk = [("K2", ktile(2)), ("V0", vtile(0)), ("K3", ktile(3)), ("V1", vtile(1)), ("G", dma(0)[:5]), ("G", dma(0)[5:]),
            ("H", dma(1)[:5]), ("H", dma(1)[5:])]
    def takeb(n):
        nonlocal bulk
        r = []
        for tag, l in bulk[:n]:
            r += l; q.extend([tag] * nvm(l))
        bulk = bulk[n:]
        return r
    emit(weave(A(0), [], takeb(1) if T == 2 else []))
    emit(sparse(takeb(1), ps[32:]) if T <= 3 else ps[32:])
    D = lambda t: SM(1, 0, False, t, 2).rest()
    def getq(k):
        e(f"s_waitcnt vmcnt({younger(f'Q{k}')})")
        if k <= 3: pstamp(k + 1)
        emit(qreads(k))
    def bar2():
        e("s_waitcnt lgkmcnt(0)")
        e("s_barrier")
    per = {2: [2, 2, 2], 3: [1, 1, 1, 2, 2], 4: [1, 1, 1, 1, 1, 1, 2], 5: [0, 1, 1, 1, 1, 1, 1, 1, 1]}[T]
    tk = lambda: takeb(per.pop(0))
    for k in range(2, T):
        emit(weave(A(k - 1), first_max(k - 2), tk()))
        if k == 2: bar2()
        if k < T - 1:
            getq(k)
            emit(weave(C(k - 2), D(k - 2), tk()))
        else:
            emit(weave(C(k - 2), first_max(k - 1), tk()))
            emit(D(k - 2))
            getq(k)
            emit(weave(C(k - 1), D(k - 1)[:8], tk()))
        e("s_waitcnt lgkmcnt(0)")
        emit(prescale(k))
    stamp(1)
    if opts["stamp"]: e("s_waitcnt lgkmcnt(0)")
    if T == 2:
        emit(weave(A(1), first_max(0), tk()))
        bar2()
        emit(weave(C(0), D(0), tk()))
    else:
        emit(weave(A(T - 1), D(T - 2)[8:], tk()))
    e(f"s_waitcnt vmcnt({younger('V0')})")
    e("s_barrier")
    emit(k_reads(2))
    emit(first_max(T - 1))
    emit(weave(C(T - 1), D(T - 1), tk()))
    assert not bulk and not per

def prologue_end(T):
    e(CNT)
    e(f"s_cmp_lg_u32 s{sSafe}, 0")
    e(f"s_cbranch_scc1 Lsafe{T}")
    if opts.get("enc"):
        i = len(L)
        e(f"s_cmp_eq_u32 s{sFirst}, 0"); e(f"s_cbranch_scc1 Le{i}"); e("s_memrealtime s[76:77]"); lab(f"Le{i}")
    step(T, 1, True, True)
    stamp(2)
    e(f".p2align {opts['al']}")
    lab(f"Lloop{T}")
    for t in (2, 3, 4, 5):
        step(T, t, False, True)
    e(f"s_branch Lloop{T}")
    for sp in SPINS:
        lab(f"Lsp{sp}")
        e(f"ds_read_b32 v{vFl}, v{vSr}")
        e("s_waitcnt lgkmcnt(0)")
        e(f"v_cmp_lt_u32 vcc, v{vFl}, v{vSeq}")
        e(f"s_cbranch_vccnz Lsp{sp}")
        e(f"s_branch Lspb{sp}")
    SPINS.clear()
    for p in range(4):
        tails(T, p)

def stamp_store(final=False):
    if not opts["stamp"]: return
    B = vP + 20
    if opts["stamp"] == 2:
        if not final: return
        e("s_waitcnt lgkmcnt(0)")
        e("s_mov_b32 s92, s90"); e("s_mov_b32 s93, s91"); e("s_mov_b32 s94, 256"); e("s_mov_b32 s95, 0x20000")
        e("s_mov_b64 exec, 1")
        e(f"v_mov_b32 v{B+8}, 0")
        e("s_not_b32 s96, s100"); e(f"v_mov_b32 v{B}, s96")
        e(f"buffer_atomic_umax v{B}, v{B+8}, s[92:95], 0 offen offset:32")
        e(f"v_mov_b32 v{B+1}, s{sST+12}")
        e(f"buffer_atomic_umax v{B+1}, v{B+8}, s[92:95], 0 offen offset:36")
        e(f"v_mov_b32 v{B+2}, s100")
        e(f"buffer_atomic_umax v{B+2}, v{B+8}, s[92:95], 0 offen offset:40")
        e(f"s_lshl_b32 s96, s2, 2"); e(f"s_add_u32 s96, s96, s{sW}")
        e("s_cmp_lg_u32 s96, 32"); e("s_cbranch_scc1 Lnodbg")
        e(f"s_sub_u32 s96, s99, s100"); e(f"v_mov_b32 v{B}, s96")
        e(f"s_sub_u32 s96, s{sST+2}, s97"); e(f"v_mov_b32 v{B+1}, s96")
        for i in range(1, 4):
            e(f"s_sub_u32 s96, s{sST+2*i+2}, s{sST+2*i}"); e(f"v_mov_b32 v{B+1+i}, s96")
        e(f"s_sub_u32 s96, s{sST}, s{sST+8}"); e(f"v_mov_b32 v{B+5}, s96")
        e(f"s_sub_u32 s96, s{sST+12}, s100"); e(f"v_mov_b32 v{B+6}, s96")
        e(f"v_mov_b32 v{B+7}, s100")
        e(f"buffer_store_dwordx4 {vr(B,4)}, v{B+8}, s[92:95], 0 offen")
        e(f"buffer_store_dwordx4 {vr(B+4,4)}, v{B+8}, s[92:95], 0 offen offset:16")
        lab("Lnodbg")
        return
    e("s_waitcnt lgkmcnt(0)")
    e("s_mov_b32 s92, s90"); e("s_mov_b32 s93, s91"); e("s_mov_b32 s94, 0x100000"); e("s_mov_b32 s95, 0x20000")
    e(f"s_lshl_b32 s96, s2, 2"); e(f"s_add_u32 s96, s96, s{sW}"); e("s_lshl_b32 s96, s96, 2")
    if final: e("s_add_u32 s96, s96, 3")
    else: e("s_add_u32 s96, s96, s97"); e("s_add_u32 s97, s97, 1")
    e("s_lshl_b32 s96, s96, 5")
    for i in range(5): e(f"v_mov_b32 v{B+i}, s{sST+2*i}")
    e(f"v_mov_b32 v{B+5}, s{sST+10}"); e(f"v_mov_b32 v{B+6}, s{sST+12}"); e(f"v_mov_b32 v{B+7}, s98")
    e(f"v_mov_b32 v{B+8}, 0")
    e("s_mov_b64 exec, 1")
    e(f"buffer_store_dwordx4 {vr(B,4)}, v{B+8}, s[92:95], s96 offen")
    e(f"buffer_store_dwordx4 {vr(B+4,4)}, v{B+8}, s[92:95], s96 offen offset:16")
    e("s_mov_b64 exec, -1")
    e("s_nop 2")

def epilogue(T):
    lab(f"Lepi{T}")
    stamp(4)
    if opts["stamp"]: e(f"s_memrealtime s[{sST+12}:{sST+13}]")
    if opts.get("pst") != 2: stamp_store()
    estamp(1)
    if opts["epi"]:
        def swaps(t):
            pk = vQ + 32 + 16 * (t & 1)
            return [f"v_permlane16_swap_b32 v{pk+4*j+i}, v{pk+4*j+2+i}" for j in range(4) for i in range(2)]
        def dstores(t):
            pk = vQ + 32 + 16 * (t & 1)
            return [f"buffer_store_dwordx4 {vr(pk+4*j,4)}, v{vOw}, s[{sOut}:{sOut+3}], s{sT0} offen offset:{j*64}{ST}" for j in range(4)]
        emit(epi_cvt(0) + swaps(0))
        for t in range(1, T + 1):
            va = epi_acc(t) + epi_cvt(t) + swaps(t) if t < T else []
            st = dstores(t - 1)
            e(f"s_add_u32 s{sT0}, s{sOoff}, {(t-1)*16*ROWB}")
            if opts["epi"] == 2:
                emit(st[:2] + va[:24] + st[2:] + va[24:])
            else:
                for j in range(4):
                    e(st[j]); emit(va[14 * j:14 * (j + 1)])
                emit(va[56:])
    else:
        epilogue_lds(T)
    epilogue_end(T)

def epilogue_lds(T):
    held = []
    for t in range(T):
        ac, cv, w = epi_acc(t), epi_cvt(t), epi_writes(t)
        if t == T - 1:
            estamp(3)
            if opts.get("pst") == 2: e("s_waitcnt lgkmcnt(0)")
        for qd in range(4):
            if t: emit(ac[8 * qd:8 * qd + 8])
            if qd == 1 and t:
                emit([held.pop(0), "s_waitcnt lgkmcnt(2)"])
            if held and (t > 1 or qd): e(held.pop(0))
            emit(cv[4 * qd:4 * qd + 4] + cv[16 + 4 * qd:16 + 4 * qd + 4] + w[2 * qd:2 * qd + 2])
        emit(epi_reads(t))
        so = sT0 + (t & 1)
        held += [x.replace(f"s{sT0}", f"s{so}") for x in epi_stores(t)]
        if t == 1: estamp(2)
    n = 4
    for i, x in enumerate(held):
        if x.startswith("buffer") and i >= len(held) - 4:
            n -= 1
            e(f"s_waitcnt lgkmcnt({n})")
        e(x)

def epilogue_end(T):
    estamp(4)
    if T in PROD:
        e(f"s_cmp_eq_u32 s{sD1n}, 0")
        e("s_cbranch_scc1 Ldone")
        e(f"s_mov_b32 s{sFirst}, 0")
        e(f"s_mov_b32 s{sSafe}, {opts.get('safe', 0)}")
        e(f"s_waitcnt vmcnt({4*T + (nvm(warm_loads()) if WARM else 0)})")
        e("s_branch Lstart")
    else:
        e("s_branch Ldone")

def gen():
    L.append(open(os.path.join(os.path.dirname(os.path.abspath(__file__)), "header.txt")).read().rstrip())
    L.append(f"; @launch grid=({NWG},1,1) block=(256,1,1) lds={LDSZ}")
    L.append('.amdgcn_target "amdgcn-amd-amdhsa--gfx950"')
    L.append(".text")
    L.append(f".globl {NAME}_kernel")
    L.append(".p2align 8")
    L.append(f".type {NAME}_kernel,@function")
    lab(f"{NAME}_kernel")
    e(f"s_cmp_ge_u32 s2, {NWG}")
    e("s_cbranch_scc1 Lend")
    e(f"s_getpc_b64 s[{sPC}:{sPC+1}]")
    lab("Lpc")
    e(f"s_add_u32 s4, s{sPC}, Ltab-Lpc")
    e(f"s_addc_u32 s5, s{sPC+1}, 0")
    e("s_lshl_b32 s3, s2, 5")
    e(f"s_load_dwordx8 s[{sJ}:{sJ+7}], s[4:5], s3")
    for srd, off in ((sK, 8), (sQ, 0), (sV, 16), (sOut, 32), (sQc, 0)):
        e(f"s_load_dwordx2 s[{srd}:{srd+1}], s[0:1], {off}")
    if opts["pf"] == 1:
        e(f"v_lshlrev_b32 v1, 7, v0")
        for i in range(2):
            e(f"global_load_dword v{2+i}, v1, s[{sPC}:{sPC+1}]")
            e(f"v_add_u32 v1, 32768, v1")
    elif opts["pf"] == 2:
        e("s_lshr_b32 s3, s2, 3")
        e("s_mul_i32 s3, s3, 2560")
        e("v_lshrrev_b32 v1, 6, v0")
        e("v_mul_u32_u24 v1, 640, v1")
        e("v_and_b32 v2, 7, v0")
        e("v_min_u32 v2, 4, v2")
        e("v_lshl_add_u32 v1, v2, 7, v1")
        e("v_add_u32 v1, s3, v1")
        e("v_min_u32 v1, Lcold-Lpc, v1")
        e(f"global_load_dword v2, v1, s[{sPC}:{sPC+1}]")
    if opts["stamp"]:
        e(f"s_load_dwordx2 s[90:91], s[0:1], {40 if opts['stamp'] == 2 else 48}")
        e("s_memrealtime s[100:101]")
        e("s_mov_b32 s97, 0")
    if opts.get("spin"):
        e("s_memrealtime s[100:101]")
        e("s_load_dwordx2 s[90:91], s[0:1], 40")
    if LIGHT:
        e("s_load_dwordx2 s[90:91], s[0:1], 48")
        e("s_memrealtime s[100:101]")
    w, ln, i16, g, x4, x5, x6 = range(vX, vX + 7)
    e(f"v_lshrrev_b32 v{w}, 6, v0")
    e(f"v_and_b32 v{ln}, 63, v0")
    e(f"v_readfirstlane_b32 s{sW}, v{w}")
    e(f"v_and_b32 v{i16}, 15, v{ln}")
    e(f"v_lshrrev_b32 v{g}, 4, v{ln}")
    e(f"v_xor_b32 v{x6}, v{i16}, v{g}")
    e(f"v_lshlrev_b32 v{x6}, 4, v{x6}")
    mark = len(L)
    e(f"v_bfe_u32 v{x4}, v{ln}, 3, 1")
    e(f"v_lshlrev_b32 v{x4}, 12, v{x4}")
    e(f"v_and_b32 v{x5}, 7, v{ln}")
    e(f"v_lshl_add_u32 v{x4}, v{x5}, 8, v{x4}")
    e(f"v_add3_u32 v{vKa}, v{x4}, v{x6}, 0")
    e(f"v_add_u32 v{vKa}, 2048, v{vKa}")
    for s in range(1, 4):
        e(f"v_xor_b32 v{vKa+s}, {s*64}, v{vKa}")
    e(f"v_mul_u32_u24 v{x4}, {QW}, v{w}")
    e(f"v_lshl_add_u32 v{x4}, v{i16}, 8, v{x4}")
    e(f"v_add3_u32 v{x4}, v{x4}, v{x6}, 0")
    e(f"v_add_u32 v{vQa}, {QS}, v{x4}")
    e(f"v_lshlrev_b32 v{x4}, 12, v{w}")
    e(f"v_add_u32 v{x4}, {OS}, v{x4}")
    e(f"v_lshl_add_u32 v{vOr}, v{ln}, 4, v{x4}")
    e(f"v_lshl_add_u32 v{x4}, v{i16}, 8, v{x4}")
    e(f"v_lshrrev_b32 v{x5}, 1, v{g}")
    e(f"v_xor_b32 v{x5}, v{x5}, v{i16}")
    e(f"v_lshl_add_u32 v{x4}, v{x5}, 4, v{x4}")
    e(f"v_and_b32 v{x5}, 1, v{g}")
    e(f"v_lshl_add_u32 v{vOw}, v{x5}, 3, v{x4}")
    if opts["epi"]:
        e(f"v_lshlrev_b32 v{x4}, 12, v{i16}")
        e(f"v_lshl_add_u32 v{x4}, v{x5}, 5, v{x4}")
        e(f"v_lshrrev_b32 v{vOw}, 1, v{g}")
        e(f"v_lshl_add_u32 v{vOw}, v{vOw}, 4, v{x4}")
    e(f"v_lshrrev_b32 v{x4}, 1, v{g}")
    e(f"v_lshlrev_b32 v{x4}, 12, v{x4}")
    e(f"v_mul_u32_u24 v{x5}, {4*256+32}, v{x5}")
    e(f"v_add_u32 v{x4}, v{x4}, v{x5}")
    e(f"v_lshrrev_b32 v{x5}, 2, v{i16}")
    e(f"v_mul_u32_u24 v{x5}, {256+64}, v{x5}")
    e(f"v_add_u32 v{x4}, v{x4}, v{x5}")
    e(f"v_and_b32 v{x5}, 3, v{ln}")
    e(f"v_lshl_add_u32 v{vVa}, v{x5}, 3, v{x4}")
    for dt in range(1, 8):
        e(f"v_xor_b32 v{vVa+dt}, {dt*32}, v{vVa}")
    if RS:
        for i in range(4): e(f"v_mov_b32 v{vOne+i}, 0x3f803f80")
    e(f"v_and_b32 v{vFr}, 3, v{ln}")
    if opts.get("p2", 1):
        e(f"v_and_b32 v{x4}, 1, v{ln}")
        e(f"v_lshlrev_b32 v{x4}, 4, v{x4}")
        e(f"v_lshlrev_b32 v{x4}, v{x4}, 1")
        e(f"v_lshrrev_b32 v{x5}, 1, v{i16}")
        e(f"v_lshlrev_b32 v{vM23}, 1, v{g}")
        e(f"v_cmp_eq_u32 vcc, v{x5}, v{vM23}")
        e(f"v_add_u32 v{vM23}, 1, v{vM23}")
        e(f"v_cmp_eq_u32 s[{sM}:{sM+1}], v{x5}, v{vM23}")
        e(f"v_cndmask_b32 v{vM01}, 0, v{x4}, vcc")
        e("s_nop 0")
        e(f"v_cndmask_b32 v{vM23}, 0, v{x4}, s[{sM}:{sM+1}]")
    if opts.get("sb", 9) <= 5:
        e(f"v_lshlrev_b32 v{vSr}, 12, v{vFr}")
        e(f"v_add_u32 v{vSr}, {OS}, v{vSr}")
        e(f"v_mov_b32 v{vSeq}, 0")
    e(f"v_mul_u32_u24 v{vFr}, {QW}, v{vFr}")
    e(f"v_add_u32 v{vFr}, {QS+16384}, v{vFr}")
    late = [x.strip() for x in L[mark:]]
    del L[mark:]
    e(f"v_lshlrev_b32 v{vG4}, 2, v{g}")
    e(f"v_lshl_add_u32 v{vQd}, v{g}, 12, v{x6}")
    for i in range(1, 4):
        e(f"v_xor_b32 v{vQd+i}, {i*64}, v{vQd}")
        e(f"v_add_u32 v{vQd+i}, {i*(4*ROWB-1024)}, v{vQd+i}")
    e(f"v_lshl_add_u32 v{x5}, v{w}, 3, v{g}")
    e(f"v_xor_b32 v{x4}, v{vG4}, v{i16}")
    e(f"v_lshlrev_b32 v{x4}, 4, v{x4}")
    e(f"v_lshl_add_u32 v{vDV}, v{x5}, 12, v{x4}")
    e(f"v_xor_b32 v{vDV+1}, 32, v{vDV}")
    e(f"v_add_u32 v{vDV+1}, {4*ROWB-1024}, v{vDV+1}")
    e(f"v_and_b32 v{x4}, 15, v{x5}")
    e(f"v_xor_b32 v{x4}, v{x4}, v{i16}")
    e(f"v_lshlrev_b32 v{x4}, 4, v{x4}")
    e(f"v_lshl_add_u32 v{vDK}, v{x5}, 12, v{x4}")
    e(f"v_xor_b32 v{vDK+1}, 64, v{vDK}")
    e(f"v_add_u32 v{vDK}, {4096-2048}, v{vDK}")
    e(f"v_add_u32 v{vDK+1}, {4*ROWB+4096-3072}, v{vDK+1}")
    e(f"s_lshl_b32 s{sWB}, s{sW}, 12")
    e(f"s_mov_b32 s{sThr}, {hex(f32bits(BIAS if RS else 4096.0))}")
    e(f"s_mov_b32 s{sC}, {hex(f32bits(128 ** -0.5 * math.log2(math.e)))}")
    e(f"s_mov_b32 s{sNeg}, {hex(f32bits(-1e30))}")
    e(f"s_mov_b32 s{sBig}, 0x40000000")
    if opts.get("perm"): e(f"s_mov_b32 s{sN}, 0x07060302")
    e(f"s_mov_b32 s{sFirst}, 1")
    e(f"s_mov_b32 s{sSafe}, {opts.get('safe', 0)}")
    e(f"s_mov_b32 s{sLim}, {hex(f32bits(2.0 ** 40))}")
    e(f"s_mul_i32 s{sQW}, s{sW}, {QW}")
    e(f"s_add_u32 s{sQW}, s{sQW}, {QS}")
    for srd in (sQ, sK, sV, sOut, sQc):
        e(f"s_mov_b32 s{srd+2}, 0")
        e(f"s_mov_b32 s{srd+3}, 0x20000")
    e(m0set(0))
    e("s_waitcnt lgkmcnt(0)")
    e(f"s_sub_u32 s{sK}, s{sK}, 4096")
    e(f"s_subb_u32 s{sK+1}, s{sK+1}, 0")
    def decode():
        e(f"s_mov_b32 s{sQ+2}, s{sNRn}")
        e(f"s_bfe_u32 s{sTn}, s{sD1n}, 0x30018")
        e(f"s_mul_i32 s{sT0}, s{sTn}, s{sW}")
        e(f"s_lshl_b32 s{sT0}, s{sT0}, 16")
        e(f"s_and_b32 s{sQoffn}, s{sD1n}, 0xfff000")
        e(f"s_add_u32 s{sQoffn}, s{sQoffn}, s{sD0n}")
        e(f"s_add_u32 s{sQoffn}, s{sQoffn}, s{sT0}")
    emit(next_k0()[1:])
    decode()
    j = 0
    nl = 0
    for x in qgroup(0) + next_loads(1)[1]:
        if opts["lazy"] and "m0" in x and nl < opts.get("lz", 2):
            e(f"s_bitcmp0_b32 s{sD1n}, 28"); e(f"s_cbranch_scc1 Llz{nl}"); e("s_waitcnt vmcnt(0)"); lab(f"Llz{nl}"); nl += 1
        e(x)
        if x.startswith("buffer"):
            emit(late[j:j + 5]); j += 5
    emit(late[j:])
    lab("Lstart")
    e(f"s_mov_b64 s[{sD0}:{sD1}], s[{sD0n}:{sD1n}]")
    e(f"s_mov_b32 s{sLast}, s{sLastn}")
    e(f"s_mov_b32 s{sOut+2}, s{sNRn}")
    e(f"s_mov_b32 s{sV+2}, s{sNRn}")
    e(f"s_mov_b32 s{sQc+2}, s{sNRn}")
    e(f"s_mov_b32 s{sOoff}, s{sQoffn}")
    e(f"s_mov_b64 s[{sJ}:{sJ+1}], s[{sJ+4}:{sJ+5}]")
    e(f"s_mov_b64 s[{sJ+2}:{sJ+3}], s[{sJ+6}:{sJ+7}]")
    e(f"s_mov_b64 s[{sJ+4}:{sJ+5}], 0")
    e(f"s_mov_b64 s[{sJ+6}:{sJ+7}], 0")
    decode()
    e(f"s_and_b32 s{sCnt}, s{sD1}, 63")
    e(f"s_bfe_u32 s{sRem}, s{sD1}, 0x60006")
    e(f"s_mov_b32 s{sOff}, s{sD0}")
    e(f"s_add_u32 s{sOffK}, s{sD0}, {2*TILEB}")
    if opts["stamp"]: e(f"s_add_u32 s{sN}, s{sCnt}, 2")
    stamp(0)
    e(f"s_bfe_u32 s{sT0}, s{sD1}, 0x30018")
    if opts["stamp"]:
        e(f"s_memrealtime s[{sST+10}:{sST+11}]")
        e(f"s_lshl_b32 s98, s{sT0}, 8"); e(f"s_add_u32 s98, s98, s{sN}")
        e("s_waitcnt lgkmcnt(0)")
        if opts["stamp"] == 2:
            e(f"s_mov_b32 s97, s{sST}"); e(f"s_mov_b32 s99, s{sST+10}")
    order = sorted(TS, key=lambda t: (t != 4, -t))
    for T in order[1:]:
        e(f"s_cmp_eq_u32 s{sT0}, {T}")
        e(f"s_cbranch_scc1 Lpro{T}")
    global NRS
    for T in order:
        NRS = 5
        prologue(T)
        epilogue(T)
    lab("Ldone")
    if opts.get("spin"):
        if opts.get("gref"):
            e("s_mov_b32 s92, s90"); e("s_mov_b32 s93, s91"); e("s_mov_b32 s94, 256"); e("s_mov_b32 s95, 0x20000")
            e("s_not_b32 s96, s100"); e("v_mov_b32 v0, s96"); e("v_mov_b32 v2, 0")
            e("s_mov_b64 exec, 1")
            e(f"s_cmp_lg_u32 s{sW}, 0"); e("s_cbranch_scc1 Lsp0")
            e("buffer_atomic_umax v0, v2, s[92:95], 0 offen")
            lab("Lsp0")
            e("s_memrealtime s[88:89]"); e("s_waitcnt lgkmcnt(0)"); e("s_sub_u32 s88, s88, s100")
            e(f"s_cmp_lt_u32 s88, 4500"); e("s_cbranch_scc1 Lsp0")
            e("buffer_load_dword v1, v2, s[92:95], 0 offen sc0 sc1")
            e("s_waitcnt vmcnt(0)")
            e("v_readfirstlane_b32 s96, v1"); e("s_nop 3"); e("s_not_b32 s100, s96")
        if opts.get("enc"):
            e("s_waitcnt vmcnt(0)"); e("s_memrealtime s[80:81]"); e("s_waitcnt lgkmcnt(0)")
            a, b = {1: (100, 76), 2: (76, 78), 3: (78, 80), 4: (100, 80)}[opts["enc"]]
            e(f"s_sub_u32 s82, s{b}, s{a}")
            e(f"s_mul_i32 s82, s82, {opts.get('mul', 4)}")
            e("s_lshr_b32 s83, s2, 4"); e(f"s_lshr_b32 s83, {opts.get('encs', 0xffff)}, s83"); e("s_bitcmp1_b32 s83, 0")
            e("s_cselect_b32 s82, s82, 0")
            e(f"s_add_u32 s82, s82, {opts['spin']}")
        lab("Lspin")
        e("s_memrealtime s[88:89]")
        e("s_waitcnt lgkmcnt(0)")
        e("s_sub_u32 s88, s88, s100")
        e("s_cmp_lt_u32 s88, s82" if opts.get("enc") else f"s_cmp_lt_u32 s88, {opts['spin']}")
        e("s_cbranch_scc1 Lspin")
    if LIGHT:
        e("s_waitcnt vmcnt(0)")
        e("s_memrealtime s[88:89]")
        e("s_mov_b32 s92, s90"); e("s_mov_b32 s93, s91"); e("s_mov_b32 s94, 0x100000"); e("s_mov_b32 s95, 0x20000")
        e(f"s_lshl_b32 s96, s2, 2"); e(f"s_add_u32 s96, s96, s{sW}"); e("s_lshl_b32 s96, s96, 3")
        e("s_waitcnt lgkmcnt(0)")
        e("v_mov_b32 v0, s100"); e("v_mov_b32 v1, s88"); e("v_mov_b32 v2, 0")
        e("s_mov_b64 exec, 1")
        e("buffer_store_dwordx2 v[0:1], v2, s[92:95], s96 offen")
    if opts["stamp"]:
        e("s_waitcnt vmcnt(0)")
        stamp(0)
        e(f"s_memrealtime s[{sST+12}:{sST+13}]")
        e(f"s_mov_b32 s{sST+10}, s100")
        e("s_getreg_b32 s98, hwreg(HW_REG_HW_ID)")
        stamp_store(True)
    lab("Lend")
    e("s_endpgm")

    lab("Lcold")
    lab("Lrestart")
    e("s_waitcnt vmcnt(0) lgkmcnt(0)")
    e("s_barrier")
    e(f"s_mov_b64 s[{sJ+4}:{sJ+5}], s[{sJ}:{sJ+1}]")
    e(f"s_mov_b64 s[{sJ+6}:{sJ+7}], s[{sJ+2}:{sJ+3}]")
    e(f"s_mov_b64 s[{sD0n}:{sD1n}], s[{sD0}:{sD1}]")
    e(f"s_mov_b32 s{sNRn}, s{sOut+2}")
    e(f"s_mov_b32 s{sLastn}, s{sLast}")
    e(f"s_mov_b32 s{sSafe}, 1")
    e(f"s_mov_b32 s{sFirst}, 1")
    decode()
    emit(next_loads(1)[0] + next_loads(1)[1])
    e("s_branch Lstart")
    for T in order:
        safe_loop(T)
    for tag, buf in STUBS:
        lab(f"Lrare_{tag}")
        e(f"s_call_b64 s[{sRet}:{sRet+1}], Lresc_{buf}")
        e(f"s_branch Lback_{tag}")
    for b in range(2):
        lab(f"Lresc_{b}")
        e("s_nop 15")
        for t in range(TM):
            s, s2 = sreg(b, t), sreg(b ^ 1, t)
            dl, al = vX, (vX + 8 + t if t < 4 else vX + 2)
            e(f"v_max3_f32 v{dl}, v{s}, v{s+1}, v{s+2}")
            e(f"v_max3_f32 v{dl}, v{dl}, v{s+3}, v{s+4}")
            e(f"v_max3_f32 v{dl}, v{dl}, v{s+5}, v{s+6}")
            if RS:
                e(f"v_max_f32 v{dl}, v{dl}, v{s+7}")
                e(f"v_add_f32 v{dl}, s{sThr}, v{dl}")
                e(f"v_max_f32 v{dl}, 0, v{dl}")
            else:
                e(f"v_max3_f32 v{dl}, v{dl}, v{s+7}, 0")
            emit(xlane("v_max_f32", [dl], vX + 1))
            e(f"v_sub_f32 v{al}, 0, v{dl}")
            e(f"v_exp_f32 v{al}, v{al}")
            for i in range(8):
                e(f"v_sub_f32 v{s+i}, v{s+i}, v{dl}")
                e(f"v_sub_f32 v{s2+i}, v{s2+i}, v{dl}")
            for i in range(4):
                e(f"v_sub_f32 v{vNM+4*t+i}, v{vNM+4*t+i}, v{dl}")
            if not RS:
                e(f"v_mul_f32 v{vL+t}, v{vL+t}, v{al}")
            if RS and t == 4:
                for i in range(4): e(f"v_mul_f32 v{vL4+i}, v{vL4+i}, v{al}")
            if RS and t < 4:
                for i in range(4):
                    e(f"v_accvgpr_read_b32 v{vX+1}, a{aL+4*t+i}")
                    e(f"v_mul_f32 v{vX+1}, v{vX+1}, v{al}")
                    e(f"v_accvgpr_write_b32 a{aL+4*t+i}, v{vX+1}")
        emit(SM(TM, b, False).rest())
        if b == 0: e("s_branch LrescO")
    lab("LrescO")
    for t in range(TM):
        for i in range(0, 32, 4):
            al = vX + 8 + t if t < 4 else vX + 2
            for k in range(4): e(f"v_accvgpr_read_b32 v{vX+4+k}, a{aO+32*t+i+k}")
            for k in range(4): e(f"v_mul_f32 v{vX+4+k}, v{vX+4+k}, v{al}")
            for k in range(4): e(f"v_accvgpr_write_b32 a{aO+32*t+i+k}, v{vX+4+k}")
    e("s_nop 1")
    e(f"s_setpc_b64 s[{sRet}:{sRet+1}]")

    e(".p2align 5")
    L.append(".type Ltab,@object")
    lab("Ltab")
    for ent in TAB:
        e(".long " + ", ".join(str(x) for x in ent))
    L.append('.section .rodata,"a"')
    L.append(".p2align 6")
    L.append(f".amdhsa_kernel {NAME}_kernel")
    L.append("  .amdhsa_next_free_vgpr 512")
    L.append("  .amdhsa_next_free_sgpr 102")
    L.append("  .amdhsa_accum_offset 256")
    L.append("  .amdhsa_group_segment_fixed_size 0")
    L.append("  .amdhsa_kernarg_size 56")
    L.append("  .amdhsa_user_sgpr_count 2")
    L.append("  .amdhsa_user_sgpr_kernarg_segment_ptr 1")
    L.append("  .amdhsa_system_sgpr_workgroup_id_x 1")
    L.append(".end_amdhsa_kernel")

gen()
open(sys.argv[1], "w").write("\n".join(L) + "\n")
```

```python
import sys, struct, math, os
sys.path.insert(0, os.path.dirname(os.path.abspath(__file__)))
from sched import Op, schedule

NAME = "standalone__varlen_attn_packed__ragged"
CU = [0, 534, 1426, 1714, 2675, 3469, 4036, 4628, 4845]
ROWB = 4096
TILEB = 32 * ROWB
QS = 65536
QW = 20480
OS = QS + 4 * QW
LDSZ = 163840
TM = 5

opts = dict(stamp=0, st="sc0+sc1", ld="", ldq="nt", al=3, e64=0, rs=1, epi=0, late=1, plan="b", rev=0, lc=4, pf=2, lazy=0)
for a in sys.argv[2:]:
    k, v = a.split("=")
    opts[k] = int(v) if v.lstrip("-").isdigit() else v
LD = (" " + opts["ld"].replace("+", " ")) if opts["ld"] else ""
LDQ = (" " + opts["ldq"].replace("+", " ")) if opts.get("ldq", opts["ld"]) and "ldq" in opts else ("" if "ldq" in opts else LD)
ST = (" " + opts["st"].replace("+", " ")) if opts["st"] else ""
DG = str(opts.get("diag", ""))

def f32bits(x):
    return struct.unpack("<I", struct.pack("<f", x))[0]

vQ = 0
vS = 64
vP = 144
vNM = 184
vKa = 204
vVa = 208
vDK = 216
vDV = 218
vQd = 220
vE = 224
vT = 228
vL = 233
vU = 238
vQa = 239
vOw = 240
vOr = 241
vG4 = 242
vU2 = 243
vX = 244
aO = 0
aKf = 160
aVf = 192
aQ = 224
aL = 240
vOne = 228
vL4 = 232
vAc = vX + 1
vFr = 236
vFl = 237
vM01, vM23 = 238, 243
vSeq = 238
vSr = 243
BIAS = 20.0
RS = opts['rs']
NRS = opts.get('nrs', 3)
NOCHK = [False]
NRS5 = opts.get('nrs5', 3)

sQ, sK, sV, sOut = 12, 16, 20, 24
sJ = 28
sD0, sD1 = 36, 37
sL, sN, sOff, sWB, sCnt, sLast, sThr, sC, sNeg, sW = 38, 39, 40, 41, 42, 43, 44, 45, 46, 47
sRet, sPC = 48, 52
sTn = 50
sRem, sQoffn, sOoff, sBig = 54, 55, 56, 57
sD0n, sD1n, sNRn, sLastn = 28, 29, 30, 31
sT0 = 61
sOffK = 63
sQW = 3
sFirst = 64
sSafe = 65
sLim = 66
sQc = 8
sM = 68
sST = 76

L = []
def e(s): L.append("    " + s)
def lab(s): L.append(s + ":")
def vr(b, n): return f"v[{b}:{b+n-1}]"
def ar(b, n): return f"a[{b}:{b+n-1}]"
def emit(lines):
    for x in lines:
        if x.endswith(":"): L.append(x)
        else: e(x)
LIGHT = opts["stamp"] == 3
if LIGHT: opts["stamp"] = 0
def estamp(idx):
    if opts["stamp"] and opts.get("pst") == 2:
        e(f"s_memtime s[{sST+2*idx}:{sST+1+2*idx}]")
def pstamp(idx):
    if opts["stamp"] and opts.get("pst") == 1:
        e(f"s_memtime s[{sST+2*idx}:{sST+1+2*idx}]")
        e("s_waitcnt lgkmcnt(0)")
def stamp(idx):
    if opts.get("pst") and 1 <= idx <= 4: return
    if opts["stamp"]:
        e(f"s_memtime s[{sST+2*idx}:{sST+1+2*idx}]")

SEQ = []
for si in range(8):
    ln = CU[si + 1] - CU[si]
    SEQ.append((CU[si], ln, (ln + 63) // 64, (ln + 31) // 32))

PLANS = {
    "c": [[(31, 4)]] * 4 + [[(25, 5)]] * 2 + [[(25, 3), (7, 4)], [(18, 3), (17, 3)], [(18, 3), (17, 3)], [(18, 3), (17, 3)],
          [(28, 3), (9, 3)], [(28, 3), (9, 2)]] + [[(19, 5)]] * 2 + [[(28, 4)]] * 2,
    "b": [[(31, 4)]] * 4 + [[(25, 5)]] * 2 + [[(25, 3), (7, 4)], [(18, 3), (17, 3)], [(18, 3), (17, 3)], [(18, 3), (17, 3)],
          [(19, 4), (9, 3)], [(28, 2), (19, 2)], [(19, 4), (9, 2)]] + [[(28, 4)]] * 3,
    "a": [[(31, 4)]] * 4 + [[(25, 5)]] * 2 + [[(17, 4), (18, 2)], [(19, 5), (7, 2)], [(25, 3), (9, 3)], [(28, 2), (18, 2)],
          [(17, 5), (9, 2)], [(18, 5), (7, 2)]] + [[(28, 4)]] * 3 + [[(19, 5)]],
}

def plan_head():
    n2s = {SEQ[i][3]: i for i in range(8)}
    nxt = {i: 0 for i in range(8)}
    spec = PLANS[opts["plan"]]
    res = [[None] * len(s) for s in spec]
    for want in (2, 3, 4, 5):
        for i, s in enumerate(spec):
            for k, (n, t) in enumerate(s):
                if t == want:
                    si = n2s[n]
                    res[i][k] = (si, nxt[si], t); nxt[si] += 64 * t
    for i in range(8):
        assert nxt[i] == SEQ[i][2] * 64, (i, nxt[i])
    if opts["rev"]:
        res = [list(reversed(r)) for r in res]
    return res

def make_table():
    ph = plan_head()
    tab = []
    for wg in range(256):
        x, j = wg & 7, wg >> 3
        head = 2 * x + (j & 1)
        ent = []
        for (si, q0, t) in ph[j >> 1]:
            st, ln, nb, n = SEQ[si]
            d0 = st * ROWB + head * 256
            ent += [d0, (n - 2) | ((ln - 32 * (n - 1)) << 6) | (q0 << 12) | (t << 24) | (((opts["lazy"] >> (j >> 1)) & 1) << 28), d0 + (ln - 1) * ROWB + 256, d0 + (n - 1) * TILEB]
        assert len(ent) <= 8
        ent += [0] * (8 - len(ent))
        tab.append(ent)
    return tab

TAB = make_table()
PH = plan_head()
TS = sorted({t for jl in PH for _, _, t in jl}, reverse=True)
TAILS = {}
for jl in PH:
    for k, (si, q0, t) in enumerate(jl):
        TAILS.setdefault((t, (SEQ[si][3] - 1) % 4), set()).add(1 if k + 1 < len(jl) else 0)
PROD = {t for (t, p), v in TAILS.items() if v - {0}}
NWG = 256

MF = "v_mfma_f32_16x16x32_bf16"
def qreg(t, s):
    return vr(vQ + 16 * t + 4 * s, 4) if t < 4 else ar(aQ + 4 * s, 4)
def sreg(buf, t, a=0): return vS + 40 * buf + 8 * t + 4 * a
def preg(buf, t): return vP + 20 * buf + 4 * t

def qk1(buf, t, a, s, cinit, kf=None):
    d = sreg(buf, t, a)
    kf = aKf if kf is None else kf
    return f"{MF} {vr(d,4)}, {ar(kf+4*(a*4+s),4)}, {qreg(t,s)}, {vr(cinit if s == 0 else d,4)}"

def qk_mfmas(T, buf):
    return [qk1(buf, t, a, s, vNM + 4 * t) for a in range(2) for s in range(4) for t in range(T)]

ZERO = [False]
def pv1(buf, t, dt, vf):
    o = aO + 32 * t + 4 * dt
    return f"{MF} {ar(o,4)}, {ar(vf+4*dt,4)}, {vr(preg(buf,t),4)}, {'0' if ZERO[0] else ar(o,4)}"

def rs1(buf, t):
    l = ar(aL + 4 * t, 4) if t < 4 else vr(vL4, 4)
    return f"{MF} {l}, {vr(vOne,4)}, {vr(preg(buf,t),4)}, {'0' if ZERO[0] else l}"

def pv_mfmas(T, buf, vf=aVf):
    return [pv1(buf, t, dt, vf) for dt in range(8) for t in range(T)] + ([rs1(buf, t) for t in range(min(T, NRS))] if RS else [])

def zero_mfmas(T):
    return [f"v_mfma_f32_32x32x16_bf16 {ar(aO+16*i,16)}, {vr(vP+28,4)}, {vr(vP+28,4)}, 0" for i in range(2 * T)]

def k_reads(slot, kf=None):
    kf = aKf if kf is None else kf
    return [f"ds_read_b128 {ar(kf+4*(a*4+s),4)}, v{vKa+s} offset:{slot*16384+a*8192}" for a in range(2) for s in range(4)]

def v_reads(slot, vf=aVf):
    return [f"ds_read_b64_tr_b16 {ar(vf+4*dt+2*a,2)}, v{vVa+dt} offset:{slot*16384+a*8192}" for dt in range(8) for a in range(2)]

def m0set(off):
    return f"s_add_u32 m0, s{sWB}, {off}" if off else f"s_mov_b32 m0, s{sWB}"
def ldv(j, so):
    return f"buffer_load_dwordx4 v{vDV+j}, s[{sV}:{sV+3}], s{so} offen" + (f" offset:{j*1024}" if j else "") + f"{LD} lds"
def ldk(j, so):
    return f"buffer_load_dwordx4 v{vDK+j}, s[{sK}:{sK+3}], s{so} offen offset:{2048+j*1024}{LD} lds"

def dma(slot):
    return [m0set(slot * 16384),
            f"s_add_u32 s{sOff}, s{sOff}, {TILEB}",
            f"s_add_u32 s{sOffK}, s{sOffK}, {TILEB}",
            ldv(0, sOff), ldv(1, sOff), ldk(0, sOffK), ldk(1, sOffK)]

CHK = f"v_cmp_ne_u32 vcc, 0, v{vX}" if RS else f"v_cmp_lt_f32 vcc, s{sThr}, v{vX}"
ERING = [vE, vE + 2, vX + 4, vX + 6]
def softmax_ops(T, buf, full=True, R=4, t0=0):
    exps, sims = [], []
    done_after = []
    n = 4 * T
    for k in range(n):
        t, kk = divmod(k, 4)
        t = T - 1 - t + t0
        a = ERING[k % R]; b = a + 1
        need = done_after[k - R] if k >= R else 0
        exps += [(f"v_exp_f32 v{a}, v{sreg(buf,t)+2*kk}", need), (f"v_exp_f32 v{b}, v{sreg(buf,t)+2*kk+1}", need)]
        p = preg(buf, t) + kk
        u = (vP + 36 if T == 1 else vX + 3) if RS else (vU if k & 1 else vU2)
        ne = 2 * k + 2
        if RS:
            sims.append((f"v_perm_b32 v{p}, v{b}, v{a}, s{sN}" if opts.get("perm") else f"v_cvt_pk_bf16_f32 v{p}, v{a}, v{b}", ne))
            if t >= NRS:
                pt, lt = vL4 + 2 * (t - 3), vL4 + 2 * (t - 3) + 1
                if kk == 0:
                    if full: sims.append((f"v_add_f32 v{lt}, v{lt}, v{pt}", 0))
                    sims.append((f"v_add_f32 v{pt}, v{a}, v{b}", ne))
                else:
                    sims.append((f"v_add_f32 v{u}, v{a}, v{b}", ne))
            done_after.append(len(sims))
            if t >= NRS and kk: sims.append((f"v_add_f32 v{pt}, v{pt}, v{u}", ne))
            if full and (k & 1) and not NOCHK[0]:
                sims.append((f"v_or_b32 v{vAc}, v{p-1}, v{p}" if k == 1 else f"v_or3_b32 v{vAc}, v{vAc}, v{p-1}, v{p}", ne))
        elif kk == 0:
            if full: sims.append((f"v_add_f32 v{vL+t}, v{vL+t}, v{vT+t}", 0))
            sims += [(f"v_cvt_pk_bf16_f32 v{p}, v{a}, v{b}", ne), (f"v_add_f32 v{vT+t}, v{a}, v{b}", ne)]
            done_after.append(len(sims))
        else:
            sims += [(f"v_add_f32 v{u}, v{a}, v{b}", ne), (f"v_cvt_pk_bf16_f32 v{p}, v{a}, v{b}", ne)]
            done_after.append(len(sims))
            sims.append((f"v_add_f32 v{vT+t}, v{vT+t}, v{u}", ne))
    if full and RS and NOCHK[0]:
        pass
    elif full and RS:
        sims += [(f"v_and_b32 v{vX}, 0x40004000, v{vAc}", 2 * n), (CHK, 2 * n)]
    elif full:
        m = [vT + t for t in range(T)]
        cur = m.pop(0)
        while m:
            if len(m) >= 2:
                sims.append((f"v_max3_f32 v{vX}, v{cur}, v{m[0]}, v{m[1]}", 2 * n)); m = m[2:]
            else:
                sims.append((f"v_max_f32 v{vX}, v{cur}, v{m[0]}", 2 * n)); m = []
            cur = vX
        sims.append((f"v_cmp_lt_f32 vcc, s{sThr}, v{cur}", 2 * n))
    return exps, sims

class SM:
    def __init__(s, T, buf, full=True, t0=0, R=4):
        s.ex, s.si = softmax_ops(T, buf, full, R, t0)
        s.i = s.j = 0
        s.last_exp = False
    def left(s): return 8 * (len(s.ex) - s.i) + 4 * (len(s.si) - s.j)
    def can_exp(s): return s.i < len(s.ex) and s.ex[s.i][1] <= s.j
    def can_sim(s):
        if s.j >= len(s.si): return False
        need = s.si[s.j][1]
        return need < s.i or (need == s.i and not s.last_exp)
    def exp(s): s.i += 1; s.last_exp = True; return s.ex[s.i - 1][0]
    def sim(s): s.j += 1; s.last_exp = False; return s.si[s.j - 1][0]
    def other(s): s.last_exp = False
    def any(s):
        if s.can_sim() and (s.si[s.j][1] <= s.i - 2 or not s.can_exp()): return s.sim()
        if s.can_exp(): return s.exp()
        if s.can_sim(): return s.sim()
        s.last_exp = False
        return "s_nop 0"
    def take(s, n): return [s.any() for _ in range(n) if s.left()]
    def rest(s):
        r = []
        while s.left(): r.append(s.any())
        return r

def is_mem(x): return x.startswith("ds_") or x.startswith("buffer_")

def pack(mf, fixed, sm=None, novalu=(), keep=0, cap=8):
    n = len(mf)
    def fcost(l):
        c = 0; ns = 0; nm = 0
        for x in l:
            if x.endswith(":"): continue
            if is_mem(x): c += 8 if nm else 4; nm += 1
            elif x.startswith("s_"): c += 4 if (ns or nm) else 0; ns += 1
            else: c += 4
        return c
    fc = [fcost(fixed.get(g, [])) for g in range(n)]
    out = []
    for g in range(n):
        out.append(mf[g])
        out += fixed.get(g, [])
        if sm is None: continue
        sm.other()
        if g in novalu: continue
        rem = [k for k in range(g, n) if k not in novalu]
        last = g == rem[-1]
        used = fc[g]
        while sm.left() > keep:
            later = sum(max(0, cap - fc[k]) for k in rem[1:])
            over = sm.left() - keep - later
            room = cap - used
            if room <= 0:
                if not last and over * 1.0 < 4 * 1.0 + 0 : break
                if not last and (used - cap + 4) * len(rem) > over + (used - cap) + 2 * len(rem): break
            nexp = len(sm.ex) - sm.i
            full_later = sum(1 for k in rem[1:] if cap - fc[k] >= 8)
            if room >= 8 and sm.can_exp() and (not sm.can_sim() or nexp > full_later * opts.get("eb", 70) // 100 or sm.si[sm.j][1] > sm.i - 4):
                out.append(sm.exp()); used += 8
            elif sm.can_sim():
                out.append(sm.sim()); used += 4
            elif sm.can_exp() and (room >= 8 or last or nexp + opts.get("slk", 1) > full_later or over > 0):
                out.append(sm.exp()); used += 8
            else:
                if last: out.append(sm.any()); used += 4
                else: break
    return out

STUBS = []
SPINS = []
def check_rare(buf, tag):
    e(f"s_cbranch_vccnz Lrare_{tag}")
    lab(f"Lback_{tag}")
    STUBS.append((tag, buf))

def spread(items, gaps):
    d = {}
    gaps = list(gaps)
    for i, x in enumerate(items):
        d.setdefault(gaps[i * len(gaps) // len(items)], []).append(x)
    return d

def merge(*ds):
    r = {}
    for d in ds:
        for k, v in d.items():
            r.setdefault(k, []).extend(v)
    return r

def interleave(a, b):
    out = []
    if not a: return list(b)
    j = 0
    for i, x in enumerate(a):
        out.append(x)
        nj = (i + 1) * len(b) // len(a)
        out += b[j:nj]; j = nj
    return out

CNT = f"s_sub_u32 s{sCnt}, s{sCnt}, 1"

def place(items, gaps):
    groups = []
    cur = []
    for x in items:
        cur.append(x)
        if is_mem(x): groups.append(cur); cur = []
    if cur: groups.append(cur)
    gaps = list(gaps)
    d = {}
    for i, gr in enumerate(groups):
        d.setdefault(gaps[i * len(gaps) // len(groups)], []).extend(gr)
    return d

def qgroup(g, dyn=True):
    r = [f"s_add_u32 m0, s{sQW}, {g*4096}" if g else f"s_mov_b32 m0, s{sQW}",
         f"s_add_u32 s{sT0}, s{sQoffn}, {g*16*ROWB}"]
    if g >= 2 and dyn:
        r += [f"s_cmp_gt_u32 s{sTn}, {g}", f"s_cselect_b32 s{sT0}, s{sT0}, s{sBig}"]
    r += [f"buffer_load_dwordx4 v{vQd+i}, s[{sQ}:{sQ+3}], s{sT0} offen offset:{i*1024}{LDQ} lds" for i in range(4)]
    return r

def step(T, t, prod=False, fast=False):
    p = t % 4
    b = t % 2
    h = 8 * T
    ZERO[0] = prod
    mf = qk_mfmas(T, b ^ 1) + pv_mfmas(T, b ^ 1)
    ZERO[0] = False
    kr = k_reads((t + 2) % 4)
    d = dma((t + 1) % 4)
    NOCHK[0] = bool(fast)
    sm = SM(T, b)
    NOCHK[0] = False
    n = len(mf)
    vrd = v_reads((t + 1) % 4)
    vm = opts.get('vm', 8)
    end = [CNT] if (prod or fast) else [CNT, "s_cselect_b64 vcc, -1, vcc"]
    bw = f"s_waitcnt vmcnt({vm}) lgkmcnt(0)"
    tight = T >= opts.get("tt", 3)
    SPIN = None
    if fast and T >= opts.get("sb", 9):
        ve, gx, gr, gy = {5: (24, 29, 44, 50), 4: (20, 25, 37, 43), 3: (16, 20, 26, 31)}[T]
        gr += opts.get("sbo", 0); gy += opts.get("sbo", 0)
        SPIN = f"{T}_{p}{'z' if prod else ''}"
        kd = [kr[0], kr[1], d[3], kr[2], kr[3], kr[4], d[4], kr[5], kr[6], kr[7], d[5]]
        fixed = merge(place(vrd, range(0, ve)),
                      {gx - 3: [d[0], f"v_add_u32 v{vSeq}, 1, v{vSeq}"], gx - 2: [d[1]], gx - 1: [d[2]],
                       gx: [bw, f"ds_write_b32 v{vOr}, v{vSeq}"], gr: [f"ds_read_b32 v{vFl}, v{vSr}"],
                       gy - 1: ["s_waitcnt lgkmcnt(0)", f"v_cmp_lt_u32 vcc, v{vFl}, v{vSeq}"],
                       gy: [f"s_cbranch_vccnz Lsp{SPIN}", f"Lspb{SPIN}:"]},
                      place(kd, range(gy + 1, n - 6)),
                      {n - 4: [end[0], d[6]], n - 2: ["s_waitcnt lgkmcnt(0)"]})
        nov = (gx, gy, n - 1)
        SPINS.append(SPIN)
    elif tight:
        kd = [kr[0], kr[1], d[3], kr[2], kr[3], d[4], kr[4], kr[5], kr[6], d[5], kr[7]]
        fixed = merge(place(vrd, range(0, h - 6)),
                      {h - 5: [d[0]], h - 4: [d[1]], h - 3: [d[2]], h - 2: [bw], h - 1: ["s_barrier"]},
                      place(kd, range(h, n - 7)),
                      {n - 5: [d[6]], n - 4: [end[0]], n - 3: ["s_waitcnt lgkmcnt(0)"], n - 2: end[1:]})
        nov = (h - 1, n - 1) if fast else (h - 1, n - 2, n - 1)
    elif T >= 3:
        kd = [kr[0], kr[1], d[3], kr[2], kr[3], d[4], kr[4], kr[5], d[5], kr[6], kr[7], d[6]]
        fixed = merge(place(vrd, range(0, h - 5)),
                      {h - 1: [bw, "s_barrier"]},
                      {h - 4: [d[0]], h - 3: [d[1]], h - 2: [d[2]]},
                      place(kd, range(h, n - 3)),
                      {n - 2: [end[0]], n - 1: end[1:]})
        nov = (h - 1, n - 1)
    else:
        kd = [kr[0], kr[1], d[3], kr[2], kr[3], kr[4], d[4], kr[5], kr[6], kr[7], d[5]]
        fixed = merge(place(vrd, range(0, 12)),
                      {h - 1: [bw, "s_barrier"]},
                      {h - 4: [d[0]], h - 3: [d[1]], h - 2: [d[2]]},
                      place(kd, range(h, n - 5)),
                      {n - 2: [end[0], d[6]], n - 1: end[1:]})
        nov = (h - 1, n - 1)
    if prod or not tight: e("s_waitcnt lgkmcnt(0)")
    body = pack(mf, fixed, sm, nov)
    if DG and not prod:
        body = [x for x in body if not (("d" in DG and x.startswith("buffer_load")) or ("b" in DG and x.startswith("s_barrier"))
                or ("l" in DG and x.startswith("ds_read")) or ("w" in DG and x.startswith("s_waitcnt"))
                or ("v" in DG and x.startswith(("v_exp", "v_cvt", "v_or"))))]
    if opts["e64"]:
        body = [x.replace("v_exp_f32 ", "v_exp_f32_e64 ").replace("v_add_f32 ", "v_add_f32_e64 ").replace("v_max_f32 ", "v_max_f32_e64 ") for x in body]
    emit(body)
    assert sm.left() == 0
    if fast:
        if not prod and TAILS.get((T, (p + 1) % 4)): e(f"s_cbranch_scc1 Lxt{T}_{p}")
    elif prod:
        check_rare(b, f"t{T}p{p}")
    else:
        e(f"s_cbranch_vccnz Lx{T}_{p}")
        lab(f"Lxb{T}_{p}")

def exit_stub(T, p):
    lab(f"Lx{T}_{p}")
    e(CHK)
    check_rare(p % 2, f"x{T}_{p}")
    if TAILS.get((T, (p + 1) % 4)):
        e(f"s_cbranch_scc1 Lxt{T}_{p}")
    e(f"s_branch Lxb{T}_{p}")

def tails(T, p):
    np_ = (p + 1) % 4
    nx = sorted(TAILS.get((T, np_), ()))
    if not nx: return
    lab(f"Lxt{T}_{p}")
    for tn in nx[1:]:
        e(f"s_cmp_lg_u32 s{sD1n}, 0")
        e(f"s_cbranch_scc1 Ltail{T}_{np_}_{tn}")
    for tn in nx:
        tail(T, np_, tn)

def safe_loop(T):
    lab(f"Lsafe{T}")
    step(T, 1, True)
    lab(f"Lsloop{T}")
    for t in (2, 3, 4, 5):
        step(T, t)
    e(f"s_branch Lsloop{T}")
    for p in range(4):
        exit_stub(T, p)

def ktile(u):
    return [m0set(u * 16384), f"s_add_u32 s{sT0}, s{sD0}, {(u-1)*TILEB}", ldk(0, sT0), ldk(1, sT0)]
def vtile(u):
    so = sLast if u == 0 else sD0
    return [m0set(((u + 2) % 4) * 16384), "s_nop 0", ldv(0, so), ldv(1, so)]
def next_k0():
    return [m0set(0), f"s_add_u32 s{sK+2}, s{sNRn}, 4096", ldk(0, sLastn), ldk(1, sLastn)]
def next_k1():
    return [m0set(16384), "s_nop 0", ldk(0, sD0n), ldk(1, sD0n)]

def tail(T, p, tn):
    b = p % 2
    lab(f"Ltail{T}_{p}_{tn}")
    if opts.get("enc"): e("s_memrealtime s[78:79]")
    stamp(3)
    if opts["stamp"]: e("s_waitcnt lgkmcnt(0)")
    vrd = v_reads((p + 1) % 4)
    vrd2 = v_reads((p + 2) % 4, aKf)
    sm = SM(T, b)
    mf = pv_mfmas(T, b ^ 1)
    o = min(T, NRS) if RS else 0
    if RS: mf = mf[-o:] + mf[:-o]
    rsm, mf = mf[:o], mf[o:]
    emit(interleave(rsm, vrd[:o]) + vrd[o:])
    m = []
    for t in range(T):
        x = vX + 8 + t if t < 4 else vX + 2
        if t >= NRS: e(f"v_add_f32 v{x}, v{vL4+2*(t-3)}, v{vL4+2*(t-3)+1}")
        elif t < 4: e(f"v_accvgpr_read_b32 v{x}, a{aL+4*t}")
        m.append(x if (t < 4 or t >= NRS) else vL4)
    cur = m.pop(0)
    while m:
        if len(m) >= 2:
            e(f"v_max3_f32 v{vFl}, v{cur}, v{m[0]}, v{m[1]}"); m = m[2:]
        else:
            e(f"v_max_f32 v{vFl}, v{cur}, v{m[0]}"); m = []
        cur = vFl
    e(f"v_cmp_le_f32 vcc, s{sLim}, v{vFl}")
    emit(sm.take(2))
    e("s_cmp_lg_u64 vcc, 0")
    e(f"s_cselect_b32 s{sT0}, 1, 0")
    e(f"s_andn2_b32 s{sT0}, s{sT0}, s{sSafe}")
    e(f"v_mov_b32 v{vFl}, s{sT0}")
    e(f"ds_write_b32 v{vQa}, v{vFl} offset:16384")
    emit(sm.take(opts.get("tk", 16)))
    e("s_waitcnt vmcnt(8) lgkmcnt(0)")
    e("s_barrier")
    fixed = place([f"ds_read_b32 v{vFl}, v{vFr}"] + vrd2, range(len(mf) - 2))
    if tn:
        fixed = merge(fixed, place(sum(next_loads(tn), []) if WARM else next_loads(tn)[0], range(len(mf))))
    emit(pack(mf, fixed, sm))
    assert sm.left() == 0
    check_rare(b, f"t{T}t{p}_{tn}")
    e("s_waitcnt lgkmcnt(8)")
    e(f"v_cmp_ne_u32 vcc, 0, v{vFl}")
    e("s_cbranch_vccnz Lrestart")
    fin(T, b, tn)

WARM = opts.get("warm", 0)
def warm_loads():
    r = [m0set(2 * 16384), f"s_add_u32 s{sT0}, s{sD0n}, {TILEB}", ldk(0, sT0), ldk(1, sT0),
         f"s_add_u32 m0, s{sQW}, {3*4096}", f"s_mov_b32 s{sV+2}, s{sNRn}", ldv(0, sLastn), ldv(1, sLastn)]
    if WARM >= 2: r += [x.replace(LDQ + " lds", " lds") for x in qgroup(2)]
    return r

def next_loads(tn):
    return next_k0() + qgroup(0, False), qgroup(1, False) + next_k1()

def xlane(op, regs, tmp):
    r = []
    for sw in ("v_permlane32_swap_b32", "v_permlane16_swap_b32"):
        r += [f"v_mov_b32 v{tmp+i}, v{x}" for i, x in enumerate(regs)]
        r += ["s_nop 1"]
        r += [f"{sw} v{x}, v{tmp+i}" for i, x in enumerate(regs)]
        r += ["s_nop 1"]
        r += [f"{op} v{x}, v{x}, v{tmp+i}" for i, x in enumerate(regs)]
    return r

vOA = vNM
vLI = vNM + 8
def epi_acc(t):
    return [f"v_accvgpr_read_b32 v{vQ+i}, a{aO+32*t+i}" for i in range(32)]
def epi_cvt(t):
    r = [f"v_pk_mul_f32 {vr(vQ+2*i,2)}, {vr(vQ+2*i,2)}, {vr(vLI+2*(t//2),2)} " +
         ("op_sel:[0,1] op_sel_hi:[1,1]" if t & 1 else "op_sel_hi:[1,0]") for i in range(16)]
    r += [f"v_cvt_pk_bf16_f32 v{vQ+32+16*(t&1)+i}, v{vQ+2*i}, v{vQ+2*i+1}" for i in range(16)]
    return r
def epi_writes(t):
    return [f"ds_write_b64 v{vOA+dt}, {vr(vQ+32+16*(t&1)+2*dt,2)}" for dt in range(8)]
def epi_reads(t):
    return [f"ds_read_b128 {vr(vS+16*t+4*i,4)}, v{vOr} offset:{i*1024}" for i in range(4)]
def epi_stores(t):
    return [f"s_add_u32 s{sT0}, s{sOoff}, {t*16*ROWB}"] + \
           [f"buffer_store_dwordx4 {vr(vS+16*t+4*i,4)}, v{vQd+i}, s[{sOut}:{sOut+3}], s{sT0} offen offset:{i*1024}{ST}" for i in range(4)]

def fin(T, b, tn):
    if not RS: e("s_waitcnt lgkmcnt(0)")
    mf = [pv1(b, t, dt, aKf) for t in range(T) for dt in range(8)]
    regs = [vL + t for t in range(T)]
    xo = [f"v_xor_b32 v{vOA+dt}, {dt*32}, v{vOw}" for dt in range(8)] if not opts["epi"] else ["s_nop 0"]
    if RS:
        nr = min(T, NRS)
        mf = [rs1(b, t) for t in range(nr)] + mf
        src = lambda t: (vX + t if t < NRS else vL4 + 2 * (t - 3) + 1)
        ad = [src(t) for t in range(nr, T)]
        if ad: xo = [f"v_add_f32 v{x}, v{x}, v{x-1}" for x in ad] + xlane("v_add_f32", ad, vX + 6) + xo
        ls = [f"v_accvgpr_read_b32 v{vX+t}, a{aL+4*t}" if t < 4 else f"v_mov_b32 v{vX+t}, v{vL4}" for t in range(nr)] + \
             [f"v_rcp_f32 v{vLI+t}, v{src(t)}" for t in range(T)] + epi_acc(0)
        fixed = merge({nr - 1: ["s_waitcnt lgkmcnt(6)"], nr + 4: ["s_waitcnt lgkmcnt(0)"]},
                      spread(xo, range(nr + 8)), spread(ls, range(nr + 8, len(mf))))
    else:
        ls = [f"v_add_f32 v{vL+t}, v{vL+t}, v{vT+t}" for t in range(T)] + xlane("v_add_f32", regs, vX) + \
             [f"v_rcp_f32 v{vLI+t}, v{vL+t}" for t in range(T)] + xo + epi_acc(0)
        fixed = spread(ls, range(len(mf)))
    if tn: fixed = merge(place(warm_loads() if WARM else next_loads(tn)[1], range(len(mf))), fixed)
    emit(pack(mf, fixed))
    e(f"s_branch Lepi{T}")

def first_max(t):
    s0 = sreg(0, t)
    m = vX + 2
    r = [f"v_max3_f32 v{m}, v{s0}, v{s0+1}, v{s0+2}", f"v_max3_f32 v{m}, v{m}, v{s0+3}, v{s0+4}",
         f"v_max3_f32 v{m}, v{m}, v{s0+5}, v{s0+6}", f"v_max_f32 v{m}, v{m}, v{s0+7}"]
    r += xlane("v_max_f32", [m], vX + 3)
    if RS: r += [f"v_add_f32 v{m}, s{sThr}, v{m}"]
    r += [f"v_sub_f32 v{vNM+4*t+i}, 0, v{m}" for i in range(4)]
    r += [f"v_sub_f32 v{s0+i}, v{s0+i}, v{m}" for i in range(8)]
    return r

def qraw(t, k=0):
    return vQ + 16 * t + k if t < 4 else sreg(k // 8, 4) + k % 8
def prescale(t):
    r = []
    for k in range(0, 16, 2):
        q = qraw(t, k)
        for i in range(2):
            r += [f"v_lshlrev_b32 v{vX+2*i}, 16, v{q+i}", f"v_and_b32 v{vX+2*i+1}, 0xffff0000, v{q+i}"]
        for i in range(2):
            r += [f"v_pk_mul_f32 {vr(vX+2*i,2)}, {vr(vX+2*i,2)}, s[{sThr}:{sC}] op_sel:[0,1] op_sel_hi:[1,1]"]
        for i in range(2):
            r += [f"v_cvt_pk_bf16_f32 v{q+i}, v{vX+2*i}, v{vX+2*i+1}"]
        if t == 4: r += [f"v_accvgpr_write_b32 a{aQ+k+i}, v{q+i}" for i in range(2)]
    return r

def first_only(lines):
    i = len(L)
    e(f"s_cmp_eq_u32 s{sFirst}, 0")
    e(f"s_cbranch_scc1 Lw{i}")
    emit(lines)
    lab(f"Lw{i}")

def nvm(l): return sum(x.startswith("buffer") for x in l)

vMK = vP + 20
def weave(mfs, valu, mem):
    d = place(mem, range(len(mfs))) if mem else {}
    out = []
    j = 0
    nops = [i for i, x in enumerate(valu) if x == "s_nop 1"]
    if nops and len(mfs) > len(nops):
        extra = len(mfs) - len(nops)
        free = [i for i in range(len(valu)) if i not in nops and i - 1 not in nops]
        head = [0, 2][:min(2, extra)]
        tailp = [i for i in free if i > nops[-1] + 1]
        more = [tailp[k * len(tailp) // (extra - len(head))] for k in range(extra - len(head))]
        cuts = sorted(set(nops + head + more))
        assert len(cuts) == len(mfs)
        k = 0
        for i, x in enumerate(valu):
            if i in cuts:
                out.append(mfs[k])
                m = d.get(k, []); k += 1
                if x == "s_nop 1":
                    out += m if m else ["s_nop 0"]
                    continue
                out += m
            out.append(x)
        return out
    for i, x in enumerate(mfs):
        out.append(x)
        out += d.get(i, [])
        nj = (i + 1) * len(valu) // len(mfs)
        out += valu[j:nj]; j = nj
    return out

def bf16bits(x):
    u = f32bits(x)
    return (u + 0x7FFF + ((u >> 16) & 1)) >> 16
CSC = 128 ** -0.5 * math.log2(math.e)
CHI = bf16bits(CSC)
CLO = bf16bits(CSC - struct.unpack("<f", struct.pack("<I", CHI << 16))[0])

def prologue2(T):
    lab(f"Lpro{T}")
    vCA = vP + 28
    adr = [vX + 8 + s for s in range(4)], [vP + 32 + s for s in range(4)]
    ops = []
    def add(l, **k):
        r = [Op(x, **k) for x in l if not x.startswith("s_nop")]
        ops.extend(r); return r
    def qcur(g):
        return [x.replace(f"s{sQoffn}", f"s{sOoff}").replace(f"s[{sQ}:{sQ+3}]", f"s[{sQc}:{sQc+3}]") for x in qgroup(g, False)]
    def vmw(tag, first, after, tmin):
        i = len(L) * 1000 + len(ops)
        lines = [f"s_cmp_eq_u32 s{sFirst}, 0", f"s_cbranch_scc1 Lw{i}", "@W", f"Lw{i}:"] if first else None
        o = Op("s_waitcnt vmcnt(0)", vmwait=tag, lines=lines, after=after, tmin=tmin); ops.append(o); return o
    t0, dt = opts.get("qt0", 100), opts.get("qdt", 300)
    add([f"v_xor_b32 v{adr[0][s]}, {s*64}, v{vQa}" for s in range(4)] + [f"v_add_u32 v{adr[1][s]}, 8, v{adr[0][s]}" for s in range(4)])
    add([f"v_mul_u32_u24 v{vCA}, {CHI}, v{vM01}", f"v_mul_u32_u24 v{vCA+1}, {CHI}, v{vM23}",
         f"v_mul_u32_u24 v{vCA+2}, {CLO}, v{vM01}", f"v_mul_u32_u24 v{vCA+3}, {CLO}, v{vM23}"])
    add([f"v_sub_u32 v{vX}, s{sRem}, v{vG4}", f"v_mov_b32 v{vX+1}, s{sNeg}"])
    for a in range(2):
        add([f"v_cmp_lt_i32 s[{sM+2*i}:{sM+2*i+1}], {16*a+i}, v{vX}" for i in range(4)])
        add([f"v_cndmask_b32 v{vMK+4*a+i}, v{vX+1}, 0, s[{sM+2*i}:{sM+2*i+1}]" for i in range(4)])
    add([f"v_mov_b32 v{vL4+2*(t-3)+1}, 0" for t in range(NRS, T)])
    qld = {}
    for g in range(2, T):
        qld[g] = add(qcur(g), tag=f"Q{g}", tmin=(g - 2) * 260)
    W = {0: vmw("Q0", True, qld.get(2, [])[-1:], t0)}
    W[1] = vmw("K1", True, [W[0]] + qld.get(3, [])[-1:], t0 + dt)
    B1 = add(["s_barrier"], after=[W[1]])[0]
    kr = add(k_reads(0) + k_reads(1, aVf), after=[B1])
    B2 = add(["s_barrier"], after=[B1], reads={("a", aKf + i) for i in range(64)})[0]
    e1, e2 = (2, 2) if T >= 4 else (1, min(T - 1, opts.get("b3", 1)))
    bulk = {e1: [("K2", ktile(2), B1), ("V0", vtile(0), B1)]}
    bulk.setdefault(e2, []).extend([("K3", ktile(3), B1), ("V1", vtile(1), B1), ("G", dma(0), B2), ("G", dma(1), B2)])
    lastA = None
    tile_all, tile_max = {}, {}
    for t in range(T):
        if t >= 2:
            aft = [W[t - 1], qld[T - 1][-1]]
            if opts.get("lag", 1): aft += tile_all[t - 2]
            if opts.get("lag", 1) and t == T - 1: aft += tile_max[t - 1] if opts.get("lag", 1) == 1 else tile_all[t - 1]
            W[t] = vmw(f"Q{t}", False, aft, t0 + t * dt)
        for tag, l, bar in bulk.get(t, []):
            r = add(l, tag=tag, after=[bar, W[t]])
            if tag == "V0": v0 = r[-1]
        raw = aO + 32 * t
        add([f"ds_read2st64_b64 {ar(raw+4*k,4)}, v{adr[k&1][k>>1]} offset0:{8*t} offset1:{8*t}" for k in range(8)], after=[W[t]])
        for k in range(8):
            d = sreg((k >> 1) & 1, t, k & 1)
            add([f"{MF} {vr(d,4)}, {vr(vCA,4)}, {ar(raw+4*k,4)}, 0"])
            for i in range(2):
                if t < 4:
                    add([f"v_cvt_pk_bf16_f32 v{vQ+16*t+2*k+i}, v{d+2*i}, v{d+2*i+1}"])
                else:
                    add([f"v_cvt_pk_bf16_f32 v{d+2*i}, v{d+2*i}, v{d+2*i+1}", f"v_accvgpr_write_b32 a{aQ+2*k+i}, v{d+2*i}"])
        lastA = add([qk1(0, t, a, s, vMK + 4 * a) for a in range(2) for s in range(4)])[-1]
        fm = first_max(t)
        if t & 1: fm = [x.replace(f"v{vX+2}", f"v{vX}").replace(f"v{vX+3}", f"v{vX+1}") for x in fm]
        tile_max[t] = add(fm)
        cc = add([qk1(1, t, a, s, vNM + 4 * t, aVf) for a in range(2) for s in range(4)])
        dd = SM(1, 0, False, t, 2).rest()
        if t & 1:
            for i in range(4): dd = [x.replace(f"v{vE+i}", f"v{vX+4+i}") for x in dd]
        tile_all[t] = tile_max[t] + cc + add(dd)
    W3 = vmw("V0", False, [v0, lastA, B2] + (tile_max[T - 1] if opts.get("w3", 1) else []), 0)
    B3 = add(["s_barrier"], after=[W3])[0]
    add(k_reads(2), after=[B3], bonus=150)
    q = ["K0"] * 2 + ["Q0"] * 4 + ["Q1"] * 4 + ["K1"] * 2
    out, est = schedule(ops, q, verbose=bool(opts.get("verb")))
    assert q[-8:] == ["G"] * 8
    emit(out)
    stamp(1)

def prologue(T):
    if opts.get("p2", 1): prologue2(T)
    else: prologue1(T)
    prologue_end(T)

def prologue1(T):
    lab(f"Lpro{T}")
    def qcur(g):
        return [x.replace(f"s{sQoffn}", f"s{sOoff}").replace(f"s[{sQ}:{sQ+3}]", f"s[{sQc}:{sQc+3}]") for x in qgroup(g, False)]
    q = ["K0"] * 2 + ["Q0"] * 4 + ["Q1"] * 4 + ["K1"] * 2
    def younger(tag): return len(q) - 1 - max(i for i, x in enumerate(q) if x == tag)
    for s in range(4):
        e(f"v_xor_b32 v{vX+8+s}, {s*64}, v{vQa}")
    pre = [f"v_sub_u32 v{vX}, s{sRem}, v{vG4}", f"v_mov_b32 v{vX+1}, s{sNeg}"]
    for a in range(2):
        pre += [f"v_cmp_lt_i32 s[{sM+2*i}:{sM+2*i+1}], {16*a+i}, v{vX}" for i in range(4)] + ["s_nop 0"]
        pre += [f"v_cndmask_b32 v{vMK+4*a+i}, v{vX+1}, 0, s[{sM+2*i}:{sM+2*i+1}]" for i in range(4)]
    if not RS: pre += [f"v_mov_b32 v{vL+t}, 0" for t in range(T)]
    else: pre += [f"v_mov_b32 v{vL4+2*(t-3)+1}, 0" for t in range(NRS, T)]
    def qreads(t):
        return [f"ds_read_b128 {vr(qraw(t,4*s),4)}, v{vX+8+s} offset:{t*4096}" for s in range(4)]
    A = lambda t: [qk1(0, t, a, s, vMK + 4 * a) for a in range(2) for s in range(4)]
    C = lambda t: [qk1(1, t, a, s, vNM + 4 * t, aVf) for a in range(2) for s in range(4)]
    def sparse(mem, valu):
        d = place(mem, range(max(1, nvm(mem))))
        out = []; j = 0
        for i in range(len(d)):
            out += d[i]
            nj = (i + 1) * len(valu) // len(d)
            out += valu[j:nj]; j = nj
        return out
    if T > 2:
        emit(sparse(qcur(2), pre)); q += ["Q2"] * 4
        pre = []
    first_only([f"s_waitcnt vmcnt({younger('Q0')})"])
    pstamp(1)
    emit(qreads(0))
    emit(pre)
    e("s_waitcnt lgkmcnt(0)")
    if T > 3:
        emit(sparse(qcur(3), prescale(0))); q += ["Q3"] * 4
    else:
        emit(prescale(0))
    first_only([f"s_waitcnt vmcnt({younger('K1')})"])
    pstamp(2)
    if opts.get("sb", 9) <= 5: e(f"ds_write_b32 v{vOr}, v{vSeq}")
    emit(qreads(1))
    e("s_barrier")
    emit(k_reads(0))
    e("s_waitcnt lgkmcnt(8)")
    ps = prescale(1)
    if T > 4:
        emit(sparse(qcur(4), ps[:32])); q += ["Q4"] * 4
    else:
        emit(ps[:32])
    emit(k_reads(1, aVf))
    e("s_waitcnt lgkmcnt(8)")
    bulk = [("K2", ktile(2)), ("V0", vtile(0)), ("K3", ktile(3)), ("V1", vtile(1)), ("G", dma(0)[:5]), ("G", dma(0)[5:]),
            ("H", dma(1)[:5]), ("H", dma(1)[5:])]
    def takeb(n):
        nonlocal bulk
        r = []
        for tag, l in bulk[:n]:
            r += l; q.extend([tag] * nvm(l))
        bulk = bulk[n:]
        return r
    emit(weave(A(0), [], takeb(1) if T == 2 else []))
    emit(sparse(takeb(1), ps[32:]) if T <= 3 else ps[32:])
    D = lambda t: SM(1, 0, False, t, 2).rest()
    def getq(k):
        e(f"s_waitcnt vmcnt({younger(f'Q{k}')})")
        if k <= 3: pstamp(k + 1)
        emit(qreads(k))
    def bar2():
        e("s_waitcnt lgkmcnt(0)")
        e("s_barrier")
    per = {2: [2, 2, 2], 3: [1, 1, 1, 2, 2], 4: [1, 1, 1, 1, 1, 1, 2], 5: [0, 1, 1, 1, 1, 1, 1, 1, 1]}[T]
    tk = lambda: takeb(per.pop(0))
    for k in range(2, T):
        emit(weave(A(k - 1), first_max(k - 2), tk()))
        if k == 2: bar2()
        if k < T - 1:
            getq(k)
            emit(weave(C(k - 2), D(k - 2), tk()))
        else:
            emit(weave(C(k - 2), first_max(k - 1), tk()))
            emit(D(k - 2))
            getq(k)
            emit(weave(C(k - 1), D(k - 1)[:8], tk()))
        e("s_waitcnt lgkmcnt(0)")
        emit(prescale(k))
    stamp(1)
    if opts["stamp"]: e("s_waitcnt lgkmcnt(0)")
    if T == 2:
        emit(weave(A(1), first_max(0), tk()))
        bar2()
        emit(weave(C(0), D(0), tk()))
    else:
        emit(weave(A(T - 1), D(T - 2)[8:], tk()))
    e(f"s_waitcnt vmcnt({younger('V0')})")
    e("s_barrier")
    emit(k_reads(2))
    emit(first_max(T - 1))
    emit(weave(C(T - 1), D(T - 1), tk()))
    assert not bulk and not per

def prologue_end(T):
    e(CNT)
    e(f"s_cmp_lg_u32 s{sSafe}, 0")
    e(f"s_cbranch_scc1 Lsafe{T}")
    if opts.get("enc"):
        i = len(L)
        e(f"s_cmp_eq_u32 s{sFirst}, 0"); e(f"s_cbranch_scc1 Le{i}"); e("s_memrealtime s[76:77]"); lab(f"Le{i}")
    step(T, 1, True, True)
    stamp(2)
    e(f".p2align {opts['al']}")
    lab(f"Lloop{T}")
    for t in (2, 3, 4, 5):
        step(T, t, False, True)
    e(f"s_branch Lloop{T}")
    for sp in SPINS:
        lab(f"Lsp{sp}")
        e(f"ds_read_b32 v{vFl}, v{vSr}")
        e("s_waitcnt lgkmcnt(0)")
        e(f"v_cmp_lt_u32 vcc, v{vFl}, v{vSeq}")
        e(f"s_cbranch_vccnz Lsp{sp}")
        e(f"s_branch Lspb{sp}")
    SPINS.clear()
    for p in range(4):
        tails(T, p)

def stamp_store(final=False):
    if not opts["stamp"]: return
    B = vP + 20
    if opts["stamp"] == 2:
        if not final: return
        e("s_waitcnt lgkmcnt(0)")
        e("s_mov_b32 s92, s90"); e("s_mov_b32 s93, s91"); e("s_mov_b32 s94, 256"); e("s_mov_b32 s95, 0x20000")
        e("s_mov_b64 exec, 1")
        e(f"v_mov_b32 v{B+8}, 0")
        e("s_not_b32 s96, s100"); e(f"v_mov_b32 v{B}, s96")
        e(f"buffer_atomic_umax v{B}, v{B+8}, s[92:95], 0 offen offset:32")
        e(f"v_mov_b32 v{B+1}, s{sST+12}")
        e(f"buffer_atomic_umax v{B+1}, v{B+8}, s[92:95], 0 offen offset:36")
        e(f"v_mov_b32 v{B+2}, s100")
        e(f"buffer_atomic_umax v{B+2}, v{B+8}, s[92:95], 0 offen offset:40")
        e(f"s_lshl_b32 s96, s2, 2"); e(f"s_add_u32 s96, s96, s{sW}")
        e("s_cmp_lg_u32 s96, 32"); e("s_cbranch_scc1 Lnodbg")
        e(f"s_sub_u32 s96, s99, s100"); e(f"v_mov_b32 v{B}, s96")
        e(f"s_sub_u32 s96, s{sST+2}, s97"); e(f"v_mov_b32 v{B+1}, s96")
        for i in range(1, 4):
            e(f"s_sub_u32 s96, s{sST+2*i+2}, s{sST+2*i}"); e(f"v_mov_b32 v{B+1+i}, s96")
        e(f"s_sub_u32 s96, s{sST}, s{sST+8}"); e(f"v_mov_b32 v{B+5}, s96")
        e(f"s_sub_u32 s96, s{sST+12}, s100"); e(f"v_mov_b32 v{B+6}, s96")
        e(f"v_mov_b32 v{B+7}, s100")
        e(f"buffer_store_dwordx4 {vr(B,4)}, v{B+8}, s[92:95], 0 offen")
        e(f"buffer_store_dwordx4 {vr(B+4,4)}, v{B+8}, s[92:95], 0 offen offset:16")
        lab("Lnodbg")
        return
    e("s_waitcnt lgkmcnt(0)")
    e("s_mov_b32 s92, s90"); e("s_mov_b32 s93, s91"); e("s_mov_b32 s94, 0x100000"); e("s_mov_b32 s95, 0x20000")
    e(f"s_lshl_b32 s96, s2, 2"); e(f"s_add_u32 s96, s96, s{sW}"); e("s_lshl_b32 s96, s96, 2")
    if final: e("s_add_u32 s96, s96, 3")
    else: e("s_add_u32 s96, s96, s97"); e("s_add_u32 s97, s97, 1")
    e("s_lshl_b32 s96, s96, 5")
    for i in range(5): e(f"v_mov_b32 v{B+i}, s{sST+2*i}")
    e(f"v_mov_b32 v{B+5}, s{sST+10}"); e(f"v_mov_b32 v{B+6}, s{sST+12}"); e(f"v_mov_b32 v{B+7}, s98")
    e(f"v_mov_b32 v{B+8}, 0")
    e("s_mov_b64 exec, 1")
    e(f"buffer_store_dwordx4 {vr(B,4)}, v{B+8}, s[92:95], s96 offen")
    e(f"buffer_store_dwordx4 {vr(B+4,4)}, v{B+8}, s[92:95], s96 offen offset:16")
    e("s_mov_b64 exec, -1")
    e("s_nop 2")

def epilogue(T):
    lab(f"Lepi{T}")
    stamp(4)
    if opts["stamp"]: e(f"s_memrealtime s[{sST+12}:{sST+13}]")
    if opts.get("pst") != 2: stamp_store()
    estamp(1)
    if opts["epi"]:
        def swaps(t):
            pk = vQ + 32 + 16 * (t & 1)
            return [f"v_permlane16_swap_b32 v{pk+4*j+i}, v{pk+4*j+2+i}" for j in range(4) for i in range(2)]
        def dstores(t):
            pk = vQ + 32 + 16 * (t & 1)
            return [f"buffer_store_dwordx4 {vr(pk+4*j,4)}, v{vOw}, s[{sOut}:{sOut+3}], s{sT0} offen offset:{j*64}{ST}" for j in range(4)]
        emit(epi_cvt(0) + swaps(0))
        for t in range(1, T + 1):
            va = epi_acc(t) + epi_cvt(t) + swaps(t) if t < T else []
            st = dstores(t - 1)
            e(f"s_add_u32 s{sT0}, s{sOoff}, {(t-1)*16*ROWB}")
            if opts["epi"] == 2:
                emit(st[:2] + va[:24] + st[2:] + va[24:])
            else:
                for j in range(4):
                    e(st[j]); emit(va[14 * j:14 * (j + 1)])
                emit(va[56:])
    else:
        epilogue_lds(T)
    epilogue_end(T)

def epilogue_lds(T):
    held = []
    for t in range(T):
        ac, cv, w = epi_acc(t), epi_cvt(t), epi_writes(t)
        if t == T - 1:
            estamp(3)
            if opts.get("pst") == 2: e("s_waitcnt lgkmcnt(0)")
        for qd in range(4):
            if t: emit(ac[8 * qd:8 * qd + 8])
            if qd == 1 and t:
                emit([held.pop(0), "s_waitcnt lgkmcnt(2)"])
            if held and (t > 1 or qd): e(held.pop(0))
            emit(cv[4 * qd:4 * qd + 4] + cv[16 + 4 * qd:16 + 4 * qd + 4] + w[2 * qd:2 * qd + 2])
        emit(epi_reads(t))
        so = sT0 + (t & 1)
        held += [x.replace(f"s{sT0}", f"s{so}") for x in epi_stores(t)]
        if t == 1: estamp(2)
    n = 4
    for i, x in enumerate(held):
        if x.startswith("buffer") and i >= len(held) - 4:
            n -= 1
            e(f"s_waitcnt lgkmcnt({n})")
        e(x)

def epilogue_end(T):
    estamp(4)
    if T in PROD:
        e(f"s_cmp_eq_u32 s{sD1n}, 0")
        e("s_cbranch_scc1 Ldone")
        e(f"s_mov_b32 s{sFirst}, 0")
        e(f"s_mov_b32 s{sSafe}, {opts.get('safe', 0)}")
        e(f"s_waitcnt vmcnt({4*T + (nvm(warm_loads()) if WARM else 0)})")
        e("s_branch Lstart")
    else:
        e("s_branch Ldone")

def gen():
    L.append(open(os.path.join(os.path.dirname(os.path.abspath(__file__)), "header.txt")).read().rstrip())
    L.append(f"; @launch grid=({NWG},1,1) block=(256,1,1) lds={LDSZ}")
    L.append("""; Structure (generated by a script of my own, one workgroup per CU, 4 waves, 512 registers each):
;    with the running-max loop (Lsafe*, rescale in Lresc*), so the result never depends on value ranges.""")
    L.append('.amdgcn_target "amdgcn-amd-amdhsa--gfx950"')
    L.append(".text")
    L.append(f".globl {NAME}_kernel")
    L.append(".p2align 8")
    L.append(f".type {NAME}_kernel,@function")
    lab(f"{NAME}_kernel")
    e(f"s_cmp_ge_u32 s2, {NWG}")
    e("s_cbranch_scc1 Lend")
    e(f"s_getpc_b64 s[{sPC}:{sPC+1}]")
    lab("Lpc")
    e(f"s_add_u32 s4, s{sPC}, Ltab-Lpc")
    e(f"s_addc_u32 s5, s{sPC+1}, 0")
    e("s_lshl_b32 s3, s2, 5")
    e(f"s_load_dwordx8 s[{sJ}:{sJ+7}], s[4:5], s3")
    for srd, off in ((sK, 8), (sQ, 0), (sV, 16), (sOut, 32), (sQc, 0)):
        e(f"s_load_dwordx2 s[{srd}:{srd+1}], s[0:1], {off}")
    if opts["pf"] == 1:
        e(f"v_lshlrev_b32 v1, 7, v0")
        for i in range(2):
            e(f"global_load_dword v{2+i}, v1, s[{sPC}:{sPC+1}]")
            e(f"v_add_u32 v1, 32768, v1")
    elif opts["pf"] == 2:
        e("s_lshr_b32 s3, s2, 3")
        e("s_mul_i32 s3, s3, 2560")
        e("v_lshrrev_b32 v1, 6, v0")
        e("v_mul_u32_u24 v1, 640, v1")
        e("v_and_b32 v2, 7, v0")
        e("v_min_u32 v2, 4, v2")
        e("v_lshl_add_u32 v1, v2, 7, v1")
        e("v_add_u32 v1, s3, v1")
        e("v_min_u32 v1, Lcold-Lpc, v1")
        e(f"global_load_dword v2, v1, s[{sPC}:{sPC+1}]")
    if opts["stamp"]:
        e(f"s_load_dwordx2 s[90:91], s[0:1], {40 if opts['stamp'] == 2 else 48}")
        e("s_memrealtime s[100:101]")
        e("s_mov_b32 s97, 0")
    if opts.get("spin"):
        e("s_memrealtime s[100:101]")
        e("s_load_dwordx2 s[90:91], s[0:1], 40")
    if LIGHT:
        e("s_load_dwordx2 s[90:91], s[0:1], 48")
        e("s_memrealtime s[100:101]")
    w, ln, i16, g, x4, x5, x6 = range(vX, vX + 7)
    e(f"v_lshrrev_b32 v{w}, 6, v0")
    e(f"v_and_b32 v{ln}, 63, v0")
    e(f"v_readfirstlane_b32 s{sW}, v{w}")
    e(f"v_and_b32 v{i16}, 15, v{ln}")
    e(f"v_lshrrev_b32 v{g}, 4, v{ln}")
    e(f"v_xor_b32 v{x6}, v{i16}, v{g}")
    e(f"v_lshlrev_b32 v{x6}, 4, v{x6}")
    mark = len(L)
    e(f"v_bfe_u32 v{x4}, v{ln}, 3, 1")
    e(f"v_lshlrev_b32 v{x4}, 12, v{x4}")
    e(f"v_and_b32 v{x5}, 7, v{ln}")
    e(f"v_lshl_add_u32 v{x4}, v{x5}, 8, v{x4}")
    e(f"v_add3_u32 v{vKa}, v{x4}, v{x6}, 0")
    e(f"v_add_u32 v{vKa}, 2048, v{vKa}")
    for s in range(1, 4):
        e(f"v_xor_b32 v{vKa+s}, {s*64}, v{vKa}")
    e(f"v_mul_u32_u24 v{x4}, {QW}, v{w}")
    e(f"v_lshl_add_u32 v{x4}, v{i16}, 8, v{x4}")
    e(f"v_add3_u32 v{x4}, v{x4}, v{x6}, 0")
    e(f"v_add_u32 v{vQa}, {QS}, v{x4}")
    e(f"v_lshlrev_b32 v{x4}, 12, v{w}")
    e(f"v_add_u32 v{x4}, {OS}, v{x4}")
    e(f"v_lshl_add_u32 v{vOr}, v{ln}, 4, v{x4}")
    e(f"v_lshl_add_u32 v{x4}, v{i16}, 8, v{x4}")
    e(f"v_lshrrev_b32 v{x5}, 1, v{g}")
    e(f"v_xor_b32 v{x5}, v{x5}, v{i16}")
    e(f"v_lshl_add_u32 v{x4}, v{x5}, 4, v{x4}")
    e(f"v_and_b32 v{x5}, 1, v{g}")
    e(f"v_lshl_add_u32 v{vOw}, v{x5}, 3, v{x4}")
    if opts["epi"]:
        e(f"v_lshlrev_b32 v{x4}, 12, v{i16}")
        e(f"v_lshl_add_u32 v{x4}, v{x5}, 5, v{x4}")
        e(f"v_lshrrev_b32 v{vOw}, 1, v{g}")
        e(f"v_lshl_add_u32 v{vOw}, v{vOw}, 4, v{x4}")
    e(f"v_lshrrev_b32 v{x4}, 1, v{g}")
    e(f"v_lshlrev_b32 v{x4}, 12, v{x4}")
    e(f"v_mul_u32_u24 v{x5}, {4*256+32}, v{x5}")
    e(f"v_add_u32 v{x4}, v{x4}, v{x5}")
    e(f"v_lshrrev_b32 v{x5}, 2, v{i16}")
    e(f"v_mul_u32_u24 v{x5}, {256+64}, v{x5}")
    e(f"v_add_u32 v{x4}, v{x4}, v{x5}")
    e(f"v_and_b32 v{x5}, 3, v{ln}")
    e(f"v_lshl_add_u32 v{vVa}, v{x5}, 3, v{x4}")
    for dt in range(1, 8):
        e(f"v_xor_b32 v{vVa+dt}, {dt*32}, v{vVa}")
    if RS:
        for i in range(4): e(f"v_mov_b32 v{vOne+i}, 0x3f803f80")
    e(f"v_and_b32 v{vFr}, 3, v{ln}")
    if opts.get("p2", 1):
        e(f"v_and_b32 v{x4}, 1, v{ln}")
        e(f"v_lshlrev_b32 v{x4}, 4, v{x4}")
        e(f"v_lshlrev_b32 v{x4}, v{x4}, 1")
        e(f"v_lshrrev_b32 v{x5}, 1, v{i16}")
        e(f"v_lshlrev_b32 v{vM23}, 1, v{g}")
        e(f"v_cmp_eq_u32 vcc, v{x5}, v{vM23}")
        e(f"v_add_u32 v{vM23}, 1, v{vM23}")
        e(f"v_cmp_eq_u32 s[{sM}:{sM+1}], v{x5}, v{vM23}")
        e(f"v_cndmask_b32 v{vM01}, 0, v{x4}, vcc")
        e("s_nop 0")
        e(f"v_cndmask_b32 v{vM23}, 0, v{x4}, s[{sM}:{sM+1}]")
    if opts.get("sb", 9) <= 5:
        e(f"v_lshlrev_b32 v{vSr}, 12, v{vFr}")
        e(f"v_add_u32 v{vSr}, {OS}, v{vSr}")
        e(f"v_mov_b32 v{vSeq}, 0")
    e(f"v_mul_u32_u24 v{vFr}, {QW}, v{vFr}")
    e(f"v_add_u32 v{vFr}, {QS+16384}, v{vFr}")
    late = [x.strip() for x in L[mark:]]
    del L[mark:]
    e(f"v_lshlrev_b32 v{vG4}, 2, v{g}")
    e(f"v_lshl_add_u32 v{vQd}, v{g}, 12, v{x6}")
    for i in range(1, 4):
        e(f"v_xor_b32 v{vQd+i}, {i*64}, v{vQd}")
        e(f"v_add_u32 v{vQd+i}, {i*(4*ROWB-1024)}, v{vQd+i}")
    e(f"v_lshl_add_u32 v{x5}, v{w}, 3, v{g}")
    e(f"v_xor_b32 v{x4}, v{vG4}, v{i16}")
    e(f"v_lshlrev_b32 v{x4}, 4, v{x4}")
    e(f"v_lshl_add_u32 v{vDV}, v{x5}, 12, v{x4}")
    e(f"v_xor_b32 v{vDV+1}, 32, v{vDV}")
    e(f"v_add_u32 v{vDV+1}, {4*ROWB-1024}, v{vDV+1}")
    e(f"v_and_b32 v{x4}, 15, v{x5}")
    e(f"v_xor_b32 v{x4}, v{x4}, v{i16}")
    e(f"v_lshlrev_b32 v{x4}, 4, v{x4}")
    e(f"v_lshl_add_u32 v{vDK}, v{x5}, 12, v{x4}")
    e(f"v_xor_b32 v{vDK+1}, 64, v{vDK}")
    e(f"v_add_u32 v{vDK}, {4096-2048}, v{vDK}")
    e(f"v_add_u32 v{vDK+1}, {4*ROWB+4096-3072}, v{vDK+1}")
    e(f"s_lshl_b32 s{sWB}, s{sW}, 12")
    e(f"s_mov_b32 s{sThr}, {hex(f32bits(BIAS if RS else 4096.0))}")
    e(f"s_mov_b32 s{sC}, {hex(f32bits(128 ** -0.5 * math.log2(math.e)))}")
    e(f"s_mov_b32 s{sNeg}, {hex(f32bits(-1e30))}")
    e(f"s_mov_b32 s{sBig}, 0x40000000")
    if opts.get("perm"): e(f"s_mov_b32 s{sN}, 0x07060302")
    e(f"s_mov_b32 s{sFirst}, 1")
    e(f"s_mov_b32 s{sSafe}, {opts.get('safe', 0)}")
    e(f"s_mov_b32 s{sLim}, {hex(f32bits(2.0 ** 40))}")
    e(f"s_mul_i32 s{sQW}, s{sW}, {QW}")
    e(f"s_add_u32 s{sQW}, s{sQW}, {QS}")
    for srd in (sQ, sK, sV, sOut, sQc):
        e(f"s_mov_b32 s{srd+2}, 0")
        e(f"s_mov_b32 s{srd+3}, 0x20000")
    e(m0set(0))
    e("s_waitcnt lgkmcnt(0)")
    e(f"s_sub_u32 s{sK}, s{sK}, 4096")
    e(f"s_subb_u32 s{sK+1}, s{sK+1}, 0")
    def decode():
        e(f"s_mov_b32 s{sQ+2}, s{sNRn}")
        e(f"s_bfe_u32 s{sTn}, s{sD1n}, 0x30018")
        e(f"s_mul_i32 s{sT0}, s{sTn}, s{sW}")
        e(f"s_lshl_b32 s{sT0}, s{sT0}, 16")
        e(f"s_and_b32 s{sQoffn}, s{sD1n}, 0xfff000")
        e(f"s_add_u32 s{sQoffn}, s{sQoffn}, s{sD0n}")
        e(f"s_add_u32 s{sQoffn}, s{sQoffn}, s{sT0}")
    emit(next_k0()[1:])
    decode()
    j = 0
    nl = 0
    for x in qgroup(0) + next_loads(1)[1]:
        if opts["lazy"] and "m0" in x and nl < opts.get("lz", 2):
            e(f"s_bitcmp0_b32 s{sD1n}, 28"); e(f"s_cbranch_scc1 Llz{nl}"); e("s_waitcnt vmcnt(0)"); lab(f"Llz{nl}"); nl += 1
        e(x)
        if x.startswith("buffer"):
            emit(late[j:j + 5]); j += 5
    emit(late[j:])
    lab("Lstart")
    e(f"s_mov_b64 s[{sD0}:{sD1}], s[{sD0n}:{sD1n}]")
    e(f"s_mov_b32 s{sLast}, s{sLastn}")
    e(f"s_mov_b32 s{sOut+2}, s{sNRn}")
    e(f"s_mov_b32 s{sV+2}, s{sNRn}")
    e(f"s_mov_b32 s{sQc+2}, s{sNRn}")
    e(f"s_mov_b32 s{sOoff}, s{sQoffn}")
    e(f"s_mov_b64 s[{sJ}:{sJ+1}], s[{sJ+4}:{sJ+5}]")
    e(f"s_mov_b64 s[{sJ+2}:{sJ+3}], s[{sJ+6}:{sJ+7}]")
    e(f"s_mov_b64 s[{sJ+4}:{sJ+5}], 0")
    e(f"s_mov_b64 s[{sJ+6}:{sJ+7}], 0")
    decode()
    e(f"s_and_b32 s{sCnt}, s{sD1}, 63")
    e(f"s_bfe_u32 s{sRem}, s{sD1}, 0x60006")
    e(f"s_mov_b32 s{sOff}, s{sD0}")
    e(f"s_add_u32 s{sOffK}, s{sD0}, {2*TILEB}")
    if opts["stamp"]: e(f"s_add_u32 s{sN}, s{sCnt}, 2")
    stamp(0)
    e(f"s_bfe_u32 s{sT0}, s{sD1}, 0x30018")
    if opts["stamp"]:
        e(f"s_memrealtime s[{sST+10}:{sST+11}]")
        e(f"s_lshl_b32 s98, s{sT0}, 8"); e(f"s_add_u32 s98, s98, s{sN}")
        e("s_waitcnt lgkmcnt(0)")
        if opts["stamp"] == 2:
            e(f"s_mov_b32 s97, s{sST}"); e(f"s_mov_b32 s99, s{sST+10}")
    order = sorted(TS, key=lambda t: (t != 4, -t))
    for T in order[1:]:
        e(f"s_cmp_eq_u32 s{sT0}, {T}")
        e(f"s_cbranch_scc1 Lpro{T}")
    global NRS
    for T in order:
        NRS = NRS5 if T == 5 else 5
        prologue(T)
        epilogue(T)
    lab("Ldone")
    if opts.get("spin"):
        if opts.get("gref"):
            e("s_mov_b32 s92, s90"); e("s_mov_b32 s93, s91"); e("s_mov_b32 s94, 256"); e("s_mov_b32 s95, 0x20000")
            e("s_not_b32 s96, s100"); e("v_mov_b32 v0, s96"); e("v_mov_b32 v2, 0")
            e("s_mov_b64 exec, 1")
            e(f"s_cmp_lg_u32 s{sW}, 0"); e("s_cbranch_scc1 Lsp0")
            e("buffer_atomic_umax v0, v2, s[92:95], 0 offen")
            lab("Lsp0")
            e("s_memrealtime s[88:89]"); e("s_waitcnt lgkmcnt(0)"); e("s_sub_u32 s88, s88, s100")
            e(f"s_cmp_lt_u32 s88, 4500"); e("s_cbranch_scc1 Lsp0")
            e("buffer_load_dword v1, v2, s[92:95], 0 offen sc0 sc1")
            e("s_waitcnt vmcnt(0)")
            e("v_readfirstlane_b32 s96, v1"); e("s_nop 3"); e("s_not_b32 s100, s96")
        if opts.get("enc"):
            e("s_waitcnt vmcnt(0)"); e("s_memrealtime s[80:81]"); e("s_waitcnt lgkmcnt(0)")
            a, b = {1: (100, 76), 2: (76, 78), 3: (78, 80), 4: (100, 80)}[opts["enc"]]
            e(f"s_sub_u32 s82, s{b}, s{a}")
            e(f"s_mul_i32 s82, s82, {opts.get('mul', 4)}")
            e("s_lshr_b32 s83, s2, 4"); e(f"s_lshr_b32 s83, {opts.get('encs', 0xffff)}, s83"); e("s_bitcmp1_b32 s83, 0")
            e("s_cselect_b32 s82, s82, 0")
            e(f"s_add_u32 s82, s82, {opts['spin']}")
        lab("Lspin")
        e("s_memrealtime s[88:89]")
        e("s_waitcnt lgkmcnt(0)")
        e("s_sub_u32 s88, s88, s100")
        e("s_cmp_lt_u32 s88, s82" if opts.get("enc") else f"s_cmp_lt_u32 s88, {opts['spin']}")
        e("s_cbranch_scc1 Lspin")
    if LIGHT:
        e("s_waitcnt vmcnt(0)")
        e("s_memrealtime s[88:89]")
        e("s_mov_b32 s92, s90"); e("s_mov_b32 s93, s91"); e("s_mov_b32 s94, 0x100000"); e("s_mov_b32 s95, 0x20000")
        e(f"s_lshl_b32 s96, s2, 2"); e(f"s_add_u32 s96, s96, s{sW}"); e("s_lshl_b32 s96, s96, 3")
        e("s_waitcnt lgkmcnt(0)")
        e("v_mov_b32 v0, s100"); e("v_mov_b32 v1, s88"); e("v_mov_b32 v2, 0")
        e("s_mov_b64 exec, 1")
        e("buffer_store_dwordx2 v[0:1], v2, s[92:95], s96 offen")
    if opts["stamp"]:
        e("s_waitcnt vmcnt(0)")
        stamp(0)
        e(f"s_memrealtime s[{sST+12}:{sST+13}]")
        e(f"s_mov_b32 s{sST+10}, s100")
        e("s_getreg_b32 s98, hwreg(HW_REG_HW_ID)")
        stamp_store(True)
    lab("Lend")
    e("s_endpgm")

    lab("Lcold")
    lab("Lrestart")
    e("s_waitcnt vmcnt(0) lgkmcnt(0)")
    e("s_barrier")
    e(f"s_mov_b64 s[{sJ+4}:{sJ+5}], s[{sJ}:{sJ+1}]")
    e(f"s_mov_b64 s[{sJ+6}:{sJ+7}], s[{sJ+2}:{sJ+3}]")
    e(f"s_mov_b64 s[{sD0n}:{sD1n}], s[{sD0}:{sD1}]")
    e(f"s_mov_b32 s{sNRn}, s{sOut+2}")
    e(f"s_mov_b32 s{sLastn}, s{sLast}")
    e(f"s_mov_b32 s{sSafe}, 1")
    e(f"s_mov_b32 s{sFirst}, 1")
    decode()
    emit(next_loads(1)[0] + next_loads(1)[1])
    e("s_branch Lstart")
    for T in order:
        NRS = NRS5 if T == 5 else 5
        safe_loop(T)
    NRS = NRS5
    for tag, buf in STUBS:
        lab(f"Lrare_{tag}")
        e(f"s_call_b64 s[{sRet}:{sRet+1}], Lresc_{buf}")
        e(f"s_branch Lback_{tag}")
    for b in range(2):
        lab(f"Lresc_{b}")
        e("s_nop 15")
        for t in range(TM):
            s, s2 = sreg(b, t), sreg(b ^ 1, t)
            dl, al = vX, (vX + 8 + t if t < 4 else vX + 2)
            e(f"v_max3_f32 v{dl}, v{s}, v{s+1}, v{s+2}")
            e(f"v_max3_f32 v{dl}, v{dl}, v{s+3}, v{s+4}")
            e(f"v_max3_f32 v{dl}, v{dl}, v{s+5}, v{s+6}")
            if RS:
                e(f"v_max_f32 v{dl}, v{dl}, v{s+7}")
                e(f"v_add_f32 v{dl}, s{sThr}, v{dl}")
                e(f"v_max_f32 v{dl}, 0, v{dl}")
            else:
                e(f"v_max3_f32 v{dl}, v{dl}, v{s+7}, 0")
            emit(xlane("v_max_f32", [dl], vX + 1))
            e(f"v_sub_f32 v{al}, 0, v{dl}")
            e(f"v_exp_f32 v{al}, v{al}")
            for i in range(8):
                e(f"v_sub_f32 v{s+i}, v{s+i}, v{dl}")
                e(f"v_sub_f32 v{s2+i}, v{s2+i}, v{dl}")
            for i in range(4):
                e(f"v_sub_f32 v{vNM+4*t+i}, v{vNM+4*t+i}, v{dl}")
            if not RS:
                e(f"v_mul_f32 v{vL+t}, v{vL+t}, v{al}")
            if RS and t >= NRS:
                e(f"v_mul_f32 v{vL4+2*(t-3)+1}, v{vL4+2*(t-3)+1}, v{al}")
            elif RS and t == 4:
                for i in range(4): e(f"v_mul_f32 v{vL4+i}, v{vL4+i}, v{al}")
            if RS and t < 4:
                for i in range(4):
                    e(f"v_accvgpr_read_b32 v{vX+1}, a{aL+4*t+i}")
                    e(f"v_mul_f32 v{vX+1}, v{vX+1}, v{al}")
                    e(f"v_accvgpr_write_b32 a{aL+4*t+i}, v{vX+1}")
        emit(SM(TM, b, False).rest())
        if b == 0: e("s_branch LrescO")
    lab("LrescO")
    for t in range(TM):
        for i in range(0, 32, 4):
            al = vX + 8 + t if t < 4 else vX + 2
            for k in range(4): e(f"v_accvgpr_read_b32 v{vX+4+k}, a{aO+32*t+i+k}")
            for k in range(4): e(f"v_mul_f32 v{vX+4+k}, v{vX+4+k}, v{al}")
            for k in range(4): e(f"v_accvgpr_write_b32 a{aO+32*t+i+k}, v{vX+4+k}")
    e("s_nop 1")
    e(f"s_setpc_b64 s[{sRet}:{sRet+1}]")

    e(".p2align 5")
    L.append(".type Ltab,@object")
    lab("Ltab")
    for ent in TAB:
        e(".long " + ", ".join(str(x) for x in ent))
    L.append('.section .rodata,"a"')
    L.append(".p2align 6")
    L.append(f".amdhsa_kernel {NAME}_kernel")
    L.append("  .amdhsa_next_free_vgpr 512")
    L.append("  .amdhsa_next_free_sgpr 102")
    L.append("  .amdhsa_accum_offset 256")
    L.append("  .amdhsa_group_segment_fixed_size 0")
    L.append("  .amdhsa_kernarg_size 56")
    L.append("  .amdhsa_user_sgpr_count 2")
    L.append("  .amdhsa_user_sgpr_kernarg_segment_ptr 1")
    L.append("  .amdhsa_system_sgpr_workgroup_id_x 1")
    L.append(".end_amdhsa_kernel")

gen()
open(sys.argv[1], "w").write("\n".join(L) + "\n")
```

```python
import re

def regs(tok):
    tok = tok.strip()
    m = re.fullmatch(r"([vas])\[(\d+):(\d+)\]", tok)
    if m: return {(m.group(1), i) for i in range(int(m.group(2)), int(m.group(3)) + 1)}
    m = re.fullmatch(r"([vas])(\d+)", tok)
    if m: return {(m.group(1), int(m.group(2)))}
    if tok in ("vcc", "vcc_lo", "vcc_hi"): return {("s", 106)}
    if tok == "m0": return {("s", 124)}
    return set()

SCC = ("s", 200)
def parse(l):
    op, _, rest = l.partition(" ")
    ops = [x.strip().split(" ")[0] for x in rest.split(",")] if rest else []
    R = [regs(x) for x in ops]
    U = lambda xs: set().union(*xs) if xs else set()
    w, r = set(), set()
    if op.startswith("v_permlane"): w = R[0] | R[1]; r = set(w)
    elif op.startswith("v_"): w = R[0]; r = U(R[1:])
    elif op.startswith("ds_read"): w = R[0]; r = R[1]
    elif op.startswith("ds_write"): r = R[0] | R[1]
    elif op.startswith("buffer_load") and l.endswith("lds"): r = U(R) | {("s", 124)}
    elif op.startswith("buffer_"): r = U(R)
    elif op.startswith("s_cmp"): r = U(R); w = {SCC}
    elif op.startswith("s_cselect"): w = R[0]; r = U(R[1:]) | {SCC}
    elif op.startswith("s_mov"): w = R[0]; r = U(R[1:])
    elif op.startswith("s_") and R: w = R[0] | {SCC}; r = U(R[1:])
    return op, w, r, R

TR = ("v_exp_f32", "v_rcp_f32")
class Op:
    def __init__(s, text, tag=None, after=(), tmin=0, reads=(), kind=None, lines=None, vmwait=None, bonus=0):
        s.bonus = bonus
        s.text, s.tag, s.after, s.tmin, s.lines, s.vmwait = text, tag, list(after), tmin, lines, vmwait
        s.op, s.w, s.r, s.R = parse(text)
        s.r = s.r | set(reads)
        o = s.op
        s.kind = kind or ("M" if o.startswith("v_mfma") else "V" if o.startswith("v_") else "L" if o.startswith("ds_")
                          else "G" if o.startswith("buffer_") else "B" if o == "s_barrier" else "S")
        s.cost = {"M": 8, "L": 6, "G": 6, "B": 40, "S": 4}.get(s.kind, 8 if (o in TR or o.startswith("v_permlane")) else 4)

def need_states(a, b):
    n = 0
    if a.kind == "M":
        p8 = "32x32" in a.op
        if b.kind in "VLG" and a.w & (b.r | b.w): n = 12 if p8 else 8
        if b.kind == "M":
            if a.w & (b.R[1] | b.R[2]): n = 12 if p8 else 8
            elif a.w & b.R[3] and not (b.R[3] == a.w and a.op == b.op): n = 10 if p8 else 6
        if b.kind == "V" and len(a.R) > 3 and a.R[3] & b.w: n = max(n, 7 if p8 else 3)
    elif a.kind == "V":
        vw = {x for x in a.w if x[0] != "s"}; sw = a.w - vw
        if b.kind == "M" and vw & b.r: n = 2
        if b.op.startswith("v_permlane") and vw & b.r: n = 2
        if a.op in TR and b.kind == "V" and b.op not in TR and vw & b.r: n = max(n, 1)
        if sw and b.kind == "V" and sw & b.r: n = max(n, 2)
        if sw and b.kind in "LG" and sw & b.r: n = max(n, 5)
    elif a.kind == "S":
        if b.kind == "G" and ("s", 124) in a.w and ("s", 124) in b.r: n = 1
    elif a.kind == "G" and a.op.startswith("buffer_store"):
        if b.kind == "V" and a.R[0] & b.w: n = 2
    return n

LDSLAT = 120
def schedule(ops, vmq, store_gap=64, verbose=False, betas=(3, 6, 10, 16, 24, 40, 64, 100, 10000), gammas=(0,)):
    best = None
    for beta in betas:
      for gamma in gammas:
        q = list(vmq)
        out, t = schedule1(ops, q, store_gap, beta, gamma)
        if best is None or t < best[1]: best = (out, t, q, (beta, gamma))
    vmq[:] = best[2]
    if verbose: print("scheduled", len(ops), "ops, est", best[1], "beta", best[3])
    return best[0], best[1]

def schedule1(ops, vmq, store_gap, beta, gamma=0):
    n = len(ops)
    pred = [dict() for _ in range(n)]
    lastw, readers = {}, {}
    lastG = None
    lastLw = None
    for j, b in enumerate(ops):
        for x in b.r:
            if x in lastw: pred[j][lastw[x]] = 0
        for x in b.w:
            if x == SCC and not any(SCC in o.r for o in ops): continue
            if x in lastw: pred[j][lastw[x]] = 0
            for i in readers.get(x, ()):
                if i != j: pred[j][i] = 0
        for a in b.after: pred[j][ops.index(a)] = 0
        if b.kind == "G":
            if lastG is not None: pred[j][lastG] = 0
            lastG = j
        for x in b.r: readers.setdefault(x, []).append(j)
        for x in b.w: lastw[x] = j; readers[x] = []
        for i in pred[j]: pred[j][i] = need_states(ops[i], b)
    succ = [[] for _ in range(n)]
    for j in range(n):
        for i in pred[j]: succ[i].append(j)
    prio = [0] * n
    for i in range(n - 1, -1, -1):
        lat = lambda j: (LDSLAT if (ops[i].kind == "L" and ops[i].w & ops[j].r) else 4 * pred[j][i] + (16 if ops[i].kind == "M" and ops[j].kind == "M" else 0) + ((92 if "store" in ops[j].op else 58) if ops[i].kind == "G" and ops[j].kind == "G" else 0))
        prio[i] = ops[i].cost + max([prio[j] + lat(j) for j in succ[i]] + [ops[i].bonus])
    prio = [prio[i] - gamma * i for i in range(n)]
    done = [None] * n
    out = []
    t = 0; pipe = 0; lastv = -100; lastg = -1000; lastw_ = -1000; prev = "S"; states = 0
    lds = []
    left = set(range(n))
    while left:
        best = None
        for j in left:
            b = ops[j]
            if any(done[i] is None for i in pred[j]): continue
            short = max([pred[j][i] - (states - done[i][1] - 1) for i in pred[j]] + [0])
            st = max(t + 4 * short, b.tmin)
            for i in pred[j]:
                if ops[i].kind == "L" and ops[i].w & (b.r | b.w) and i in lds: st = max(st, done[i][0] + LDSLAT)
            pen = 0
            if b.kind == "M": st = max(st, pipe)
            elif b.op.startswith("v_pk") and pipe + 12 > st: st = pipe + 12
            elif b.kind in "LG":
                if prev not in ("M", "Ms"): st = max(st, lastv + 8)
                if prev == "L": pen = 4
                if b.kind == "G": st = max(st, lastg + (98 if "store" in b.op else store_gap))
                if b.op.startswith("ds_write"): st = max(st, lastw_ + 26)
                if prev in ("M", "Ms"): pen = -6
            elif b.kind == "S" and prev == "M" and b.lines is None and b.vmwait is None: pen = -7
            if b.kind == "M" and st <= t: pen = -5
            key = ((st - t + pen) * beta - prio[j], j)
            if best is None or key < best[0]: best = (key, j, st, short)
        key, j, st, short = best
        b = ops[j]
        k = -1
        for idx, i in enumerate(lds):
            if ops[i].w & (b.r | b.w) and i in pred[j]: k = idx
        if k >= 0:
            while k + 1 < len(lds) and done[lds[k + 1]][0] + LDSLAT <= st + 8: k += 1
            out.append(f"s_waitcnt lgkmcnt({min(15, len(lds) - 1 - k)})"); states += 1; short = max(0, short - 1)
            lds = lds[k + 1:]
            if prev != "M": st += 4
        if short > 0:
            out.append(f"s_nop {short-1}"); states += short
        t = st
        if b.vmwait is not None:
            y = len(vmq) - 1 - max(i for i, x in enumerate(vmq) if x == b.vmwait)
            txt = f"s_waitcnt vmcnt({y})"
            out += [x.replace("@W", txt) for x in (b.lines or ["@W"])]
            states += 1
            t += 44 if b.lines else 4
        else:
            out.append(b.text); states += 1
            if b.kind == "M": pipe = t + (32 if "32x32" in b.op else 16); t += 8
            elif b.kind == "V": t += b.cost; lastv = t
            elif b.kind in "LG":
                t += (8 if prev == "L" else 4) + (8 if b.op.startswith("ds_write") else 0)
                if b.kind == "G": lastg = st; vmq.append(b.tag)
                else: lds.append(j)
                if b.op.startswith("ds_write"): lastw_ = st
            elif b.kind == "B": t += 40
            else: t += 0 if prev == "M" else 4
        done[j] = (t, states - 1)
        prev = "Ms" if (b.kind == "S" and prev == "M") else ("L" if b.kind in "LG" else b.kind)
        left.discard(j)
    return out, t
```

```python
import sys, struct, math, os
sys.path.insert(0, os.path.dirname(os.path.abspath(__file__)))
from sched import Op, schedule

NAME = "standalone__varlen_attn_packed__ragged"
CU = [0, 534, 1426, 1714, 2675, 3469, 4036, 4628, 4845]
ROWB = 4096
TILEB = 32 * ROWB
QS = 65536
QW = 20480
OS = QS + 4 * QW
LDSZ = 163840
TM = 5

opts = dict(stamp=0, st="sc0+sc1", ld="", ldq="nt", al=3, e64=0, rs=1, epi=0, late=1, plan="b", rev=0, lc=4, pf=2, lazy=0)
for a in sys.argv[2:]:
    k, v = a.split("=")
    opts[k] = int(v) if v.lstrip("-").isdigit() else v
LD = (" " + opts["ld"].replace("+", " ")) if opts["ld"] else ""
LDQ = (" " + opts["ldq"].replace("+", " ")) if opts.get("ldq", opts["ld"]) and "ldq" in opts else ("" if "ldq" in opts else LD)
ST = (" " + opts["st"].replace("+", " ")) if opts["st"] else ""
DG = str(opts.get("diag", ""))

def f32bits(x):
    return struct.unpack("<I", struct.pack("<f", x))[0]

vQ = 0
vS = 64
vP = 144
vNM = 184
vKa = 204
vVa = 208
vDK = 216
vDV = 218
vQd = 220
vE = 224
vT = 228
vL = 233
vU = 238
vQa = 239
vOw = 240
vOr = 241
vG4 = 242
vU2 = 243
vX = 244
aO = 0
aKf = 160
aVf = 192
aQ = 224
aL = 240
vOne = 228
vL4 = 232
vAc = vX + 1
vFr = 236
vFl = 237
vM01, vM23 = 238, 243
vSeq = 238
vSr = 243
BIAS = 20.0
RS = opts['rs']
NRS = opts.get('nrs', 3)
NOCHK = [False]
NRS5 = opts.get('nrs5', 3)

sQ, sK, sV, sOut = 12, 16, 20, 24
sJ = 28
sD0, sD1 = 36, 37
sL, sN, sOff, sWB, sCnt, sLast, sThr, sC, sNeg, sW = 38, 39, 40, 41, 42, 43, 44, 45, 46, 47
sRet, sPC = 48, 52
sTn = 50
sRem, sQoffn, sOoff, sBig = 54, 55, 56, 57
sD0n, sD1n, sNRn, sLastn = 28, 29, 30, 31
sT0 = 61
sOffK = 63
sQW = 3
sFirst = 64
sSafe = 65
sLim = 66
sQc = 8
sM = 68
sST = 76

L = []
def e(s): L.append("    " + s)
def lab(s): L.append(s + ":")
def vr(b, n): return f"v[{b}:{b+n-1}]"
def ar(b, n): return f"a[{b}:{b+n-1}]"
def emit(lines):
    for x in lines:
        if x.endswith(":"): L.append(x)
        else: e(x)
LIGHT = opts["stamp"] == 3
if LIGHT: opts["stamp"] = 0
def estamp(idx):
    if opts["stamp"] and opts.get("pst") == 2:
        e(f"s_memtime s[{sST+2*idx}:{sST+1+2*idx}]")
def pstamp(idx):
    if opts["stamp"] and opts.get("pst") == 1:
        e(f"s_memtime s[{sST+2*idx}:{sST+1+2*idx}]")
        e("s_waitcnt lgkmcnt(0)")
def stamp(idx):
    if opts.get("pst") and 1 <= idx <= 4: return
    if opts["stamp"]:
        e(f"s_memtime s[{sST+2*idx}:{sST+1+2*idx}]")

SEQ = []
for si in range(8):
    ln = CU[si + 1] - CU[si]
    SEQ.append((CU[si], ln, (ln + 63) // 64, (ln + 31) // 32))

PLANS = {
    "c": [[(31, 4)]] * 4 + [[(25, 5)]] * 2 + [[(25, 3), (7, 4)], [(18, 3), (17, 3)], [(18, 3), (17, 3)], [(18, 3), (17, 3)],
          [(28, 3), (9, 3)], [(28, 3), (9, 2)]] + [[(19, 5)]] * 2 + [[(28, 4)]] * 2,
    "b": [[(31, 4)]] * 4 + [[(25, 5)]] * 2 + [[(25, 3), (7, 4)], [(18, 3), (17, 3)], [(18, 3), (17, 3)], [(18, 3), (17, 3)],
          [(19, 4), (9, 3)], [(28, 2), (19, 2)], [(19, 4), (9, 2)]] + [[(28, 4)]] * 3,
    "a": [[(31, 4)]] * 4 + [[(25, 5)]] * 2 + [[(17, 4), (18, 2)], [(19, 5), (7, 2)], [(25, 3), (9, 3)], [(28, 2), (18, 2)],
          [(17, 5), (9, 2)], [(18, 5), (7, 2)]] + [[(28, 4)]] * 3 + [[(19, 5)]],
}

def plan_head():
    n2s = {SEQ[i][3]: i for i in range(8)}
    nxt = {i: 0 for i in range(8)}
    spec = PLANS[opts["plan"]]
    res = [[None] * len(s) for s in spec]
    for want in (2, 3, 4, 5):
        for i, s in enumerate(spec):
            for k, (n, t) in enumerate(s):
                if t == want:
                    si = n2s[n]
                    res[i][k] = (si, nxt[si], t); nxt[si] += 64 * t
    for i in range(8):
        assert nxt[i] == SEQ[i][2] * 64, (i, nxt[i])
    if opts["rev"]:
        res = [list(reversed(r)) for r in res]
    return res

def make_table():
    ph = plan_head()
    tab = []
    for wg in range(256):
        x, j = wg & 7, wg >> 3
        head = 2 * x + (j & 1)
        ent = []
        for (si, q0, t) in ph[j >> 1]:
            st, ln, nb, n = SEQ[si]
            d0 = st * ROWB + head * 256
            ent += [d0, (n - 2) | ((ln - 32 * (n - 1)) << 6) | (q0 << 12) | (t << 24) | (((opts["lazy"] >> (j >> 1)) & 1) << 28), d0 + (ln - 1) * ROWB + 256, d0 + (n - 1) * TILEB]
        assert len(ent) <= 8
        ent += [0] * (8 - len(ent))
        tab.append(ent)
    return tab

TAB = make_table()
PH = plan_head()
TS = sorted({t for jl in PH for _, _, t in jl}, reverse=True)
TAILS = {}
for jl in PH:
    for k, (si, q0, t) in enumerate(jl):
        TAILS.setdefault((t, (SEQ[si][3] - 1) % 4), set()).add(1 if k + 1 < len(jl) else 0)
PROD = {t for (t, p), v in TAILS.items() if v - {0}}
NWG = 256

MF = "v_mfma_f32_16x16x32_bf16"
def qreg(t, s):
    return vr(vQ + 16 * t + 4 * s, 4) if t < 4 else ar(aQ + 4 * s, 4)
def sreg(buf, t, a=0): return vS + 40 * buf + 8 * t + 4 * a
def preg(buf, t): return vP + 20 * buf + 4 * t

def qk1(buf, t, a, s, cinit, kf=None):
    d = sreg(buf, t, a)
    kf = aKf if kf is None else kf
    return f"{MF} {vr(d,4)}, {ar(kf+4*(a*4+s),4)}, {qreg(t,s)}, {vr(cinit if s == 0 else d,4)}"

def qk_mfmas(T, buf):
    return [qk1(buf, t, a, s, vNM + 4 * t) for a in range(2) for s in range(4) for t in range(T)]

ZERO = [False]
def pv1(buf, t, dt, vf):
    o = aO + 32 * t + 4 * dt
    return f"{MF} {ar(o,4)}, {ar(vf+4*dt,4)}, {vr(preg(buf,t),4)}, {'0' if ZERO[0] else ar(o,4)}"

def rs1(buf, t):
    l = ar(aL + 4 * t, 4) if t < 4 else vr(vL4, 4)
    return f"{MF} {l}, {vr(vOne,4)}, {vr(preg(buf,t),4)}, {'0' if ZERO[0] else l}"

def pv_mfmas(T, buf, vf=aVf):
    return [pv1(buf, t, dt, vf) for dt in range(8) for t in range(T)] + ([rs1(buf, t) for t in range(min(T, NRS))] if RS else [])

def zero_mfmas(T):
    return [f"v_mfma_f32_32x32x16_bf16 {ar(aO+16*i,16)}, {vr(vP+28,4)}, {vr(vP+28,4)}, 0" for i in range(2 * T)]

def k_reads(slot, kf=None):
    kf = aKf if kf is None else kf
    return [f"ds_read_b128 {ar(kf+4*(a*4+s),4)}, v{vKa+s} offset:{slot*16384+a*8192}" for a in range(2) for s in range(4)]

def v_reads(slot, vf=aVf):
    return [f"ds_read_b64_tr_b16 {ar(vf+4*dt+2*a,2)}, v{vVa+dt} offset:{slot*16384+a*8192}" for dt in range(8) for a in range(2)]

def m0set(off):
    return f"s_add_u32 m0, s{sWB}, {off}" if off else f"s_mov_b32 m0, s{sWB}"
def ldv(j, so):
    return f"buffer_load_dwordx4 v{vDV+j}, s[{sV}:{sV+3}], s{so} offen" + (f" offset:{j*1024}" if j else "") + f"{LD} lds"
def ldk(j, so):
    return f"buffer_load_dwordx4 v{vDK+j}, s[{sK}:{sK+3}], s{so} offen offset:{2048+j*1024}{LD} lds"

def dma(slot):
    return [m0set(slot * 16384),
            f"s_add_u32 s{sOff}, s{sOff}, {TILEB}",
            f"s_add_u32 s{sOffK}, s{sOffK}, {TILEB}",
            ldv(0, sOff), ldv(1, sOff), ldk(0, sOffK), ldk(1, sOffK)]

CHK = f"v_cmp_ne_u32 vcc, 0, v{vX}" if RS else f"v_cmp_lt_f32 vcc, s{sThr}, v{vX}"
ERING = [vE, vE + 2, vX + 4, vX + 6]
def softmax_ops(T, buf, full=True, R=4, t0=0):
    exps, sims = [], []
    done_after = []
    n = 4 * T
    for k in range(n):
        t, kk = divmod(k, 4)
        t = T - 1 - t + t0
        a = ERING[k % R]; b = a + 1
        need = done_after[k - R] if k >= R else 0
        exps += [(f"v_exp_f32 v{a}, v{sreg(buf,t)+2*kk}", need), (f"v_exp_f32 v{b}, v{sreg(buf,t)+2*kk+1}", need)]
        p = preg(buf, t) + kk
        u = (vP + 36 if T == 1 else vX + 3) if RS else (vU if k & 1 else vU2)
        ne = 2 * k + 2
        if RS:
            sims.append((f"v_perm_b32 v{p}, v{b}, v{a}, s{sN}" if opts.get("perm") else f"v_cvt_pk_bf16_f32 v{p}, v{a}, v{b}", ne))
            if t >= NRS:
                pt, lt = vL4 + 2 * (t - 3), vL4 + 2 * (t - 3) + 1
                if kk == 0:
                    if full: sims.append((f"v_add_f32 v{lt}, v{lt}, v{pt}", 0))
                    sims.append((f"v_add_f32 v{pt}, v{a}, v{b}", ne))
                else:
                    sims.append((f"v_add_f32 v{u}, v{a}, v{b}", ne))
            done_after.append(len(sims))
            if t >= NRS and kk: sims.append((f"v_add_f32 v{pt}, v{pt}, v{u}", ne))
            if full and (k & 1) and not NOCHK[0]:
                sims.append((f"v_or_b32 v{vAc}, v{p-1}, v{p}" if k == 1 else f"v_or3_b32 v{vAc}, v{vAc}, v{p-1}, v{p}", ne))
        elif kk == 0:
            if full: sims.append((f"v_add_f32 v{vL+t}, v{vL+t}, v{vT+t}", 0))
            sims += [(f"v_cvt_pk_bf16_f32 v{p}, v{a}, v{b}", ne), (f"v_add_f32 v{vT+t}, v{a}, v{b}", ne)]
            done_after.append(len(sims))
        else:
            sims += [(f"v_add_f32 v{u}, v{a}, v{b}", ne), (f"v_cvt_pk_bf16_f32 v{p}, v{a}, v{b}", ne)]
            done_after.append(len(sims))
            sims.append((f"v_add_f32 v{vT+t}, v{vT+t}, v{u}", ne))
    if full and RS and NOCHK[0]:
        pass
    elif full and RS:
        sims += [(f"v_and_b32 v{vX}, 0x40004000, v{vAc}", 2 * n), (CHK, 2 * n)]
    elif full:
        m = [vT + t for t in range(T)]
        cur = m.pop(0)
        while m:
            if len(m) >= 2:
                sims.append((f"v_max3_f32 v{vX}, v{cur}, v{m[0]}, v{m[1]}", 2 * n)); m = m[2:]
            else:
                sims.append((f"v_max_f32 v{vX}, v{cur}, v{m[0]}", 2 * n)); m = []
            cur = vX
        sims.append((f"v_cmp_lt_f32 vcc, s{sThr}, v{cur}", 2 * n))
    return exps, sims

class SM:
    def __init__(s, T, buf, full=True, t0=0, R=4):
        s.ex, s.si = softmax_ops(T, buf, full, R, t0)
        s.i = s.j = 0
        s.last_exp = False
    def left(s): return 8 * (len(s.ex) - s.i) + 4 * (len(s.si) - s.j)
    def can_exp(s): return s.i < len(s.ex) and s.ex[s.i][1] <= s.j
    def can_sim(s):
        if s.j >= len(s.si): return False
        need = s.si[s.j][1]
        return need < s.i or (need == s.i and not s.last_exp)
    def exp(s): s.i += 1; s.last_exp = True; return s.ex[s.i - 1][0]
    def sim(s): s.j += 1; s.last_exp = False; return s.si[s.j - 1][0]
    def other(s): s.last_exp = False
    def any(s):
        if s.can_sim() and (s.si[s.j][1] <= s.i - 2 or not s.can_exp()): return s.sim()
        if s.can_exp(): return s.exp()
        if s.can_sim(): return s.sim()
        s.last_exp = False
        return "s_nop 0"
    def take(s, n): return [s.any() for _ in range(n) if s.left()]
    def rest(s):
        r = []
        while s.left(): r.append(s.any())
        return r

def is_mem(x): return x.startswith("ds_") or x.startswith("buffer_")

def pack(mf, fixed, sm=None, novalu=(), keep=0, cap=8):
    n = len(mf)
    def fcost(l):
        c = 0; ns = 0; nm = 0
        for x in l:
            if x.endswith(":"): continue
            if is_mem(x): c += 8 if nm else 4; nm += 1
            elif x.startswith("s_"): c += 4 if (ns or nm) else 0; ns += 1
            else: c += 4
        return c
    fc = [fcost(fixed.get(g, [])) for g in range(n)]
    out = []
    for g in range(n):
        out.append(mf[g])
        out += fixed.get(g, [])
        if sm is None: continue
        sm.other()
        if g in novalu: continue
        rem = [k for k in range(g, n) if k not in novalu]
        last = g == rem[-1]
        used = fc[g]
        while sm.left() > keep:
            later = sum(max(0, cap - fc[k]) for k in rem[1:])
            over = sm.left() - keep - later
            room = cap - used
            if room <= 0:
                if not last and over * 1.0 < 4 * 1.0 + 0 : break
                if not last and (used - cap + 4) * len(rem) > over + (used - cap) + 2 * len(rem): break
            nexp = len(sm.ex) - sm.i
            full_later = sum(1 for k in rem[1:] if cap - fc[k] >= 8)
            if room >= 8 and sm.can_exp() and (not sm.can_sim() or nexp > full_later * opts.get("eb", 70) // 100 or sm.si[sm.j][1] > sm.i - 4):
                out.append(sm.exp()); used += 8
            elif sm.can_sim():
                out.append(sm.sim()); used += 4
            elif sm.can_exp() and (room >= 8 or last or nexp + opts.get("slk", 1) > full_later or over > 0):
                out.append(sm.exp()); used += 8
            else:
                if last: out.append(sm.any()); used += 4
                else: break
    return out

STUBS = []
SPINS = []
def check_rare(buf, tag):
    e(f"s_cbranch_vccnz Lrare_{tag}")
    lab(f"Lback_{tag}")
    STUBS.append((tag, buf))

def spread(items, gaps):
    d = {}
    gaps = list(gaps)
    for i, x in enumerate(items):
        d.setdefault(gaps[i * len(gaps) // len(items)], []).append(x)
    return d

def merge(*ds):
    r = {}
    for d in ds:
        for k, v in d.items():
            r.setdefault(k, []).extend(v)
    return r

def interleave(a, b):
    out = []
    if not a: return list(b)
    j = 0
    for i, x in enumerate(a):
        out.append(x)
        nj = (i + 1) * len(b) // len(a)
        out += b[j:nj]; j = nj
    return out

CNT = f"s_sub_u32 s{sCnt}, s{sCnt}, 1"

def place(items, gaps):
    groups = []
    cur = []
    for x in items:
        cur.append(x)
        if is_mem(x): groups.append(cur); cur = []
    if cur: groups.append(cur)
    gaps = list(gaps)
    d = {}
    for i, gr in enumerate(groups):
        d.setdefault(gaps[i * len(gaps) // len(groups)], []).extend(gr)
    return d

def qgroup(g, dyn=True):
    r = [f"s_add_u32 m0, s{sQW}, {g*4096}" if g else f"s_mov_b32 m0, s{sQW}",
         f"s_add_u32 s{sT0}, s{sQoffn}, {g*16*ROWB}"]
    if g >= 2 and dyn:
        r += [f"s_cmp_gt_u32 s{sTn}, {g}", f"s_cselect_b32 s{sT0}, s{sT0}, s{sBig}"]
    r += [f"buffer_load_dwordx4 v{vQd+i}, s[{sQ}:{sQ+3}], s{sT0} offen offset:{i*1024}{LDQ} lds" for i in range(4)]
    return r

def step(T, t, prod=False, fast=False):
    p = t % 4
    b = t % 2
    h = 8 * T
    ZERO[0] = prod
    mf = qk_mfmas(T, b ^ 1) + pv_mfmas(T, b ^ 1)
    ZERO[0] = False
    kr = k_reads((t + 2) % 4)
    d = dma((t + 1) % 4)
    NOCHK[0] = bool(fast)
    sm = SM(T, b)
    NOCHK[0] = False
    n = len(mf)
    vrd = v_reads((t + 1) % 4)
    vm = opts.get('vm', 8)
    end = [CNT] if (prod or fast) else [CNT, "s_cselect_b64 vcc, -1, vcc"]
    bw = f"s_waitcnt vmcnt({vm}) lgkmcnt(0)"
    tight = T >= opts.get("tt", 3)
    SPIN = None
    if fast and T >= opts.get("sb", 9):
        ve, gx, gr, gy = {5: (24, 29, 44, 50), 4: (20, 25, 37, 43), 3: (16, 20, 26, 31)}[T]
        gr += opts.get("sbo", 0); gy += opts.get("sbo", 0)
        SPIN = f"{T}_{p}{'z' if prod else ''}"
        kd = [kr[0], kr[1], d[3], kr[2], kr[3], kr[4], d[4], kr[5], kr[6], kr[7], d[5]]
        fixed = merge(place(vrd, range(0, ve)),
                      {gx - 3: [d[0], f"v_add_u32 v{vSeq}, 1, v{vSeq}"], gx - 2: [d[1]], gx - 1: [d[2]],
                       gx: [bw, f"ds_write_b32 v{vOr}, v{vSeq}"], gr: [f"ds_read_b32 v{vFl}, v{vSr}"],
                       gy - 1: ["s_waitcnt lgkmcnt(0)", f"v_cmp_lt_u32 vcc, v{vFl}, v{vSeq}"],
                       gy: [f"s_cbranch_vccnz Lsp{SPIN}", f"Lspb{SPIN}:"]},
                      place(kd, range(gy + 1, n - 6)),
                      {n - 4: [end[0], d[6]], n - 2: ["s_waitcnt lgkmcnt(0)"]})
        nov = (gx, gy, n - 1)
        SPINS.append(SPIN)
    elif tight:
        kd = [kr[0], kr[1], d[3], kr[2], kr[3], d[4], kr[4], kr[5], kr[6], d[5], kr[7]]
        fixed = merge(place(vrd, range(0, h - 6)),
                      {h - 5: [d[0]], h - 4: [d[1]], h - 3: [d[2]], h - 2: [bw], h - 1: ["s_barrier"]},
                      place(kd, range(h, n - 7)),
                      {n - 5: [d[6]], n - 4: [end[0]], n - 3: ["s_waitcnt lgkmcnt(0)"], n - 2: end[1:]})
        nov = (h - 1, n - 1) if fast else (h - 1, n - 2, n - 1)
    elif T >= 3:
        kd = [kr[0], kr[1], d[3], kr[2], kr[3], d[4], kr[4], kr[5], d[5], kr[6], kr[7], d[6]]
        fixed = merge(place(vrd, range(0, h - 5)),
                      {h - 1: [bw, "s_barrier"]},
                      {h - 4: [d[0]], h - 3: [d[1]], h - 2: [d[2]]},
                      place(kd, range(h, n - 3)),
                      {n - 2: [end[0]], n - 1: end[1:]})
        nov = (h - 1, n - 1)
    else:
        kd = [kr[0], kr[1], d[3], kr[2], kr[3], kr[4], d[4], kr[5], kr[6], kr[7], d[5]]
        fixed = merge(place(vrd, range(0, 12)),
                      {h - 1: [bw, "s_barrier"]},
                      {h - 4: [d[0]], h - 3: [d[1]], h - 2: [d[2]]},
                      place(kd, range(h, n - 5)),
                      {n - 2: [end[0], d[6]], n - 1: end[1:]})
        nov = (h - 1, n - 1)
    if prod or not tight: e("s_waitcnt lgkmcnt(0)")
    body = pack(mf, fixed, sm, nov)
    if DG and not prod:
        body = [x for x in body if not (("d" in DG and x.startswith("buffer_load")) or ("b" in DG and x.startswith("s_barrier"))
                or ("l" in DG and x.startswith("ds_read")) or ("w" in DG and x.startswith("s_waitcnt"))
                or ("v" in DG and x.startswith(("v_exp", "v_cvt", "v_or"))))]
    if opts["e64"]:
        body = [x.replace("v_exp_f32 ", "v_exp_f32_e64 ").replace("v_add_f32 ", "v_add_f32_e64 ").replace("v_max_f32 ", "v_max_f32_e64 ") for x in body]
    emit(body)
    assert sm.left() == 0
    if fast:
        if not prod and TAILS.get((T, (p + 1) % 4)): e(f"s_cbranch_scc1 Lxt{T}_{p}")
    elif prod:
        check_rare(b, f"t{T}p{p}")
    else:
        e(f"s_cbranch_vccnz Lx{T}_{p}")
        lab(f"Lxb{T}_{p}")

def exit_stub(T, p):
    lab(f"Lx{T}_{p}")
    e(CHK)
    check_rare(p % 2, f"x{T}_{p}")
    if TAILS.get((T, (p + 1) % 4)):
        e(f"s_cbranch_scc1 Lx{'s' if T2 else 't'}{T}_{p}")
    e(f"s_branch Lxb{T}_{p}")

T2 = opts.get("t2", 1)
def tails(T, p, safe=False):
    np_ = (p + 1) % 4
    nx = sorted(TAILS.get((T, np_), ()))
    if not nx: return
    pre = "Ltail" if (safe or not T2) else "Lft"
    lab(f"Lx{'s' if safe else 't'}{T}_{p}")
    for tn in nx[1:]:
        e(f"s_cmp_lg_u32 s{sD1n}, 0")
        e(f"s_cbranch_scc1 {pre}{T}_{np_}_{tn}")
    for tn in nx:
        (tail if (safe or not T2) else tail2)(T, np_, tn)

def tail2(T, p, tn):
    b = p % 2
    lab(f"Lft{T}_{p}_{tn}")
    if opts.get("enc"): e("s_memrealtime s[78:79]")
    stamp(3); stamp(4)
    if opts["stamp"]:
        e(f"s_memrealtime s[{sST+12}:{sST+13}]")
        B0 = vQ
        stamp_store(False, vQ)
    e("s_waitcnt lgkmcnt(0)")
    ops = []
    def add(l, **k):
        r = [Op(x, **k) for x in l if not x.startswith("s_nop")]
        ops.extend(r); return r
    add(v_reads((p + 1) % 4))
    W0 = Op("s_waitcnt vmcnt(0)", vmwait="old", tmin=opts.get("tw", 120)); ops.append(W0)
    B1 = add(["s_barrier"], after=[W0])[0]
    add(v_reads((p + 2) % 4, aKf), after=[B1])
    if tn: add(sum(next_loads(tn), []), after=[B1], tag="n")
    add([f"v_xor_b32 v{vOA+dt}, {dt*32}, v{vOw}" for dt in range(8)])
    npk = T - opts.get("npk", 9)
    lreg = []
    prev_reads = []
    for t in range(T):
        s0, pp = sreg(b, t), preg(b, t)
        add([f"v_exp_f32 v{s0+i}, v{s0+i}" for i in range(8)])
        add([f"v_cvt_pk_bf16_f32 v{pp+k}, v{s0+2*k}, v{s0+2*k+1}" for k in range(4)])
        lx = vX + 8 + t if t < 4 else vX + 2
        if t >= NRS:
            pt, lt = vL4 + 2 * (t - 3), vL4 + 2 * (t - 3) + 1
            add([f"v_add_f32 v{lt}, v{lt}, v{pt}"] + [f"v_add_f32 v{s0+2*k}, v{s0+2*k}, v{s0+2*k+1}" for k in range(4)] +
                [f"v_add_f32 v{s0}, v{s0}, v{s0+2}", f"v_add_f32 v{s0+4}, v{s0+4}, v{s0+6}", f"v_add_f32 v{lt}, v{lt}, v{s0}",
                 f"v_add_f32 v{lx}, v{lt}, v{s0+4}"] + xlane("v_add_f32", [lx], pt))
        else:
            add([rs1(b ^ 1, t), rs1(b, t)])
            add([f"v_accvgpr_read_b32 v{lx}, a{aL+4*t}" if t < 4 else f"v_mov_b32 v{lx}, v{vL4}"])
        lreg.append(lx)
        add([f"v_rcp_f32 v{vLI+2*t}, v{lx}"])
        add([pv1(b ^ 1, t, dt, aVf) for dt in range(8)])
        add([pv1(b, t, dt, aKf) for dt in range(8)])
        if t == T - 1:
            m = list(lreg); cur = m.pop(0)
            while m:
                if len(m) >= 2: add([f"v_max3_f32 v{vFl}, v{cur}, v{m[0]}, v{m[1]}"]); m = m[2:]
                else: add([f"v_max_f32 v{vFl}, v{cur}, v{m[0]}"]); m = []
                cur = vFl
            add([f"v_cmp_le_f32 vcc, s{sLim}, v{vFl}", f"s_or_b32 s{sM+6}, vcc_lo, vcc_hi", f"v_mov_b32 v{vFl}, s{sM+6}"])
            fw = add([f"ds_write_b32 v{vQa}, v{vFl} offset:16384"])[0]; fw.w = {("x", 1)}
            B2 = add(["s_barrier"], after=[B1], reads={("x", 1)})[0]
            add([f"ds_read_b32 v{vX}, v{vFr}"], after=[B2])
            add([f"v_cmp_ne_u32 vcc, 0, v{vX}"], bonus=opts.get("fb", 0))
        x = vQ + 32 * (t & 1)
        wr = []
        for dt in range(8):
            y = x + 4 * dt
            lk = opts.get("lk", 2)
            add([f"v_accvgpr_read_b32 v{y+i}, a{aO+32*t+4*dt+i}" for i in range(4)],
                after=(wr[(dt // lk - 1) * lk:(dt // lk) * lk] if (t == T - 1 and dt >= opts.get("l0", 9)) else []))
            if t >= npk:
                add([f"v_pk_mul_f32 {vr(y+i,2)}, {vr(y+i,2)}, {vr(vLI+2*t,2)} op_sel_hi:[1,0]" for i in (0, 2)])
            else:
                add([f"v_mul_f32 v{y+i}, v{y+i}, v{vLI+2*t}" for i in range(4)])
            add([f"v_cvt_pk_bf16_f32 v{y}, v{y}, v{y+1}", f"v_cvt_pk_bf16_f32 v{y+1}, v{y+2}, v{y+3}"])
            wr += add([f"ds_write_b64 v{vOA+dt}, {vr(y,2)}"], after=prev_reads)
        prev_reads = add([f"ds_read_b128 {ar(aO+32*t+4*i,4)}, v{vOr} offset:{i*1024}" for i in range(4)], after=wr)
        add([f"s_add_u32 s{sM+t}, s{sOoff}, {t*16*ROWB}"])
        add([f"buffer_store_dwordx4 {ar(aO+32*t+4*i,4)}, v{vQd+i}, s[{sOut}:{sOut+3}], s{sM+t} offen offset:{i*1024}{ST}" for i in range(4)], tag="s")
    q = ["old"] * 4 + ["x"] * (8 + (2 if opts["stamp"] == 1 else 0))
    out, est = schedule(ops, q, verbose=bool(opts.get("verb")), betas=(40, 64, 96), gammas=(0, 2))
    emit(out)
    e("s_cbranch_vccnz Lrestart")
    if tn:
        e(f"s_mov_b32 s{sFirst}, 0")
        e(f"s_waitcnt vmcnt({4*T})")
        e("s_branch Lstart")
    else:
        e("s_branch Ldone")

def safe_loop(T):
    lab(f"Lsafe{T}")
    step(T, 1, True)
    lab(f"Lsloop{T}")
    for t in (2, 3, 4, 5):
        step(T, t)
    e(f"s_branch Lsloop{T}")
    for p in range(4):
        exit_stub(T, p)
    if T2:
        for p in range(4):
            tails(T, p, True)
        epilogue(T)

def ktile(u):
    return [m0set(u * 16384), f"s_add_u32 s{sT0}, s{sD0}, {(u-1)*TILEB}", ldk(0, sT0), ldk(1, sT0)]
def vtile(u):
    so = sLast if u == 0 else sD0
    return [m0set(((u + 2) % 4) * 16384), "s_nop 0", ldv(0, so), ldv(1, so)]
def next_k0():
    return [m0set(0), f"s_add_u32 s{sK+2}, s{sNRn}, 4096", ldk(0, sLastn), ldk(1, sLastn)]
def next_k1():
    return [m0set(16384), "s_nop 0", ldk(0, sD0n), ldk(1, sD0n)]

def tail(T, p, tn):
    b = p % 2
    lab(f"Ltail{T}_{p}_{tn}")
    if opts.get("enc"): e("s_memrealtime s[78:79]")
    stamp(3)
    if opts["stamp"]: e("s_waitcnt lgkmcnt(0)")
    vrd = v_reads((p + 1) % 4)
    vrd2 = v_reads((p + 2) % 4, aKf)
    sm = SM(T, b)
    mf = pv_mfmas(T, b ^ 1)
    o = min(T, NRS) if RS else 0
    if RS: mf = mf[-o:] + mf[:-o]
    rsm, mf = mf[:o], mf[o:]
    emit(interleave(rsm, vrd[:o]) + vrd[o:])
    m = []
    for t in range(T):
        x = vX + 8 + t if t < 4 else vX + 2
        if t >= NRS: e(f"v_add_f32 v{x}, v{vL4+2*(t-3)}, v{vL4+2*(t-3)+1}")
        elif t < 4: e(f"v_accvgpr_read_b32 v{x}, a{aL+4*t}")
        m.append(x if (t < 4 or t >= NRS) else vL4)
    cur = m.pop(0)
    while m:
        if len(m) >= 2:
            e(f"v_max3_f32 v{vFl}, v{cur}, v{m[0]}, v{m[1]}"); m = m[2:]
        else:
            e(f"v_max_f32 v{vFl}, v{cur}, v{m[0]}"); m = []
        cur = vFl
    e(f"v_cmp_le_f32 vcc, s{sLim}, v{vFl}")
    emit(sm.take(2))
    e("s_cmp_lg_u64 vcc, 0")
    e(f"s_cselect_b32 s{sT0}, 1, 0")
    e(f"s_andn2_b32 s{sT0}, s{sT0}, s{sSafe}")
    e(f"v_mov_b32 v{vFl}, s{sT0}")
    e(f"ds_write_b32 v{vQa}, v{vFl} offset:16384")
    emit(sm.take(opts.get("tk", 16)))
    e("s_waitcnt vmcnt(8) lgkmcnt(0)")
    e("s_barrier")
    fixed = place([f"ds_read_b32 v{vFl}, v{vFr}"] + vrd2, range(len(mf) - 2))
    if tn:
        fixed = merge(fixed, place(sum(next_loads(tn), []) if WARM else next_loads(tn)[0], range(len(mf))))
    emit(pack(mf, fixed, sm))
    assert sm.left() == 0
    check_rare(b, f"t{T}t{p}_{tn}")
    e("s_waitcnt lgkmcnt(8)")
    e(f"v_cmp_ne_u32 vcc, 0, v{vFl}")
    e("s_cbranch_vccnz Lrestart")
    fin(T, b, tn)

WARM = opts.get("warm", 0)
def warm_loads():
    r = [m0set(2 * 16384), f"s_add_u32 s{sT0}, s{sD0n}, {TILEB}", ldk(0, sT0), ldk(1, sT0),
         f"s_add_u32 m0, s{sQW}, {3*4096}", f"s_mov_b32 s{sV+2}, s{sNRn}", ldv(0, sLastn), ldv(1, sLastn)]
    if WARM >= 2: r += [x.replace(LDQ + " lds", " lds") for x in qgroup(2)]
    return r

def next_loads(tn):
    return next_k0() + qgroup(0, False), qgroup(1, False) + next_k1()

def xlane(op, regs, tmp):
    r = []
    for sw in ("v_permlane32_swap_b32", "v_permlane16_swap_b32"):
        r += [f"v_mov_b32 v{tmp+i}, v{x}" for i, x in enumerate(regs)]
        r += ["s_nop 1"]
        r += [f"{sw} v{x}, v{tmp+i}" for i, x in enumerate(regs)]
        r += ["s_nop 1"]
        r += [f"{op} v{x}, v{x}, v{tmp+i}" for i, x in enumerate(regs)]
    return r

vOA = vNM
vLI = vNM + 8
def epi_acc(t):
    return [f"v_accvgpr_read_b32 v{vQ+i}, a{aO+32*t+i}" for i in range(32)]
def epi_cvt(t):
    r = [f"v_pk_mul_f32 {vr(vQ+2*i,2)}, {vr(vQ+2*i,2)}, {vr(vLI+2*(t//2),2)} " +
         ("op_sel:[0,1] op_sel_hi:[1,1]" if t & 1 else "op_sel_hi:[1,0]") for i in range(16)]
    r += [f"v_cvt_pk_bf16_f32 v{vQ+32+16*(t&1)+i}, v{vQ+2*i}, v{vQ+2*i+1}" for i in range(16)]
    return r
def epi_writes(t):
    return [f"ds_write_b64 v{vOA+dt}, {vr(vQ+32+16*(t&1)+2*dt,2)}" for dt in range(8)]
def epi_reads(t):
    return [f"ds_read_b128 {vr(vS+16*t+4*i,4)}, v{vOr} offset:{i*1024}" for i in range(4)]
def epi_stores(t):
    return [f"s_add_u32 s{sT0}, s{sOoff}, {t*16*ROWB}"] + \
           [f"buffer_store_dwordx4 {vr(vS+16*t+4*i,4)}, v{vQd+i}, s[{sOut}:{sOut+3}], s{sT0} offen offset:{i*1024}{ST}" for i in range(4)]

def fin(T, b, tn):
    if not RS: e("s_waitcnt lgkmcnt(0)")
    mf = [pv1(b, t, dt, aKf) for t in range(T) for dt in range(8)]
    regs = [vL + t for t in range(T)]
    xo = [f"v_xor_b32 v{vOA+dt}, {dt*32}, v{vOw}" for dt in range(8)] if not opts["epi"] else ["s_nop 0"]
    if RS:
        nr = min(T, NRS)
        mf = [rs1(b, t) for t in range(nr)] + mf
        src = lambda t: (vX + t if t < NRS else vL4 + 2 * (t - 3) + 1)
        ad = [src(t) for t in range(nr, T)]
        if ad: xo = [f"v_add_f32 v{x}, v{x}, v{x-1}" for x in ad] + xlane("v_add_f32", ad, vX + 6) + xo
        ls = [f"v_accvgpr_read_b32 v{vX+t}, a{aL+4*t}" if t < 4 else f"v_mov_b32 v{vX+t}, v{vL4}" for t in range(nr)] + \
             [f"v_rcp_f32 v{vLI+t}, v{src(t)}" for t in range(T)] + epi_acc(0)
        fixed = merge({nr - 1: ["s_waitcnt lgkmcnt(6)"], nr + 4: ["s_waitcnt lgkmcnt(0)"]},
                      spread(xo, range(nr + 8)), spread(ls, range(nr + 8, len(mf))))
    else:
        ls = [f"v_add_f32 v{vL+t}, v{vL+t}, v{vT+t}" for t in range(T)] + xlane("v_add_f32", regs, vX) + \
             [f"v_rcp_f32 v{vLI+t}, v{vL+t}" for t in range(T)] + xo + epi_acc(0)
        fixed = spread(ls, range(len(mf)))
    if tn: fixed = merge(place(warm_loads() if WARM else next_loads(tn)[1], range(len(mf))), fixed)
    emit(pack(mf, fixed))
    e(f"s_branch Lepi{T}")

def first_max(t):
    s0 = sreg(0, t)
    m = vX + 2
    r = [f"v_max3_f32 v{m}, v{s0}, v{s0+1}, v{s0+2}", f"v_max3_f32 v{m}, v{m}, v{s0+3}, v{s0+4}",
         f"v_max3_f32 v{m}, v{m}, v{s0+5}, v{s0+6}", f"v_max_f32 v{m}, v{m}, v{s0+7}"]
    r += xlane("v_max_f32", [m], vX + 3)
    if RS: r += [f"v_add_f32 v{m}, s{sThr}, v{m}"]
    r += [f"v_sub_f32 v{vNM+4*t+i}, 0, v{m}" for i in range(4)]
    r += [f"v_sub_f32 v{s0+i}, v{s0+i}, v{m}" for i in range(8)]
    return r

def qraw(t, k=0):
    return vQ + 16 * t + k if t < 4 else sreg(k // 8, 4) + k % 8
def prescale(t):
    r = []
    for k in range(0, 16, 2):
        q = qraw(t, k)
        for i in range(2):
            r += [f"v_lshlrev_b32 v{vX+2*i}, 16, v{q+i}", f"v_and_b32 v{vX+2*i+1}, 0xffff0000, v{q+i}"]
        for i in range(2):
            r += [f"v_pk_mul_f32 {vr(vX+2*i,2)}, {vr(vX+2*i,2)}, s[{sThr}:{sC}] op_sel:[0,1] op_sel_hi:[1,1]"]
        for i in range(2):
            r += [f"v_cvt_pk_bf16_f32 v{q+i}, v{vX+2*i}, v{vX+2*i+1}"]
        if t == 4: r += [f"v_accvgpr_write_b32 a{aQ+k+i}, v{q+i}" for i in range(2)]
    return r

def first_only(lines):
    i = len(L)
    e(f"s_cmp_eq_u32 s{sFirst}, 0")
    e(f"s_cbranch_scc1 Lw{i}")
    emit(lines)
    lab(f"Lw{i}")

def nvm(l): return sum(x.startswith("buffer") for x in l)

vMK = vP + 20
def weave(mfs, valu, mem):
    d = place(mem, range(len(mfs))) if mem else {}
    out = []
    j = 0
    nops = [i for i, x in enumerate(valu) if x == "s_nop 1"]
    if nops and len(mfs) > len(nops):
        extra = len(mfs) - len(nops)
        free = [i for i in range(len(valu)) if i not in nops and i - 1 not in nops]
        head = [0, 2][:min(2, extra)]
        tailp = [i for i in free if i > nops[-1] + 1]
        more = [tailp[k * len(tailp) // (extra - len(head))] for k in range(extra - len(head))]
        cuts = sorted(set(nops + head + more))
        assert len(cuts) == len(mfs)
        k = 0
        for i, x in enumerate(valu):
            if i in cuts:
                out.append(mfs[k])
                m = d.get(k, []); k += 1
                if x == "s_nop 1":
                    out += m if m else ["s_nop 0"]
                    continue
                out += m
            out.append(x)
        return out
    for i, x in enumerate(mfs):
        out.append(x)
        out += d.get(i, [])
        nj = (i + 1) * len(valu) // len(mfs)
        out += valu[j:nj]; j = nj
    return out

def bf16bits(x):
    u = f32bits(x)
    return (u + 0x7FFF + ((u >> 16) & 1)) >> 16
CSC = 128 ** -0.5 * math.log2(math.e)
CHI = bf16bits(CSC)
CLO = bf16bits(CSC - struct.unpack("<f", struct.pack("<I", CHI << 16))[0])

def prologue2(T):
    lab(f"Lpro{T}")
    vCA = vP + 28
    adr = [vX + 8 + s for s in range(4)], [vP + 32 + s for s in range(4)]
    ops = []
    def add(l, **k):
        r = [Op(x, **k) for x in l if not x.startswith("s_nop")]
        ops.extend(r); return r
    def qcur(g):
        return [x.replace(f"s{sQoffn}", f"s{sOoff}").replace(f"s[{sQ}:{sQ+3}]", f"s[{sQc}:{sQc+3}]") for x in qgroup(g, False)]
    def vmw(tag, first, after, tmin):
        i = len(L) * 1000 + len(ops)
        lines = [f"s_cmp_eq_u32 s{sFirst}, 0", f"s_cbranch_scc1 Lw{i}", "@W", f"Lw{i}:"] if first else None
        o = Op("s_waitcnt vmcnt(0)", vmwait=tag, lines=lines, after=after, tmin=tmin); ops.append(o); return o
    t0, dt = opts.get("qt0", 100), opts.get("qdt", 300)
    add([f"v_xor_b32 v{adr[0][s]}, {s*64}, v{vQa}" for s in range(4)] + [f"v_add_u32 v{adr[1][s]}, 8, v{adr[0][s]}" for s in range(4)])
    add([f"v_mul_u32_u24 v{vCA}, {CHI}, v{vM01}", f"v_mul_u32_u24 v{vCA+1}, {CHI}, v{vM23}",
         f"v_mul_u32_u24 v{vCA+2}, {CLO}, v{vM01}", f"v_mul_u32_u24 v{vCA+3}, {CLO}, v{vM23}"])
    add([f"v_sub_u32 v{vX}, s{sRem}, v{vG4}", f"v_mov_b32 v{vX+1}, s{sNeg}"])
    for a in range(2):
        add([f"v_cmp_lt_i32 s[{sM+2*i}:{sM+2*i+1}], {16*a+i}, v{vX}" for i in range(4)])
        add([f"v_cndmask_b32 v{vMK+4*a+i}, v{vX+1}, 0, s[{sM+2*i}:{sM+2*i+1}]" for i in range(4)])
    add([f"v_mov_b32 v{vL4+2*(t-3)+1}, 0" for t in range(NRS, T)])
    qld = {}
    for g in range(2, T):
        qld[g] = add(qcur(g), tag=f"Q{g}", tmin=(g - 2) * 260)
    W = {0: vmw("Q0", True, qld.get(2, [])[-1:], t0)}
    W[1] = vmw("K1", True, [W[0]] + qld.get(3, [])[-1:], t0 + dt)
    B1 = add(["s_barrier"], after=[W[1]])[0]
    kr = add(k_reads(0) + k_reads(1, aVf), after=[B1])
    B2 = add(["s_barrier"], after=[B1], reads={("a", aKf + i) for i in range(64)})[0]
    e1, e2 = (2, 2) if T >= 4 else (1, min(T - 1, opts.get("b3", 1)))
    bulk = {e1: [("K2", ktile(2), B1), ("V0", vtile(0), B1)]}
    bulk.setdefault(e2, []).extend([("K3", ktile(3), B1), ("V1", vtile(1), B1), ("G", dma(0), B2), ("G", dma(1), B2)])
    lastA = None
    tile_all, tile_max = {}, {}
    for t in range(T):
        if t >= 2:
            aft = [W[t - 1], qld[T - 1][-1]]
            if opts.get("lag", 1): aft += tile_all[t - 2]
            if opts.get("lag", 1) and t == T - 1: aft += tile_max[t - 1] if opts.get("lag", 1) == 1 else tile_all[t - 1]
            W[t] = vmw(f"Q{t}", False, aft, t0 + t * dt)
        for tag, l, bar in bulk.get(t, []):
            r = add(l, tag=tag, after=[bar, W[t]])
            if tag == "V0": v0 = r[-1]
        raw = aO + 32 * t
        add([f"ds_read2st64_b64 {ar(raw+4*k,4)}, v{adr[k&1][k>>1]} offset0:{8*t} offset1:{8*t}" for k in range(8)], after=[W[t]])
        for k in range(8):
            d = sreg((k >> 1) & 1, t, k & 1)
            add([f"{MF} {vr(d,4)}, {vr(vCA,4)}, {ar(raw+4*k,4)}, 0"])
            for i in range(2):
                if t < 4:
                    add([f"v_cvt_pk_bf16_f32 v{vQ+16*t+2*k+i}, v{d+2*i}, v{d+2*i+1}"])
                else:
                    add([f"v_cvt_pk_bf16_f32 v{d+2*i}, v{d+2*i}, v{d+2*i+1}", f"v_accvgpr_write_b32 a{aQ+2*k+i}, v{d+2*i}"])
        lastA = add([qk1(0, t, a, s, vMK + 4 * a) for a in range(2) for s in range(4)])[-1]
        fm = first_max(t)
        if t & 1: fm = [x.replace(f"v{vX+2}", f"v{vX}").replace(f"v{vX+3}", f"v{vX+1}") for x in fm]
        tile_max[t] = add(fm)
        cc = add([qk1(1, t, a, s, vNM + 4 * t, aVf) for a in range(2) for s in range(4)])
        dd = SM(1, 0, False, t, 2).rest()
        if t & 1:
            for i in range(4): dd = [x.replace(f"v{vE+i}", f"v{vX+4+i}") for x in dd]
        tile_all[t] = tile_max[t] + cc + add(dd)
    W3 = vmw("V0", False, [v0, lastA, B2] + (tile_max[T - 1] if opts.get("w3", 1) else []), 0)
    B3 = add(["s_barrier"], after=[W3])[0]
    add(k_reads(2), after=[B3], bonus=150)
    q = ["K0"] * 2 + ["Q0"] * 4 + ["Q1"] * 4 + ["K1"] * 2
    out, est = schedule(ops, q, verbose=bool(opts.get("verb")), **({} if opts.get("pb", 0) else {"betas": (10000,)}))
    assert q[-8:] == ["G"] * 8
    emit(out)
    stamp(1)

def prologue(T):
    if opts.get("p2", 1): prologue2(T)
    else: prologue1(T)
    prologue_end(T)

def prologue1(T):
    lab(f"Lpro{T}")
    def qcur(g):
        return [x.replace(f"s{sQoffn}", f"s{sOoff}").replace(f"s[{sQ}:{sQ+3}]", f"s[{sQc}:{sQc+3}]") for x in qgroup(g, False)]
    q = ["K0"] * 2 + ["Q0"] * 4 + ["Q1"] * 4 + ["K1"] * 2
    def younger(tag): return len(q) - 1 - max(i for i, x in enumerate(q) if x == tag)
    for s in range(4):
        e(f"v_xor_b32 v{vX+8+s}, {s*64}, v{vQa}")
    pre = [f"v_sub_u32 v{vX}, s{sRem}, v{vG4}", f"v_mov_b32 v{vX+1}, s{sNeg}"]
    for a in range(2):
        pre += [f"v_cmp_lt_i32 s[{sM+2*i}:{sM+2*i+1}], {16*a+i}, v{vX}" for i in range(4)] + ["s_nop 0"]
        pre += [f"v_cndmask_b32 v{vMK+4*a+i}, v{vX+1}, 0, s[{sM+2*i}:{sM+2*i+1}]" for i in range(4)]
    if not RS: pre += [f"v_mov_b32 v{vL+t}, 0" for t in range(T)]
    else: pre += [f"v_mov_b32 v{vL4+2*(t-3)+1}, 0" for t in range(NRS, T)]
    def qreads(t):
        return [f"ds_read_b128 {vr(qraw(t,4*s),4)}, v{vX+8+s} offset:{t*4096}" for s in range(4)]
    A = lambda t: [qk1(0, t, a, s, vMK + 4 * a) for a in range(2) for s in range(4)]
    C = lambda t: [qk1(1, t, a, s, vNM + 4 * t, aVf) for a in range(2) for s in range(4)]
    def sparse(mem, valu):
        d = place(mem, range(max(1, nvm(mem))))
        out = []; j = 0
        for i in range(len(d)):
            out += d[i]
            nj = (i + 1) * len(valu) // len(d)
            out += valu[j:nj]; j = nj
        return out
    if T > 2:
        emit(sparse(qcur(2), pre)); q += ["Q2"] * 4
        pre = []
    first_only([f"s_waitcnt vmcnt({younger('Q0')})"])
    pstamp(1)
    emit(qreads(0))
    emit(pre)
    e("s_waitcnt lgkmcnt(0)")
    if T > 3:
        emit(sparse(qcur(3), prescale(0))); q += ["Q3"] * 4
    else:
        emit(prescale(0))
    first_only([f"s_waitcnt vmcnt({younger('K1')})"])
    pstamp(2)
    if opts.get("sb", 9) <= 5: e(f"ds_write_b32 v{vOr}, v{vSeq}")
    emit(qreads(1))
    e("s_barrier")
    emit(k_reads(0))
    e("s_waitcnt lgkmcnt(8)")
    ps = prescale(1)
    if T > 4:
        emit(sparse(qcur(4), ps[:32])); q += ["Q4"] * 4
    else:
        emit(ps[:32])
    emit(k_reads(1, aVf))
    e("s_waitcnt lgkmcnt(8)")
    bulk = [("K2", ktile(2)), ("V0", vtile(0)), ("K3", ktile(3)), ("V1", vtile(1)), ("G", dma(0)[:5]), ("G", dma(0)[5:]),
            ("H", dma(1)[:5]), ("H", dma(1)[5:])]
    def takeb(n):
        nonlocal bulk
        r = []
        for tag, l in bulk[:n]:
            r += l; q.extend([tag] * nvm(l))
        bulk = bulk[n:]
        return r
    emit(weave(A(0), [], takeb(1) if T == 2 else []))
    emit(sparse(takeb(1), ps[32:]) if T <= 3 else ps[32:])
    D = lambda t: SM(1, 0, False, t, 2).rest()
    def getq(k):
        e(f"s_waitcnt vmcnt({younger(f'Q{k}')})")
        if k <= 3: pstamp(k + 1)
        emit(qreads(k))
    def bar2():
        e("s_waitcnt lgkmcnt(0)")
        e("s_barrier")
    per = {2: [2, 2, 2], 3: [1, 1, 1, 2, 2], 4: [1, 1, 1, 1, 1, 1, 2], 5: [0, 1, 1, 1, 1, 1, 1, 1, 1]}[T]
    tk = lambda: takeb(per.pop(0))
    for k in range(2, T):
        emit(weave(A(k - 1), first_max(k - 2), tk()))
        if k == 2: bar2()
        if k < T - 1:
            getq(k)
            emit(weave(C(k - 2), D(k - 2), tk()))
        else:
            emit(weave(C(k - 2), first_max(k - 1), tk()))
            emit(D(k - 2))
            getq(k)
            emit(weave(C(k - 1), D(k - 1)[:8], tk()))
        e("s_waitcnt lgkmcnt(0)")
        emit(prescale(k))
    stamp(1)
    if opts["stamp"]: e("s_waitcnt lgkmcnt(0)")
    if T == 2:
        emit(weave(A(1), first_max(0), tk()))
        bar2()
        emit(weave(C(0), D(0), tk()))
    else:
        emit(weave(A(T - 1), D(T - 2)[8:], tk()))
    e(f"s_waitcnt vmcnt({younger('V0')})")
    e("s_barrier")
    emit(k_reads(2))
    emit(first_max(T - 1))
    emit(weave(C(T - 1), D(T - 1), tk()))
    assert not bulk and not per

def prologue_end(T):
    e(CNT)
    e(f"s_cmp_lg_u32 s{sSafe}, 0")
    e(f"s_cbranch_scc1 Lsafe{T}")
    if opts.get("enc"):
        i = len(L)
        e(f"s_cmp_eq_u32 s{sFirst}, 0"); e(f"s_cbranch_scc1 Le{i}"); e("s_memrealtime s[76:77]"); lab(f"Le{i}")
    step(T, 1, True, True)
    stamp(2)
    e(f".p2align {opts['al']}")
    lab(f"Lloop{T}")
    for t in (2, 3, 4, 5):
        step(T, t, False, True)
    e(f"s_branch Lloop{T}")
    for sp in SPINS:
        lab(f"Lsp{sp}")
        e(f"ds_read_b32 v{vFl}, v{vSr}")
        e("s_waitcnt lgkmcnt(0)")
        e(f"v_cmp_lt_u32 vcc, v{vFl}, v{vSeq}")
        e(f"s_cbranch_vccnz Lsp{sp}")
        e(f"s_branch Lspb{sp}")
    SPINS.clear()
    for p in range(4):
        tails(T, p)

def stamp_store(final=False, B=None):
    if not opts["stamp"]: return
    B = vP + 20 if B is None else B
    if opts["stamp"] == 2:
        if not final: return
        e("s_waitcnt lgkmcnt(0)")
        e("s_mov_b32 s92, s90"); e("s_mov_b32 s93, s91"); e("s_mov_b32 s94, 256"); e("s_mov_b32 s95, 0x20000")
        e("s_mov_b64 exec, 1")
        e(f"v_mov_b32 v{B+8}, 0")
        e("s_not_b32 s96, s100"); e(f"v_mov_b32 v{B}, s96")
        e(f"buffer_atomic_umax v{B}, v{B+8}, s[92:95], 0 offen offset:32")
        e(f"v_mov_b32 v{B+1}, s{sST+12}")
        e(f"buffer_atomic_umax v{B+1}, v{B+8}, s[92:95], 0 offen offset:36")
        e(f"v_mov_b32 v{B+2}, s100")
        e(f"buffer_atomic_umax v{B+2}, v{B+8}, s[92:95], 0 offen offset:40")
        e(f"s_lshl_b32 s96, s2, 2"); e(f"s_add_u32 s96, s96, s{sW}")
        e("s_cmp_lg_u32 s96, 32"); e("s_cbranch_scc1 Lnodbg")
        e(f"s_sub_u32 s96, s99, s100"); e(f"v_mov_b32 v{B}, s96")
        e(f"s_sub_u32 s96, s{sST+2}, s97"); e(f"v_mov_b32 v{B+1}, s96")
        for i in range(1, 4):
            e(f"s_sub_u32 s96, s{sST+2*i+2}, s{sST+2*i}"); e(f"v_mov_b32 v{B+1+i}, s96")
        e(f"s_sub_u32 s96, s{sST}, s{sST+8}"); e(f"v_mov_b32 v{B+5}, s96")
        e(f"s_sub_u32 s96, s{sST+12}, s100"); e(f"v_mov_b32 v{B+6}, s96")
        e(f"v_mov_b32 v{B+7}, s100")
        e(f"buffer_store_dwordx4 {vr(B,4)}, v{B+8}, s[92:95], 0 offen")
        e(f"buffer_store_dwordx4 {vr(B+4,4)}, v{B+8}, s[92:95], 0 offen offset:16")
        lab("Lnodbg")
        return
    e("s_waitcnt lgkmcnt(0)")
    e("s_mov_b32 s92, s90"); e("s_mov_b32 s93, s91"); e("s_mov_b32 s94, 0x100000"); e("s_mov_b32 s95, 0x20000")
    e(f"s_lshl_b32 s96, s2, 2"); e(f"s_add_u32 s96, s96, s{sW}"); e("s_lshl_b32 s96, s96, 2")
    if final: e("s_add_u32 s96, s96, 3")
    else: e("s_add_u32 s96, s96, s97"); e("s_add_u32 s97, s97, 1")
    e("s_lshl_b32 s96, s96, 5")
    for i in range(5): e(f"v_mov_b32 v{B+i}, s{sST+2*i}")
    e(f"v_mov_b32 v{B+5}, s{sST+10}"); e(f"v_mov_b32 v{B+6}, s{sST+12}"); e(f"v_mov_b32 v{B+7}, s98")
    e(f"v_mov_b32 v{B+8}, 0")
    e("s_mov_b64 exec, 1")
    e(f"buffer_store_dwordx4 {vr(B,4)}, v{B+8}, s[92:95], s96 offen")
    e(f"buffer_store_dwordx4 {vr(B+4,4)}, v{B+8}, s[92:95], s96 offen offset:16")
    e("s_mov_b64 exec, -1")
    e("s_nop 2")

def epilogue(T):
    lab(f"Lepi{T}")
    stamp(4)
    if opts["stamp"]: e(f"s_memrealtime s[{sST+12}:{sST+13}]")
    if opts.get("pst") != 2: stamp_store()
    estamp(1)
    if opts["epi"]:
        def swaps(t):
            pk = vQ + 32 + 16 * (t & 1)
            return [f"v_permlane16_swap_b32 v{pk+4*j+i}, v{pk+4*j+2+i}" for j in range(4) for i in range(2)]
        def dstores(t):
            pk = vQ + 32 + 16 * (t & 1)
            return [f"buffer_store_dwordx4 {vr(pk+4*j,4)}, v{vOw}, s[{sOut}:{sOut+3}], s{sT0} offen offset:{j*64}{ST}" for j in range(4)]
        emit(epi_cvt(0) + swaps(0))
        for t in range(1, T + 1):
            va = epi_acc(t) + epi_cvt(t) + swaps(t) if t < T else []
            st = dstores(t - 1)
            e(f"s_add_u32 s{sT0}, s{sOoff}, {(t-1)*16*ROWB}")
            if opts["epi"] == 2:
                emit(st[:2] + va[:24] + st[2:] + va[24:])
            else:
                for j in range(4):
                    e(st[j]); emit(va[14 * j:14 * (j + 1)])
                emit(va[56:])
    else:
        epilogue_lds(T)
    epilogue_end(T)

def epilogue_lds(T):
    held = []
    for t in range(T):
        ac, cv, w = epi_acc(t), epi_cvt(t), epi_writes(t)
        if t == T - 1:
            estamp(3)
            if opts.get("pst") == 2: e("s_waitcnt lgkmcnt(0)")
        for qd in range(4):
            if t: emit(ac[8 * qd:8 * qd + 8])
            if qd == 1 and t:
                emit([held.pop(0), "s_waitcnt lgkmcnt(2)"])
            if held and (t > 1 or qd): e(held.pop(0))
            emit(cv[4 * qd:4 * qd + 4] + cv[16 + 4 * qd:16 + 4 * qd + 4] + w[2 * qd:2 * qd + 2])
        emit(epi_reads(t))
        so = sT0 + (t & 1)
        held += [x.replace(f"s{sT0}", f"s{so}") for x in epi_stores(t)]
        if t == 1: estamp(2)
    n = 4
    for i, x in enumerate(held):
        if x.startswith("buffer") and i >= len(held) - 4:
            n -= 1
            e(f"s_waitcnt lgkmcnt({n})")
        e(x)

def epilogue_end(T):
    estamp(4)
    if T in PROD:
        e(f"s_cmp_eq_u32 s{sD1n}, 0")
        e("s_cbranch_scc1 Ldone")
        e(f"s_mov_b32 s{sFirst}, 0")
        e(f"s_mov_b32 s{sSafe}, {opts.get('safe', 0)}")
        e(f"s_waitcnt vmcnt({4*T + (nvm(warm_loads()) if WARM else 0)})")
        e("s_branch Lstart")
    else:
        e("s_branch Ldone")

def gen():
    L.append(open(os.path.join(os.path.dirname(os.path.abspath(__file__)), "header.txt")).read().rstrip())
    L.append(f"; @launch grid=({NWG},1,1) block=(256,1,1) lds={LDSZ}")
    L.append("""; Structure (generated by a script of my own, one workgroup per CU, 4 waves, 512 registers each):
;    with the running-max loop (Lsafe*, rescale in Lresc*), so the result never depends on value ranges.""")
    L.append('.amdgcn_target "amdgcn-amd-amdhsa--gfx950"')
    L.append(".text")
    L.append(f".globl {NAME}_kernel")
    L.append(".p2align 8")
    L.append(f".type {NAME}_kernel,@function")
    lab(f"{NAME}_kernel")
    e(f"s_cmp_ge_u32 s2, {NWG}")
    e("s_cbranch_scc1 Lend")
    e(f"s_getpc_b64 s[{sPC}:{sPC+1}]")
    lab("Lpc")
    e(f"s_add_u32 s4, s{sPC}, Ltab-Lpc")
    e(f"s_addc_u32 s5, s{sPC+1}, 0")
    e("s_lshl_b32 s3, s2, 5")
    e(f"s_load_dwordx8 s[{sJ}:{sJ+7}], s[4:5], s3")
    for srd, off in ((sK, 8), (sQ, 0), (sV, 16), (sOut, 32), (sQc, 0)):
        e(f"s_load_dwordx2 s[{srd}:{srd+1}], s[0:1], {off}")
    if opts["pf"] == 1:
        e(f"v_lshlrev_b32 v1, 7, v0")
        for i in range(2):
            e(f"global_load_dword v{2+i}, v1, s[{sPC}:{sPC+1}]")
            e(f"v_add_u32 v1, 32768, v1")
    elif opts["pf"] == 2:
        e("s_lshr_b32 s3, s2, 3")
        e("s_mul_i32 s3, s3, 2560")
        e("v_lshrrev_b32 v1, 6, v0")
        e("v_mul_u32_u24 v1, 640, v1")
        e("v_and_b32 v2, 7, v0")
        e("v_min_u32 v2, 4, v2")
        e("v_lshl_add_u32 v1, v2, 7, v1")
        e("v_add_u32 v1, s3, v1")
        e("v_min_u32 v1, Lcold-Lpc, v1")
        e(f"global_load_dword v2, v1, s[{sPC}:{sPC+1}]")
    if opts["stamp"]:
        e(f"s_load_dwordx2 s[90:91], s[0:1], {40 if opts['stamp'] == 2 else 48}")
        e("s_memrealtime s[100:101]")
        e("s_mov_b32 s97, 0")
    if opts.get("spin"):
        e("s_memrealtime s[100:101]")
        e("s_load_dwordx2 s[90:91], s[0:1], 40")
    if LIGHT:
        e("s_load_dwordx2 s[90:91], s[0:1], 48")
        e("s_memrealtime s[100:101]")
    w, ln, i16, g, x4, x5, x6 = range(vX, vX + 7)
    e(f"v_lshrrev_b32 v{w}, 6, v0")
    e(f"v_and_b32 v{ln}, 63, v0")
    e(f"v_readfirstlane_b32 s{sW}, v{w}")
    e(f"v_and_b32 v{i16}, 15, v{ln}")
    e(f"v_lshrrev_b32 v{g}, 4, v{ln}")
    e(f"v_xor_b32 v{x6}, v{i16}, v{g}")
    e(f"v_lshlrev_b32 v{x6}, 4, v{x6}")
    mark = len(L)
    e(f"v_bfe_u32 v{x4}, v{ln}, 3, 1")
    e(f"v_lshlrev_b32 v{x4}, 12, v{x4}")
    e(f"v_and_b32 v{x5}, 7, v{ln}")
    e(f"v_lshl_add_u32 v{x4}, v{x5}, 8, v{x4}")
    e(f"v_add3_u32 v{vKa}, v{x4}, v{x6}, 0")
    e(f"v_add_u32 v{vKa}, 2048, v{vKa}")
    for s in range(1, 4):
        e(f"v_xor_b32 v{vKa+s}, {s*64}, v{vKa}")
    e(f"v_mul_u32_u24 v{x4}, {QW}, v{w}")
    e(f"v_lshl_add_u32 v{x4}, v{i16}, 8, v{x4}")
    e(f"v_add3_u32 v{x4}, v{x4}, v{x6}, 0")
    e(f"v_add_u32 v{vQa}, {QS}, v{x4}")
    e(f"v_lshlrev_b32 v{x4}, 12, v{w}")
    e(f"v_add_u32 v{x4}, {OS}, v{x4}")
    e(f"v_lshl_add_u32 v{vOr}, v{ln}, 4, v{x4}")
    e(f"v_lshl_add_u32 v{x4}, v{i16}, 8, v{x4}")
    e(f"v_lshrrev_b32 v{x5}, 1, v{g}")
    e(f"v_xor_b32 v{x5}, v{x5}, v{i16}")
    e(f"v_lshl_add_u32 v{x4}, v{x5}, 4, v{x4}")
    e(f"v_and_b32 v{x5}, 1, v{g}")
    e(f"v_lshl_add_u32 v{vOw}, v{x5}, 3, v{x4}")
    if opts["epi"]:
        e(f"v_lshlrev_b32 v{x4}, 12, v{i16}")
        e(f"v_lshl_add_u32 v{x4}, v{x5}, 5, v{x4}")
        e(f"v_lshrrev_b32 v{vOw}, 1, v{g}")
        e(f"v_lshl_add_u32 v{vOw}, v{vOw}, 4, v{x4}")
    e(f"v_lshrrev_b32 v{x4}, 1, v{g}")
    e(f"v_lshlrev_b32 v{x4}, 12, v{x4}")
    e(f"v_mul_u32_u24 v{x5}, {4*256+32}, v{x5}")
    e(f"v_add_u32 v{x4}, v{x4}, v{x5}")
    e(f"v_lshrrev_b32 v{x5}, 2, v{i16}")
    e(f"v_mul_u32_u24 v{x5}, {256+64}, v{x5}")
    e(f"v_add_u32 v{x4}, v{x4}, v{x5}")
    e(f"v_and_b32 v{x5}, 3, v{ln}")
    e(f"v_lshl_add_u32 v{vVa}, v{x5}, 3, v{x4}")
    for dt in range(1, 8):
        e(f"v_xor_b32 v{vVa+dt}, {dt*32}, v{vVa}")
    if RS:
        for i in range(4): e(f"v_mov_b32 v{vOne+i}, 0x3f803f80")
    e(f"v_and_b32 v{vFr}, 3, v{ln}")
    if opts.get("p2", 1):
        e(f"v_and_b32 v{x4}, 1, v{ln}")
        e(f"v_lshlrev_b32 v{x4}, 4, v{x4}")
        e(f"v_lshlrev_b32 v{x4}, v{x4}, 1")
        e(f"v_lshrrev_b32 v{x5}, 1, v{i16}")
        e(f"v_lshlrev_b32 v{vM23}, 1, v{g}")
        e(f"v_cmp_eq_u32 vcc, v{x5}, v{vM23}")
        e(f"v_add_u32 v{vM23}, 1, v{vM23}")
        e(f"v_cmp_eq_u32 s[{sM}:{sM+1}], v{x5}, v{vM23}")
        e(f"v_cndmask_b32 v{vM01}, 0, v{x4}, vcc")
        e("s_nop 0")
        e(f"v_cndmask_b32 v{vM23}, 0, v{x4}, s[{sM}:{sM+1}]")
    if opts.get("sb", 9) <= 5:
        e(f"v_lshlrev_b32 v{vSr}, 12, v{vFr}")
        e(f"v_add_u32 v{vSr}, {OS}, v{vSr}")
        e(f"v_mov_b32 v{vSeq}, 0")
    e(f"v_mul_u32_u24 v{vFr}, {QW}, v{vFr}")
    e(f"v_add_u32 v{vFr}, {QS+16384}, v{vFr}")
    late = [x.strip() for x in L[mark:]]
    del L[mark:]
    e(f"v_lshlrev_b32 v{vG4}, 2, v{g}")
    e(f"v_lshl_add_u32 v{vQd}, v{g}, 12, v{x6}")
    for i in range(1, 4):
        e(f"v_xor_b32 v{vQd+i}, {i*64}, v{vQd}")
        e(f"v_add_u32 v{vQd+i}, {i*(4*ROWB-1024)}, v{vQd+i}")
    e(f"v_lshl_add_u32 v{x5}, v{w}, 3, v{g}")
    e(f"v_xor_b32 v{x4}, v{vG4}, v{i16}")
    e(f"v_lshlrev_b32 v{x4}, 4, v{x4}")
    e(f"v_lshl_add_u32 v{vDV}, v{x5}, 12, v{x4}")
    e(f"v_xor_b32 v{vDV+1}, 32, v{vDV}")
    e(f"v_add_u32 v{vDV+1}, {4*ROWB-1024}, v{vDV+1}")
    e(f"v_and_b32 v{x4}, 15, v{x5}")
    e(f"v_xor_b32 v{x4}, v{x4}, v{i16}")
    e(f"v_lshlrev_b32 v{x4}, 4, v{x4}")
    e(f"v_lshl_add_u32 v{vDK}, v{x5}, 12, v{x4}")
    e(f"v_xor_b32 v{vDK+1}, 64, v{vDK}")
    e(f"v_add_u32 v{vDK}, {4096-2048}, v{vDK}")
    e(f"v_add_u32 v{vDK+1}, {4*ROWB+4096-3072}, v{vDK+1}")
    e(f"s_lshl_b32 s{sWB}, s{sW}, 12")
    e(f"s_mov_b32 s{sThr}, {hex(f32bits(BIAS if RS else 4096.0))}")
    e(f"s_mov_b32 s{sC}, {hex(f32bits(128 ** -0.5 * math.log2(math.e)))}")
    e(f"s_mov_b32 s{sNeg}, {hex(f32bits(-1e30))}")
    e(f"s_mov_b32 s{sBig}, 0x40000000")
    if opts.get("perm"): e(f"s_mov_b32 s{sN}, 0x07060302")
    e(f"s_mov_b32 s{sFirst}, 1")
    e(f"s_mov_b32 s{sSafe}, {opts.get('safe', 0)}")
    e(f"s_mov_b32 s{sLim}, {hex(f32bits(2.0 ** 40))}")
    e(f"s_mul_i32 s{sQW}, s{sW}, {QW}")
    e(f"s_add_u32 s{sQW}, s{sQW}, {QS}")
    for srd in (sQ, sK, sV, sOut, sQc):
        e(f"s_mov_b32 s{srd+2}, 0")
        e(f"s_mov_b32 s{srd+3}, 0x20000")
    e(m0set(0))
    e("s_waitcnt lgkmcnt(0)")
    e(f"s_sub_u32 s{sK}, s{sK}, 4096")
    e(f"s_subb_u32 s{sK+1}, s{sK+1}, 0")
    def decode():
        e(f"s_mov_b32 s{sQ+2}, s{sNRn}")
        e(f"s_bfe_u32 s{sTn}, s{sD1n}, 0x30018")
        e(f"s_mul_i32 s{sT0}, s{sTn}, s{sW}")
        e(f"s_lshl_b32 s{sT0}, s{sT0}, 16")
        e(f"s_and_b32 s{sQoffn}, s{sD1n}, 0xfff000")
        e(f"s_add_u32 s{sQoffn}, s{sQoffn}, s{sD0n}")
        e(f"s_add_u32 s{sQoffn}, s{sQoffn}, s{sT0}")
    emit(next_k0()[1:])
    decode()
    j = 0
    nl = 0
    for x in qgroup(0) + next_loads(1)[1]:
        if opts["lazy"] and "m0" in x and nl < opts.get("lz", 2):
            e(f"s_bitcmp0_b32 s{sD1n}, 28"); e(f"s_cbranch_scc1 Llz{nl}"); e("s_waitcnt vmcnt(0)"); lab(f"Llz{nl}"); nl += 1
        e(x)
        if x.startswith("buffer"):
            emit(late[j:j + 5]); j += 5
    emit(late[j:])
    lab("Lstart")
    e(f"s_mov_b64 s[{sD0}:{sD1}], s[{sD0n}:{sD1n}]")
    e(f"s_mov_b32 s{sLast}, s{sLastn}")
    e(f"s_mov_b32 s{sOut+2}, s{sNRn}")
    e(f"s_mov_b32 s{sV+2}, s{sNRn}")
    e(f"s_mov_b32 s{sQc+2}, s{sNRn}")
    e(f"s_mov_b32 s{sOoff}, s{sQoffn}")
    e(f"s_mov_b64 s[{sJ}:{sJ+1}], s[{sJ+4}:{sJ+5}]")
    e(f"s_mov_b64 s[{sJ+2}:{sJ+3}], s[{sJ+6}:{sJ+7}]")
    e(f"s_mov_b64 s[{sJ+4}:{sJ+5}], 0")
    e(f"s_mov_b64 s[{sJ+6}:{sJ+7}], 0")
    decode()
    e(f"s_and_b32 s{sCnt}, s{sD1}, 63")
    e(f"s_bfe_u32 s{sRem}, s{sD1}, 0x60006")
    e(f"s_mov_b32 s{sOff}, s{sD0}")
    e(f"s_add_u32 s{sOffK}, s{sD0}, {2*TILEB}")
    if opts["stamp"]: e(f"s_add_u32 s{sN}, s{sCnt}, 2")
    stamp(0)
    e(f"s_bfe_u32 s{sT0}, s{sD1}, 0x30018")
    if opts["stamp"]:
        e(f"s_memrealtime s[{sST+10}:{sST+11}]")
        e(f"s_lshl_b32 s98, s{sT0}, 8"); e(f"s_add_u32 s98, s98, s{sN}")
        e("s_waitcnt lgkmcnt(0)")
        if opts["stamp"] == 2:
            e(f"s_mov_b32 s97, s{sST}"); e(f"s_mov_b32 s99, s{sST+10}")
    order = sorted(TS, key=lambda t: (t != 4, -t))
    for T in order[1:]:
        e(f"s_cmp_eq_u32 s{sT0}, {T}")
        e(f"s_cbranch_scc1 Lpro{T}")
    global NRS
    for T in order:
        NRS = NRS5 if T == 5 else 5
        prologue(T)
        if not T2: epilogue(T)
    lab("Ldone")
    if opts.get("spin"):
        if opts.get("gref"):
            e("s_mov_b32 s92, s90"); e("s_mov_b32 s93, s91"); e("s_mov_b32 s94, 256"); e("s_mov_b32 s95, 0x20000")
            e("s_not_b32 s96, s100"); e("v_mov_b32 v0, s96"); e("v_mov_b32 v2, 0")
            e("s_mov_b64 exec, 1")
            e(f"s_cmp_lg_u32 s{sW}, 0"); e("s_cbranch_scc1 Lsp0")
            e("buffer_atomic_umax v0, v2, s[92:95], 0 offen")
            lab("Lsp0")
            e("s_memrealtime s[88:89]"); e("s_waitcnt lgkmcnt(0)"); e("s_sub_u32 s88, s88, s100")
            e(f"s_cmp_lt_u32 s88, 4500"); e("s_cbranch_scc1 Lsp0")
            e("buffer_load_dword v1, v2, s[92:95], 0 offen sc0 sc1")
            e("s_waitcnt vmcnt(0)")
            e("v_readfirstlane_b32 s96, v1"); e("s_nop 3"); e("s_not_b32 s100, s96")
        if opts.get("enc"):
            e("s_waitcnt vmcnt(0)"); e("s_memrealtime s[80:81]"); e("s_waitcnt lgkmcnt(0)")
            a, b = {1: (100, 76), 2: (76, 78), 3: (78, 80), 4: (100, 80)}[opts["enc"]]
            e(f"s_sub_u32 s82, s{b}, s{a}")
            e(f"s_mul_i32 s82, s82, {opts.get('mul', 4)}")
            e("s_lshr_b32 s83, s2, 4"); e(f"s_lshr_b32 s83, {opts.get('encs', 0xffff)}, s83"); e("s_bitcmp1_b32 s83, 0")
            e("s_cselect_b32 s82, s82, 0")
            e(f"s_add_u32 s82, s82, {opts['spin']}")
        lab("Lspin")
        e("s_memrealtime s[88:89]")
        e("s_waitcnt lgkmcnt(0)")
        e("s_sub_u32 s88, s88, s100")
        e("s_cmp_lt_u32 s88, s82" if opts.get("enc") else f"s_cmp_lt_u32 s88, {opts['spin']}")
        e("s_cbranch_scc1 Lspin")
    if LIGHT:
        e("s_waitcnt vmcnt(0)")
        e("s_memrealtime s[88:89]")
        e("s_mov_b32 s92, s90"); e("s_mov_b32 s93, s91"); e("s_mov_b32 s94, 0x100000"); e("s_mov_b32 s95, 0x20000")
        e(f"s_lshl_b32 s96, s2, 2"); e(f"s_add_u32 s96, s96, s{sW}"); e("s_lshl_b32 s96, s96, 3")
        e("s_waitcnt lgkmcnt(0)")
        e("v_mov_b32 v0, s100"); e("v_mov_b32 v1, s88"); e("v_mov_b32 v2, 0")
        e("s_mov_b64 exec, 1")
        e("buffer_store_dwordx2 v[0:1], v2, s[92:95], s96 offen")
    if opts["stamp"]:
        e("s_waitcnt vmcnt(0)")
        stamp(0)
        e(f"s_memrealtime s[{sST+12}:{sST+13}]")
        e(f"s_mov_b32 s{sST+10}, s100")
        e("s_getreg_b32 s98, hwreg(HW_REG_HW_ID)")
        stamp_store(True)
    lab("Lend")
    e("s_endpgm")

    lab("Lcold")
    lab("Lrestart")
    e("s_waitcnt vmcnt(0) lgkmcnt(0)")
    e("s_barrier")
    e(f"s_mov_b64 s[{sJ+4}:{sJ+5}], s[{sJ}:{sJ+1}]")
    e(f"s_mov_b64 s[{sJ+6}:{sJ+7}], s[{sJ+2}:{sJ+3}]")
    e(f"s_mov_b64 s[{sD0n}:{sD1n}], s[{sD0}:{sD1}]")
    e(f"s_mov_b32 s{sNRn}, s{sOut+2}")
    e(f"s_mov_b32 s{sLastn}, s{sLast}")
    e(f"s_mov_b32 s{sSafe}, 1")
    e(f"s_mov_b32 s{sFirst}, 1")
    decode()
    emit(next_loads(1)[0] + next_loads(1)[1])
    e("s_branch Lstart")
    for T in order:
        NRS = NRS5 if T == 5 else 5
        safe_loop(T)
    NRS = NRS5
    for tag, buf in STUBS:
        lab(f"Lrare_{tag}")
        e(f"s_call_b64 s[{sRet}:{sRet+1}], Lresc_{buf}")
        e(f"s_branch Lback_{tag}")
    for b in range(2):
        lab(f"Lresc_{b}")
        e("s_nop 15")
        for t in range(TM):
            s, s2 = sreg(b, t), sreg(b ^ 1, t)
            dl, al = vX, (vX + 8 + t if t < 4 else vX + 2)
            e(f"v_max3_f32 v{dl}, v{s}, v{s+1}, v{s+2}")
            e(f"v_max3_f32 v{dl}, v{dl}, v{s+3}, v{s+4}")
            e(f"v_max3_f32 v{dl}, v{dl}, v{s+5}, v{s+6}")
            if RS:
                e(f"v_max_f32 v{dl}, v{dl}, v{s+7}")
                e(f"v_add_f32 v{dl}, s{sThr}, v{dl}")
                e(f"v_max_f32 v{dl}, 0, v{dl}")
            else:
                e(f"v_max3_f32 v{dl}, v{dl}, v{s+7}, 0")
            emit(xlane("v_max_f32", [dl], vX + 1))
            e(f"v_sub_f32 v{al}, 0, v{dl}")
            e(f"v_exp_f32 v{al}, v{al}")
            for i in range(8):
                e(f"v_sub_f32 v{s+i}, v{s+i}, v{dl}")
                e(f"v_sub_f32 v{s2+i}, v{s2+i}, v{dl}")
            for i in range(4):
                e(f"v_sub_f32 v{vNM+4*t+i}, v{vNM+4*t+i}, v{dl}")
            if not RS:
                e(f"v_mul_f32 v{vL+t}, v{vL+t}, v{al}")
            if RS and t >= NRS:
                e(f"v_mul_f32 v{vL4+2*(t-3)+1}, v{vL4+2*(t-3)+1}, v{al}")
            elif RS and t == 4:
                for i in range(4): e(f"v_mul_f32 v{vL4+i}, v{vL4+i}, v{al}")
            if RS and t < 4:
                for i in range(4):
                    e(f"v_accvgpr_read_b32 v{vX+1}, a{aL+4*t+i}")
                    e(f"v_mul_f32 v{vX+1}, v{vX+1}, v{al}")
                    e(f"v_accvgpr_write_b32 a{aL+4*t+i}, v{vX+1}")
        emit(SM(TM, b, False).rest())
        if b == 0: e("s_branch LrescO")
    lab("LrescO")
    for t in range(TM):
        for i in range(0, 32, 4):
            al = vX + 8 + t if t < 4 else vX + 2
            for k in range(4): e(f"v_accvgpr_read_b32 v{vX+4+k}, a{aO+32*t+i+k}")
            for k in range(4): e(f"v_mul_f32 v{vX+4+k}, v{vX+4+k}, v{al}")
            for k in range(4): e(f"v_accvgpr_write_b32 a{aO+32*t+i+k}, v{vX+4+k}")
    e("s_nop 1")
    e(f"s_setpc_b64 s[{sRet}:{sRet+1}]")

    e(".p2align 5")
    L.append(".type Ltab,@object")
    lab("Ltab")
    for ent in TAB:
        e(".long " + ", ".join(str(x) for x in ent))
    L.append('.section .rodata,"a"')
    L.append(".p2align 6")
    L.append(f".amdhsa_kernel {NAME}_kernel")
    L.append("  .amdhsa_next_free_vgpr 512")
    L.append("  .amdhsa_next_free_sgpr 102")
    L.append("  .amdhsa_accum_offset 256")
    L.append("  .amdhsa_group_segment_fixed_size 0")
    L.append("  .amdhsa_kernarg_size 56")
    L.append("  .amdhsa_user_sgpr_count 2")
    L.append("  .amdhsa_user_sgpr_kernarg_segment_ptr 1")
    L.append("  .amdhsa_system_sgpr_workgroup_id_x 1")
    L.append(".end_amdhsa_kernel")

gen()
open(sys.argv[1], "w").write("\n".join(L) + "\n")
```

```python
import sys, struct, math, os
sys.path.insert(0, os.path.dirname(os.path.abspath(__file__)))
from sched import Op, schedule

NAME = "standalone__varlen_attn_packed__ragged"
CU = [0, 534, 1426, 1714, 2675, 3469, 4036, 4628, 4845]
ROWB = 4096
TILEB = 32 * ROWB
QS = 65536
QW = 20480
OS = QS + 4 * QW
LDSZ = 163840
TM = 5

opts = dict(stamp=0, st="sc0+sc1", ld="", ldq="nt", al=3, e64=0, rs=1, epi=0, late=1, plan="b", rev=0, lc=4, pf=2, lazy=0)
for a in sys.argv[2:]:
    k, v = a.split("=")
    opts[k] = int(v) if v.lstrip("-").isdigit() else v
LD = (" " + opts["ld"].replace("+", " ")) if opts["ld"] else ""
LDQ = (" " + opts["ldq"].replace("+", " ")) if opts.get("ldq", opts["ld"]) and "ldq" in opts else ("" if "ldq" in opts else LD)
ST = (" " + opts["st"].replace("+", " ")) if opts["st"] else ""
DG = str(opts.get("diag", ""))

def f32bits(x):
    return struct.unpack("<I", struct.pack("<f", x))[0]

vQ = 0
vS = 64
vP = 144
vNM = 184
vKa = 204
vVa = 208
vDK = 216
vDV = 218
vQd = 220
vE = 224
vT = 228
vL = 233
vU = 238
vQa = 239
vOw = 240
vOr = 241
vG4 = 242
vU2 = 243
vX = 244
aO = 0
aKf = 160
aVf = 192
aQ = 224
aL = 240
vOne = 228
vL4 = 232
vAc = vX + 1
vFr = 236
vFl = 237
vM01, vM23 = 238, 243
vSeq = 238
vSr = 243
BIAS = 20.0
RS = opts['rs']
NRS = opts.get('nrs', 3)
NOCHK = [False]
NRS5 = opts.get('nrs5', 3)

sQ, sK, sV, sOut = 12, 16, 20, 24
sJ = 28
sD0, sD1 = 36, 37
sL, sN, sOff, sWB, sCnt, sLast, sThr, sC, sNeg, sW = 38, 39, 40, 41, 42, 43, 44, 45, 46, 47
sRet, sPC = 48, 52
sTn = 50
sRem, sQoffn, sOoff, sBig = 54, 55, 56, 57
sD0n, sD1n, sNRn, sLastn = 28, 29, 30, 31
sT0 = 61
sOffK = 63
sQW = 3
sFirst = 64
sSafe = 65
sLim = 66
sQc = 8
sM = 68
sST = 76

L = []
def e(s): L.append("    " + s)
def lab(s): L.append(s + ":")
def vr(b, n): return f"v[{b}:{b+n-1}]"
def ar(b, n): return f"a[{b}:{b+n-1}]"
def emit(lines):
    for x in lines:
        if x.endswith(":"): L.append(x)
        else: e(x)
LIGHT = opts["stamp"] == 3
if LIGHT: opts["stamp"] = 0
def estamp(idx):
    if opts["stamp"] and opts.get("pst") == 2:
        e(f"s_memtime s[{sST+2*idx}:{sST+1+2*idx}]")
def pstamp(idx):
    if opts["stamp"] and opts.get("pst") == 1:
        e(f"s_memtime s[{sST+2*idx}:{sST+1+2*idx}]")
        e("s_waitcnt lgkmcnt(0)")
def stamp(idx):
    if opts.get("pst") and 1 <= idx <= 4: return
    if opts["stamp"]:
        e(f"s_memtime s[{sST+2*idx}:{sST+1+2*idx}]")

SEQ = []
for si in range(8):
    ln = CU[si + 1] - CU[si]
    SEQ.append((CU[si], ln, (ln + 63) // 64, (ln + 31) // 32))

PLANS = {
    "c": [[(31, 4)]] * 4 + [[(25, 5)]] * 2 + [[(25, 3), (7, 4)], [(18, 3), (17, 3)], [(18, 3), (17, 3)], [(18, 3), (17, 3)],
          [(28, 3), (9, 3)], [(28, 3), (9, 2)]] + [[(19, 5)]] * 2 + [[(28, 4)]] * 2,
    "b": [[(31, 4)]] * 4 + [[(25, 5)]] * 2 + [[(25, 3), (7, 4)], [(18, 3), (17, 3)], [(18, 3), (17, 3)], [(18, 3), (17, 3)],
          [(19, 4), (9, 3)], [(28, 2), (19, 2)], [(19, 4), (9, 2)]] + [[(28, 4)]] * 3,
    "a": [[(31, 4)]] * 4 + [[(25, 5)]] * 2 + [[(17, 4), (18, 2)], [(19, 5), (7, 2)], [(25, 3), (9, 3)], [(28, 2), (18, 2)],
          [(17, 5), (9, 2)], [(18, 5), (7, 2)]] + [[(28, 4)]] * 3 + [[(19, 5)]],
}

def plan_head():
    n2s = {SEQ[i][3]: i for i in range(8)}
    nxt = {i: 0 for i in range(8)}
    spec = PLANS[opts["plan"]]
    res = [[None] * len(s) for s in spec]
    for want in (2, 3, 4, 5):
        for i, s in enumerate(spec):
            for k, (n, t) in enumerate(s):
                if t == want:
                    si = n2s[n]
                    res[i][k] = (si, nxt[si], t); nxt[si] += 64 * t
    for i in range(8):
        assert nxt[i] == SEQ[i][2] * 64, (i, nxt[i])
    if opts["rev"]:
        res = [list(reversed(r)) for r in res]
    return res

def make_table():
    ph = plan_head()
    tab = []
    for wg in range(256):
        x, j = wg & 7, wg >> 3
        head = 2 * x + (j & 1)
        ent = []
        for (si, q0, t) in ph[j >> 1]:
            st, ln, nb, n = SEQ[si]
            d0 = st * ROWB + head * 256
            ent += [d0, (n - 2) | ((ln - 32 * (n - 1)) << 6) | (q0 << 12) | (t << 24) | (((opts["lazy"] >> (j >> 1)) & 1) << 28), d0 + (ln - 1) * ROWB + 256, d0 + (n - 1) * TILEB]
        assert len(ent) <= 8
        ent += [0] * (8 - len(ent))
        tab.append(ent)
    return tab

TAB = make_table()
PH = plan_head()
TS = sorted({t for jl in PH for _, _, t in jl}, reverse=True)
TAILS = {}
for jl in PH:
    for k, (si, q0, t) in enumerate(jl):
        TAILS.setdefault((t, (SEQ[si][3] - 1) % 4), set()).add(1 if k + 1 < len(jl) else 0)
FIRSTS = {jl[0][2] for jl in PH}
RAMP = opts.get("ramp", 0)
PROD = {t for (t, p), v in TAILS.items() if v - {0}}
NWG = 256

MF = "v_mfma_f32_16x16x32_bf16"
def qreg(t, s):
    return vr(vQ + 16 * t + 4 * s, 4) if t < 4 else ar(aQ + 4 * s, 4)
def sreg(buf, t, a=0): return vS + 40 * buf + 8 * t + 4 * a
def preg(buf, t): return vP + 20 * buf + 4 * t

def qk1(buf, t, a, s, cinit, kf=None):
    d = sreg(buf, t, a)
    kf = aKf if kf is None else kf
    return f"{MF} {vr(d,4)}, {ar(kf+4*(a*4+s),4)}, {qreg(t,s)}, {vr(cinit if s == 0 else d,4)}"

def qk_mfmas(T, buf):
    return [qk1(buf, t, a, s, vNM + 4 * t) for a in range(2) for s in range(4) for t in range(T)]

ZERO = [False]
def pv1(buf, t, dt, vf):
    o = aO + 32 * t + 4 * dt
    return f"{MF} {ar(o,4)}, {ar(vf+4*dt,4)}, {vr(preg(buf,t),4)}, {'0' if ZERO[0] else ar(o,4)}"

def rs1(buf, t):
    l = ar(aL + 4 * t, 4) if t < 4 else vr(vL4, 4)
    return f"{MF} {l}, {vr(vOne,4)}, {vr(preg(buf,t),4)}, {'0' if ZERO[0] else l}"

def pv_mfmas(T, buf, vf=aVf):
    return [pv1(buf, t, dt, vf) for dt in range(8) for t in range(T)] + ([rs1(buf, t) for t in range(min(T, NRS))] if RS else [])

def zero_mfmas(T):
    return [f"v_mfma_f32_32x32x16_bf16 {ar(aO+16*i,16)}, {vr(vP+28,4)}, {vr(vP+28,4)}, 0" for i in range(2 * T)]

def k_reads(slot, kf=None):
    kf = aKf if kf is None else kf
    return [f"ds_read_b128 {ar(kf+4*(a*4+s),4)}, v{vKa+s} offset:{slot*16384+a*8192}" for a in range(2) for s in range(4)]

def v_reads(slot, vf=aVf):
    return [f"ds_read_b64_tr_b16 {ar(vf+4*dt+2*a,2)}, v{vVa+dt} offset:{slot*16384+a*8192}" for dt in range(8) for a in range(2)]

def m0set(off):
    return f"s_add_u32 m0, s{sWB}, {off}" if off else f"s_mov_b32 m0, s{sWB}"
def ldv(j, so):
    return f"buffer_load_dwordx4 v{vDV+j}, s[{sV}:{sV+3}], s{so} offen" + (f" offset:{j*1024}" if j else "") + f"{LD} lds"
def ldk(j, so):
    return f"buffer_load_dwordx4 v{vDK+j}, s[{sK}:{sK+3}], s{so} offen offset:{2048+j*1024}{LD} lds"

def dma(slot):
    return [m0set(slot * 16384),
            f"s_add_u32 s{sOff}, s{sOff}, {TILEB}",
            f"s_add_u32 s{sOffK}, s{sOffK}, {TILEB}",
            ldv(0, sOff), ldv(1, sOff), ldk(0, sOffK), ldk(1, sOffK)]

CHK = f"v_cmp_ne_u32 vcc, 0, v{vX}" if RS else f"v_cmp_lt_f32 vcc, s{sThr}, v{vX}"
ERING = [vE, vE + 2, vX + 4, vX + 6]
def softmax_ops(T, buf, full=True, R=4, t0=0):
    exps, sims = [], []
    done_after = []
    n = 4 * T
    for k in range(n):
        t, kk = divmod(k, 4)
        t = T - 1 - t + t0
        a = ERING[k % R]; b = a + 1
        need = done_after[k - R] if k >= R else 0
        exps += [(f"v_exp_f32 v{a}, v{sreg(buf,t)+2*kk}", need), (f"v_exp_f32 v{b}, v{sreg(buf,t)+2*kk+1}", need)]
        p = preg(buf, t) + kk
        u = (vP + 36 if T == 1 else vX + 3) if RS else (vU if k & 1 else vU2)
        ne = 2 * k + 2
        if RS:
            sims.append((f"v_perm_b32 v{p}, v{b}, v{a}, s{sN}" if opts.get("perm") else f"v_cvt_pk_bf16_f32 v{p}, v{a}, v{b}", ne))
            if t >= NRS:
                pt, lt = vL4 + 2 * (t - 3), vL4 + 2 * (t - 3) + 1
                if kk == 0:
                    if full: sims.append((f"v_add_f32 v{lt}, v{lt}, v{pt}", 0))
                    sims.append((f"v_add_f32 v{pt}, v{a}, v{b}", ne))
                else:
                    sims.append((f"v_add_f32 v{u}, v{a}, v{b}", ne))
            done_after.append(len(sims))
            if t >= NRS and kk: sims.append((f"v_add_f32 v{pt}, v{pt}, v{u}", ne))
            if full and (k & 1) and not NOCHK[0]:
                sims.append((f"v_or_b32 v{vAc}, v{p-1}, v{p}" if k == 1 else f"v_or3_b32 v{vAc}, v{vAc}, v{p-1}, v{p}", ne))
        elif kk == 0:
            if full: sims.append((f"v_add_f32 v{vL+t}, v{vL+t}, v{vT+t}", 0))
            sims += [(f"v_cvt_pk_bf16_f32 v{p}, v{a}, v{b}", ne), (f"v_add_f32 v{vT+t}, v{a}, v{b}", ne)]
            done_after.append(len(sims))
        else:
            sims += [(f"v_add_f32 v{u}, v{a}, v{b}", ne), (f"v_cvt_pk_bf16_f32 v{p}, v{a}, v{b}", ne)]
            done_after.append(len(sims))
            sims.append((f"v_add_f32 v{vT+t}, v{vT+t}, v{u}", ne))
    if full and RS and NOCHK[0]:
        pass
    elif full and RS:
        sims += [(f"v_and_b32 v{vX}, 0x40004000, v{vAc}", 2 * n), (CHK, 2 * n)]
    elif full:
        m = [vT + t for t in range(T)]
        cur = m.pop(0)
        while m:
            if len(m) >= 2:
                sims.append((f"v_max3_f32 v{vX}, v{cur}, v{m[0]}, v{m[1]}", 2 * n)); m = m[2:]
            else:
                sims.append((f"v_max_f32 v{vX}, v{cur}, v{m[0]}", 2 * n)); m = []
            cur = vX
        sims.append((f"v_cmp_lt_f32 vcc, s{sThr}, v{cur}", 2 * n))
    return exps, sims

class SM:
    def __init__(s, T, buf, full=True, t0=0, R=4):
        s.ex, s.si = softmax_ops(T, buf, full, R, t0)
        s.i = s.j = 0
        s.last_exp = False
    def left(s): return 8 * (len(s.ex) - s.i) + 4 * (len(s.si) - s.j)
    def can_exp(s): return s.i < len(s.ex) and s.ex[s.i][1] <= s.j
    def can_sim(s):
        if s.j >= len(s.si): return False
        need = s.si[s.j][1]
        return need < s.i or (need == s.i and not s.last_exp)
    def exp(s): s.i += 1; s.last_exp = True; return s.ex[s.i - 1][0]
    def sim(s): s.j += 1; s.last_exp = False; return s.si[s.j - 1][0]
    def other(s): s.last_exp = False
    def any(s):
        if s.can_sim() and (s.si[s.j][1] <= s.i - 2 or not s.can_exp()): return s.sim()
        if s.can_exp(): return s.exp()
        if s.can_sim(): return s.sim()
        s.last_exp = False
        return "s_nop 0"
    def take(s, n): return [s.any() for _ in range(n) if s.left()]
    def rest(s):
        r = []
        while s.left(): r.append(s.any())
        return r

def is_mem(x): return x.startswith("ds_") or x.startswith("buffer_")

def pack(mf, fixed, sm=None, novalu=(), keep=0, cap=8):
    n = len(mf)
    def fcost(l):
        c = 0; ns = 0; nm = 0
        for x in l:
            if x.endswith(":"): continue
            if is_mem(x): c += 8 if nm else 4; nm += 1
            elif x.startswith("s_"): c += 4 if (ns or nm) else 0; ns += 1
            else: c += 4
        return c
    fc = [fcost(fixed.get(g, [])) for g in range(n)]
    out = []
    for g in range(n):
        out.append(mf[g])
        out += fixed.get(g, [])
        if sm is None: continue
        sm.other()
        if g in novalu: continue
        rem = [k for k in range(g, n) if k not in novalu]
        last = g == rem[-1]
        used = fc[g]
        while sm.left() > keep:
            later = sum(max(0, cap - fc[k]) for k in rem[1:])
            over = sm.left() - keep - later
            room = cap - used
            if room <= 0:
                if not last and over * 1.0 < 4 * 1.0 + 0 : break
                if not last and (used - cap + 4) * len(rem) > over + (used - cap) + 2 * len(rem): break
            nexp = len(sm.ex) - sm.i
            full_later = sum(1 for k in rem[1:] if cap - fc[k] >= 8)
            if room >= 8 and sm.can_exp() and (not sm.can_sim() or nexp > full_later * opts.get("eb", 70) // 100 or sm.si[sm.j][1] > sm.i - 4):
                out.append(sm.exp()); used += 8
            elif sm.can_sim():
                out.append(sm.sim()); used += 4
            elif sm.can_exp() and (room >= 8 or last or nexp + opts.get("slk", 1) > full_later or over > 0):
                out.append(sm.exp()); used += 8
            else:
                if last: out.append(sm.any()); used += 4
                else: break
    return out

STUBS = []
SPINS = []
def check_rare(buf, tag):
    e(f"s_cbranch_vccnz Lrare_{tag}")
    lab(f"Lback_{tag}")
    STUBS.append((tag, buf))

def spread(items, gaps):
    d = {}
    gaps = list(gaps)
    for i, x in enumerate(items):
        d.setdefault(gaps[i * len(gaps) // len(items)], []).append(x)
    return d

def merge(*ds):
    r = {}
    for d in ds:
        for k, v in d.items():
            r.setdefault(k, []).extend(v)
    return r

def interleave(a, b):
    out = []
    if not a: return list(b)
    j = 0
    for i, x in enumerate(a):
        out.append(x)
        nj = (i + 1) * len(b) // len(a)
        out += b[j:nj]; j = nj
    return out

CNT = f"s_sub_u32 s{sCnt}, s{sCnt}, 1"

def place(items, gaps):
    groups = []
    cur = []
    for x in items:
        cur.append(x)
        if is_mem(x): groups.append(cur); cur = []
    if cur: groups.append(cur)
    gaps = list(gaps)
    d = {}
    for i, gr in enumerate(groups):
        d.setdefault(gaps[i * len(gaps) // len(groups)], []).extend(gr)
    return d

def qgroup(g, dyn=True):
    r = [f"s_add_u32 m0, s{sQW}, {g*4096}" if g else f"s_mov_b32 m0, s{sQW}",
         f"s_add_u32 s{sT0}, s{sQoffn}, {g*16*ROWB}"]
    if g >= 2 and dyn:
        r += [f"s_cmp_gt_u32 s{sTn}, {g}", f"s_cselect_b32 s{sT0}, s{sT0}, s{sBig}"]
    r += [f"buffer_load_dwordx4 v{vQd+i}, s[{sQ}:{sQ+3}], s{sT0} offen offset:{i*1024}{LDQ} lds" for i in range(4)]
    return r

def step(T, t, prod=False, fast=False):
    p = t % 4
    b = t % 2
    h = 8 * T
    ZERO[0] = prod
    mf = qk_mfmas(T, b ^ 1) + pv_mfmas(T, b ^ 1)
    ZERO[0] = False
    kr = k_reads((t + 2) % 4)
    d = dma((t + 1) % 4)
    NOCHK[0] = bool(fast)
    sm = SM(T, b)
    NOCHK[0] = False
    n = len(mf)
    vrd = v_reads((t + 1) % 4)
    vm = opts.get('vm', 8)
    end = [CNT] if (prod or fast) else [CNT, "s_cselect_b64 vcc, -1, vcc"]
    bw = f"s_waitcnt vmcnt({vm}) lgkmcnt(0)"
    tight = T >= opts.get("tt", 3)
    SPIN = None
    if fast and T >= opts.get("sb", 9):
        ve, gx, gr, gy = {5: (24, 29, 44, 50), 4: (20, 25, 37, 43), 3: (16, 20, 26, 31)}[T]
        gr += opts.get("sbo", 0); gy += opts.get("sbo", 0)
        SPIN = f"{T}_{p}{'z' if prod else ''}"
        kd = [kr[0], kr[1], d[3], kr[2], kr[3], kr[4], d[4], kr[5], kr[6], kr[7], d[5]]
        fixed = merge(place(vrd, range(0, ve)),
                      {gx - 3: [d[0], f"v_add_u32 v{vSeq}, 1, v{vSeq}"], gx - 2: [d[1]], gx - 1: [d[2]],
                       gx: [bw, f"ds_write_b32 v{vOr}, v{vSeq}"], gr: [f"ds_read_b32 v{vFl}, v{vSr}"],
                       gy - 1: ["s_waitcnt lgkmcnt(0)", f"v_cmp_lt_u32 vcc, v{vFl}, v{vSeq}"],
                       gy: [f"s_cbranch_vccnz Lsp{SPIN}", f"Lspb{SPIN}:"]},
                      place(kd, range(gy + 1, n - 6)),
                      {n - 4: [end[0], d[6]], n - 2: ["s_waitcnt lgkmcnt(0)"]})
        nov = (gx, gy, n - 1)
        SPINS.append(SPIN)
    elif tight:
        kd = [kr[0], kr[1], d[3], kr[2], kr[3], d[4], kr[4], kr[5], kr[6], d[5], kr[7]]
        fixed = merge(place(vrd, range(0, h - 6)),
                      {h - 5: [d[0]], h - 4: [d[1]], h - 3: [d[2]], h - 2: [bw], h - 1: ["s_barrier"]},
                      place(kd, range(h, n - 7)),
                      {n - 5: [d[6]], n - 4: [end[0]], n - 3: ["s_waitcnt lgkmcnt(0)"], n - 2: end[1:]})
        nov = (h - 1, n - 1) if fast else (h - 1, n - 2, n - 1)
    elif T >= 3:
        kd = [kr[0], kr[1], d[3], kr[2], kr[3], d[4], kr[4], kr[5], d[5], kr[6], kr[7], d[6]]
        fixed = merge(place(vrd, range(0, h - 5)),
                      {h - 1: [bw, "s_barrier"]},
                      {h - 4: [d[0]], h - 3: [d[1]], h - 2: [d[2]]},
                      place(kd, range(h, n - 3)),
                      {n - 2: [end[0]], n - 1: end[1:]})
        nov = (h - 1, n - 1)
    else:
        kd = [kr[0], kr[1], d[3], kr[2], kr[3], kr[4], d[4], kr[5], kr[6], kr[7], d[5]]
        fixed = merge(place(vrd, range(0, 12)),
                      {h - 1: [bw, "s_barrier"]},
                      {h - 4: [d[0]], h - 3: [d[1]], h - 2: [d[2]]},
                      place(kd, range(h, n - 5)),
                      {n - 2: [end[0], d[6]], n - 1: end[1:]})
        nov = (h - 1, n - 1)
    if prod or not tight: e("s_waitcnt lgkmcnt(0)")
    body = pack(mf, fixed, sm, nov)
    if DG and not prod:
        body = [x for x in body if not (("d" in DG and x.startswith("buffer_load")) or ("b" in DG and x.startswith("s_barrier"))
                or ("l" in DG and x.startswith("ds_read")) or ("w" in DG and x.startswith("s_waitcnt"))
                or ("v" in DG and x.startswith(("v_exp", "v_cvt", "v_or"))))]
    if opts["e64"]:
        body = [x.replace("v_exp_f32 ", "v_exp_f32_e64 ").replace("v_add_f32 ", "v_add_f32_e64 ").replace("v_max_f32 ", "v_max_f32_e64 ") for x in body]
    emit(body)
    assert sm.left() == 0
    if fast:
        if not prod and TAILS.get((T, (p + 1) % 4)): e(f"s_cbranch_scc1 Lxt{T}_{p}")
    elif prod:
        check_rare(b, f"t{T}p{p}")
    else:
        e(f"s_cbranch_vccnz Lx{T}_{p}")
        lab(f"Lxb{T}_{p}")

def exit_stub(T, p):
    lab(f"Lx{T}_{p}")
    e(CHK)
    check_rare(p % 2, f"x{T}_{p}")
    if TAILS.get((T, (p + 1) % 4)):
        e(f"s_cbranch_scc1 Lx{'s' if T2 else 't'}{T}_{p}")
    e(f"s_branch Lxb{T}_{p}")

T2 = opts.get("t2", 1)
def tails(T, p, safe=False):
    np_ = (p + 1) % 4
    nx = sorted(TAILS.get((T, np_), ()))
    if not nx: return
    pre = "Ltail" if (safe or not T2) else "Lft"
    lab(f"Lx{'s' if safe else 't'}{T}_{p}")
    for tn in nx[1:]:
        e(f"s_cmp_lg_u32 s{sD1n}, 0")
        e(f"s_cbranch_scc1 {pre}{T}_{np_}_{tn}")
    for tn in nx:
        (tail if (safe or not T2) else tail2)(T, np_, tn)

def tail2(T, p, tn):
    b = p % 2
    lab(f"Lft{T}_{p}_{tn}")
    if opts.get("enc"): e("s_memrealtime s[78:79]")
    stamp(3); stamp(4)
    if opts["stamp"]:
        e(f"s_memrealtime s[{sST+12}:{sST+13}]")
        B0 = vQ
        stamp_store(False, vQ)
    e("s_waitcnt lgkmcnt(0)")
    ops = []
    def add(l, **k):
        r = [Op(x, **k) for x in l if not x.startswith("s_nop")]
        ops.extend(r); return r
    add(v_reads((p + 1) % 4))
    W0 = Op("s_waitcnt vmcnt(0)", vmwait="old", tmin=opts.get("tw", 120)); ops.append(W0)
    B1 = add(["s_barrier"], after=[W0])[0]
    add(v_reads((p + 2) % 4, aKf), after=[B1])
    if tn: add(sum(next_loads(tn), []), after=[B1], tag="n")
    add([f"v_xor_b32 v{vOA+dt}, {dt*32}, v{vOw}" for dt in range(8)])
    npk = T - opts.get("npk", 9)
    lreg = []
    prev_reads = []
    for t in range(T):
        s0, pp = sreg(b, t), preg(b, t)
        add([f"v_exp_f32 v{s0+i}, v{s0+i}" for i in range(8)])
        add([f"v_cvt_pk_bf16_f32 v{pp+k}, v{s0+2*k}, v{s0+2*k+1}" for k in range(4)])
        lx = vX + 8 + t if t < 4 else vX + 2
        if t >= NRS:
            pt, lt = vL4 + 2 * (t - 3), vL4 + 2 * (t - 3) + 1
            add([f"v_add_f32 v{lt}, v{lt}, v{pt}"] + [f"v_add_f32 v{s0+2*k}, v{s0+2*k}, v{s0+2*k+1}" for k in range(4)] +
                [f"v_add_f32 v{s0}, v{s0}, v{s0+2}", f"v_add_f32 v{s0+4}, v{s0+4}, v{s0+6}", f"v_add_f32 v{lt}, v{lt}, v{s0}",
                 f"v_add_f32 v{lx}, v{lt}, v{s0+4}"] + xlane("v_add_f32", [lx], pt))
        else:
            add([rs1(b ^ 1, t), rs1(b, t)])
            add([f"v_accvgpr_read_b32 v{lx}, a{aL+4*t}" if t < 4 else f"v_mov_b32 v{lx}, v{vL4}"])
        lreg.append(lx)
        add([f"v_rcp_f32 v{vLI+2*t}, v{lx}"])
        add([pv1(b ^ 1, t, dt, aVf) for dt in range(8)])
        add([pv1(b, t, dt, aKf) for dt in range(8)])
        if t == T - 1:
            m = list(lreg); cur = m.pop(0)
            while m:
                if len(m) >= 2: add([f"v_max3_f32 v{vFl}, v{cur}, v{m[0]}, v{m[1]}"]); m = m[2:]
                else: add([f"v_max_f32 v{vFl}, v{cur}, v{m[0]}"]); m = []
                cur = vFl
            add([f"v_cmp_le_f32 vcc, s{sLim}, v{vFl}", f"s_or_b32 s{sM+6}, vcc_lo, vcc_hi", f"v_mov_b32 v{vFl}, s{sM+6}"])
            fw = add([f"ds_write_b32 v{vQa}, v{vFl} offset:16384"])[0]; fw.w = {("x", 1)}
            B2 = add(["s_barrier"], after=[B1], reads={("x", 1)})[0]
            add([f"ds_read_b32 v{vX}, v{vFr}"], after=[B2])
            add([f"v_cmp_ne_u32 vcc, 0, v{vX}"], bonus=opts.get("fb", 0))
        x = vQ + 32 * (t & 1)
        wr = []
        for dt in range(8):
            y = x + 4 * dt
            lk = opts.get("lk", 2)
            add([f"v_accvgpr_read_b32 v{y+i}, a{aO+32*t+4*dt+i}" for i in range(4)],
                after=(wr[(dt // lk - 1) * lk:(dt // lk) * lk] if (t == T - 1 and dt >= opts.get("l0", 9)) else []))
            if t >= npk:
                add([f"v_pk_mul_f32 {vr(y+i,2)}, {vr(y+i,2)}, {vr(vLI+2*t,2)} op_sel_hi:[1,0]" for i in (0, 2)])
            else:
                add([f"v_mul_f32 v{y+i}, v{y+i}, v{vLI+2*t}" for i in range(4)])
            add([f"v_cvt_pk_bf16_f32 v{y}, v{y}, v{y+1}", f"v_cvt_pk_bf16_f32 v{y+1}, v{y+2}, v{y+3}"])
            wr += add([f"ds_write_b64 v{vOA+dt}, {vr(y,2)}"], after=prev_reads)
        prev_reads = add([f"ds_read_b128 {ar(aO+32*t+4*i,4)}, v{vOr} offset:{i*1024}" for i in range(4)], after=wr)
        add([f"s_add_u32 s{sM+t}, s{sOoff}, {t*16*ROWB}"])
        add([f"buffer_store_dwordx4 {ar(aO+32*t+4*i,4)}, v{vQd+i}, s[{sOut}:{sOut+3}], s{sM+t} offen offset:{i*1024}{ST}" for i in range(4)], tag="s")
    q = ["old"] * 4 + ["x"] * (8 + (2 if opts["stamp"] == 1 else 0))
    out, est = schedule(ops, q, verbose=bool(opts.get("verb")), betas=(40, 64, 96), gammas=(0, 2))
    emit(out)
    e("s_cbranch_vccnz Lrestart")
    if tn:
        e(f"s_mov_b32 s{sFirst}, 0")
        e(f"s_waitcnt vmcnt({4*T})")
        e("s_branch Lstart")
    else:
        e("s_branch Ldone")

def safe_loop(T):
    lab(f"Lsafe{T}")
    step(T, 1, True)
    lab(f"Lsloop{T}")
    for t in (2, 3, 4, 5):
        step(T, t)
    e(f"s_branch Lsloop{T}")
    for p in range(4):
        exit_stub(T, p)
    if T2:
        for p in range(4):
            tails(T, p, True)
        epilogue(T)

def ktile(u):
    return [m0set(u * 16384), f"s_add_u32 s{sT0}, s{sD0}, {(u-1)*TILEB}", ldk(0, sT0), ldk(1, sT0)]
def vtile(u):
    so = sLast if u == 0 else sD0
    return [m0set(((u + 2) % 4) * 16384), "s_nop 0", ldv(0, so), ldv(1, so)]
def next_k0():
    return [m0set(0), f"s_add_u32 s{sK+2}, s{sNRn}, 4096", ldk(0, sLastn), ldk(1, sLastn)]
def next_k1():
    return [m0set(16384), "s_nop 0", ldk(0, sD0n), ldk(1, sD0n)]

def tail(T, p, tn):
    b = p % 2
    lab(f"Ltail{T}_{p}_{tn}")
    if opts.get("enc"): e("s_memrealtime s[78:79]")
    stamp(3)
    if opts["stamp"]: e("s_waitcnt lgkmcnt(0)")
    vrd = v_reads((p + 1) % 4)
    vrd2 = v_reads((p + 2) % 4, aKf)
    sm = SM(T, b)
    mf = pv_mfmas(T, b ^ 1)
    o = min(T, NRS) if RS else 0
    if RS: mf = mf[-o:] + mf[:-o]
    rsm, mf = mf[:o], mf[o:]
    emit(interleave(rsm, vrd[:o]) + vrd[o:])
    m = []
    for t in range(T):
        x = vX + 8 + t if t < 4 else vX + 2
        if t >= NRS: e(f"v_add_f32 v{x}, v{vL4+2*(t-3)}, v{vL4+2*(t-3)+1}")
        elif t < 4: e(f"v_accvgpr_read_b32 v{x}, a{aL+4*t}")
        m.append(x if (t < 4 or t >= NRS) else vL4)
    cur = m.pop(0)
    while m:
        if len(m) >= 2:
            e(f"v_max3_f32 v{vFl}, v{cur}, v{m[0]}, v{m[1]}"); m = m[2:]
        else:
            e(f"v_max_f32 v{vFl}, v{cur}, v{m[0]}"); m = []
        cur = vFl
    e(f"v_cmp_le_f32 vcc, s{sLim}, v{vFl}")
    emit(sm.take(2))
    e("s_cmp_lg_u64 vcc, 0")
    e(f"s_cselect_b32 s{sT0}, 1, 0")
    e(f"s_andn2_b32 s{sT0}, s{sT0}, s{sSafe}")
    e(f"v_mov_b32 v{vFl}, s{sT0}")
    e(f"ds_write_b32 v{vQa}, v{vFl} offset:16384")
    emit(sm.take(opts.get("tk", 16)))
    e("s_waitcnt vmcnt(8) lgkmcnt(0)")
    e("s_barrier")
    fixed = place([f"ds_read_b32 v{vFl}, v{vFr}"] + vrd2, range(len(mf) - 2))
    if tn:
        fixed = merge(fixed, place(sum(next_loads(tn), []) if WARM else next_loads(tn)[0], range(len(mf))))
    emit(pack(mf, fixed, sm))
    assert sm.left() == 0
    check_rare(b, f"t{T}t{p}_{tn}")
    e("s_waitcnt lgkmcnt(8)")
    e(f"v_cmp_ne_u32 vcc, 0, v{vFl}")
    e("s_cbranch_vccnz Lrestart")
    fin(T, b, tn)

WARM = opts.get("warm", 0)
def warm_loads():
    r = [m0set(2 * 16384), f"s_add_u32 s{sT0}, s{sD0n}, {TILEB}", ldk(0, sT0), ldk(1, sT0),
         f"s_add_u32 m0, s{sQW}, {3*4096}", f"s_mov_b32 s{sV+2}, s{sNRn}", ldv(0, sLastn), ldv(1, sLastn)]
    if WARM >= 2: r += [x.replace(LDQ + " lds", " lds") for x in qgroup(2)]
    return r

def next_loads(tn):
    return next_k0() + qgroup(0, False), qgroup(1, False) + next_k1()

def xlane(op, regs, tmp):
    r = []
    for sw in ("v_permlane32_swap_b32", "v_permlane16_swap_b32"):
        r += [f"v_mov_b32 v{tmp+i}, v{x}" for i, x in enumerate(regs)]
        r += ["s_nop 1"]
        r += [f"{sw} v{x}, v{tmp+i}" for i, x in enumerate(regs)]
        r += ["s_nop 1"]
        r += [f"{op} v{x}, v{x}, v{tmp+i}" for i, x in enumerate(regs)]
    return r

vOA = vNM
vLI = vNM + 8
def epi_acc(t):
    return [f"v_accvgpr_read_b32 v{vQ+i}, a{aO+32*t+i}" for i in range(32)]
def epi_cvt(t):
    r = [f"v_pk_mul_f32 {vr(vQ+2*i,2)}, {vr(vQ+2*i,2)}, {vr(vLI+2*(t//2),2)} " +
         ("op_sel:[0,1] op_sel_hi:[1,1]" if t & 1 else "op_sel_hi:[1,0]") for i in range(16)]
    r += [f"v_cvt_pk_bf16_f32 v{vQ+32+16*(t&1)+i}, v{vQ+2*i}, v{vQ+2*i+1}" for i in range(16)]
    return r
def epi_writes(t):
    return [f"ds_write_b64 v{vOA+dt}, {vr(vQ+32+16*(t&1)+2*dt,2)}" for dt in range(8)]
def epi_reads(t):
    return [f"ds_read_b128 {vr(vS+16*t+4*i,4)}, v{vOr} offset:{i*1024}" for i in range(4)]
def epi_stores(t):
    return [f"s_add_u32 s{sT0}, s{sOoff}, {t*16*ROWB}"] + \
           [f"buffer_store_dwordx4 {vr(vS+16*t+4*i,4)}, v{vQd+i}, s[{sOut}:{sOut+3}], s{sT0} offen offset:{i*1024}{ST}" for i in range(4)]

def fin(T, b, tn):
    if not RS: e("s_waitcnt lgkmcnt(0)")
    mf = [pv1(b, t, dt, aKf) for t in range(T) for dt in range(8)]
    regs = [vL + t for t in range(T)]
    xo = [f"v_xor_b32 v{vOA+dt}, {dt*32}, v{vOw}" for dt in range(8)] if not opts["epi"] else ["s_nop 0"]
    if RS:
        nr = min(T, NRS)
        mf = [rs1(b, t) for t in range(nr)] + mf
        src = lambda t: (vX + t if t < NRS else vL4 + 2 * (t - 3) + 1)
        ad = [src(t) for t in range(nr, T)]
        if ad: xo = [f"v_add_f32 v{x}, v{x}, v{x-1}" for x in ad] + xlane("v_add_f32", ad, vX + 6) + xo
        ls = [f"v_accvgpr_read_b32 v{vX+t}, a{aL+4*t}" if t < 4 else f"v_mov_b32 v{vX+t}, v{vL4}" for t in range(nr)] + \
             [f"v_rcp_f32 v{vLI+t}, v{src(t)}" for t in range(T)] + epi_acc(0)
        fixed = merge({nr - 1: ["s_waitcnt lgkmcnt(6)"], nr + 4: ["s_waitcnt lgkmcnt(0)"]},
                      spread(xo, range(nr + 8)), spread(ls, range(nr + 8, len(mf))))
    else:
        ls = [f"v_add_f32 v{vL+t}, v{vL+t}, v{vT+t}" for t in range(T)] + xlane("v_add_f32", regs, vX) + \
             [f"v_rcp_f32 v{vLI+t}, v{vL+t}" for t in range(T)] + xo + epi_acc(0)
        fixed = spread(ls, range(len(mf)))
    if tn: fixed = merge(place(warm_loads() if WARM else next_loads(tn)[1], range(len(mf))), fixed)
    emit(pack(mf, fixed))
    e(f"s_branch Lepi{T}")

def first_max(t):
    s0 = sreg(0, t)
    m = vX + 2
    r = [f"v_max3_f32 v{m}, v{s0}, v{s0+1}, v{s0+2}", f"v_max3_f32 v{m}, v{m}, v{s0+3}, v{s0+4}",
         f"v_max3_f32 v{m}, v{m}, v{s0+5}, v{s0+6}", f"v_max_f32 v{m}, v{m}, v{s0+7}"]
    r += xlane("v_max_f32", [m], vX + 3)
    if RS: r += [f"v_add_f32 v{m}, s{sThr}, v{m}"]
    r += [f"v_sub_f32 v{vNM+4*t+i}, 0, v{m}" for i in range(4)]
    r += [f"v_sub_f32 v{s0+i}, v{s0+i}, v{m}" for i in range(8)]
    return r

def qraw(t, k=0):
    return vQ + 16 * t + k if t < 4 else sreg(k // 8, 4) + k % 8
def prescale(t):
    r = []
    for k in range(0, 16, 2):
        q = qraw(t, k)
        for i in range(2):
            r += [f"v_lshlrev_b32 v{vX+2*i}, 16, v{q+i}", f"v_and_b32 v{vX+2*i+1}, 0xffff0000, v{q+i}"]
        for i in range(2):
            r += [f"v_pk_mul_f32 {vr(vX+2*i,2)}, {vr(vX+2*i,2)}, s[{sThr}:{sC}] op_sel:[0,1] op_sel_hi:[1,1]"]
        for i in range(2):
            r += [f"v_cvt_pk_bf16_f32 v{q+i}, v{vX+2*i}, v{vX+2*i+1}"]
        if t == 4: r += [f"v_accvgpr_write_b32 a{aQ+k+i}, v{q+i}" for i in range(2)]
    return r

def first_only(lines):
    i = len(L)
    e(f"s_cmp_eq_u32 s{sFirst}, 0")
    e(f"s_cbranch_scc1 Lw{i}")
    emit(lines)
    lab(f"Lw{i}")

def nvm(l): return sum(x.startswith("buffer") for x in l)

vMK = vP + 20
def weave(mfs, valu, mem):
    d = place(mem, range(len(mfs))) if mem else {}
    out = []
    j = 0
    nops = [i for i, x in enumerate(valu) if x == "s_nop 1"]
    if nops and len(mfs) > len(nops):
        extra = len(mfs) - len(nops)
        free = [i for i in range(len(valu)) if i not in nops and i - 1 not in nops]
        head = [0, 2][:min(2, extra)]
        tailp = [i for i in free if i > nops[-1] + 1]
        more = [tailp[k * len(tailp) // (extra - len(head))] for k in range(extra - len(head))]
        cuts = sorted(set(nops + head + more))
        assert len(cuts) == len(mfs)
        k = 0
        for i, x in enumerate(valu):
            if i in cuts:
                out.append(mfs[k])
                m = d.get(k, []); k += 1
                if x == "s_nop 1":
                    out += m if m else ["s_nop 0"]
                    continue
                out += m
            out.append(x)
        return out
    for i, x in enumerate(mfs):
        out.append(x)
        out += d.get(i, [])
        nj = (i + 1) * len(valu) // len(mfs)
        out += valu[j:nj]; j = nj
    return out

def bf16bits(x):
    u = f32bits(x)
    return (u + 0x7FFF + ((u >> 16) & 1)) >> 16
CSC = 128 ** -0.5 * math.log2(math.e)
CHI = bf16bits(CSC)
CLO = bf16bits(CSC - struct.unpack("<f", struct.pack("<I", CHI << 16))[0])

def prologue2(T):
    lab(f"Lpro{T}")
    vCA = vP + 28
    adr = [vX + 8 + s for s in range(4)], [vP + 32 + s for s in range(4)]
    ops = []
    def add(l, **k):
        r = [Op(x, **k) for x in l if not x.startswith("s_nop")]
        ops.extend(r); return r
    def qcur(g):
        return [x.replace(f"s{sQoffn}", f"s{sOoff}").replace(f"s[{sQ}:{sQ+3}]", f"s[{sQc}:{sQc+3}]") for x in qgroup(g, False)]
    def vmw(tag, first, after, tmin):
        i = len(L) * 1000 + len(ops)
        lines = [f"s_cmp_eq_u32 s{sFirst}, 0", f"s_cbranch_scc1 Lw{i}", "@W", f"Lw{i}:"] if first else None
        o = Op("s_waitcnt vmcnt(0)", vmwait=tag, lines=lines, after=after, tmin=tmin); ops.append(o); return o
    t0, dt = opts.get("qt0", 100), opts.get("qdt", 300)
    add([f"v_xor_b32 v{adr[0][s]}, {s*64}, v{vQa}" for s in range(4)] + [f"v_add_u32 v{adr[1][s]}, 8, v{adr[0][s]}" for s in range(4)])
    add([f"v_mul_u32_u24 v{vCA}, {CHI}, v{vM01}", f"v_mul_u32_u24 v{vCA+1}, {CHI}, v{vM23}",
         f"v_mul_u32_u24 v{vCA+2}, {CLO}, v{vM01}", f"v_mul_u32_u24 v{vCA+3}, {CLO}, v{vM23}"])
    add([f"v_sub_u32 v{vX}, s{sRem}, v{vG4}", f"v_mov_b32 v{vX+1}, s{sNeg}"])
    for a in range(2):
        add([f"v_cmp_lt_i32 s[{sM+2*i}:{sM+2*i+1}], {16*a+i}, v{vX}" for i in range(4)])
        add([f"v_cndmask_b32 v{vMK+4*a+i}, v{vX+1}, 0, s[{sM+2*i}:{sM+2*i+1}]" for i in range(4)])
    add([f"v_mov_b32 v{vL4+2*(t-3)+1}, 0" for t in range(NRS, T)])
    qld = {}
    for g in range(2, T):
        qld[g] = add(qcur(g), tag=f"Q{g}", tmin=(g - 2) * 260)
    W = {0: vmw("Q0", True, qld.get(2, [])[-1:], t0)}
    B0 = opts.get("b0", 1)
    if B0:
        Bz = add(["s_barrier"], after=[W[0]])[0]
        add(k_reads(0), after=[Bz])
    def second(aft):
        nonlocal B1, B2
        W[1] = vmw("K1", True, [W[0]] + qld.get(3, [])[-1:] + aft, t0 + dt)
        B1 = add(["s_barrier"], after=[W[1]])[0]
        add(([] if B0 else k_reads(0)) + k_reads(1, aVf), after=[B1])
        B2 = add(["s_barrier"], after=[B1], reads={("a", aKf + i) for i in range(64)})[0]
    B1 = B2 = None
    if not B0: second([])
    e1, e2 = (2, 2) if T >= 4 else (1, min(T - 1, opts.get("b3", 1)))
    bulk = {e1: [("K2", ktile(2), 1), ("V0", vtile(0), 1)]}
    bulk.setdefault(e2, []).extend([("K3", ktile(3), 1), ("V1", vtile(1), 1), ("G", dma(0), 2), ("G", dma(1), 2)])
    lastA = None
    tile_all, tile_max = {}, {}
    for t in range(T):
        if t >= 2:
            aft = [W[t - 1], qld[T - 1][-1]]
            if opts.get("lag", 1): aft += tile_all[t - 2]
            if opts.get("lag", 1) and t == T - 1: aft += tile_max[t - 1] if opts.get("lag", 1) == 1 else tile_all[t - 1]
            W[t] = vmw(f"Q{t}", False, aft, t0 + t * dt)
        for tag, l, bar in bulk.get(t, []):
            r = add(l, tag=tag, after=[B1 if bar == 1 else B2, W[t]])
            if tag == "V0": v0 = r[-1]
        raw = aO + 32 * t
        add([f"ds_read2st64_b64 {ar(raw+4*k,4)}, v{adr[k&1][k>>1]} offset0:{8*t} offset1:{8*t}" for k in range(8)], after=[W[t]])
        for k in range(8):
            d = sreg((k >> 1) & 1, t, k & 1)
            add([f"{MF} {vr(d,4)}, {vr(vCA,4)}, {ar(raw+4*k,4)}, 0"])
            for i in range(2):
                if t < 4:
                    add([f"v_cvt_pk_bf16_f32 v{vQ+16*t+2*k+i}, v{d+2*i}, v{d+2*i+1}"])
                else:
                    add([f"v_cvt_pk_bf16_f32 v{d+2*i}, v{d+2*i}, v{d+2*i+1}", f"v_accvgpr_write_b32 a{aQ+2*k+i}, v{d+2*i}"])
        lastA = add([qk1(0, t, a, s, vMK + 4 * a) for a in range(2) for s in range(4)])[-1]
        fm = first_max(t)
        if t & 1: fm = [x.replace(f"v{vX+2}", f"v{vX}").replace(f"v{vX+3}", f"v{vX+1}") for x in fm]
        tile_max[t] = add(fm)
        if t == 0 and B0: second([Bz] + ([lastA] if B0 == 1 else tile_max[0]))
        cc = add([qk1(1, t, a, s, vNM + 4 * t, aVf) for a in range(2) for s in range(4)])
        dd = SM(1, 0, False, t, 2).rest()
        if t & 1:
            for i in range(4): dd = [x.replace(f"v{vE+i}", f"v{vX+4+i}") for x in dd]
        tile_all[t] = tile_max[t] + cc + add(dd)
    W3 = vmw("V0", False, [v0, lastA, B2] + (tile_max[T - 1] if opts.get("w3", 1) else []), 0)
    B3 = add(["s_barrier"], after=[W3])[0]
    add(k_reads(2), after=[B3], bonus=150)
    q = ["K0"] * 2 + ["Q0"] * 4 + ["Q1"] * 4 + ["K1"] * 2
    out, est = schedule(ops, q, verbose=bool(opts.get("verb")), **({} if opts.get("pb", 0) else {"betas": (10000,)}))
    assert q[-8:] == ["G"] * 8
    emit(out)
    stamp(1)

def prologue3(T):
    lab(f"Lramp{T}")
    mk = [preg(0, T - 1), preg(1, T - 1)]
    adr = [vX + 8 + s for s in range(4)], [vNM + 4 * (T - 1) + s for s in range(4)]
    ops = []
    def add(l, **k):
        r = [Op(x, **k) for x in l if not x.startswith("s_nop")]
        ops.extend(r); return r
    def qcur(g):
        return [x.replace(f"s{sQoffn}", f"s{sOoff}").replace(f"s[{sQ}:{sQ+3}]", f"s[{sQc}:{sQc+3}]") for x in qgroup(g, False)]
    def vmw(tag, after, tmin):
        o = Op("s_waitcnt vmcnt(0)", vmwait=tag, after=after, tmin=tmin); ops.append(o); return o
    t0, dt = opts.get("rt0", 200), opts.get("rdt", 700)
    add([f"v_xor_b32 v{adr[0][s]}, {s*64}, v{vQa}" for s in range(4)] + [f"v_add_u32 v{adr[1][s]}, 8, v{adr[0][s]}" for s in range(4)])
    vCA = sreg(0, 4)
    add([f"v_mul_u32_u24 v{vCA}, {CHI}, v{vM01}", f"v_mul_u32_u24 v{vCA+1}, {CHI}, v{vM23}",
         f"v_mul_u32_u24 v{vCA+2}, {CLO}, v{vM01}", f"v_mul_u32_u24 v{vCA+3}, {CLO}, v{vM23}"])
    CA = vr(vCA, 4)
    if T == 5:
        assert NRS <= 3
        add([f"v_accvgpr_write_b32 a{aL+12+i}, v{vCA+i}" for i in range(4)])
        CA = ar(aL + 12, 4)
    add([f"v_sub_u32 v{vX}, s{sRem}, v{vG4}", f"v_mov_b32 v{vX+1}, s{sNeg}"])
    for a in range(2):
        add([f"v_cmp_lt_i32 s[{sM+2*i}:{sM+2*i+1}], {16*a+i}, v{vX}" for i in range(4)])
        add([f"v_cndmask_b32 v{mk[a]+i}, v{vX+1}, 0, s[{sM+2*i}:{sM+2*i+1}]" for i in range(4)])
    early = [("K2", ktile(2)), ("V0", vtile(0))] + [(f"Q{g}", qcur(g)) for g in range(2, T)]
    if opts.get("ro", 0) and T > 2: early = early[2:3] + early[:2] + early[3:]
    ld = {}
    for tag, l in early: ld[tag] = add(l, tag=tag)[-1]
    el = [ld[tag] for tag, _ in early]
    W = {0: vmw("Q0", el[1:2], t0)}
    W[1] = vmw("K1", [W[0]] + el[2:3], t0 + dt)
    B1 = add(["s_barrier"], after=[W[1]])[0]
    add(k_reads(0) + k_reads(1, aVf), after=[B1])
    WV = vmw("V0", [W[1], el[-1]], t0 + dt + opts.get("rv", 300))
    B2 = add(["s_barrier"], after=[B1, WV], reads={("a", aKf + i) for i in range(64)})[0]
    lt = min(opts.get("rl", 2), T - 1)
    buf = aO + 128
    groups = [[0, 1]] + [[t] for t in range(2, T)]
    tile_all, frag = {}, []
    def soft(b, t, first):
        s0, pp = sreg(b, t), preg(b, t)
        r = add([f"v_exp_f32 v{s0+i}, v{s0+i}" for i in range(8)])
        r += add([f"v_cvt_pk_bf16_f32 v{pp+k}, v{s0+2*k}, v{s0+2*k+1}" for k in range(4)])
        if t >= NRS:
            dst = vL4 + 2 * (t - 3) + (1 if first else 0)
            r += add([f"v_add_f32 v{s0+2*k}, v{s0+2*k}, v{s0+2*k+1}" for k in range(4)] +
                     [f"v_add_f32 v{s0}, v{s0}, v{s0+2}", f"v_add_f32 v{s0+4}, v{s0+4}, v{s0+6}", f"v_add_f32 v{dst}, v{s0}, v{s0+4}"])
        return r
    for gr in groups:
        for t in gr:
            if t >= 2:
                aft = [W[t - 1], el[-1]]
                lag = opts.get("rlag", 1)
                for u in range(0, t - lag + 1 if lag else 0):
                    if u in tile_all and u <= t - lag: aft += tile_all[u]
                W[t] = vmw(f"Q{t}", aft, t0 + t * dt + opts.get("rv", 300))
            if t == lt:
                for tag, l, bar in (("K3", ktile(3), B1), ("V1", vtile(1), B1), ("G", dma(0), B2), ("G", dma(1), B2)):
                    r = add(l, tag=tag, after=[bar, W[t]])
                    if tag == "V1": v1 = r[-1]
            raw = aO + 32 * t
            add([f"ds_read2st64_b64 {ar(raw+4*k,4)}, v{adr[k&1][k>>1]} offset0:{8*t} offset1:{8*t}" for k in range(8)], after=[W[t]])
            for k in range(8):
                d = sreg((k >> 1) & 1, t, k & 1)
                add([f"{MF} {vr(d,4)}, {CA}, {ar(raw+4*k,4)}, 0"])
                for i in range(2):
                    if t < 4:
                        add([f"v_cvt_pk_bf16_f32 v{vQ+16*t+2*k+i}, v{d+2*i}, v{d+2*i+1}"])
                    else:
                        add([f"v_cvt_pk_bf16_f32 v{d+2*i}, v{d+2*i}, v{d+2*i+1}", f"v_accvgpr_write_b32 a{aQ+2*k+i}, v{d+2*i}"])
            add([qk1(0, t, a, s, mk[a]) for a in range(2) for s in range(4)])
            fm = first_max(t)
            if t & 1: fm = [x.replace(f"v{vX+2}", f"v{vX}").replace(f"v{vX+3}", f"v{vX+1}") for x in fm]
            tile_all[t] = add(fm)
            tile_all[t] += add([qk1(1, t, a, s, vNM + 4 * t, aVf) for a in range(2) for s in range(4)])
            tile_all[t] += soft(0, t, True)
        last = gr[-1] == T - 1
        bk, bv = ((aKf, aVf) if T == 5 else (buf, aVf)) if last else (buf, buf)
        if last and T < 5 and len(groups) > 1: bk, bv = aKf, buf
        frag += add(k_reads(2, bk), after=[B2])
        for t in gr:
            tile_all[t] += add([qk1(0, t, a, s, vNM + 4 * t, bk) for a in range(2) for s in range(4)])
            tile_all[t] += soft(1, t, False)
        if not (last and T < 5 and len(groups) > 1):
            frag += add(v_reads(2, bv), after=[B2])
        ZERO[0] = True
        for t in gr:
            tile_all[t] += add([pv1(0, t, dt_, bv) for dt_ in range(8)] + ([rs1(0, t)] if t < NRS else []))
        ZERO[0] = False
    W4 = vmw("V1", [v1, B2], 0)
    for o in frag: o.w = o.w | {("x", 2)}
    B4 = add(["s_barrier"], after=[W4] + frag, reads={x for o in frag[-24:] for x in o.w})[0]
    for o in frag: o.w = o.w - {("x", 2)}
    B4.r = B4.r - {("x", 2)}
    add(k_reads(3), after=[B4], bonus=150)
    add(dma(2), after=[B4], tag="G")
    q = ["K0"] * 2 + ["Q0"] * 4 + ["Q1"] * 4 + ["K1"] * 2
    out, est = schedule(ops, q, verbose=bool(opts.get("verb")), betas=(64, 10000))
    assert q[-12:] == ["G"] * 12
    emit(out)
    e(f"s_sub_u32 s{sCnt}, s{sCnt}, 2")
    e("s_waitcnt lgkmcnt(0)")
    stamp(1)
    if opts.get("enc"): e("s_memrealtime s[76:77]")

def prologue(T):
    if opts.get("p2", 1): prologue2(T)
    else: prologue1(T)
    prologue_end(T)

def prologue1(T):
    lab(f"Lpro{T}")
    def qcur(g):
        return [x.replace(f"s{sQoffn}", f"s{sOoff}").replace(f"s[{sQ}:{sQ+3}]", f"s[{sQc}:{sQc+3}]") for x in qgroup(g, False)]
    q = ["K0"] * 2 + ["Q0"] * 4 + ["Q1"] * 4 + ["K1"] * 2
    def younger(tag): return len(q) - 1 - max(i for i, x in enumerate(q) if x == tag)
    for s in range(4):
        e(f"v_xor_b32 v{vX+8+s}, {s*64}, v{vQa}")
    pre = [f"v_sub_u32 v{vX}, s{sRem}, v{vG4}", f"v_mov_b32 v{vX+1}, s{sNeg}"]
    for a in range(2):
        pre += [f"v_cmp_lt_i32 s[{sM+2*i}:{sM+2*i+1}], {16*a+i}, v{vX}" for i in range(4)] + ["s_nop 0"]
        pre += [f"v_cndmask_b32 v{vMK+4*a+i}, v{vX+1}, 0, s[{sM+2*i}:{sM+2*i+1}]" for i in range(4)]
    if not RS: pre += [f"v_mov_b32 v{vL+t}, 0" for t in range(T)]
    else: pre += [f"v_mov_b32 v{vL4+2*(t-3)+1}, 0" for t in range(NRS, T)]
    def qreads(t):
        return [f"ds_read_b128 {vr(qraw(t,4*s),4)}, v{vX+8+s} offset:{t*4096}" for s in range(4)]
    A = lambda t: [qk1(0, t, a, s, vMK + 4 * a) for a in range(2) for s in range(4)]
    C = lambda t: [qk1(1, t, a, s, vNM + 4 * t, aVf) for a in range(2) for s in range(4)]
    def sparse(mem, valu):
        d = place(mem, range(max(1, nvm(mem))))
        out = []; j = 0
        for i in range(len(d)):
            out += d[i]
            nj = (i + 1) * len(valu) // len(d)
            out += valu[j:nj]; j = nj
        return out
    if T > 2:
        emit(sparse(qcur(2), pre)); q += ["Q2"] * 4
        pre = []
    first_only([f"s_waitcnt vmcnt({younger('Q0')})"])
    pstamp(1)
    emit(qreads(0))
    emit(pre)
    e("s_waitcnt lgkmcnt(0)")
    if T > 3:
        emit(sparse(qcur(3), prescale(0))); q += ["Q3"] * 4
    else:
        emit(prescale(0))
    first_only([f"s_waitcnt vmcnt({younger('K1')})"])
    pstamp(2)
    if opts.get("sb", 9) <= 5: e(f"ds_write_b32 v{vOr}, v{vSeq}")
    emit(qreads(1))
    e("s_barrier")
    emit(k_reads(0))
    e("s_waitcnt lgkmcnt(8)")
    ps = prescale(1)
    if T > 4:
        emit(sparse(qcur(4), ps[:32])); q += ["Q4"] * 4
    else:
        emit(ps[:32])
    emit(k_reads(1, aVf))
    e("s_waitcnt lgkmcnt(8)")
    bulk = [("K2", ktile(2)), ("V0", vtile(0)), ("K3", ktile(3)), ("V1", vtile(1)), ("G", dma(0)[:5]), ("G", dma(0)[5:]),
            ("H", dma(1)[:5]), ("H", dma(1)[5:])]
    def takeb(n):
        nonlocal bulk
        r = []
        for tag, l in bulk[:n]:
            r += l; q.extend([tag] * nvm(l))
        bulk = bulk[n:]
        return r
    emit(weave(A(0), [], takeb(1) if T == 2 else []))
    emit(sparse(takeb(1), ps[32:]) if T <= 3 else ps[32:])
    D = lambda t: SM(1, 0, False, t, 2).rest()
    def getq(k):
        e(f"s_waitcnt vmcnt({younger(f'Q{k}')})")
        if k <= 3: pstamp(k + 1)
        emit(qreads(k))
    def bar2():
        e("s_waitcnt lgkmcnt(0)")
        e("s_barrier")
    per = {2: [2, 2, 2], 3: [1, 1, 1, 2, 2], 4: [1, 1, 1, 1, 1, 1, 2], 5: [0, 1, 1, 1, 1, 1, 1, 1, 1]}[T]
    tk = lambda: takeb(per.pop(0))
    for k in range(2, T):
        emit(weave(A(k - 1), first_max(k - 2), tk()))
        if k == 2: bar2()
        if k < T - 1:
            getq(k)
            emit(weave(C(k - 2), D(k - 2), tk()))
        else:
            emit(weave(C(k - 2), first_max(k - 1), tk()))
            emit(D(k - 2))
            getq(k)
            emit(weave(C(k - 1), D(k - 1)[:8], tk()))
        e("s_waitcnt lgkmcnt(0)")
        emit(prescale(k))
    stamp(1)
    if opts["stamp"]: e("s_waitcnt lgkmcnt(0)")
    if T == 2:
        emit(weave(A(1), first_max(0), tk()))
        bar2()
        emit(weave(C(0), D(0), tk()))
    else:
        emit(weave(A(T - 1), D(T - 2)[8:], tk()))
    e(f"s_waitcnt vmcnt({younger('V0')})")
    e("s_barrier")
    emit(k_reads(2))
    emit(first_max(T - 1))
    emit(weave(C(T - 1), D(T - 1), tk()))
    assert not bulk and not per

def prologue_end(T):
    e(CNT)
    e(f"s_cmp_lg_u32 s{sSafe}, 0")
    e(f"s_cbranch_scc1 Lsafe{T}")
    if opts.get("enc"):
        i = len(L)
        e(f"s_cmp_eq_u32 s{sFirst}, 0"); e(f"s_cbranch_scc1 Le{i}"); e("s_memrealtime s[76:77]"); lab(f"Le{i}")
    step(T, 1, True, True)
    if RAMP and T in FIRSTS:
        e(f"s_branch Ljoin{T}")
        prologue3(T)
        lab(f"Ljoin{T}")
    stamp(2)
    e(f".p2align {opts['al']}")
    lab(f"Lloop{T}")
    for t in (2, 3, 4, 5):
        step(T, t, False, True)
    e(f"s_branch Lloop{T}")
    for sp in SPINS:
        lab(f"Lsp{sp}")
        e(f"ds_read_b32 v{vFl}, v{vSr}")
        e("s_waitcnt lgkmcnt(0)")
        e(f"v_cmp_lt_u32 vcc, v{vFl}, v{vSeq}")
        e(f"s_cbranch_vccnz Lsp{sp}")
        e(f"s_branch Lspb{sp}")
    SPINS.clear()
    for p in range(4):
        tails(T, p)

def stamp_store(final=False, B=None):
    if not opts["stamp"]: return
    B = vP + 20 if B is None else B
    if opts["stamp"] == 2:
        if not final: return
        e("s_waitcnt lgkmcnt(0)")
        e("s_mov_b32 s92, s90"); e("s_mov_b32 s93, s91"); e("s_mov_b32 s94, 256"); e("s_mov_b32 s95, 0x20000")
        e("s_mov_b64 exec, 1")
        e(f"v_mov_b32 v{B+8}, 0")
        e("s_not_b32 s96, s100"); e(f"v_mov_b32 v{B}, s96")
        e(f"buffer_atomic_umax v{B}, v{B+8}, s[92:95], 0 offen offset:32")
        e(f"v_mov_b32 v{B+1}, s{sST+12}")
        e(f"buffer_atomic_umax v{B+1}, v{B+8}, s[92:95], 0 offen offset:36")
        e(f"v_mov_b32 v{B+2}, s100")
        e(f"buffer_atomic_umax v{B+2}, v{B+8}, s[92:95], 0 offen offset:40")
        e(f"s_lshl_b32 s96, s2, 2"); e(f"s_add_u32 s96, s96, s{sW}")
        e("s_cmp_lg_u32 s96, 32"); e("s_cbranch_scc1 Lnodbg")
        e(f"s_sub_u32 s96, s99, s100"); e(f"v_mov_b32 v{B}, s96")
        e(f"s_sub_u32 s96, s{sST+2}, s97"); e(f"v_mov_b32 v{B+1}, s96")
        for i in range(1, 4):
            e(f"s_sub_u32 s96, s{sST+2*i+2}, s{sST+2*i}"); e(f"v_mov_b32 v{B+1+i}, s96")
        e(f"s_sub_u32 s96, s{sST}, s{sST+8}"); e(f"v_mov_b32 v{B+5}, s96")
        e(f"s_sub_u32 s96, s{sST+12}, s100"); e(f"v_mov_b32 v{B+6}, s96")
        e(f"v_mov_b32 v{B+7}, s100")
        e(f"buffer_store_dwordx4 {vr(B,4)}, v{B+8}, s[92:95], 0 offen")
        e(f"buffer_store_dwordx4 {vr(B+4,4)}, v{B+8}, s[92:95], 0 offen offset:16")
        lab("Lnodbg")
        return
    e("s_waitcnt lgkmcnt(0)")
    e("s_mov_b32 s92, s90"); e("s_mov_b32 s93, s91"); e("s_mov_b32 s94, 0x100000"); e("s_mov_b32 s95, 0x20000")
    e(f"s_lshl_b32 s96, s2, 2"); e(f"s_add_u32 s96, s96, s{sW}"); e("s_lshl_b32 s96, s96, 2")
    if final: e("s_add_u32 s96, s96, 3")
    else: e("s_add_u32 s96, s96, s97"); e("s_add_u32 s97, s97, 1")
    e("s_lshl_b32 s96, s96, 5")
    for i in range(5): e(f"v_mov_b32 v{B+i}, s{sST+2*i}")
    e(f"v_mov_b32 v{B+5}, s{sST+10}"); e(f"v_mov_b32 v{B+6}, s{sST+12}"); e(f"v_mov_b32 v{B+7}, s98")
    e(f"v_mov_b32 v{B+8}, 0")
    e("s_mov_b64 exec, 1")
    e(f"buffer_store_dwordx4 {vr(B,4)}, v{B+8}, s[92:95], s96 offen")
    e(f"buffer_store_dwordx4 {vr(B+4,4)}, v{B+8}, s[92:95], s96 offen offset:16")
    e("s_mov_b64 exec, -1")
    e("s_nop 2")

def epilogue(T):
    lab(f"Lepi{T}")
    stamp(4)
    if opts["stamp"]: e(f"s_memrealtime s[{sST+12}:{sST+13}]")
    if opts.get("pst") != 2: stamp_store()
    estamp(1)
    if opts["epi"]:
        def swaps(t):
            pk = vQ + 32 + 16 * (t & 1)
            return [f"v_permlane16_swap_b32 v{pk+4*j+i}, v{pk+4*j+2+i}" for j in range(4) for i in range(2)]
        def dstores(t):
            pk = vQ + 32 + 16 * (t & 1)
            return [f"buffer_store_dwordx4 {vr(pk+4*j,4)}, v{vOw}, s[{sOut}:{sOut+3}], s{sT0} offen offset:{j*64}{ST}" for j in range(4)]
        emit(epi_cvt(0) + swaps(0))
        for t in range(1, T + 1):
            va = epi_acc(t) + epi_cvt(t) + swaps(t) if t < T else []
            st = dstores(t - 1)
            e(f"s_add_u32 s{sT0}, s{sOoff}, {(t-1)*16*ROWB}")
            if opts["epi"] == 2:
                emit(st[:2] + va[:24] + st[2:] + va[24:])
            else:
                for j in range(4):
                    e(st[j]); emit(va[14 * j:14 * (j + 1)])
                emit(va[56:])
    else:
        epilogue_lds(T)
    epilogue_end(T)

def epilogue_lds(T):
    held = []
    for t in range(T):
        ac, cv, w = epi_acc(t), epi_cvt(t), epi_writes(t)
        if t == T - 1:
            estamp(3)
            if opts.get("pst") == 2: e("s_waitcnt lgkmcnt(0)")
        for qd in range(4):
            if t: emit(ac[8 * qd:8 * qd + 8])
            if qd == 1 and t:
                emit([held.pop(0), "s_waitcnt lgkmcnt(2)"])
            if held and (t > 1 or qd): e(held.pop(0))
            emit(cv[4 * qd:4 * qd + 4] + cv[16 + 4 * qd:16 + 4 * qd + 4] + w[2 * qd:2 * qd + 2])
        emit(epi_reads(t))
        so = sT0 + (t & 1)
        held += [x.replace(f"s{sT0}", f"s{so}") for x in epi_stores(t)]
        if t == 1: estamp(2)
    n = 4
    for i, x in enumerate(held):
        if x.startswith("buffer") and i >= len(held) - 4:
            n -= 1
            e(f"s_waitcnt lgkmcnt({n})")
        e(x)

def epilogue_end(T):
    estamp(4)
    if T in PROD:
        e(f"s_cmp_eq_u32 s{sD1n}, 0")
        e("s_cbranch_scc1 Ldone")
        e(f"s_mov_b32 s{sFirst}, 0")
        e(f"s_mov_b32 s{sSafe}, {opts.get('safe', 0)}")
        e(f"s_waitcnt vmcnt({4*T + (nvm(warm_loads()) if WARM else 0)})")
        e("s_branch Lstart")
    else:
        e("s_branch Ldone")

def gen():
    L.append(open(os.path.join(os.path.dirname(os.path.abspath(__file__)), "header.txt")).read().rstrip())
    L.append(f"; @launch grid=({NWG},1,1) block=(256,1,1) lds={LDSZ}")
    L.append("""; Structure (generated by a script of my own, one workgroup per CU, 4 waves, 512 registers each):
;    with the running-max loop (Lsafe*, rescale in Lresc*), so the result never depends on value ranges.""")
    L.append('.amdgcn_target "amdgcn-amd-amdhsa--gfx950"')
    L.append(".text")
    L.append(f".globl {NAME}_kernel")
    L.append(".p2align 8")
    L.append(f".type {NAME}_kernel,@function")
    lab(f"{NAME}_kernel")
    e(f"s_cmp_ge_u32 s2, {NWG}")
    e("s_cbranch_scc1 Lend")
    e(f"s_getpc_b64 s[{sPC}:{sPC+1}]")
    lab("Lpc")
    e(f"s_add_u32 s4, s{sPC}, Ltab-Lpc")
    e(f"s_addc_u32 s5, s{sPC+1}, 0")
    e("s_lshl_b32 s3, s2, 5")
    e(f"s_load_dwordx8 s[{sJ}:{sJ+7}], s[4:5], s3")
    for srd, off in ((sK, 8), (sQ, 0), (sV, 16), (sOut, 32), (sQc, 0)):
        e(f"s_load_dwordx2 s[{srd}:{srd+1}], s[0:1], {off}")
    if opts["pf"] == 1:
        e(f"v_lshlrev_b32 v1, 7, v0")
        for i in range(2):
            e(f"global_load_dword v{2+i}, v1, s[{sPC}:{sPC+1}]")
            e(f"v_add_u32 v1, 32768, v1")
    elif opts["pf"] == 2:
        e("s_lshr_b32 s3, s2, 3")
        e("s_mul_i32 s3, s3, 2560")
        e("v_lshrrev_b32 v1, 6, v0")
        e("v_mul_u32_u24 v1, 640, v1")
        e("v_and_b32 v2, 7, v0")
        e("v_min_u32 v2, 4, v2")
        e("v_lshl_add_u32 v1, v2, 7, v1")
        e("v_add_u32 v1, s3, v1")
        e("v_min_u32 v1, Lcold-Lpc, v1")
        e(f"global_load_dword v2, v1, s[{sPC}:{sPC+1}]")
    if opts["stamp"]:
        e(f"s_load_dwordx2 s[90:91], s[0:1], {40 if opts['stamp'] == 2 else 48}")
        e("s_memrealtime s[100:101]")
        e("s_mov_b32 s97, 0")
    if opts.get("spin"):
        e("s_memrealtime s[100:101]")
        e("s_load_dwordx2 s[90:91], s[0:1], 40")
    if LIGHT:
        e("s_load_dwordx2 s[90:91], s[0:1], 48")
        e("s_memrealtime s[100:101]")
    w, ln, i16, g, x4, x5, x6 = range(vX, vX + 7)
    e(f"v_lshrrev_b32 v{w}, 6, v0")
    e(f"v_and_b32 v{ln}, 63, v0")
    e(f"v_readfirstlane_b32 s{sW}, v{w}")
    e(f"v_and_b32 v{i16}, 15, v{ln}")
    e(f"v_lshrrev_b32 v{g}, 4, v{ln}")
    e(f"v_xor_b32 v{x6}, v{i16}, v{g}")
    e(f"v_lshlrev_b32 v{x6}, 4, v{x6}")
    mark = len(L)
    e(f"v_bfe_u32 v{x4}, v{ln}, 3, 1")
    e(f"v_lshlrev_b32 v{x4}, 12, v{x4}")
    e(f"v_and_b32 v{x5}, 7, v{ln}")
    e(f"v_lshl_add_u32 v{x4}, v{x5}, 8, v{x4}")
    e(f"v_add3_u32 v{vKa}, v{x4}, v{x6}, 0")
    e(f"v_add_u32 v{vKa}, 2048, v{vKa}")
    for s in range(1, 4):
        e(f"v_xor_b32 v{vKa+s}, {s*64}, v{vKa}")
    e(f"v_mul_u32_u24 v{x4}, {QW}, v{w}")
    e(f"v_lshl_add_u32 v{x4}, v{i16}, 8, v{x4}")
    e(f"v_add3_u32 v{x4}, v{x4}, v{x6}, 0")
    e(f"v_add_u32 v{vQa}, {QS}, v{x4}")
    e(f"v_lshlrev_b32 v{x4}, 12, v{w}")
    e(f"v_add_u32 v{x4}, {OS}, v{x4}")
    e(f"v_lshl_add_u32 v{vOr}, v{ln}, 4, v{x4}")
    e(f"v_lshl_add_u32 v{x4}, v{i16}, 8, v{x4}")
    e(f"v_lshrrev_b32 v{x5}, 1, v{g}")
    e(f"v_xor_b32 v{x5}, v{x5}, v{i16}")
    e(f"v_lshl_add_u32 v{x4}, v{x5}, 4, v{x4}")
    e(f"v_and_b32 v{x5}, 1, v{g}")
    e(f"v_lshl_add_u32 v{vOw}, v{x5}, 3, v{x4}")
    if opts["epi"]:
        e(f"v_lshlrev_b32 v{x4}, 12, v{i16}")
        e(f"v_lshl_add_u32 v{x4}, v{x5}, 5, v{x4}")
        e(f"v_lshrrev_b32 v{vOw}, 1, v{g}")
        e(f"v_lshl_add_u32 v{vOw}, v{vOw}, 4, v{x4}")
    e(f"v_lshrrev_b32 v{x4}, 1, v{g}")
    e(f"v_lshlrev_b32 v{x4}, 12, v{x4}")
    e(f"v_mul_u32_u24 v{x5}, {4*256+32}, v{x5}")
    e(f"v_add_u32 v{x4}, v{x4}, v{x5}")
    e(f"v_lshrrev_b32 v{x5}, 2, v{i16}")
    e(f"v_mul_u32_u24 v{x5}, {256+64}, v{x5}")
    e(f"v_add_u32 v{x4}, v{x4}, v{x5}")
    e(f"v_and_b32 v{x5}, 3, v{ln}")
    e(f"v_lshl_add_u32 v{vVa}, v{x5}, 3, v{x4}")
    for dt in range(1, 8):
        e(f"v_xor_b32 v{vVa+dt}, {dt*32}, v{vVa}")
    if RS:
        for i in range(4): e(f"v_mov_b32 v{vOne+i}, 0x3f803f80")
    e(f"v_and_b32 v{vFr}, 3, v{ln}")
    if opts.get("p2", 1):
        e(f"v_and_b32 v{x4}, 1, v{ln}")
        e(f"v_lshlrev_b32 v{x4}, 4, v{x4}")
        e(f"v_lshlrev_b32 v{x4}, v{x4}, 1")
        e(f"v_lshrrev_b32 v{x5}, 1, v{i16}")
        e(f"v_lshlrev_b32 v{vM23}, 1, v{g}")
        e(f"v_cmp_eq_u32 vcc, v{x5}, v{vM23}")
        e(f"v_add_u32 v{vM23}, 1, v{vM23}")
        e(f"v_cmp_eq_u32 s[{sM}:{sM+1}], v{x5}, v{vM23}")
        e(f"v_cndmask_b32 v{vM01}, 0, v{x4}, vcc")
        e("s_nop 0")
        e(f"v_cndmask_b32 v{vM23}, 0, v{x4}, s[{sM}:{sM+1}]")
    if opts.get("sb", 9) <= 5:
        e(f"v_lshlrev_b32 v{vSr}, 12, v{vFr}")
        e(f"v_add_u32 v{vSr}, {OS}, v{vSr}")
        e(f"v_mov_b32 v{vSeq}, 0")
    e(f"v_mul_u32_u24 v{vFr}, {QW}, v{vFr}")
    e(f"v_add_u32 v{vFr}, {QS+16384}, v{vFr}")
    late = [x.strip() for x in L[mark:]]
    del L[mark:]
    e(f"v_lshlrev_b32 v{vG4}, 2, v{g}")
    e(f"v_lshl_add_u32 v{vQd}, v{g}, 12, v{x6}")
    for i in range(1, 4):
        e(f"v_xor_b32 v{vQd+i}, {i*64}, v{vQd}")
        e(f"v_add_u32 v{vQd+i}, {i*(4*ROWB-1024)}, v{vQd+i}")
    e(f"v_lshl_add_u32 v{x5}, v{w}, 3, v{g}")
    e(f"v_xor_b32 v{x4}, v{vG4}, v{i16}")
    e(f"v_lshlrev_b32 v{x4}, 4, v{x4}")
    e(f"v_lshl_add_u32 v{vDV}, v{x5}, 12, v{x4}")
    e(f"v_xor_b32 v{vDV+1}, 32, v{vDV}")
    e(f"v_add_u32 v{vDV+1}, {4*ROWB-1024}, v{vDV+1}")
    e(f"v_and_b32 v{x4}, 15, v{x5}")
    e(f"v_xor_b32 v{x4}, v{x4}, v{i16}")
    e(f"v_lshlrev_b32 v{x4}, 4, v{x4}")
    e(f"v_lshl_add_u32 v{vDK}, v{x5}, 12, v{x4}")
    e(f"v_xor_b32 v{vDK+1}, 64, v{vDK}")
    e(f"v_add_u32 v{vDK}, {4096-2048}, v{vDK}")
    e(f"v_add_u32 v{vDK+1}, {4*ROWB+4096-3072}, v{vDK+1}")
    e(f"s_lshl_b32 s{sWB}, s{sW}, 12")
    e(f"s_mov_b32 s{sThr}, {hex(f32bits(BIAS if RS else 4096.0))}")
    e(f"s_mov_b32 s{sC}, {hex(f32bits(128 ** -0.5 * math.log2(math.e)))}")
    e(f"s_mov_b32 s{sNeg}, {hex(f32bits(-1e30))}")
    e(f"s_mov_b32 s{sBig}, 0x40000000")
    if opts.get("perm"): e(f"s_mov_b32 s{sN}, 0x07060302")
    e(f"s_mov_b32 s{sFirst}, 1")
    e(f"s_mov_b32 s{sSafe}, {opts.get('safe', 0)}")
    e(f"s_mov_b32 s{sLim}, {hex(f32bits(2.0 ** 40))}")
    e(f"s_mul_i32 s{sQW}, s{sW}, {QW}")
    e(f"s_add_u32 s{sQW}, s{sQW}, {QS}")
    for srd in (sQ, sK, sV, sOut, sQc):
        e(f"s_mov_b32 s{srd+2}, 0")
        e(f"s_mov_b32 s{srd+3}, 0x20000")
    e(m0set(0))
    e("s_waitcnt lgkmcnt(0)")
    e(f"s_sub_u32 s{sK}, s{sK}, 4096")
    e(f"s_subb_u32 s{sK+1}, s{sK+1}, 0")
    def decode():
        e(f"s_mov_b32 s{sQ+2}, s{sNRn}")
        e(f"s_bfe_u32 s{sTn}, s{sD1n}, 0x30018")
        e(f"s_mul_i32 s{sT0}, s{sTn}, s{sW}")
        e(f"s_lshl_b32 s{sT0}, s{sT0}, 16")
        e(f"s_and_b32 s{sQoffn}, s{sD1n}, 0xfff000")
        e(f"s_add_u32 s{sQoffn}, s{sQoffn}, s{sD0n}")
        e(f"s_add_u32 s{sQoffn}, s{sQoffn}, s{sT0}")
    emit(next_k0()[1:])
    decode()
    j = 0
    nl = 0
    for x in qgroup(0) + next_loads(1)[1]:
        if opts["lazy"] and "m0" in x and nl < opts.get("lz", 2):
            e(f"s_bitcmp0_b32 s{sD1n}, 28"); e(f"s_cbranch_scc1 Llz{nl}"); e("s_waitcnt vmcnt(0)"); lab(f"Llz{nl}"); nl += 1
        e(x)
        if x.startswith("buffer"):
            emit(late[j:j + 5]); j += 5
    emit(late[j:])
    lab("Lstart")
    e(f"s_mov_b64 s[{sD0}:{sD1}], s[{sD0n}:{sD1n}]")
    e(f"s_mov_b32 s{sLast}, s{sLastn}")
    e(f"s_mov_b32 s{sOut+2}, s{sNRn}")
    e(f"s_mov_b32 s{sV+2}, s{sNRn}")
    e(f"s_mov_b32 s{sQc+2}, s{sNRn}")
    e(f"s_mov_b32 s{sOoff}, s{sQoffn}")
    e(f"s_mov_b64 s[{sJ}:{sJ+1}], s[{sJ+4}:{sJ+5}]")
    e(f"s_mov_b64 s[{sJ+2}:{sJ+3}], s[{sJ+6}:{sJ+7}]")
    e(f"s_mov_b64 s[{sJ+4}:{sJ+5}], 0")
    e(f"s_mov_b64 s[{sJ+6}:{sJ+7}], 0")
    decode()
    e(f"s_and_b32 s{sCnt}, s{sD1}, 63")
    e(f"s_bfe_u32 s{sRem}, s{sD1}, 0x60006")
    e(f"s_mov_b32 s{sOff}, s{sD0}")
    e(f"s_add_u32 s{sOffK}, s{sD0}, {2*TILEB}")
    if opts["stamp"]: e(f"s_add_u32 s{sN}, s{sCnt}, 2")
    stamp(0)
    e(f"s_bfe_u32 s{sT0}, s{sD1}, 0x30018")
    if opts["stamp"]:
        e(f"s_memrealtime s[{sST+10}:{sST+11}]")
        e(f"s_lshl_b32 s98, s{sT0}, 8"); e(f"s_add_u32 s98, s98, s{sN}")
        e("s_waitcnt lgkmcnt(0)")
        if opts["stamp"] == 2:
            e(f"s_mov_b32 s97, s{sST}"); e(f"s_mov_b32 s99, s{sST+10}")
    order = sorted(TS, key=lambda t: (t != 4, -t))
    if RAMP:
        e(f"s_cmp_gt_u32 s{sFirst}, s{sSafe}")
        e(f"s_cselect_b32 s{sT0+1}, s{sT0}, 0")
        for T in order:
            if T in FIRSTS:
                e(f"s_cmp_eq_u32 s{sT0+1}, {T}")
                e(f"s_cbranch_scc1 Lramp{T}")
    for T in order[1:]:
        e(f"s_cmp_eq_u32 s{sT0}, {T}")
        e(f"s_cbranch_scc1 Lpro{T}")
    global NRS
    for T in order:
        NRS = NRS5 if T == 5 else 5
        prologue(T)
        if not T2: epilogue(T)
    lab("Ldone")
    if opts.get("spin"):
        if opts.get("gref"):
            e("s_mov_b32 s92, s90"); e("s_mov_b32 s93, s91"); e("s_mov_b32 s94, 256"); e("s_mov_b32 s95, 0x20000")
            e("s_not_b32 s96, s100"); e("v_mov_b32 v0, s96"); e("v_mov_b32 v2, 0")
            e("s_mov_b64 exec, 1")
            e(f"s_cmp_lg_u32 s{sW}, 0"); e("s_cbranch_scc1 Lsp0")
            e("buffer_atomic_umax v0, v2, s[92:95], 0 offen")
            lab("Lsp0")
            e("s_memrealtime s[88:89]"); e("s_waitcnt lgkmcnt(0)"); e("s_sub_u32 s88, s88, s100")
            e(f"s_cmp_lt_u32 s88, 4500"); e("s_cbranch_scc1 Lsp0")
            e("buffer_load_dword v1, v2, s[92:95], 0 offen sc0 sc1")
            e("s_waitcnt vmcnt(0)")
            e("v_readfirstlane_b32 s96, v1"); e("s_nop 3"); e("s_not_b32 s100, s96")
        if opts.get("enc"):
            e("s_waitcnt vmcnt(0)"); e("s_memrealtime s[80:81]"); e("s_waitcnt lgkmcnt(0)")
            a, b = {1: (100, 76), 2: (76, 78), 3: (78, 80), 4: (100, 80)}[opts["enc"]]
            e(f"s_sub_u32 s82, s{b}, s{a}")
            e(f"s_mul_i32 s82, s82, {opts.get('mul', 4)}")
            e("s_lshr_b32 s83, s2, 4"); e(f"s_lshr_b32 s83, {opts.get('encs', 0xffff)}, s83"); e("s_bitcmp1_b32 s83, 0")
            e("s_cselect_b32 s82, s82, 0")
            e(f"s_add_u32 s82, s82, {opts['spin']}")
        lab("Lspin")
        e("s_memrealtime s[88:89]")
        e("s_waitcnt lgkmcnt(0)")
        e("s_sub_u32 s88, s88, s100")
        e("s_cmp_lt_u32 s88, s82" if opts.get("enc") else f"s_cmp_lt_u32 s88, {opts['spin']}")
        e("s_cbranch_scc1 Lspin")
    if LIGHT:
        e("s_waitcnt vmcnt(0)")
        e("s_memrealtime s[88:89]")
        e("s_mov_b32 s92, s90"); e("s_mov_b32 s93, s91"); e("s_mov_b32 s94, 0x100000"); e("s_mov_b32 s95, 0x20000")
        e(f"s_lshl_b32 s96, s2, 2"); e(f"s_add_u32 s96, s96, s{sW}"); e("s_lshl_b32 s96, s96, 3")
        e("s_waitcnt lgkmcnt(0)")
        e("v_mov_b32 v0, s100"); e("v_mov_b32 v1, s88"); e("v_mov_b32 v2, 0")
        e("s_mov_b64 exec, 1")
        e("buffer_store_dwordx2 v[0:1], v2, s[92:95], s96 offen")
    if opts["stamp"]:
        e("s_waitcnt vmcnt(0)")
        stamp(0)
        e(f"s_memrealtime s[{sST+12}:{sST+13}]")
        e(f"s_mov_b32 s{sST+10}, s100")
        e("s_getreg_b32 s98, hwreg(HW_REG_HW_ID)")
        stamp_store(True)
    lab("Lend")
    e("s_endpgm")

    lab("Lcold")
    lab("Lrestart")
    e("s_waitcnt vmcnt(0) lgkmcnt(0)")
    e("s_barrier")
    e(f"s_mov_b64 s[{sJ+4}:{sJ+5}], s[{sJ}:{sJ+1}]")
    e(f"s_mov_b64 s[{sJ+6}:{sJ+7}], s[{sJ+2}:{sJ+3}]")
    e(f"s_mov_b64 s[{sD0n}:{sD1n}], s[{sD0}:{sD1}]")
    e(f"s_mov_b32 s{sNRn}, s{sOut+2}")
    e(f"s_mov_b32 s{sLastn}, s{sLast}")
    e(f"s_mov_b32 s{sSafe}, 1")
    e(f"s_mov_b32 s{sFirst}, 1")
    decode()
    emit(next_loads(1)[0] + next_loads(1)[1])
    e("s_branch Lstart")
    for T in order:
        NRS = NRS5 if T == 5 else 5
        safe_loop(T)
    NRS = NRS5
    for tag, buf in STUBS:
        lab(f"Lrare_{tag}")
        e(f"s_call_b64 s[{sRet}:{sRet+1}], Lresc_{buf}")
        e(f"s_branch Lback_{tag}")
    for b in range(2):
        lab(f"Lresc_{b}")
        e("s_nop 15")
        for t in range(TM):
            s, s2 = sreg(b, t), sreg(b ^ 1, t)
            dl, al = vX, (vX + 8 + t if t < 4 else vX + 2)
            e(f"v_max3_f32 v{dl}, v{s}, v{s+1}, v{s+2}")
            e(f"v_max3_f32 v{dl}, v{dl}, v{s+3}, v{s+4}")
            e(f"v_max3_f32 v{dl}, v{dl}, v{s+5}, v{s+6}")
            if RS:
                e(f"v_max_f32 v{dl}, v{dl}, v{s+7}")
                e(f"v_add_f32 v{dl}, s{sThr}, v{dl}")
                e(f"v_max_f32 v{dl}, 0, v{dl}")
            else:
                e(f"v_max3_f32 v{dl}, v{dl}, v{s+7}, 0")
            emit(xlane("v_max_f32", [dl], vX + 1))
            e(f"v_sub_f32 v{al}, 0, v{dl}")
            e(f"v_exp_f32 v{al}, v{al}")
            for i in range(8):
                e(f"v_sub_f32 v{s+i}, v{s+i}, v{dl}")
                e(f"v_sub_f32 v{s2+i}, v{s2+i}, v{dl}")
            for i in range(4):
                e(f"v_sub_f32 v{vNM+4*t+i}, v{vNM+4*t+i}, v{dl}")
            if not RS:
                e(f"v_mul_f32 v{vL+t}, v{vL+t}, v{al}")
            if RS and t >= NRS:
                e(f"v_mul_f32 v{vL4+2*(t-3)+1}, v{vL4+2*(t-3)+1}, v{al}")
            elif RS and t == 4:
                for i in range(4): e(f"v_mul_f32 v{vL4+i}, v{vL4+i}, v{al}")
            if RS and t < 4:
                for i in range(4):
                    e(f"v_accvgpr_read_b32 v{vX+1}, a{aL+4*t+i}")
                    e(f"v_mul_f32 v{vX+1}, v{vX+1}, v{al}")
                    e(f"v_accvgpr_write_b32 a{aL+4*t+i}, v{vX+1}")
        emit(SM(TM, b, False).rest())
        if b == 0: e("s_branch LrescO")
    lab("LrescO")
    for t in range(TM):
        for i in range(0, 32, 4):
            al = vX + 8 + t if t < 4 else vX + 2
            for k in range(4): e(f"v_accvgpr_read_b32 v{vX+4+k}, a{aO+32*t+i+k}")
            for k in range(4): e(f"v_mul_f32 v{vX+4+k}, v{vX+4+k}, v{al}")
            for k in range(4): e(f"v_accvgpr_write_b32 a{aO+32*t+i+k}, v{vX+4+k}")
    e("s_nop 1")
    e(f"s_setpc_b64 s[{sRet}:{sRet+1}]")

    e(".p2align 5")
    L.append(".type Ltab,@object")
    lab("Ltab")
    for ent in TAB:
        e(".long " + ", ".join(str(x) for x in ent))
    L.append('.section .rodata,"a"')
    L.append(".p2align 6")
    L.append(f".amdhsa_kernel {NAME}_kernel")
    L.append("  .amdhsa_next_free_vgpr 512")
    L.append("  .amdhsa_next_free_sgpr 102")
    L.append("  .amdhsa_accum_offset 256")
    L.append("  .amdhsa_group_segment_fixed_size 0")
    L.append("  .amdhsa_kernarg_size 56")
    L.append("  .amdhsa_user_sgpr_count 2")
    L.append("  .amdhsa_user_sgpr_kernarg_segment_ptr 1")
    L.append("  .amdhsa_system_sgpr_workgroup_id_x 1")
    L.append(".end_amdhsa_kernel")

gen()
open(sys.argv[1], "w").write("\n".join(L) + "\n")
```

```python
import sys, struct, math, os
sys.path.insert(0, os.path.dirname(os.path.abspath(__file__)))
from sched import Op, schedule

NAME = "standalone__varlen_attn_packed__ragged"
CU = [0, 534, 1426, 1714, 2675, 3469, 4036, 4628, 4845]
ROWB = 4096
TILEB = 32 * ROWB
QS = 65536
QW = 20480
OS = QS + 4 * QW
LDSZ = 163840
TM = 5

opts = dict(stamp=0, st="sc0+sc1", ld="", ldq="nt", al=3, e64=0, rs=1, epi=0, late=1, plan="b", rev=0, lc=4, pf=2, lazy=0)
for a in sys.argv[2:]:
    k, v = a.split("=")
    opts[k] = int(v) if v.lstrip("-").isdigit() else v
LD = (" " + opts["ld"].replace("+", " ")) if opts["ld"] else ""
LDQ = (" " + opts["ldq"].replace("+", " ")) if opts.get("ldq", opts["ld"]) and "ldq" in opts else ("" if "ldq" in opts else LD)
ST = (" " + opts["st"].replace("+", " ")) if opts["st"] else ""
DG = str(opts.get("diag", ""))

def f32bits(x):
    return struct.unpack("<I", struct.pack("<f", x))[0]

vQ = 0
vS = 64
vP = 144
vNM = 184
vKa = 204
vVa = 208
vDK = 216
vDV = 218
vQd = 220
vE = 224
vT = 228
vL = 233
vU = 238
vQa = 239
vOw = 240
vOr = 241
vG4 = 242
vU2 = 243
vX = 244
aO = 0
aKf = 160
aVf = 192
aQ = 224
aL = 240
vOne = 228
vL4 = 232
vAc = vX + 1
vFr = 236
vFl = 237
vM01, vM23 = 238, 243
vSeq = 238
vSr = 243
BIAS = 20.0
RS = opts['rs']
NRS = opts.get('nrs', 3)
NOCHK = [False]
NRS5 = opts.get('nrs5', 3)

sQ, sK, sV, sOut = 12, 16, 20, 24
sJ = 28
sD0, sD1 = 36, 37
sL, sN, sOff, sWB, sCnt, sLast, sThr, sC, sNeg, sW = 38, 39, 40, 41, 42, 43, 44, 45, 46, 47
sRet, sPC = 48, 52
sTn = 50
sRem, sQoffn, sOoff, sBig = 54, 55, 56, 57
sD0n, sD1n, sNRn, sLastn = 28, 29, 30, 31
sT0 = 61
sOffK = 63
sQW = 3
sFirst = 64
sSafe = 65
sLim = 66
sQc = 8
sM = 68
sST = 76

L = []
def e(s): L.append("    " + s)
def lab(s): L.append(s + ":")
def vr(b, n): return f"v[{b}:{b+n-1}]"
def ar(b, n): return f"a[{b}:{b+n-1}]"
def emit(lines):
    for x in lines:
        if x.endswith(":"): L.append(x)
        else: e(x)
LIGHT = opts["stamp"] == 3
if LIGHT: opts["stamp"] = 0
def estamp(idx):
    if opts["stamp"] and opts.get("pst") == 2:
        e(f"s_memtime s[{sST+2*idx}:{sST+1+2*idx}]")
def pstamp(idx):
    if opts["stamp"] and opts.get("pst") == 1:
        e(f"s_memtime s[{sST+2*idx}:{sST+1+2*idx}]")
        e("s_waitcnt lgkmcnt(0)")
def stamp(idx):
    if opts.get("pst") and 1 <= idx <= 4: return
    if opts["stamp"]:
        e(f"s_memtime s[{sST+2*idx}:{sST+1+2*idx}]")

SEQ = []
for si in range(8):
    ln = CU[si + 1] - CU[si]
    SEQ.append((CU[si], ln, (ln + 63) // 64, (ln + 31) // 32))

PLANS = {
    "c": [[(31, 4)]] * 4 + [[(25, 5)]] * 2 + [[(25, 3), (7, 4)], [(18, 3), (17, 3)], [(18, 3), (17, 3)], [(18, 3), (17, 3)],
          [(28, 3), (9, 3)], [(28, 3), (9, 2)]] + [[(19, 5)]] * 2 + [[(28, 4)]] * 2,
    "b": [[(31, 4)]] * 4 + [[(25, 5)]] * 2 + [[(25, 3), (7, 4)], [(18, 3), (17, 3)], [(18, 3), (17, 3)], [(18, 3), (17, 3)],
          [(19, 4), (9, 3)], [(28, 2), (19, 2)], [(19, 4), (9, 2)]] + [[(28, 4)]] * 3,
    "a": [[(31, 4)]] * 4 + [[(25, 5)]] * 2 + [[(17, 4), (18, 2)], [(19, 5), (7, 2)], [(25, 3), (9, 3)], [(28, 2), (18, 2)],
          [(17, 5), (9, 2)], [(18, 5), (7, 2)]] + [[(28, 4)]] * 3 + [[(19, 5)]],
}

def plan_head():
    n2s = {SEQ[i][3]: i for i in range(8)}
    nxt = {i: 0 for i in range(8)}
    spec = PLANS[opts["plan"]]
    res = [[None] * len(s) for s in spec]
    for want in (2, 3, 4, 5):
        for i, s in enumerate(spec):
            for k, (n, t) in enumerate(s):
                if t == want:
                    si = n2s[n]
                    res[i][k] = (si, nxt[si], t); nxt[si] += 64 * t
    for i in range(8):
        assert nxt[i] == SEQ[i][2] * 64, (i, nxt[i])
    if opts["rev"]:
        res = [list(reversed(r)) for r in res]
    return res

def make_table():
    ph = plan_head()
    tab = []
    for wg in range(256):
        x, j = wg & 7, wg >> 3
        head = [2 * x + (j & 1), x + 8 * (j & 1), (x & 1) + 4 * (x >> 1) + 2 * (j & 1)][opts.get('hm', 0)]
        ent = []
        for (si, q0, t) in ph[j >> 1]:
            st, ln, nb, n = SEQ[si]
            d0 = st * ROWB + head * 256
            ent += [d0, (n - 2) | ((ln - 32 * (n - 1)) << 6) | (q0 << 12) | (t << 24) | (((opts["lazy"] >> (j >> 1)) & 1) << 28), d0 + (ln - 1) * ROWB + 256, d0 + (n - 1) * TILEB]
        assert len(ent) <= 8
        ent += [0] * (8 - len(ent))
        tab.append(ent)
    return tab

TAB = make_table()
PH = plan_head()
TS = sorted({t for jl in PH for _, _, t in jl}, reverse=True)
TAILS = {}
for jl in PH:
    for k, (si, q0, t) in enumerate(jl):
        TAILS.setdefault((t, (SEQ[si][3] - 1) % 4), set()).add(1 if k + 1 < len(jl) else 0)
FIRSTS = {jl[0][2] for jl in PH}
RAMP = opts.get("ramp", 0)
PROD = {t for (t, p), v in TAILS.items() if v - {0}}
NWG = 256

MF = "v_mfma_f32_16x16x32_bf16"
def qreg(t, s):
    return vr(vQ + 16 * t + 4 * s, 4) if t < 4 else ar(aQ + 4 * s, 4)
def sreg(buf, t, a=0): return vS + 40 * buf + 8 * t + 4 * a
def preg(buf, t): return vP + 20 * buf + 4 * t

def qk1(buf, t, a, s, cinit, kf=None):
    d = sreg(buf, t, a)
    kf = aKf if kf is None else kf
    return f"{MF} {vr(d,4)}, {ar(kf+4*(a*4+s),4)}, {qreg(t,s)}, {vr(cinit if s == 0 else d,4)}"

def qk_mfmas(T, buf):
    return [qk1(buf, t, a, s, vNM + 4 * t) for a in range(2) for s in range(4) for t in range(T)]

ZERO = [False]
def pv1(buf, t, dt, vf):
    o = aO + 32 * t + 4 * dt
    return f"{MF} {ar(o,4)}, {ar(vf+4*dt,4)}, {vr(preg(buf,t),4)}, {'0' if ZERO[0] else ar(o,4)}"

def rs1(buf, t):
    l = ar(aL + 4 * t, 4) if t < 4 else vr(vL4, 4)
    return f"{MF} {l}, {vr(vOne,4)}, {vr(preg(buf,t),4)}, {'0' if ZERO[0] else l}"

def pv_mfmas(T, buf, vf=aVf):
    return [pv1(buf, t, dt, vf) for dt in range(8) for t in range(T)] + ([rs1(buf, t) for t in range(min(T, NRS))] if RS else [])

def zero_mfmas(T):
    return [f"v_mfma_f32_32x32x16_bf16 {ar(aO+16*i,16)}, {vr(vP+28,4)}, {vr(vP+28,4)}, 0" for i in range(2 * T)]

def k_reads(slot, kf=None):
    kf = aKf if kf is None else kf
    return [f"ds_read_b128 {ar(kf+4*(a*4+s),4)}, v{vKa+s} offset:{slot*16384+a*8192}" for a in range(2) for s in range(4)]

def v_reads(slot, vf=aVf):
    return [f"ds_read_b64_tr_b16 {ar(vf+4*dt+2*a,2)}, v{vVa+dt} offset:{slot*16384+a*8192}" for dt in range(8) for a in range(2)]

def m0set(off):
    return f"s_add_u32 m0, s{sWB}, {off}" if off else f"s_mov_b32 m0, s{sWB}"
def ldv(j, so):
    return f"buffer_load_dwordx4 v{vDV+j}, s[{sV}:{sV+3}], s{so} offen" + (f" offset:{j*1024}" if j else "") + f"{LD} lds"
def ldk(j, so):
    return f"buffer_load_dwordx4 v{vDK+j}, s[{sK}:{sK+3}], s{so} offen offset:{2048+j*1024}{LD} lds"

def dma(slot):
    return [m0set(slot * 16384),
            f"s_add_u32 s{sOff}, s{sOff}, {TILEB}",
            f"s_add_u32 s{sOffK}, s{sOffK}, {TILEB}",
            ldv(0, sOff), ldv(1, sOff), ldk(0, sOffK), ldk(1, sOffK)]

CHK = f"v_cmp_ne_u32 vcc, 0, v{vX}" if RS else f"v_cmp_lt_f32 vcc, s{sThr}, v{vX}"
ERING = [vE, vE + 2, vX + 4, vX + 6]
def softmax_ops(T, buf, full=True, R=4, t0=0):
    exps, sims = [], []
    done_after = []
    n = 4 * T
    for k in range(n):
        t, kk = divmod(k, 4)
        t = T - 1 - t + t0
        a = ERING[k % R]; b = a + 1
        need = done_after[k - R] if k >= R else 0
        exps += [(f"v_exp_f32 v{a}, v{sreg(buf,t)+2*kk}", need), (f"v_exp_f32 v{b}, v{sreg(buf,t)+2*kk+1}", need)]
        p = preg(buf, t) + kk
        u = (vP + 36 if T == 1 else vX + 3) if RS else (vU if k & 1 else vU2)
        ne = 2 * k + 2
        if RS:
            sims.append((f"v_perm_b32 v{p}, v{b}, v{a}, s{sN}" if opts.get("perm") else f"v_cvt_pk_bf16_f32 v{p}, v{a}, v{b}", ne))
            if t >= NRS:
                pt, lt = vL4 + 2 * (t - 3), vL4 + 2 * (t - 3) + 1
                if kk == 0:
                    if full: sims.append((f"v_add_f32 v{lt}, v{lt}, v{pt}", 0))
                    sims.append((f"v_add_f32 v{pt}, v{a}, v{b}", ne))
                else:
                    sims.append((f"v_add_f32 v{u}, v{a}, v{b}", ne))
            done_after.append(len(sims))
            if t >= NRS and kk: sims.append((f"v_add_f32 v{pt}, v{pt}, v{u}", ne))
            if full and (k & 1) and not NOCHK[0]:
                sims.append((f"v_or_b32 v{vAc}, v{p-1}, v{p}" if k == 1 else f"v_or3_b32 v{vAc}, v{vAc}, v{p-1}, v{p}", ne))
        elif kk == 0:
            if full: sims.append((f"v_add_f32 v{vL+t}, v{vL+t}, v{vT+t}", 0))
            sims += [(f"v_cvt_pk_bf16_f32 v{p}, v{a}, v{b}", ne), (f"v_add_f32 v{vT+t}, v{a}, v{b}", ne)]
            done_after.append(len(sims))
        else:
            sims += [(f"v_add_f32 v{u}, v{a}, v{b}", ne), (f"v_cvt_pk_bf16_f32 v{p}, v{a}, v{b}", ne)]
            done_after.append(len(sims))
            sims.append((f"v_add_f32 v{vT+t}, v{vT+t}, v{u}", ne))
    if full and RS and NOCHK[0]:
        pass
    elif full and RS:
        sims += [(f"v_and_b32 v{vX}, 0x40004000, v{vAc}", 2 * n), (CHK, 2 * n)]
    elif full:
        m = [vT + t for t in range(T)]
        cur = m.pop(0)
        while m:
            if len(m) >= 2:
                sims.append((f"v_max3_f32 v{vX}, v{cur}, v{m[0]}, v{m[1]}", 2 * n)); m = m[2:]
            else:
                sims.append((f"v_max_f32 v{vX}, v{cur}, v{m[0]}", 2 * n)); m = []
            cur = vX
        sims.append((f"v_cmp_lt_f32 vcc, s{sThr}, v{cur}", 2 * n))
    return exps, sims

class SM:
    def __init__(s, T, buf, full=True, t0=0, R=4):
        s.ex, s.si = softmax_ops(T, buf, full, R, t0)
        s.i = s.j = 0
        s.last_exp = False
    def left(s): return 8 * (len(s.ex) - s.i) + 4 * (len(s.si) - s.j)
    def can_exp(s): return s.i < len(s.ex) and s.ex[s.i][1] <= s.j
    def can_sim(s):
        if s.j >= len(s.si): return False
        need = s.si[s.j][1]
        return need < s.i or (need == s.i and not s.last_exp)
    def exp(s): s.i += 1; s.last_exp = True; return s.ex[s.i - 1][0]
    def sim(s): s.j += 1; s.last_exp = False; return s.si[s.j - 1][0]
    def other(s): s.last_exp = False
    def any(s):
        if s.can_sim() and (s.si[s.j][1] <= s.i - 2 or not s.can_exp()): return s.sim()
        if s.can_exp(): return s.exp()
        if s.can_sim(): return s.sim()
        s.last_exp = False
        return "s_nop 0"
    def take(s, n): return [s.any() for _ in range(n) if s.left()]
    def rest(s):
        r = []
        while s.left(): r.append(s.any())
        return r

def is_mem(x): return x.startswith("ds_") or x.startswith("buffer_")

def pack(mf, fixed, sm=None, novalu=(), keep=0, cap=8):
    n = len(mf)
    def fcost(l):
        c = 0; ns = 0; nm = 0
        for x in l:
            if x.endswith(":"): continue
            if is_mem(x): c += 8 if nm else 4; nm += 1
            elif x.startswith("s_"): c += 4 if (ns or nm) else 0; ns += 1
            else: c += 4
        return c
    fc = [fcost(fixed.get(g, [])) for g in range(n)]
    out = []
    for g in range(n):
        out.append(mf[g])
        out += fixed.get(g, [])
        if sm is None: continue
        sm.other()
        if g in novalu: continue
        rem = [k for k in range(g, n) if k not in novalu]
        last = g == rem[-1]
        used = fc[g]
        while sm.left() > keep:
            later = sum(max(0, cap - fc[k]) for k in rem[1:])
            over = sm.left() - keep - later
            room = cap - used
            if room <= 0:
                if not last and over * 1.0 < 4 * 1.0 + 0 : break
                if not last and (used - cap + 4) * len(rem) > over + (used - cap) + 2 * len(rem): break
            nexp = len(sm.ex) - sm.i
            full_later = sum(1 for k in rem[1:] if cap - fc[k] >= 8)
            if room >= 8 and sm.can_exp() and (not sm.can_sim() or nexp > full_later * opts.get("eb", 70) // 100 or sm.si[sm.j][1] > sm.i - 4):
                out.append(sm.exp()); used += 8
            elif sm.can_sim():
                out.append(sm.sim()); used += 4
            elif sm.can_exp() and (room >= 8 or last or nexp + opts.get("slk", 1) > full_later or over > 0):
                out.append(sm.exp()); used += 8
            else:
                if last: out.append(sm.any()); used += 4
                else: break
    return out

STUBS = []
SPINS = []
def check_rare(buf, tag):
    e(f"s_cbranch_vccnz Lrare_{tag}")
    lab(f"Lback_{tag}")
    STUBS.append((tag, buf))

def spread(items, gaps):
    d = {}
    gaps = list(gaps)
    for i, x in enumerate(items):
        d.setdefault(gaps[i * len(gaps) // len(items)], []).append(x)
    return d

def merge(*ds):
    r = {}
    for d in ds:
        for k, v in d.items():
            r.setdefault(k, []).extend(v)
    return r

def interleave(a, b):
    out = []
    if not a: return list(b)
    j = 0
    for i, x in enumerate(a):
        out.append(x)
        nj = (i + 1) * len(b) // len(a)
        out += b[j:nj]; j = nj
    return out

CNT = f"s_sub_u32 s{sCnt}, s{sCnt}, 1"

def place(items, gaps):
    groups = []
    cur = []
    for x in items:
        cur.append(x)
        if is_mem(x): groups.append(cur); cur = []
    if cur: groups.append(cur)
    gaps = list(gaps)
    d = {}
    for i, gr in enumerate(groups):
        d.setdefault(gaps[i * len(gaps) // len(groups)], []).extend(gr)
    return d

def qgroup(g, dyn=True):
    r = [f"s_add_u32 m0, s{sQW}, {g*4096}" if g else f"s_mov_b32 m0, s{sQW}",
         f"s_add_u32 s{sT0}, s{sQoffn}, {g*16*ROWB}"]
    if g >= 2 and dyn:
        r += [f"s_cmp_gt_u32 s{sTn}, {g}", f"s_cselect_b32 s{sT0}, s{sT0}, s{sBig}"]
    r += [f"buffer_load_dwordx4 v{vQd+i}, s[{sQ}:{sQ+3}], s{sT0} offen offset:{i*1024}{LDQ} lds" for i in range(4)]
    return r

def step(T, t, prod=False, fast=False):
    p = t % 4
    b = t % 2
    h = 8 * T
    ZERO[0] = prod
    mf = qk_mfmas(T, b ^ 1) + pv_mfmas(T, b ^ 1)
    ZERO[0] = False
    kr = k_reads((t + 2) % 4)
    d = dma((t + 1) % 4)
    NOCHK[0] = bool(fast)
    sm = SM(T, b)
    NOCHK[0] = False
    n = len(mf)
    vrd = v_reads((t + 1) % 4)
    vm = opts.get('vm', 8)
    end = [CNT] if (prod or fast) else [CNT, "s_cselect_b64 vcc, -1, vcc"]
    bw = f"s_waitcnt vmcnt({vm}) lgkmcnt(0)"
    tight = T >= opts.get("tt", 3)
    SPIN = None
    if fast and T >= opts.get("sb", 9):
        ve, gx, gr, gy = {5: (24, 29, 44, 50), 4: (20, 25, 37, 43), 3: (16, 20, 26, 31)}[T]
        gr += opts.get("sbo", 0); gy += opts.get("sbo", 0)
        SPIN = f"{T}_{p}{'z' if prod else ''}"
        kd = [kr[0], kr[1], d[3], kr[2], kr[3], kr[4], d[4], kr[5], kr[6], kr[7], d[5]]
        fixed = merge(place(vrd, range(0, ve)),
                      {gx - 3: [d[0], f"v_add_u32 v{vSeq}, 1, v{vSeq}"], gx - 2: [d[1]], gx - 1: [d[2]],
                       gx: [bw, f"ds_write_b32 v{vOr}, v{vSeq}"], gr: [f"ds_read_b32 v{vFl}, v{vSr}"],
                       gy - 1: ["s_waitcnt lgkmcnt(0)", f"v_cmp_lt_u32 vcc, v{vFl}, v{vSeq}"],
                       gy: [f"s_cbranch_vccnz Lsp{SPIN}", f"Lspb{SPIN}:"]},
                      place(kd, range(gy + 1, n - 6)),
                      {n - 4: [end[0], d[6]], n - 2: ["s_waitcnt lgkmcnt(0)"]})
        nov = (gx, gy, n - 1)
        SPINS.append(SPIN)
    elif tight:
        kd = [kr[0], kr[1], d[3], kr[2], kr[3], d[4], kr[4], kr[5], kr[6], d[5], kr[7]]
        fixed = merge(place(vrd, range(0, h - 6)),
                      {h - 5: [d[0]], h - 4: [d[1]], h - 3: [d[2]], h - 2: [bw], h - 1: ["s_barrier"]},
                      place(kd, range(h, n - 7)),
                      {n - 5: [d[6]], n - 4: [end[0]], n - 3: ["s_waitcnt lgkmcnt(0)"], n - 2: end[1:]})
        nov = (h - 1, n - 1) if fast else (h - 1, n - 2, n - 1)
    elif T >= 3:
        kd = [kr[0], kr[1], d[3], kr[2], kr[3], d[4], kr[4], kr[5], d[5], kr[6], kr[7], d[6]]
        fixed = merge(place(vrd, range(0, h - 5)),
                      {h - 1: [bw, "s_barrier"]},
                      {h - 4: [d[0]], h - 3: [d[1]], h - 2: [d[2]]},
                      place(kd, range(h, n - 3)),
                      {n - 2: [end[0]], n - 1: end[1:]})
        nov = (h - 1, n - 1)
    else:
        kd = [kr[0], kr[1], d[3], kr[2], kr[3], kr[4], d[4], kr[5], kr[6], kr[7], d[5]]
        fixed = merge(place(vrd, range(0, 12)),
                      {h - 1: [bw, "s_barrier"]},
                      {h - 4: [d[0]], h - 3: [d[1]], h - 2: [d[2]]},
                      place(kd, range(h, n - 5)),
                      {n - 2: [end[0], d[6]], n - 1: end[1:]})
        nov = (h - 1, n - 1)
    if prod or not tight: e("s_waitcnt lgkmcnt(0)")
    body = pack(mf, fixed, sm, nov)
    if DG and not prod:
        body = [x for x in body if not (("d" in DG and x.startswith("buffer_load")) or ("b" in DG and x.startswith("s_barrier"))
                or ("l" in DG and x.startswith("ds_read")) or ("w" in DG and x.startswith("s_waitcnt"))
                or ("v" in DG and x.startswith(("v_exp", "v_cvt", "v_or"))))]
    if opts["e64"]:
        body = [x.replace("v_exp_f32 ", "v_exp_f32_e64 ").replace("v_add_f32 ", "v_add_f32_e64 ").replace("v_max_f32 ", "v_max_f32_e64 ") for x in body]
    emit(body)
    assert sm.left() == 0
    if fast:
        if not prod and TAILS.get((T, (p + 1) % 4)): e(f"s_cbranch_scc1 Lxt{T}_{p}")
    elif prod:
        check_rare(b, f"t{T}p{p}")
    else:
        e(f"s_cbranch_vccnz Lx{T}_{p}")
        lab(f"Lxb{T}_{p}")

def exit_stub(T, p):
    lab(f"Lx{T}_{p}")
    e(CHK)
    check_rare(p % 2, f"x{T}_{p}")
    if TAILS.get((T, (p + 1) % 4)):
        e(f"s_cbranch_scc1 Lx{'s' if T2 else 't'}{T}_{p}")
    e(f"s_branch Lxb{T}_{p}")

T2 = opts.get("t2", 1)
def tails(T, p, safe=False):
    np_ = (p + 1) % 4
    nx = sorted(TAILS.get((T, np_), ()))
    if not nx: return
    pre = "Ltail" if (safe or not T2) else "Lft"
    lab(f"Lx{'s' if safe else 't'}{T}_{p}")
    for tn in nx[1:]:
        e(f"s_cmp_lg_u32 s{sD1n}, 0")
        e(f"s_cbranch_scc1 {pre}{T}_{np_}_{tn}")
    for tn in nx:
        (tail if (safe or not T2) else tail2)(T, np_, tn)

def tail2(T, p, tn):
    b = p % 2
    lab(f"Lft{T}_{p}_{tn}")
    if opts.get("enc"): e("s_memrealtime s[78:79]")
    stamp(3); stamp(4)
    if opts["stamp"]:
        e(f"s_memrealtime s[{sST+12}:{sST+13}]")
        B0 = vQ
        stamp_store(False, vQ)
    e("s_waitcnt lgkmcnt(0)")
    ops = []
    def add(l, **k):
        r = [Op(x, **k) for x in l if not x.startswith("s_nop")]
        ops.extend(r); return r
    add(v_reads((p + 1) % 4))
    W0 = Op("s_waitcnt vmcnt(0)", vmwait="old", tmin=opts.get("tw", 120)); ops.append(W0)
    B1 = add(["s_barrier"], after=[W0])[0]
    add(v_reads((p + 2) % 4, aKf), after=[B1])
    if tn: add(sum(next_loads(tn), []), after=[B1], tag="n")
    add([f"v_xor_b32 v{vOA+dt}, {dt*32}, v{vOw}" for dt in range(8)])
    npk = T - opts.get("npk", 9)
    lreg = []
    prev_reads = []
    for t in range(T):
        s0, pp = sreg(b, t), preg(b, t)
        add([f"v_exp_f32 v{s0+i}, v{s0+i}" for i in range(8)])
        add([f"v_cvt_pk_bf16_f32 v{pp+k}, v{s0+2*k}, v{s0+2*k+1}" for k in range(4)])
        lx = vX + 8 + t if t < 4 else vX + 2
        if t >= NRS:
            pt, lt = vL4 + 2 * (t - 3), vL4 + 2 * (t - 3) + 1
            add([f"v_add_f32 v{lt}, v{lt}, v{pt}"] + [f"v_add_f32 v{s0+2*k}, v{s0+2*k}, v{s0+2*k+1}" for k in range(4)] +
                [f"v_add_f32 v{s0}, v{s0}, v{s0+2}", f"v_add_f32 v{s0+4}, v{s0+4}, v{s0+6}", f"v_add_f32 v{lt}, v{lt}, v{s0}",
                 f"v_add_f32 v{lx}, v{lt}, v{s0+4}"] + xlane("v_add_f32", [lx], pt))
        else:
            add([rs1(b ^ 1, t), rs1(b, t)])
            add([f"v_accvgpr_read_b32 v{lx}, a{aL+4*t}" if t < 4 else f"v_mov_b32 v{lx}, v{vL4}"])
        lreg.append(lx)
        add([f"v_rcp_f32 v{vLI+2*t}, v{lx}"])
        add([pv1(b ^ 1, t, dt, aVf) for dt in range(8)])
        add([pv1(b, t, dt, aKf) for dt in range(8)])
        if t == T - 1:
            m = list(lreg); cur = m.pop(0)
            while m:
                if len(m) >= 2: add([f"v_max3_f32 v{vFl}, v{cur}, v{m[0]}, v{m[1]}"]); m = m[2:]
                else: add([f"v_max_f32 v{vFl}, v{cur}, v{m[0]}"]); m = []
                cur = vFl
            add([f"v_cmp_le_f32 vcc, s{sLim}, v{vFl}", f"s_or_b32 s{sM+6}, vcc_lo, vcc_hi", f"v_mov_b32 v{vFl}, s{sM+6}"])
            fw = add([f"ds_write_b32 v{vQa}, v{vFl} offset:16384"])[0]; fw.w = {("x", 1)}
            B2 = add(["s_barrier"], after=[B1], reads={("x", 1)})[0]
            add([f"ds_read_b32 v{vX}, v{vFr}"], after=[B2])
            add([f"v_cmp_ne_u32 vcc, 0, v{vX}"], bonus=opts.get("fb", 0))
        x = vQ + 32 * (t & 1)
        wr = []
        for dt in range(8):
            y = x + 4 * dt
            lk = opts.get("lk", 2)
            add([f"v_accvgpr_read_b32 v{y+i}, a{aO+32*t+4*dt+i}" for i in range(4)],
                after=(wr[(dt // lk - 1) * lk:(dt // lk) * lk] if (t == T - 1 and dt >= opts.get("l0", 9)) else []))
            if t >= npk:
                add([f"v_pk_mul_f32 {vr(y+i,2)}, {vr(y+i,2)}, {vr(vLI+2*t,2)} op_sel_hi:[1,0]" for i in (0, 2)])
            else:
                add([f"v_mul_f32 v{y+i}, v{y+i}, v{vLI+2*t}" for i in range(4)])
            add([f"v_cvt_pk_bf16_f32 v{y}, v{y}, v{y+1}", f"v_cvt_pk_bf16_f32 v{y+1}, v{y+2}, v{y+3}"])
            wr += add([f"ds_write_b64 v{vOA+dt}, {vr(y,2)}"], after=prev_reads)
        prev_reads = add([f"ds_read_b128 {ar(aO+32*t+4*i,4)}, v{vOr} offset:{i*1024}" for i in range(4)], after=wr)
        add([f"s_add_u32 s{sM+t}, s{sOoff}, {t*16*ROWB}"])
        add([f"buffer_store_dwordx4 {ar(aO+32*t+4*i,4)}, v{vQd+i}, s[{sOut}:{sOut+3}], s{sM+t} offen offset:{i*1024}{ST}" for i in range(4)], tag="s")
    q = ["old"] * 4 + ["x"] * (8 + (2 if opts["stamp"] == 1 else 0))
    out, est = schedule(ops, q, verbose=bool(opts.get("verb")), betas=(40, 64, 96), gammas=(0, 2))
    emit(out)
    e("s_cbranch_vccnz Lrestart")
    if tn:
        e(f"s_mov_b32 s{sFirst}, 0")
        e(f"s_waitcnt vmcnt({4*T})")
        e("s_branch Lstart")
    else:
        e("s_branch Ldone" if (opts["stamp"] or LIGHT or opts.get("spin")) else "s_endpgm")

def safe_loop(T):
    lab(f"Lsafe{T}")
    step(T, 1, True)
    lab(f"Lsloop{T}")
    for t in (2, 3, 4, 5):
        step(T, t)
    e(f"s_branch Lsloop{T}")
    for p in range(4):
        exit_stub(T, p)
    if T2:
        for p in range(4):
            tails(T, p, True)
        epilogue(T)

def ktile(u):
    return [m0set(u * 16384), f"s_add_u32 s{sT0}, s{sD0}, {(u-1)*TILEB}", ldk(0, sT0), ldk(1, sT0)]
def vtile(u):
    so = sLast if u == 0 else sD0
    return [m0set(((u + 2) % 4) * 16384), "s_nop 0", ldv(0, so), ldv(1, so)]
def next_k0():
    return [m0set(0), f"s_add_u32 s{sK+2}, s{sNRn}, 4096", ldk(0, sLastn), ldk(1, sLastn)]
def next_k1():
    return [m0set(16384), "s_nop 0", ldk(0, sD0n), ldk(1, sD0n)]

def tail(T, p, tn):
    b = p % 2
    lab(f"Ltail{T}_{p}_{tn}")
    if opts.get("enc"): e("s_memrealtime s[78:79]")
    stamp(3)
    if opts["stamp"]: e("s_waitcnt lgkmcnt(0)")
    vrd = v_reads((p + 1) % 4)
    vrd2 = v_reads((p + 2) % 4, aKf)
    sm = SM(T, b)
    mf = pv_mfmas(T, b ^ 1)
    o = min(T, NRS) if RS else 0
    if RS: mf = mf[-o:] + mf[:-o]
    rsm, mf = mf[:o], mf[o:]
    emit(interleave(rsm, vrd[:o]) + vrd[o:])
    m = []
    for t in range(T):
        x = vX + 8 + t if t < 4 else vX + 2
        if t >= NRS: e(f"v_add_f32 v{x}, v{vL4+2*(t-3)}, v{vL4+2*(t-3)+1}")
        elif t < 4: e(f"v_accvgpr_read_b32 v{x}, a{aL+4*t}")
        m.append(x if (t < 4 or t >= NRS) else vL4)
    cur = m.pop(0)
    while m:
        if len(m) >= 2:
            e(f"v_max3_f32 v{vFl}, v{cur}, v{m[0]}, v{m[1]}"); m = m[2:]
        else:
            e(f"v_max_f32 v{vFl}, v{cur}, v{m[0]}"); m = []
        cur = vFl
    e(f"v_cmp_le_f32 vcc, s{sLim}, v{vFl}")
    emit(sm.take(2))
    e("s_cmp_lg_u64 vcc, 0")
    e(f"s_cselect_b32 s{sT0}, 1, 0")
    e(f"s_andn2_b32 s{sT0}, s{sT0}, s{sSafe}")
    e(f"v_mov_b32 v{vFl}, s{sT0}")
    e(f"ds_write_b32 v{vQa}, v{vFl} offset:16384")
    emit(sm.take(opts.get("tk", 16)))
    e("s_waitcnt vmcnt(8) lgkmcnt(0)")
    e("s_barrier")
    fixed = place([f"ds_read_b32 v{vFl}, v{vFr}"] + vrd2, range(len(mf) - 2))
    if tn:
        fixed = merge(fixed, place(sum(next_loads(tn), []) if WARM else next_loads(tn)[0], range(len(mf))))
    emit(pack(mf, fixed, sm))
    assert sm.left() == 0
    check_rare(b, f"t{T}t{p}_{tn}")
    e("s_waitcnt lgkmcnt(8)")
    e(f"v_cmp_ne_u32 vcc, 0, v{vFl}")
    e("s_cbranch_vccnz Lrestart")
    fin(T, b, tn)

WARM = opts.get("warm", 0)
def warm_loads():
    r = [m0set(2 * 16384), f"s_add_u32 s{sT0}, s{sD0n}, {TILEB}", ldk(0, sT0), ldk(1, sT0),
         f"s_add_u32 m0, s{sQW}, {3*4096}", f"s_mov_b32 s{sV+2}, s{sNRn}", ldv(0, sLastn), ldv(1, sLastn)]
    if WARM >= 2: r += [x.replace(LDQ + " lds", " lds") for x in qgroup(2)]
    return r

def next_loads(tn):
    return next_k0() + qgroup(0, False), qgroup(1, False) + next_k1()

def xlane(op, regs, tmp):
    r = []
    for sw in ("v_permlane32_swap_b32", "v_permlane16_swap_b32"):
        r += [f"v_mov_b32 v{tmp+i}, v{x}" for i, x in enumerate(regs)]
        r += ["s_nop 1"]
        r += [f"{sw} v{x}, v{tmp+i}" for i, x in enumerate(regs)]
        r += ["s_nop 1"]
        r += [f"{op} v{x}, v{x}, v{tmp+i}" for i, x in enumerate(regs)]
    return r

vOA = vNM
vLI = vNM + 8
def epi_acc(t):
    return [f"v_accvgpr_read_b32 v{vQ+i}, a{aO+32*t+i}" for i in range(32)]
def epi_cvt(t):
    r = [f"v_pk_mul_f32 {vr(vQ+2*i,2)}, {vr(vQ+2*i,2)}, {vr(vLI+2*(t//2),2)} " +
         ("op_sel:[0,1] op_sel_hi:[1,1]" if t & 1 else "op_sel_hi:[1,0]") for i in range(16)]
    r += [f"v_cvt_pk_bf16_f32 v{vQ+32+16*(t&1)+i}, v{vQ+2*i}, v{vQ+2*i+1}" for i in range(16)]
    return r
def epi_writes(t):
    return [f"ds_write_b64 v{vOA+dt}, {vr(vQ+32+16*(t&1)+2*dt,2)}" for dt in range(8)]
def epi_reads(t):
    return [f"ds_read_b128 {vr(vS+16*t+4*i,4)}, v{vOr} offset:{i*1024}" for i in range(4)]
def epi_stores(t):
    return [f"s_add_u32 s{sT0}, s{sOoff}, {t*16*ROWB}"] + \
           [f"buffer_store_dwordx4 {vr(vS+16*t+4*i,4)}, v{vQd+i}, s[{sOut}:{sOut+3}], s{sT0} offen offset:{i*1024}{ST}" for i in range(4)]

def fin(T, b, tn):
    if not RS: e("s_waitcnt lgkmcnt(0)")
    mf = [pv1(b, t, dt, aKf) for t in range(T) for dt in range(8)]
    regs = [vL + t for t in range(T)]
    xo = [f"v_xor_b32 v{vOA+dt}, {dt*32}, v{vOw}" for dt in range(8)] if not opts["epi"] else ["s_nop 0"]
    if RS:
        nr = min(T, NRS)
        mf = [rs1(b, t) for t in range(nr)] + mf
        src = lambda t: (vX + t if t < NRS else vL4 + 2 * (t - 3) + 1)
        ad = [src(t) for t in range(nr, T)]
        if ad: xo = [f"v_add_f32 v{x}, v{x}, v{x-1}" for x in ad] + xlane("v_add_f32", ad, vX + 6) + xo
        ls = [f"v_accvgpr_read_b32 v{vX+t}, a{aL+4*t}" if t < 4 else f"v_mov_b32 v{vX+t}, v{vL4}" for t in range(nr)] + \
             [f"v_rcp_f32 v{vLI+t}, v{src(t)}" for t in range(T)] + epi_acc(0)
        fixed = merge({nr - 1: ["s_waitcnt lgkmcnt(6)"], nr + 4: ["s_waitcnt lgkmcnt(0)"]},
                      spread(xo, range(nr + 8)), spread(ls, range(nr + 8, len(mf))))
    else:
        ls = [f"v_add_f32 v{vL+t}, v{vL+t}, v{vT+t}" for t in range(T)] + xlane("v_add_f32", regs, vX) + \
             [f"v_rcp_f32 v{vLI+t}, v{vL+t}" for t in range(T)] + xo + epi_acc(0)
        fixed = spread(ls, range(len(mf)))
    if tn: fixed = merge(place(warm_loads() if WARM else next_loads(tn)[1], range(len(mf))), fixed)
    emit(pack(mf, fixed))
    e(f"s_branch Lepi{T}")

def first_max(t):
    s0 = sreg(0, t)
    m = vX + 2
    r = [f"v_max3_f32 v{m}, v{s0}, v{s0+1}, v{s0+2}", f"v_max3_f32 v{m}, v{m}, v{s0+3}, v{s0+4}",
         f"v_max3_f32 v{m}, v{m}, v{s0+5}, v{s0+6}", f"v_max_f32 v{m}, v{m}, v{s0+7}"]
    r += xlane("v_max_f32", [m], vX + 3)
    if RS: r += [f"v_add_f32 v{m}, s{sThr}, v{m}"]
    r += [f"v_sub_f32 v{vNM+4*t+i}, 0, v{m}" for i in range(4)]
    r += [f"v_sub_f32 v{s0+i}, v{s0+i}, v{m}" for i in range(8)]
    return r

def qraw(t, k=0):
    return vQ + 16 * t + k if t < 4 else sreg(k // 8, 4) + k % 8
def prescale(t):
    r = []
    for k in range(0, 16, 2):
        q = qraw(t, k)
        for i in range(2):
            r += [f"v_lshlrev_b32 v{vX+2*i}, 16, v{q+i}", f"v_and_b32 v{vX+2*i+1}, 0xffff0000, v{q+i}"]
        for i in range(2):
            r += [f"v_pk_mul_f32 {vr(vX+2*i,2)}, {vr(vX+2*i,2)}, s[{sThr}:{sC}] op_sel:[0,1] op_sel_hi:[1,1]"]
        for i in range(2):
            r += [f"v_cvt_pk_bf16_f32 v{q+i}, v{vX+2*i}, v{vX+2*i+1}"]
        if t == 4: r += [f"v_accvgpr_write_b32 a{aQ+k+i}, v{q+i}" for i in range(2)]
    return r

def first_only(lines):
    i = len(L)
    e(f"s_cmp_eq_u32 s{sFirst}, 0")
    e(f"s_cbranch_scc1 Lw{i}")
    emit(lines)
    lab(f"Lw{i}")

def nvm(l): return sum(x.startswith("buffer") for x in l)

vMK = vP + 20
def weave(mfs, valu, mem):
    d = place(mem, range(len(mfs))) if mem else {}
    out = []
    j = 0
    nops = [i for i, x in enumerate(valu) if x == "s_nop 1"]
    if nops and len(mfs) > len(nops):
        extra = len(mfs) - len(nops)
        free = [i for i in range(len(valu)) if i not in nops and i - 1 not in nops]
        head = [0, 2][:min(2, extra)]
        tailp = [i for i in free if i > nops[-1] + 1]
        more = [tailp[k * len(tailp) // (extra - len(head))] for k in range(extra - len(head))]
        cuts = sorted(set(nops + head + more))
        assert len(cuts) == len(mfs)
        k = 0
        for i, x in enumerate(valu):
            if i in cuts:
                out.append(mfs[k])
                m = d.get(k, []); k += 1
                if x == "s_nop 1":
                    out += m if m else ["s_nop 0"]
                    continue
                out += m
            out.append(x)
        return out
    for i, x in enumerate(mfs):
        out.append(x)
        out += d.get(i, [])
        nj = (i + 1) * len(valu) // len(mfs)
        out += valu[j:nj]; j = nj
    return out

def bf16bits(x):
    u = f32bits(x)
    return (u + 0x7FFF + ((u >> 16) & 1)) >> 16
CSC = 128 ** -0.5 * math.log2(math.e)
CHI = bf16bits(CSC)
CLO = bf16bits(CSC - struct.unpack("<f", struct.pack("<I", CHI << 16))[0])

def prologue2(T):
    lab(f"Lpro{T}")
    vCA = vP + 28
    adr = [vX + 8 + s for s in range(4)], [vP + 32 + s for s in range(4)]
    ops = []
    def add(l, **k):
        r = [Op(x, **k) for x in l if not x.startswith("s_nop")]
        ops.extend(r); return r
    def qcur(g):
        return [x.replace(f"s{sQoffn}", f"s{sOoff}").replace(f"s[{sQ}:{sQ+3}]", f"s[{sQc}:{sQc+3}]") for x in qgroup(g, False)]
    def vmw(tag, first, after, tmin):
        i = len(L) * 1000 + len(ops)
        lines = [f"s_cmp_eq_u32 s{sFirst}, 0", f"s_cbranch_scc1 Lw{i}", "@W", f"Lw{i}:"] if first else None
        o = Op("s_waitcnt vmcnt(0)", vmwait=tag, lines=lines, after=after, tmin=tmin); ops.append(o); return o
    t0, dt = opts.get("qt0", 100), opts.get("qdt", 300)
    add([f"v_xor_b32 v{adr[0][s]}, {s*64}, v{vQa}" for s in range(4)] + [f"v_add_u32 v{adr[1][s]}, 8, v{adr[0][s]}" for s in range(4)])
    add([f"v_mul_u32_u24 v{vCA}, {CHI}, v{vM01}", f"v_mul_u32_u24 v{vCA+1}, {CHI}, v{vM23}",
         f"v_mul_u32_u24 v{vCA+2}, {CLO}, v{vM01}", f"v_mul_u32_u24 v{vCA+3}, {CLO}, v{vM23}"])
    add([f"v_sub_u32 v{vX}, s{sRem}, v{vG4}", f"v_mov_b32 v{vX+1}, s{sNeg}"])
    for a in range(2):
        add([f"v_cmp_lt_i32 s[{sM+2*i}:{sM+2*i+1}], {16*a+i}, v{vX}" for i in range(4)])
        add([f"v_cndmask_b32 v{vMK+4*a+i}, v{vX+1}, 0, s[{sM+2*i}:{sM+2*i+1}]" for i in range(4)])
    add([f"v_mov_b32 v{vL4+2*(t-3)+1}, 0" for t in range(NRS, T)])
    qld = {}
    for g in range(2, T):
        qld[g] = add(qcur(g), tag=f"Q{g}", tmin=(g - 2) * 260)
    W = {0: vmw("Q0", True, qld.get(min(T - 1, opts.get("qall", 2)), [])[-1:], t0)}
    B0 = opts.get("b0", 1)
    if B0:
        Bz = add(["s_barrier"], after=[W[0]])[0]
        add(k_reads(0), after=[Bz])
    def second(aft):
        nonlocal B1, B2
        W[1] = vmw("K1", True, [W[0]] + qld.get(3, [])[-1:] + aft, t0 + dt)
        B1 = add(["s_barrier"], after=[W[1]])[0]
        add(([] if B0 else k_reads(0)) + k_reads(1, aVf), after=[B1])
        B2 = add(["s_barrier"], after=[B1], reads={("a", aKf + i) for i in range(64)})[0]
    B1 = B2 = None
    if not B0: second([])
    e1, e2 = (2, 2) if T >= 4 else (1, min(T - 1, opts.get("b3", 1)))
    bulk = {e1: [("K2", ktile(2), 1), ("V0", vtile(0), 1)]}
    bulk.setdefault(e2, []).extend([("K3", ktile(3), 1), ("V1", vtile(1), 1), ("G", dma(0), 2), ("G", dma(1), 2)])
    lastA = None
    tile_all, tile_max = {}, {}
    for t in range(T):
        if t >= 2:
            aft = [W[t - 1], qld[T - 1][-1]]
            if opts.get("lag", 1): aft += tile_all[t - 2]
            if opts.get("lag", 1) and t == T - 1: aft += tile_max[t - 1] if opts.get("lag", 1) == 1 else tile_all[t - 1]
            W[t] = vmw(f"Q{t}", False, aft, t0 + t * dt)
        for tag, l, bar in bulk.get(t, []):
            r = add(l, tag=tag, after=[B1 if bar == 1 else B2, W[t]])
            if tag == "V0": v0 = r[-1]
        raw = aO + 32 * t
        add([f"ds_read2st64_b64 {ar(raw+4*k,4)}, v{adr[k&1][k>>1]} offset0:{8*t} offset1:{8*t}" for k in range(8)], after=[W[t]])
        for k in range(8):
            d = sreg((k >> 1) & 1, t, k & 1)
            add([f"{MF} {vr(d,4)}, {vr(vCA,4)}, {ar(raw+4*k,4)}, 0"])
            for i in range(2):
                if t < 4:
                    add([f"v_cvt_pk_bf16_f32 v{vQ+16*t+2*k+i}, v{d+2*i}, v{d+2*i+1}"])
                else:
                    add([f"v_cvt_pk_bf16_f32 v{d+2*i}, v{d+2*i}, v{d+2*i+1}", f"v_accvgpr_write_b32 a{aQ+2*k+i}, v{d+2*i}"])
        lastA = add([qk1(0, t, a, s, vMK + 4 * a) for a in range(2) for s in range(4)])[-1]
        fm = first_max(t)
        if t & 1: fm = [x.replace(f"v{vX+2}", f"v{vX}").replace(f"v{vX+3}", f"v{vX+1}") for x in fm]
        tile_max[t] = add(fm)
        if t == 0 and B0: second([Bz] + ([lastA] if B0 == 1 else tile_max[0]))
        cc = add([qk1(1, t, a, s, vNM + 4 * t, aVf) for a in range(2) for s in range(4)])
        dd = SM(1, 0, False, t, 2).rest()
        if t & 1:
            for i in range(4): dd = [x.replace(f"v{vE+i}", f"v{vX+4+i}") for x in dd]
        tile_all[t] = tile_max[t] + cc + add(dd)
    W3 = vmw("V0", False, [v0, lastA, B2] + (tile_max[T - 1] if opts.get("w3", 1) else []), 0)
    B3 = add(["s_barrier"], after=[W3])[0]
    add(k_reads(2), after=[B3], bonus=150)
    q = ["K0"] * 2 + ["Q0"] * 4 + ["Q1"] * 4 + ["K1"] * 2
    out, est = schedule(ops, q, verbose=bool(opts.get("verb")), **({} if opts.get("pb", 0) else {"betas": (10000,)}))
    assert q[-8:] == ["G"] * 8
    emit(out)
    stamp(1)

def prologue3(T):
    lab(f"Lramp{T}")
    mk = [preg(0, T - 1), preg(1, T - 1)]
    adr = [vX + 8 + s for s in range(4)], [vNM + 4 * (T - 1) + s for s in range(4)]
    ops = []
    def add(l, **k):
        r = [Op(x, **k) for x in l if not x.startswith("s_nop")]
        ops.extend(r); return r
    def qcur(g):
        return [x.replace(f"s{sQoffn}", f"s{sOoff}").replace(f"s[{sQ}:{sQ+3}]", f"s[{sQc}:{sQc+3}]") for x in qgroup(g, False)]
    def vmw(tag, after, tmin):
        o = Op("s_waitcnt vmcnt(0)", vmwait=tag, after=after, tmin=tmin); ops.append(o); return o
    t0, dt = opts.get("rt0", 200), opts.get("rdt", 700)
    add([f"v_xor_b32 v{adr[0][s]}, {s*64}, v{vQa}" for s in range(4)] + [f"v_add_u32 v{adr[1][s]}, 8, v{adr[0][s]}" for s in range(4)])
    vCA = sreg(0, 4)
    add([f"v_mul_u32_u24 v{vCA}, {CHI}, v{vM01}", f"v_mul_u32_u24 v{vCA+1}, {CHI}, v{vM23}",
         f"v_mul_u32_u24 v{vCA+2}, {CLO}, v{vM01}", f"v_mul_u32_u24 v{vCA+3}, {CLO}, v{vM23}"])
    CA = vr(vCA, 4)
    if T == 5:
        assert NRS <= 3
        add([f"v_accvgpr_write_b32 a{aL+12+i}, v{vCA+i}" for i in range(4)])
        CA = ar(aL + 12, 4)
    add([f"v_sub_u32 v{vX}, s{sRem}, v{vG4}", f"v_mov_b32 v{vX+1}, s{sNeg}"])
    for a in range(2):
        add([f"v_cmp_lt_i32 s[{sM+2*i}:{sM+2*i+1}], {16*a+i}, v{vX}" for i in range(4)])
        add([f"v_cndmask_b32 v{mk[a]+i}, v{vX+1}, 0, s[{sM+2*i}:{sM+2*i+1}]" for i in range(4)])
    early = [("K2", ktile(2)), ("V0", vtile(0))] + [(f"Q{g}", qcur(g)) for g in range(2, T)]
    if opts.get("ro", 0) and T > 2: early = early[2:3] + early[:2] + early[3:]
    ld = {}
    for tag, l in early: ld[tag] = add(l, tag=tag)[-1]
    el = [ld[tag] for tag, _ in early]
    W = {0: vmw("Q0", el[1:2], t0)}
    W[1] = vmw("K1", [W[0]] + el[2:3], t0 + dt)
    B1 = add(["s_barrier"], after=[W[1]])[0]
    add(k_reads(0) + k_reads(1, aVf), after=[B1])
    WV = vmw("V0", [W[1], el[-1]], t0 + dt + opts.get("rv", 300))
    B2 = add(["s_barrier"], after=[B1, WV], reads={("a", aKf + i) for i in range(64)})[0]
    lt = min(opts.get("rl", 2), T - 1)
    buf = aO + 128
    groups = [[0, 1]] + [[t] for t in range(2, T)]
    tile_all, frag = {}, []
    def soft(b, t, first):
        s0, pp = sreg(b, t), preg(b, t)
        r = add([f"v_exp_f32 v{s0+i}, v{s0+i}" for i in range(8)])
        r += add([f"v_cvt_pk_bf16_f32 v{pp+k}, v{s0+2*k}, v{s0+2*k+1}" for k in range(4)])
        if t >= NRS:
            dst = vL4 + 2 * (t - 3) + (1 if first else 0)
            r += add([f"v_add_f32 v{s0+2*k}, v{s0+2*k}, v{s0+2*k+1}" for k in range(4)] +
                     [f"v_add_f32 v{s0}, v{s0}, v{s0+2}", f"v_add_f32 v{s0+4}, v{s0+4}, v{s0+6}", f"v_add_f32 v{dst}, v{s0}, v{s0+4}"])
        return r
    for gr in groups:
        for t in gr:
            if t >= 2:
                aft = [W[t - 1], el[-1]]
                lag = opts.get("rlag", 1)
                for u in range(0, t - lag + 1 if lag else 0):
                    if u in tile_all and u <= t - lag: aft += tile_all[u]
                W[t] = vmw(f"Q{t}", aft, t0 + t * dt + opts.get("rv", 300))
            if t == lt:
                for tag, l, bar in (("K3", ktile(3), B1), ("V1", vtile(1), B1), ("G", dma(0), B2), ("G", dma(1), B2)):
                    r = add(l, tag=tag, after=[bar, W[t]])
                    if tag == "V1": v1 = r[-1]
            raw = aO + 32 * t
            add([f"ds_read2st64_b64 {ar(raw+4*k,4)}, v{adr[k&1][k>>1]} offset0:{8*t} offset1:{8*t}" for k in range(8)], after=[W[t]])
            for k in range(8):
                d = sreg((k >> 1) & 1, t, k & 1)
                add([f"{MF} {vr(d,4)}, {CA}, {ar(raw+4*k,4)}, 0"])
                for i in range(2):
                    if t < 4:
                        add([f"v_cvt_pk_bf16_f32 v{vQ+16*t+2*k+i}, v{d+2*i}, v{d+2*i+1}"])
                    else:
                        add([f"v_cvt_pk_bf16_f32 v{d+2*i}, v{d+2*i}, v{d+2*i+1}", f"v_accvgpr_write_b32 a{aQ+2*k+i}, v{d+2*i}"])
            add([qk1(0, t, a, s, mk[a]) for a in range(2) for s in range(4)])
            fm = first_max(t)
            if t & 1: fm = [x.replace(f"v{vX+2}", f"v{vX}").replace(f"v{vX+3}", f"v{vX+1}") for x in fm]
            tile_all[t] = add(fm)
            tile_all[t] += add([qk1(1, t, a, s, vNM + 4 * t, aVf) for a in range(2) for s in range(4)])
            tile_all[t] += soft(0, t, True)
        last = gr[-1] == T - 1
        bk, bv = ((aKf, aVf) if T == 5 else (buf, aVf)) if last else (buf, buf)
        if last and T < 5 and len(groups) > 1: bk, bv = aKf, buf
        frag += add(k_reads(2, bk), after=[B2])
        for t in gr:
            tile_all[t] += add([qk1(0, t, a, s, vNM + 4 * t, bk) for a in range(2) for s in range(4)])
            tile_all[t] += soft(1, t, False)
        if not (last and T < 5 and len(groups) > 1):
            frag += add(v_reads(2, bv), after=[B2])
        ZERO[0] = True
        for t in gr:
            tile_all[t] += add([pv1(0, t, dt_, bv) for dt_ in range(8)] + ([rs1(0, t)] if t < NRS else []))
        ZERO[0] = False
    W4 = vmw("V1", [v1, B2], 0)
    for o in frag: o.w = o.w | {("x", 2)}
    B4 = add(["s_barrier"], after=[W4] + frag, reads={x for o in frag[-24:] for x in o.w})[0]
    for o in frag: o.w = o.w - {("x", 2)}
    B4.r = B4.r - {("x", 2)}
    add(k_reads(3), after=[B4], bonus=150)
    add(dma(2), after=[B4], tag="G")
    q = ["K0"] * 2 + ["Q0"] * 4 + ["Q1"] * 4 + ["K1"] * 2
    out, est = schedule(ops, q, verbose=bool(opts.get("verb")), betas=(64, 10000))
    assert q[-12:] == ["G"] * 12
    emit(out)
    e(f"s_sub_u32 s{sCnt}, s{sCnt}, 2")
    e("s_waitcnt lgkmcnt(0)")
    stamp(1)
    if opts.get("enc"): e("s_memrealtime s[76:77]")

def prologue(T):
    if opts.get("p2", 1): prologue2(T)
    else: prologue1(T)
    prologue_end(T)

def prologue1(T):
    lab(f"Lpro{T}")
    def qcur(g):
        return [x.replace(f"s{sQoffn}", f"s{sOoff}").replace(f"s[{sQ}:{sQ+3}]", f"s[{sQc}:{sQc+3}]") for x in qgroup(g, False)]
    q = ["K0"] * 2 + ["Q0"] * 4 + ["Q1"] * 4 + ["K1"] * 2
    def younger(tag): return len(q) - 1 - max(i for i, x in enumerate(q) if x == tag)
    for s in range(4):
        e(f"v_xor_b32 v{vX+8+s}, {s*64}, v{vQa}")
    pre = [f"v_sub_u32 v{vX}, s{sRem}, v{vG4}", f"v_mov_b32 v{vX+1}, s{sNeg}"]
    for a in range(2):
        pre += [f"v_cmp_lt_i32 s[{sM+2*i}:{sM+2*i+1}], {16*a+i}, v{vX}" for i in range(4)] + ["s_nop 0"]
        pre += [f"v_cndmask_b32 v{vMK+4*a+i}, v{vX+1}, 0, s[{sM+2*i}:{sM+2*i+1}]" for i in range(4)]
    if not RS: pre += [f"v_mov_b32 v{vL+t}, 0" for t in range(T)]
    else: pre += [f"v_mov_b32 v{vL4+2*(t-3)+1}, 0" for t in range(NRS, T)]
    def qreads(t):
        return [f"ds_read_b128 {vr(qraw(t,4*s),4)}, v{vX+8+s} offset:{t*4096}" for s in range(4)]
    A = lambda t: [qk1(0, t, a, s, vMK + 4 * a) for a in range(2) for s in range(4)]
    C = lambda t: [qk1(1, t, a, s, vNM + 4 * t, aVf) for a in range(2) for s in range(4)]
    def sparse(mem, valu):
        d = place(mem, range(max(1, nvm(mem))))
        out = []; j = 0
        for i in range(len(d)):
            out += d[i]
            nj = (i + 1) * len(valu) // len(d)
            out += valu[j:nj]; j = nj
        return out
    if T > 2:
        emit(sparse(qcur(2), pre)); q += ["Q2"] * 4
        pre = []
    first_only([f"s_waitcnt vmcnt({younger('Q0')})"])
    pstamp(1)
    emit(qreads(0))
    emit(pre)
    e("s_waitcnt lgkmcnt(0)")
    if T > 3:
        emit(sparse(qcur(3), prescale(0))); q += ["Q3"] * 4
    else:
        emit(prescale(0))
    first_only([f"s_waitcnt vmcnt({younger('K1')})"])
    pstamp(2)
    if opts.get("sb", 9) <= 5: e(f"ds_write_b32 v{vOr}, v{vSeq}")
    emit(qreads(1))
    e("s_barrier")
    emit(k_reads(0))
    e("s_waitcnt lgkmcnt(8)")
    ps = prescale(1)
    if T > 4:
        emit(sparse(qcur(4), ps[:32])); q += ["Q4"] * 4
    else:
        emit(ps[:32])
    emit(k_reads(1, aVf))
    e("s_waitcnt lgkmcnt(8)")
    bulk = [("K2", ktile(2)), ("V0", vtile(0)), ("K3", ktile(3)), ("V1", vtile(1)), ("G", dma(0)[:5]), ("G", dma(0)[5:]),
            ("H", dma(1)[:5]), ("H", dma(1)[5:])]
    def takeb(n):
        nonlocal bulk
        r = []
        for tag, l in bulk[:n]:
            r += l; q.extend([tag] * nvm(l))
        bulk = bulk[n:]
        return r
    emit(weave(A(0), [], takeb(1) if T == 2 else []))
    emit(sparse(takeb(1), ps[32:]) if T <= 3 else ps[32:])
    D = lambda t: SM(1, 0, False, t, 2).rest()
    def getq(k):
        e(f"s_waitcnt vmcnt({younger(f'Q{k}')})")
        if k <= 3: pstamp(k + 1)
        emit(qreads(k))
    def bar2():
        e("s_waitcnt lgkmcnt(0)")
        e("s_barrier")
    per = {2: [2, 2, 2], 3: [1, 1, 1, 2, 2], 4: [1, 1, 1, 1, 1, 1, 2], 5: [0, 1, 1, 1, 1, 1, 1, 1, 1]}[T]
    tk = lambda: takeb(per.pop(0))
    for k in range(2, T):
        emit(weave(A(k - 1), first_max(k - 2), tk()))
        if k == 2: bar2()
        if k < T - 1:
            getq(k)
            emit(weave(C(k - 2), D(k - 2), tk()))
        else:
            emit(weave(C(k - 2), first_max(k - 1), tk()))
            emit(D(k - 2))
            getq(k)
            emit(weave(C(k - 1), D(k - 1)[:8], tk()))
        e("s_waitcnt lgkmcnt(0)")
        emit(prescale(k))
    stamp(1)
    if opts["stamp"]: e("s_waitcnt lgkmcnt(0)")
    if T == 2:
        emit(weave(A(1), first_max(0), tk()))
        bar2()
        emit(weave(C(0), D(0), tk()))
    else:
        emit(weave(A(T - 1), D(T - 2)[8:], tk()))
    e(f"s_waitcnt vmcnt({younger('V0')})")
    e("s_barrier")
    emit(k_reads(2))
    emit(first_max(T - 1))
    emit(weave(C(T - 1), D(T - 1), tk()))
    assert not bulk and not per

def prologue_end(T):
    e(CNT)
    e(f"s_cmp_lg_u32 s{sSafe}, 0")
    e(f"s_cbranch_scc1 Lsafe{T}")
    if opts.get("enc"):
        i = len(L)
        e(f"s_cmp_eq_u32 s{sFirst}, 0"); e(f"s_cbranch_scc1 Le{i}"); e("s_memrealtime s[76:77]"); lab(f"Le{i}")
    step(T, 1, True, True)
    if RAMP and T in FIRSTS:
        e(f"s_branch Ljoin{T}")
        prologue3(T)
        lab(f"Ljoin{T}")
    stamp(2)
    e(f".p2align {opts['al']}")
    lab(f"Lloop{T}")
    for t in (2, 3, 4, 5):
        step(T, t, False, True)
    e(f"s_branch Lloop{T}")
    for sp in SPINS:
        lab(f"Lsp{sp}")
        e(f"ds_read_b32 v{vFl}, v{vSr}")
        e("s_waitcnt lgkmcnt(0)")
        e(f"v_cmp_lt_u32 vcc, v{vFl}, v{vSeq}")
        e(f"s_cbranch_vccnz Lsp{sp}")
        e(f"s_branch Lspb{sp}")
    SPINS.clear()
    for p in range(4):
        tails(T, p)

def stamp_store(final=False, B=None):
    if not opts["stamp"]: return
    B = vP + 20 if B is None else B
    if opts["stamp"] == 2:
        if not final: return
        e("s_waitcnt lgkmcnt(0)")
        e("s_mov_b32 s92, s90"); e("s_mov_b32 s93, s91"); e("s_mov_b32 s94, 256"); e("s_mov_b32 s95, 0x20000")
        e("s_mov_b64 exec, 1")
        e(f"v_mov_b32 v{B+8}, 0")
        e("s_not_b32 s96, s100"); e(f"v_mov_b32 v{B}, s96")
        e(f"buffer_atomic_umax v{B}, v{B+8}, s[92:95], 0 offen offset:32")
        e(f"v_mov_b32 v{B+1}, s{sST+12}")
        e(f"buffer_atomic_umax v{B+1}, v{B+8}, s[92:95], 0 offen offset:36")
        e(f"v_mov_b32 v{B+2}, s100")
        e(f"buffer_atomic_umax v{B+2}, v{B+8}, s[92:95], 0 offen offset:40")
        e(f"s_lshl_b32 s96, s2, 2"); e(f"s_add_u32 s96, s96, s{sW}")
        e("s_cmp_lg_u32 s96, 32"); e("s_cbranch_scc1 Lnodbg")
        e(f"s_sub_u32 s96, s99, s100"); e(f"v_mov_b32 v{B}, s96")
        e(f"s_sub_u32 s96, s{sST+2}, s97"); e(f"v_mov_b32 v{B+1}, s96")
        for i in range(1, 4):
            e(f"s_sub_u32 s96, s{sST+2*i+2}, s{sST+2*i}"); e(f"v_mov_b32 v{B+1+i}, s96")
        e(f"s_sub_u32 s96, s{sST}, s{sST+8}"); e(f"v_mov_b32 v{B+5}, s96")
        e(f"s_sub_u32 s96, s{sST+12}, s100"); e(f"v_mov_b32 v{B+6}, s96")
        e(f"v_mov_b32 v{B+7}, s100")
        e(f"buffer_store_dwordx4 {vr(B,4)}, v{B+8}, s[92:95], 0 offen")
        e(f"buffer_store_dwordx4 {vr(B+4,4)}, v{B+8}, s[92:95], 0 offen offset:16")
        lab("Lnodbg")
        return
    e("s_waitcnt lgkmcnt(0)")
    e("s_mov_b32 s92, s90"); e("s_mov_b32 s93, s91"); e("s_mov_b32 s94, 0x100000"); e("s_mov_b32 s95, 0x20000")
    e(f"s_lshl_b32 s96, s2, 2"); e(f"s_add_u32 s96, s96, s{sW}"); e("s_lshl_b32 s96, s96, 2")
    if final: e("s_add_u32 s96, s96, 3")
    else: e("s_add_u32 s96, s96, s97"); e("s_add_u32 s97, s97, 1")
    e("s_lshl_b32 s96, s96, 5")
    for i in range(5): e(f"v_mov_b32 v{B+i}, s{sST+2*i}")
    e(f"v_mov_b32 v{B+5}, s{sST+10}"); e(f"v_mov_b32 v{B+6}, s{sST+12}"); e(f"v_mov_b32 v{B+7}, s98")
    e(f"v_mov_b32 v{B+8}, 0")
    e("s_mov_b64 exec, 1")
    e(f"buffer_store_dwordx4 {vr(B,4)}, v{B+8}, s[92:95], s96 offen")
    e(f"buffer_store_dwordx4 {vr(B+4,4)}, v{B+8}, s[92:95], s96 offen offset:16")
    e("s_mov_b64 exec, -1")
    e("s_nop 2")

def epilogue(T):
    lab(f"Lepi{T}")
    stamp(4)
    if opts["stamp"]: e(f"s_memrealtime s[{sST+12}:{sST+13}]")
    if opts.get("pst") != 2: stamp_store()
    estamp(1)
    if opts["epi"]:
        def swaps(t):
            pk = vQ + 32 + 16 * (t & 1)
            return [f"v_permlane16_swap_b32 v{pk+4*j+i}, v{pk+4*j+2+i}" for j in range(4) for i in range(2)]
        def dstores(t):
            pk = vQ + 32 + 16 * (t & 1)
            return [f"buffer_store_dwordx4 {vr(pk+4*j,4)}, v{vOw}, s[{sOut}:{sOut+3}], s{sT0} offen offset:{j*64}{ST}" for j in range(4)]
        emit(epi_cvt(0) + swaps(0))
        for t in range(1, T + 1):
            va = epi_acc(t) + epi_cvt(t) + swaps(t) if t < T else []
            st = dstores(t - 1)
            e(f"s_add_u32 s{sT0}, s{sOoff}, {(t-1)*16*ROWB}")
            if opts["epi"] == 2:
                emit(st[:2] + va[:24] + st[2:] + va[24:])
            else:
                for j in range(4):
                    e(st[j]); emit(va[14 * j:14 * (j + 1)])
                emit(va[56:])
    else:
        epilogue_lds(T)
    epilogue_end(T)

def epilogue_lds(T):
    held = []
    for t in range(T):
        ac, cv, w = epi_acc(t), epi_cvt(t), epi_writes(t)
        if t == T - 1:
            estamp(3)
            if opts.get("pst") == 2: e("s_waitcnt lgkmcnt(0)")
        for qd in range(4):
            if t: emit(ac[8 * qd:8 * qd + 8])
            if qd == 1 and t:
                emit([held.pop(0), "s_waitcnt lgkmcnt(2)"])
            if held and (t > 1 or qd): e(held.pop(0))
            emit(cv[4 * qd:4 * qd + 4] + cv[16 + 4 * qd:16 + 4 * qd + 4] + w[2 * qd:2 * qd + 2])
        emit(epi_reads(t))
        so = sT0 + (t & 1)
        held += [x.replace(f"s{sT0}", f"s{so}") for x in epi_stores(t)]
        if t == 1: estamp(2)
    n = 4
    for i, x in enumerate(held):
        if x.startswith("buffer") and i >= len(held) - 4:
            n -= 1
            e(f"s_waitcnt lgkmcnt({n})")
        e(x)

def epilogue_end(T):
    estamp(4)
    if T in PROD:
        e(f"s_cmp_eq_u32 s{sD1n}, 0")
        e("s_cbranch_scc1 Ldone")
        e(f"s_mov_b32 s{sFirst}, 0")
        e(f"s_mov_b32 s{sSafe}, {opts.get('safe', 0)}")
        e(f"s_waitcnt vmcnt({4*T + (nvm(warm_loads()) if WARM else 0)})")
        e("s_branch Lstart")
    else:
        e("s_branch Ldone")

def gen():
    L.append(open(os.path.join(os.path.dirname(os.path.abspath(__file__)), "header.txt")).read().rstrip())
    L.append(f"; @launch grid=({NWG},1,1) block=(256,1,1) lds={LDSZ}")
    L.append("""; Structure (generated by a script of my own, one workgroup per CU, 4 waves, 512 registers each):
;    with the running-max loop (Lsafe*, rescale in Lresc*), so the result never depends on value ranges.""")
    L.append('.amdgcn_target "amdgcn-amd-amdhsa--gfx950"')
    L.append(".text")
    L.append(f".globl {NAME}_kernel")
    L.append(".p2align 8")
    L.append(f".type {NAME}_kernel,@function")
    lab(f"{NAME}_kernel")
    e(f"s_cmp_ge_u32 s2, {NWG}")
    e("s_cbranch_scc1 Lend")
    e(f"s_getpc_b64 s[{sPC}:{sPC+1}]")
    lab("Lpc")
    e(f"s_add_u32 s4, s{sPC}, Ltab-Lpc")
    e(f"s_addc_u32 s5, s{sPC+1}, 0")
    e("s_lshl_b32 s3, s2, 5")
    e(f"s_load_dwordx8 s[{sJ}:{sJ+7}], s[4:5], s3")
    for srd, off in ((sK, 8), (sQ, 0), (sV, 16), (sOut, 32), (sQc, 0)):
        e(f"s_load_dwordx2 s[{srd}:{srd+1}], s[0:1], {off}")
    if opts["pf"] == 1:
        e(f"v_lshlrev_b32 v1, 7, v0")
        for i in range(2):
            e(f"global_load_dword v{2+i}, v1, s[{sPC}:{sPC+1}]")
            e(f"v_add_u32 v1, 32768, v1")
    elif opts["pf"] == 2:
        e("s_lshr_b32 s3, s2, 3")
        e("s_mul_i32 s3, s3, 2560")
        e("v_lshrrev_b32 v1, 6, v0")
        e("v_mul_u32_u24 v1, 640, v1")
        e("v_and_b32 v2, 7, v0")
        e("v_min_u32 v2, 4, v2")
        e("v_lshl_add_u32 v1, v2, 7, v1")
        e("v_add_u32 v1, s3, v1")
        e("v_min_u32 v1, Lcold-Lpc, v1")
        e(f"global_load_dword v2, v1, s[{sPC}:{sPC+1}]")
    if opts["stamp"]:
        e(f"s_load_dwordx2 s[90:91], s[0:1], {40 if opts['stamp'] == 2 else 48}")
        e("s_memrealtime s[100:101]")
        e("s_mov_b32 s97, 0")
    if opts.get("spin"):
        e("s_memrealtime s[100:101]")
        e("s_load_dwordx2 s[90:91], s[0:1], 40")
    if LIGHT:
        e("s_load_dwordx2 s[90:91], s[0:1], 48")
        e("s_memrealtime s[100:101]")
    w, ln, i16, g, x4, x5, x6 = range(vX, vX + 7)
    e(f"v_lshrrev_b32 v{w}, 6, v0")
    e(f"v_and_b32 v{ln}, 63, v0")
    e(f"v_readfirstlane_b32 s{sW}, v{w}")
    e(f"v_and_b32 v{i16}, 15, v{ln}")
    e(f"v_lshrrev_b32 v{g}, 4, v{ln}")
    e(f"v_xor_b32 v{x6}, v{i16}, v{g}")
    e(f"v_lshlrev_b32 v{x6}, 4, v{x6}")
    mark = len(L)
    e(f"v_bfe_u32 v{x4}, v{ln}, 3, 1")
    e(f"v_lshlrev_b32 v{x4}, 12, v{x4}")
    e(f"v_and_b32 v{x5}, 7, v{ln}")
    e(f"v_lshl_add_u32 v{x4}, v{x5}, 8, v{x4}")
    e(f"v_add3_u32 v{vKa}, v{x4}, v{x6}, 0")
    e(f"v_add_u32 v{vKa}, 2048, v{vKa}")
    for s in range(1, 4):
        e(f"v_xor_b32 v{vKa+s}, {s*64}, v{vKa}")
    e(f"v_mul_u32_u24 v{x4}, {QW}, v{w}")
    e(f"v_lshl_add_u32 v{x4}, v{i16}, 8, v{x4}")
    e(f"v_add3_u32 v{x4}, v{x4}, v{x6}, 0")
    e(f"v_add_u32 v{vQa}, {QS}, v{x4}")
    e(f"v_lshlrev_b32 v{x4}, 12, v{w}")
    e(f"v_add_u32 v{x4}, {OS}, v{x4}")
    e(f"v_lshl_add_u32 v{vOr}, v{ln}, 4, v{x4}")
    e(f"v_lshl_add_u32 v{x4}, v{i16}, 8, v{x4}")
    e(f"v_lshrrev_b32 v{x5}, 1, v{g}")
    e(f"v_xor_b32 v{x5}, v{x5}, v{i16}")
    e(f"v_lshl_add_u32 v{x4}, v{x5}, 4, v{x4}")
    e(f"v_and_b32 v{x5}, 1, v{g}")
    e(f"v_lshl_add_u32 v{vOw}, v{x5}, 3, v{x4}")
    if opts["epi"]:
        e(f"v_lshlrev_b32 v{x4}, 12, v{i16}")
        e(f"v_lshl_add_u32 v{x4}, v{x5}, 5, v{x4}")
        e(f"v_lshrrev_b32 v{vOw}, 1, v{g}")
        e(f"v_lshl_add_u32 v{vOw}, v{vOw}, 4, v{x4}")
    e(f"v_lshrrev_b32 v{x4}, 1, v{g}")
    e(f"v_lshlrev_b32 v{x4}, 12, v{x4}")
    e(f"v_mul_u32_u24 v{x5}, {4*256+32}, v{x5}")
    e(f"v_add_u32 v{x4}, v{x4}, v{x5}")
    e(f"v_lshrrev_b32 v{x5}, 2, v{i16}")
    e(f"v_mul_u32_u24 v{x5}, {256+64}, v{x5}")
    e(f"v_add_u32 v{x4}, v{x4}, v{x5}")
    e(f"v_and_b32 v{x5}, 3, v{ln}")
    e(f"v_lshl_add_u32 v{vVa}, v{x5}, 3, v{x4}")
    for dt in range(1, 8):
        e(f"v_xor_b32 v{vVa+dt}, {dt*32}, v{vVa}")
    if RS:
        for i in range(4): e(f"v_mov_b32 v{vOne+i}, 0x3f803f80")
    e(f"v_and_b32 v{vFr}, 3, v{ln}")
    if opts.get("p2", 1):
        e(f"v_and_b32 v{x4}, 1, v{ln}")
        e(f"v_lshlrev_b32 v{x4}, 4, v{x4}")
        e(f"v_lshlrev_b32 v{x4}, v{x4}, 1")
        e(f"v_lshrrev_b32 v{x5}, 1, v{i16}")
        e(f"v_lshlrev_b32 v{vM23}, 1, v{g}")
        e(f"v_cmp_eq_u32 vcc, v{x5}, v{vM23}")
        e(f"v_add_u32 v{vM23}, 1, v{vM23}")
        e(f"v_cmp_eq_u32 s[{sM}:{sM+1}], v{x5}, v{vM23}")
        e(f"v_cndmask_b32 v{vM01}, 0, v{x4}, vcc")
        e("s_nop 0")
        e(f"v_cndmask_b32 v{vM23}, 0, v{x4}, s[{sM}:{sM+1}]")
    if opts.get("sb", 9) <= 5:
        e(f"v_lshlrev_b32 v{vSr}, 12, v{vFr}")
        e(f"v_add_u32 v{vSr}, {OS}, v{vSr}")
        e(f"v_mov_b32 v{vSeq}, 0")
    e(f"v_mul_u32_u24 v{vFr}, {QW}, v{vFr}")
    e(f"v_add_u32 v{vFr}, {QS+16384}, v{vFr}")
    late = [x.strip() for x in L[mark:]]
    del L[mark:]
    e(f"v_lshlrev_b32 v{vG4}, 2, v{g}")
    e(f"v_lshl_add_u32 v{vQd}, v{g}, 12, v{x6}")
    for i in range(1, 4):
        e(f"v_xor_b32 v{vQd+i}, {i*64}, v{vQd}")
        e(f"v_add_u32 v{vQd+i}, {i*(4*ROWB-1024)}, v{vQd+i}")
    e(f"v_lshl_add_u32 v{x5}, v{w}, 3, v{g}")
    e(f"v_xor_b32 v{x4}, v{vG4}, v{i16}")
    e(f"v_lshlrev_b32 v{x4}, 4, v{x4}")
    e(f"v_lshl_add_u32 v{vDV}, v{x5}, 12, v{x4}")
    e(f"v_xor_b32 v{vDV+1}, 32, v{vDV}")
    e(f"v_add_u32 v{vDV+1}, {4*ROWB-1024}, v{vDV+1}")
    e(f"v_and_b32 v{x4}, 15, v{x5}")
    e(f"v_xor_b32 v{x4}, v{x4}, v{i16}")
    e(f"v_lshlrev_b32 v{x4}, 4, v{x4}")
    e(f"v_lshl_add_u32 v{vDK}, v{x5}, 12, v{x4}")
    e(f"v_xor_b32 v{vDK+1}, 64, v{vDK}")
    e(f"v_add_u32 v{vDK}, {4096-2048}, v{vDK}")
    e(f"v_add_u32 v{vDK+1}, {4*ROWB+4096-3072}, v{vDK+1}")
    e(f"s_lshl_b32 s{sWB}, s{sW}, 12")
    e(f"s_mov_b32 s{sThr}, {hex(f32bits(BIAS if RS else 4096.0))}")
    e(f"s_mov_b32 s{sC}, {hex(f32bits(128 ** -0.5 * math.log2(math.e)))}")
    e(f"s_mov_b32 s{sNeg}, {hex(f32bits(-1e30))}")
    e(f"s_mov_b32 s{sBig}, 0x40000000")
    if opts.get("perm"): e(f"s_mov_b32 s{sN}, 0x07060302")
    e(f"s_mov_b32 s{sFirst}, 1")
    e(f"s_mov_b32 s{sSafe}, {opts.get('safe', 0)}")
    e(f"s_mov_b32 s{sLim}, {hex(f32bits(2.0 ** 40))}")
    e(f"s_mul_i32 s{sQW}, s{sW}, {QW}")
    e(f"s_add_u32 s{sQW}, s{sQW}, {QS}")
    for srd in (sQ, sK, sV, sOut, sQc):
        e(f"s_mov_b32 s{srd+2}, 0")
        e(f"s_mov_b32 s{srd+3}, 0x20000")
    e(m0set(0))
    e("s_waitcnt lgkmcnt(0)")
    e(f"s_sub_u32 s{sK}, s{sK}, 4096")
    e(f"s_subb_u32 s{sK+1}, s{sK+1}, 0")
    def decode():
        e(f"s_mov_b32 s{sQ+2}, s{sNRn}")
        e(f"s_bfe_u32 s{sTn}, s{sD1n}, 0x30018")
        e(f"s_mul_i32 s{sT0}, s{sTn}, s{sW}")
        e(f"s_lshl_b32 s{sT0}, s{sT0}, 16")
        e(f"s_and_b32 s{sQoffn}, s{sD1n}, 0xfff000")
        e(f"s_add_u32 s{sQoffn}, s{sQoffn}, s{sD0n}")
        e(f"s_add_u32 s{sQoffn}, s{sQoffn}, s{sT0}")
    if not opts.get("qf"): emit(next_k0()[1:])
    decode()
    j = 0
    nl = 0
    for x in qgroup(0) + next_loads(1)[1]:
        if opts["lazy"] and "m0" in x and nl < opts.get("lz", 2):
            e(f"s_bitcmp0_b32 s{sD1n}, 28"); e(f"s_cbranch_scc1 Llz{nl}"); e("s_waitcnt vmcnt(0)"); lab(f"Llz{nl}"); nl += 1
        e(x)
        if x.startswith("buffer"):
            emit(late[j:j + 5]); j += 5
    emit(late[j:])
    lab("Lstart")
    e(f"s_mov_b64 s[{sD0}:{sD1}], s[{sD0n}:{sD1n}]")
    e(f"s_mov_b32 s{sLast}, s{sLastn}")
    e(f"s_mov_b32 s{sOut+2}, s{sNRn}")
    e(f"s_mov_b32 s{sV+2}, s{sNRn}")
    e(f"s_mov_b32 s{sQc+2}, s{sNRn}")
    e(f"s_mov_b32 s{sOoff}, s{sQoffn}")
    e(f"s_mov_b64 s[{sJ}:{sJ+1}], s[{sJ+4}:{sJ+5}]")
    e(f"s_mov_b64 s[{sJ+2}:{sJ+3}], s[{sJ+6}:{sJ+7}]")
    e(f"s_mov_b64 s[{sJ+4}:{sJ+5}], 0")
    e(f"s_mov_b64 s[{sJ+6}:{sJ+7}], 0")
    decode()
    e(f"s_and_b32 s{sCnt}, s{sD1}, 63")
    e(f"s_bfe_u32 s{sRem}, s{sD1}, 0x60006")
    e(f"s_mov_b32 s{sOff}, s{sD0}")
    e(f"s_add_u32 s{sOffK}, s{sD0}, {2*TILEB}")
    if opts["stamp"]: e(f"s_add_u32 s{sN}, s{sCnt}, 2")
    stamp(0)
    e(f"s_bfe_u32 s{sT0}, s{sD1}, 0x30018")
    if opts["stamp"]:
        e(f"s_memrealtime s[{sST+10}:{sST+11}]")
        e(f"s_lshl_b32 s98, s{sT0}, 8"); e(f"s_add_u32 s98, s98, s{sN}")
        e("s_waitcnt lgkmcnt(0)")
        if opts["stamp"] == 2:
            e(f"s_mov_b32 s97, s{sST}"); e(f"s_mov_b32 s99, s{sST+10}")
    order = sorted(TS, key=lambda t: (t != 4, -t))
    if RAMP:
        e(f"s_cmp_gt_u32 s{sFirst}, s{sSafe}")
        e(f"s_cselect_b32 s{sT0+1}, s{sT0}, 0")
        for T in order:
            if T in FIRSTS:
                e(f"s_cmp_eq_u32 s{sT0+1}, {T}")
                e(f"s_cbranch_scc1 Lramp{T}")
    for T in order[1:]:
        e(f"s_cmp_eq_u32 s{sT0}, {T}")
        e(f"s_cbranch_scc1 Lpro{T}")
    global NRS
    for T in order:
        NRS = NRS5 if T == 5 else 5
        prologue(T)
        if not T2: epilogue(T)
    lab("Ldone")
    if opts.get("spin"):
        if opts.get("gref"):
            e("s_mov_b32 s92, s90"); e("s_mov_b32 s93, s91"); e("s_mov_b32 s94, 256"); e("s_mov_b32 s95, 0x20000")
            e("s_not_b32 s96, s100"); e("v_mov_b32 v0, s96"); e("v_mov_b32 v2, 0")
            e("s_mov_b64 exec, 1")
            e(f"s_cmp_lg_u32 s{sW}, 0"); e("s_cbranch_scc1 Lsp0")
            e("buffer_atomic_umax v0, v2, s[92:95], 0 offen")
            lab("Lsp0")
            e("s_memrealtime s[88:89]"); e("s_waitcnt lgkmcnt(0)"); e("s_sub_u32 s88, s88, s100")
            e(f"s_cmp_lt_u32 s88, 4500"); e("s_cbranch_scc1 Lsp0")
            e("buffer_load_dword v1, v2, s[92:95], 0 offen sc0 sc1")
            e("s_waitcnt vmcnt(0)")
            e("v_readfirstlane_b32 s96, v1"); e("s_nop 3"); e("s_not_b32 s100, s96")
        if opts.get("enc"):
            e("s_waitcnt vmcnt(0)"); e("s_memrealtime s[80:81]"); e("s_waitcnt lgkmcnt(0)")
            a, b = {1: (100, 76), 2: (76, 78), 3: (78, 80), 4: (100, 80)}[opts["enc"]]
            e(f"s_sub_u32 s82, s{b}, s{a}")
            e(f"s_mul_i32 s82, s82, {opts.get('mul', 4)}")
            e("s_lshr_b32 s83, s2, 4"); e(f"s_lshr_b32 s83, {opts.get('encs', 0xffff)}, s83"); e("s_bitcmp1_b32 s83, 0")
            e("s_cselect_b32 s82, s82, 0")
            e(f"s_add_u32 s82, s82, {opts['spin']}")
        lab("Lspin")
        e("s_memrealtime s[88:89]")
        e("s_waitcnt lgkmcnt(0)")
        e("s_sub_u32 s88, s88, s100")
        e("s_cmp_lt_u32 s88, s82" if opts.get("enc") else f"s_cmp_lt_u32 s88, {opts['spin']}")
        e("s_cbranch_scc1 Lspin")
    if LIGHT:
        e("s_waitcnt vmcnt(0)")
        e("s_memrealtime s[88:89]")
        e("s_mov_b32 s92, s90"); e("s_mov_b32 s93, s91"); e("s_mov_b32 s94, 0x100000"); e("s_mov_b32 s95, 0x20000")
        e(f"s_lshl_b32 s96, s2, 2"); e(f"s_add_u32 s96, s96, s{sW}"); e("s_lshl_b32 s96, s96, 3")
        e("s_waitcnt lgkmcnt(0)")
        e("v_mov_b32 v0, s100"); e("v_mov_b32 v1, s88"); e("v_mov_b32 v2, 0")
        e("s_mov_b64 exec, 1")
        e("buffer_store_dwordx2 v[0:1], v2, s[92:95], s96 offen")
    if opts["stamp"]:
        e("s_waitcnt vmcnt(0)")
        stamp(0)
        e(f"s_memrealtime s[{sST+12}:{sST+13}]")
        e(f"s_mov_b32 s{sST+10}, s100")
        e("s_getreg_b32 s98, hwreg(HW_REG_HW_ID)")
        stamp_store(True)
    lab("Lend")
    e("s_endpgm")

    lab("Lcold")
    lab("Lrestart")
    e("s_waitcnt vmcnt(0) lgkmcnt(0)")
    e("s_barrier")
    e(f"s_mov_b64 s[{sJ+4}:{sJ+5}], s[{sJ}:{sJ+1}]")
    e(f"s_mov_b64 s[{sJ+6}:{sJ+7}], s[{sJ+2}:{sJ+3}]")
    e(f"s_mov_b64 s[{sD0n}:{sD1n}], s[{sD0}:{sD1}]")
    e(f"s_mov_b32 s{sNRn}, s{sOut+2}")
    e(f"s_mov_b32 s{sLastn}, s{sLast}")
    e(f"s_mov_b32 s{sSafe}, 1")
    e(f"s_mov_b32 s{sFirst}, 1")
    decode()
    emit(next_loads(1)[0] + next_loads(1)[1])
    e("s_branch Lstart")
    for T in order:
        NRS = NRS5 if T == 5 else 5
        safe_loop(T)
    NRS = NRS5
    for tag, buf in STUBS:
        lab(f"Lrare_{tag}")
        e(f"s_call_b64 s[{sRet}:{sRet+1}], Lresc_{buf}")
        e(f"s_branch Lback_{tag}")
    for b in range(2):
        lab(f"Lresc_{b}")
        e("s_nop 15")
        for t in range(TM):
            s, s2 = sreg(b, t), sreg(b ^ 1, t)
            dl, al = vX, (vX + 8 + t if t < 4 else vX + 2)
            e(f"v_max3_f32 v{dl}, v{s}, v{s+1}, v{s+2}")
            e(f"v_max3_f32 v{dl}, v{dl}, v{s+3}, v{s+4}")
            e(f"v_max3_f32 v{dl}, v{dl}, v{s+5}, v{s+6}")
            if RS:
                e(f"v_max_f32 v{dl}, v{dl}, v{s+7}")
                e(f"v_add_f32 v{dl}, s{sThr}, v{dl}")
                e(f"v_max_f32 v{dl}, 0, v{dl}")
            else:
                e(f"v_max3_f32 v{dl}, v{dl}, v{s+7}, 0")
            emit(xlane("v_max_f32", [dl], vX + 1))
            e(f"v_sub_f32 v{al}, 0, v{dl}")
            e(f"v_exp_f32 v{al}, v{al}")
            for i in range(8):
                e(f"v_sub_f32 v{s+i}, v{s+i}, v{dl}")
                e(f"v_sub_f32 v{s2+i}, v{s2+i}, v{dl}")
            for i in range(4):
                e(f"v_sub_f32 v{vNM+4*t+i}, v{vNM+4*t+i}, v{dl}")
            if not RS:
                e(f"v_mul_f32 v{vL+t}, v{vL+t}, v{al}")
            if RS and t >= NRS:
                e(f"v_mul_f32 v{vL4+2*(t-3)+1}, v{vL4+2*(t-3)+1}, v{al}")
            elif RS and t == 4:
                for i in range(4): e(f"v_mul_f32 v{vL4+i}, v{vL4+i}, v{al}")
            if RS and t < 4:
                for i in range(4):
                    e(f"v_accvgpr_read_b32 v{vX+1}, a{aL+4*t+i}")
                    e(f"v_mul_f32 v{vX+1}, v{vX+1}, v{al}")
                    e(f"v_accvgpr_write_b32 a{aL+4*t+i}, v{vX+1}")
        emit(SM(TM, b, False).rest())
        if b == 0: e("s_branch LrescO")
    lab("LrescO")
    for t in range(TM):
        for i in range(0, 32, 4):
            al = vX + 8 + t if t < 4 else vX + 2
            for k in range(4): e(f"v_accvgpr_read_b32 v{vX+4+k}, a{aO+32*t+i+k}")
            for k in range(4): e(f"v_mul_f32 v{vX+4+k}, v{vX+4+k}, v{al}")
            for k in range(4): e(f"v_accvgpr_write_b32 a{aO+32*t+i+k}, v{vX+4+k}")
    e("s_nop 1")
    e(f"s_setpc_b64 s[{sRet}:{sRet+1}]")

    e(".p2align 5")
    L.append(".type Ltab,@object")
    lab("Ltab")
    for ent in TAB:
        e(".long " + ", ".join(str(x) for x in ent))
    L.append('.section .rodata,"a"')
    L.append(".p2align 6")
    L.append(f".amdhsa_kernel {NAME}_kernel")
    L.append("  .amdhsa_next_free_vgpr 512")
    L.append("  .amdhsa_next_free_sgpr 102")
    L.append("  .amdhsa_accum_offset 256")
    L.append("  .amdhsa_group_segment_fixed_size 0")
    L.append("  .amdhsa_kernarg_size 56")
    L.append("  .amdhsa_user_sgpr_count 2")
    L.append("  .amdhsa_user_sgpr_kernarg_segment_ptr 1")
    L.append("  .amdhsa_system_sgpr_workgroup_id_x 1")
    L.append(".end_amdhsa_kernel")

gen()
open(sys.argv[1], "w").write("\n".join(L) + "\n")
```
